```python
import torch

def _softmax(x, axis=-1):
    return torch.softmax(x, dim=axis)

def _gelu(x):
    return torch.nn.functional.gelu(x, approximate='tanh')

def _silu(x):
    return torch.nn.functional.silu(x)

def _sigmoid(x):
    return torch.sigmoid(x)

def _layernorm(x, axis=-1, eps=1e-05):
    m = x.mean(dim=axis, keepdim=True)
    v = x.var(dim=axis, keepdim=True, unbiased=False)
    return (x - m) / torch.sqrt(v + eps)

def _scatter_add(tgt, idx, src, axis=0):
    return tgt.clone().index_add_(axis, idx, src)

def _segment_sum(src, seg, n):
    out = torch.zeros((n,) + src.shape[1:], dtype=src.dtype)
    return out.index_add_(0, seg, src)

def _pad(x, pw):
    flat = tuple((v for pair in reversed(pw) for v in pair))
    return torch.nn.functional.pad(x, flat)
kernel_name = 'adaLN_cond__sliding_block__glu_gated_reglu__prompt'

def setup_inputs():

    _w = lambda a: (lambda t: t.to(torch.bfloat16) if t.is_floating_point() else t)(torch.as_tensor(a))

    def _A_setup():
        B, S, D = (1, 2048, 448)
        return {'x': _w((lambda *s: torch.randn(*s, dtype=torch.bfloat16) * 0.05)(B, S, D)), 'wqkv': _w((lambda *s: torch.randn(*s, dtype=torch.bfloat16) * 0.05)(D, 3 * D)), 'wo': _w((lambda *s: torch.randn(*s, dtype=torch.bfloat16) * 0.05)(D, D))}
    _A_in = _A_setup()

    def _B_setup():
        B, S, D, F = (1, 2048, 448, 1792)
        return {'x': _w((lambda *s: torch.randn(*s, dtype=torch.bfloat16) * 0.05)(B, S, D)), 'W_gate': _w((lambda *s: torch.randn(*s, dtype=torch.bfloat16) * 0.8)(D, F) * (2.0 / D) ** 0.5), 'W_up': _w((lambda *s: torch.randn(*s, dtype=torch.bfloat16) * 0.8)(D, F) * (2.0 / D) ** 0.5), 'W_down': _w((lambda *s: torch.randn(*s, dtype=torch.bfloat16) * 0.8)(F, D) * (1.0 / F) ** 0.5)}
    _B_in = _B_setup()
    return {'A_x': _A_in['x'], 'A_wqkv': _A_in['wqkv'], 'A_wo': _A_in['wo'], 'B_x': _B_in['x'], 'B_W_gate': _B_in['W_gate'], 'B_W_up': _B_in['W_up'], 'B_W_down': _B_in['W_down'], 'c': _w((lambda *s: torch.randn(*s, dtype=torch.bfloat16) * 0.1)(1, 448) * 8.0), 'w_mod': _w((lambda *s: torch.randn(*s, dtype=torch.bfloat16) * 0.1)(448, 6 * 448) * 448 ** (-0.5) * 8.0)}

def reference(A_x, A_wqkv, A_wo, B_x, B_W_gate, B_W_up, B_W_down, c, w_mod):

    def _A_ref(x, wqkv, wo):
        B, S, D = x.shape
        H = 16
        Dh = D // H
        W = 256
        qkv = (lambda x, *d: x.permute(*d))((x @ wqkv).reshape(B, S, 3, H, Dh), 2, 0, 3, 1, 4)
        q, k, v = (qkv[0], qkv[1], qkv[2])
        scores = torch.einsum('bhqd,bhkd->bhqk', q, k) * Dh ** (-0.5)
        idx = torch.arange(S)
        mask = (idx[:, None] - idx[None, :] >= 0) & (idx[:, None] - idx[None, :] < W)
        scores = torch.where(mask[None, None], scores, -1000000000.0)
        p = _softmax(scores, axis=-1)
        o = torch.einsum('bhqk,bhkd->bhqd', p, v)
        return (lambda x, *d: x.permute(*d))(o, 0, 2, 1, 3).reshape(B, S, D) @ wo

    def _B_ref(x, W_gate, W_up, W_down):
        gate = torch.einsum('bsd,df->bsf', x, W_gate)
        up = torch.einsum('bsd,df->bsf', x, W_up)
        gate = gate * (lambda x, dt: x.to(dt))(gate > 0, gate.dtype)
        h = gate * up
        return torch.einsum('bsf,fd->bsd', h, W_down)
    x = A_x
    mod = (_silu(c) @ w_mod).reshape(c.shape[0], 6, 1, -1)
    sa, ca, ga, sb, cb, gb = (mod[:, 0].clone(), mod[:, 1].clone(), mod[:, 2].clone(), mod[:, 3].clone(), mod[:, 4].clone(), mod[:, 5].clone())
    h = _layernorm(x, axis=-1) * (1 + ca) + sa
    x = x + ga * _A_ref(h, A_wqkv, A_wo)
    h = _layernorm(x, axis=-1) * (1 + cb) + sb
    x = x + gb * _B_ref(h, B_W_gate, B_W_up, B_W_down)
    return x
```

```python
import re

TRANS = ("v_exp_f32", "v_log_f32", "v_rcp_f32", "v_rsq_f32", "v_sqrt_f32", "v_sin_f32", "v_cos_f32")
RMW_VALU = ("v_fmac_f32", "v_dot2c_f32_bf16", "v_pk_fmac")


def split_ops(s):
    out, depth, cur = [], 0, ""
    for ch in s:
        if ch in "[(":
            depth += 1
        if ch in "])":
            depth -= 1
        if ch == "," and depth == 0:
            out.append(cur.strip())
            cur = ""
        else:
            cur += ch
    if cur.strip():
        out.append(cur.strip())
    return out


def regs_of(tok):
    tok = tok.strip()
    tok = tok.split()[0] if tok else tok
    tok = tok.lstrip("-")
    m = re.fullmatch(r"abs\((.*)\)|\|(.*)\|", tok)
    if m:
        tok = m.group(1) or m.group(2)
    m = re.fullmatch(r"([vas])(\d+)", tok)
    if m:
        return {(m.group(1), int(m.group(2)))}
    m = re.fullmatch(r"([vas])\[(\d+):(\d+)\]", tok)
    if m:
        return {(m.group(1), i) for i in range(int(m.group(2)), int(m.group(3)) + 1)}
    if tok in ("vcc", "vcc_lo", "vcc_hi"):
        return {("x", "vcc")}
    if tok in ("exec", "exec_lo", "exec_hi"):
        return {("x", "exec")}
    if tok == "m0":
        return {("x", "m0")}
    return set()


class Ins:
    def __init__(self, text):
        self.text = text
        t = text.split(";")[0].strip()
        self.label = t[:-1] if t.endswith(":") else None
        self.op = ""
        self.kind = "other"
        self.rd, self.wr = set(), set()
        self.srcc, self.srcab, self.data = set(), set(), set()
        self.states = 1
        self.passes = 0
        self.target = None
        if not t or self.label or t.startswith("."):
            self.kind = "meta"
            self.states = 0
            return
        sp = t.split(None, 1)
        op = self.op = sp[0]
        ops = split_ops(sp[1]) if len(sp) > 1 else []
        base = re.sub(r"_(e32|e64|dpp|sdwa)$", "", op)
        self.base = base
        self.dpp = op.endswith("_dpp") or " row_" in t or "quad_perm" in t
        R = [regs_of(o) for o in ops]
        if op == "s_nop":
            self.kind = "nop"
            self.states = int(ops[0], 0) + 1
        elif op.startswith("s_cbranch") or op == "s_branch":
            self.kind = "branch"
            self.target = ops[0]
        elif op.startswith("v_mfma"):
            self.kind = "mfma"
            self.passes = 8 if "32x32x16" in op else 4
            self.wr = R[0]
            self.srcab = R[1] | R[2]
            self.srcc = R[3]
            self.rd = self.srcab | self.srcc
        elif op.startswith("v_"):
            self.kind = "valu"
            if base.startswith("v_cmp"):
                self.wr = R[0]
                self.rd = set().union(*R[1:])
            elif base.startswith("v_permlane"):
                self.wr = R[0] | R[1]
                self.rd = R[0] | R[1]
            elif base in ("v_add_co_u32", "v_sub_co_u32", "v_addc_co_u32"):
                self.wr = R[0] | R[1]
                self.rd = set().union(*R[2:])
            else:
                self.wr = R[0]
                self.rd = set().union(*R[1:]) if len(R) > 1 else set()
                if base.startswith(RMW_VALU) or self.dpp or base == "v_writelane_b32":
                    self.rd |= R[0]
        elif op.startswith("buffer_") or op.startswith("global_"):
            self.kind = "vmem"
            lds = re.search(r"\blds\b", t) is not None and op.startswith("buffer_load")
            self.lds_dma = lds or "_lds_" in op
            if op in ("buffer_wbl2", "buffer_inv"):
                pass
            elif self.lds_dma:
                self.rd = set().union(*R) | {("x", "m0")}
            elif "_load" in op:
                self.wr = R[0]
                self.rd = set().union(*R[1:])
            elif op.startswith("buffer_store"):
                self.rd = set().union(*R)
                if "x3" in op or "x4" in op:
                    self.data = R[0]
            elif op.startswith("global_store"):
                self.rd = set().union(*R)
                if "x3" in op or "x4" in op:
                    self.data = R[1]
            elif "atomic" in op:
                self.rd = set().union(*R)
                if " sc0" in t:
                    self.wr = R[0]
        elif op.startswith("ds_"):
            self.kind = "ds"
            if op.startswith("ds_read") or op.startswith("ds_bpermute") or op.startswith("ds_swizzle"):
                self.wr = R[0]
                self.rd = set().union(*R[1:])
            else:
                self.rd = set().union(*R)
        elif op.startswith("s_load") or op in ("s_memtime", "s_memrealtime"):
            self.kind = "smem"
            self.wr = R[0]
            self.rd = set().union(*R[1:]) if len(R) > 1 else set()
        elif op in ("s_waitcnt", "s_barrier", "s_endpgm", "s_sleep", "s_setprio"):
            self.kind = "other"
        elif op.startswith("s_"):
            self.kind = "salu"
            if op.startswith("s_cmp") or op.startswith("s_bitcmp"):
                self.rd = set().union(*R)
            else:
                self.wr = R[0] if R else set()
                self.rd = set().union(*R[1:]) if len(R) > 1 else set()
                if "saveexec" in op:
                    self.wr = self.wr | {("x", "exec")}
        else:
            raise ValueError("unknown instruction: " + text)


def vec(s):
    return {r for r in s if r[0] in "va"}


def scal(s):
    return {r for r in s if r[0] == "s" or r == ("x", "vcc")}


def need(p, c):
    n = 0
    if p.kind == "valu":
        w = vec(p.wr)
        if c.kind == "mfma" and w & c.rd:
            n = max(n, 2)
        if c.kind == "valu":
            if c.base in ("v_readlane_b32", "v_readfirstlane_b32") and w & c.rd:
                n = max(n, 1)
            if (c.dpp or c.base.startswith("v_permlane")) and w & c.rd:
                n = max(n, 2)
            if p.base in TRANS and c.base not in TRANS and w & c.rd:
                n = max(n, 1)
            if scal(p.wr) & c.rd:
                n = max(n, 4 if c.base in ("v_readlane_b32", "v_writelane_b32") else 2)
        if c.kind == "vmem" and scal(p.wr) & c.rd:
            n = max(n, 5)
        if c.kind in ("salu", "smem") and scal(p.wr) & c.rd:
            n = max(n, 1)
        if p.base in TRANS and c.kind in ("vmem", "ds") and w & c.rd:
            n = max(n, 1)
    if p.kind == "valu" and p.base.startswith("v_dot2") and c.kind in ("valu", "vmem", "ds", "mfma"):
        if vec(p.wr) & (c.rd | c.wr) and not (c.kind == "valu" and c.base == p.base):
            n = max(n, 3)
    if p.kind == "mfma":
        big = p.passes + 4
        if c.kind == "mfma":
            if p.wr & c.srcab:
                n = max(n, big)
            if p.wr & c.srcc and not (p.wr == c.srcc and p.passes == c.passes):
                n = max(n, p.passes + 2)
            if p.wr & c.wr and not (p.wr == c.srcc and p.passes == c.passes):
                n = max(n, p.passes + 2)
        if c.kind in ("valu", "vmem", "ds") and p.wr & (c.rd | c.wr):
            n = max(n, big)
        if c.kind == "valu" and p.srcc & c.wr:
            n = max(n, p.passes - 1)
        if c.kind in ("vmem", "ds") and p.srcc & c.wr:
            n = max(n, p.passes - 1)
    if p.kind == "salu" and ("x", "m0") in p.wr and c.kind == "vmem" and c.lds_dma:
        n = max(n, 1)
    if p.kind == "vmem" and p.data and p.data & c.wr:
        n = max(n, 2 if c.kind in ("valu", "mfma") else 1)
    return n


WINDOW = 20


def pad_hazards(lines):
    ins = [Ins(t) for t in lines]
    labels = {x.label: i for i, x in enumerate(ins) if x.label}
    back = {}
    for i, x in enumerate(ins):
        if x.kind == "branch" and x.target in labels and labels[x.target] < i:
            hist, age = [], 1
            for y in reversed(ins[max(0, i - 40):i]):
                if y.kind == "meta":
                    continue
                if age < WINDOW:
                    hist.append([y, age])
                age += y.states
            back.setdefault(x.target, []).extend(hist)
    out, hist, snaps = [], [], {}
    nops = 0
    for x in ins:
        if x.label:
            hist = hist + [list(h) for h in snaps.pop(x.label, [])] + [list(h) for h in back.get(x.label, [])]
        if x.kind == "meta":
            out.append(x.text)
            continue
        short = 0
        for p, age in hist:
            short = max(short, need(p, x) - age)
        if short > 0:
            nops += 1
            k = short
            while k > 0:
                step = min(k, 16)
                out.append(f"    s_nop {step - 1}")
                k -= step
            for h in hist:
                h[1] += short
        out.append(x.text)
        for h in hist:
            h[1] += x.states
        hist = [h for h in hist if h[1] < WINDOW]
        if x.kind in ("valu", "mfma", "salu", "vmem"):
            hist.append([x, 0])
        if x.kind == "branch":
            snaps.setdefault(x.target, []).extend([list(h) for h in hist])
            if x.op == "s_branch":
                hist = []
        if x.op == "s_endpgm":
            hist = []
    return out, nops


class Emit:
    def __init__(self):
        self.lines = []
        self.vm = []
        self.lg = []
        self.uid = 0

    def __call__(self, text, tag=None):
        for t in text.strip("\n").split("\n"):
            t = t.strip()
            if not t:
                continue
            if t.endswith(":") or t.startswith("."):
                self.lines.append(t)
                continue
            if t.startswith(";"):
                self.lines.append("    " + t)
                continue
            self.lines.append("    " + t)
            op = t.split()[0]
            if op.startswith("buffer_") or op.startswith("global_"):
                self.vm.append(tag)
            elif op.startswith("ds_"):
                self.lg.append(tag)
            elif op.startswith("s_load") or op in ("s_memtime", "s_memrealtime"):
                self.lg.append("smem")
            elif op == "s_waitcnt":
                m = re.search(r"vmcnt\((\d+)\)", t)
                if m:
                    n = int(m.group(1))
                    self.vm = self.vm[len(self.vm) - n:] if n else []
                m = re.search(r"lgkmcnt\((\d+)\)", t)
                if m:
                    n = int(m.group(1))
                    self.lg = self.lg[len(self.lg) - n:] if n else []

    def label(self, stem):
        self.uid += 1
        return f"L_{stem}_{self.uid}"

    def _count(self, q, tag):
        idx = [i for i, t in enumerate(q) if t == tag]
        return None if not idx else len(q) - 1 - idx[-1]

    def wait(self, vm=None, lg=None):
        parts = []
        if vm is not None:
            n = self._count(self.vm, vm)
            if n is not None:
                parts.append(f"vmcnt({min(n, 63)})")
        if lg is not None:
            n = self._count(self.lg, lg)
            if n is not None:
                assert "smem" not in self.lg or n == 0, "counted lgkm wait with scalar load outstanding"
                parts.append(f"lgkmcnt({min(n, 15)})")
        if parts:
            self("s_waitcnt " + " ".join(parts))

    def text(self):
        out, nops = pad_hazards(self.lines)
        return "\n".join(out) + "\n", nops
```

```python
import math
import struct
import sys

sys.path.insert(0, "work")
from emit import Emit

NAME = "adaLN_cond__sliding_block__glu_gated_reglu__prompt"

WS_EPOCH = 0x0
WS_XCC = 0x400
WS_FLH = 0x1000
WS_FLO = 0x2000
WS_FLZ = 0x3000
WS_FLD = 0x4000
WS_FLKV = 0x8000
WS_MODP = 0x10000
WS_STAT = 0x20000
WS_TS = 0x40000
WS_H = 0x100000
WS_O = 0x300000
WS_KV = 0x500000
WS_HID = 0x900000
WS_Z = 0x1000000
WS_SIZE = 0x1200000

L_CVEC = 0
L_GAB = 1792
L_STATX = 2304
L_MODR = 2560
L_WQ, L_WK, L_WV = 3584, 32256, 60928
L_KV = 56832
L_SCR = 89600
L_WO = 105984
L_PAD = 163328
L_WG, L_WU = 3584, 60928
L_STG = 118272
L_XA = 151040
L_X1 = 155136
L_RED = 3584
LDS_BYTES = 163840

SRD_X, SRD_WQKV, SRD_WO, SRD_WG, SRD_WU, SRD_WD = 4, 8, 12, 16, 20, 24
SRD_C, SRD_WM, SRD_OUT, SRD_DBG, SRD_WS = 28, 32, 36, 40, 44
sI, sR, sW, sH, sB, sT, sTAG, sFAST = "s48", "s49", "s50", "s51", "s52", "s53", "s54", "s55"
sA, sBt, sC, sD, sE = "s56", "s57", "s58", "s59", "s60"
sRB, sCG, sSPIN = "s61", "s62", "s63"
SMASK = 64
sHI, sHIp = "s[96:97]", 96
sTSp = 0
sADJ = "s3"

vL, vL16, vTS, vE = "v0", "v1", "v2", "v3"

SPIN_MAX = 1 << 17


def srd(n):
    return f"s[{n}:{n + 3}]"


def vr(n, k=4):
    return f"v[{n}:{n + k - 1}]" if k > 1 else f"v{n}"


def ar(n, k=4):
    return f"a[{n}:{n + k - 1}]" if k > 1 else f"a{n}"


def fbits(x):
    return "0x%08x" % struct.unpack("<I", struct.pack("<f", x))[0]


class Gen:
    def __init__(self, ts=False, stop_after=None, opts=None):
        self.e = Emit()
        self.ts = ts
        self.stop_after = stop_after
        self.o = dict(opts or {})
        self.nts = 0
        self.ts_names = []

    def stamp(self, name):
        if not self.ts:
            return
        e = self.e
        e(f"s_memrealtime s[{sTSp}:{sTSp + 1}]")
        e("s_waitcnt lgkmcnt(0)")
        e(f"v_writelane_b32 {vTS}, s{sTSp}, {self.nts}")
        self.ts_names.append(name)
        self.nts += 1

    def poll(self, voff, soff, vtmp, imm=0):
        e = self.e
        lp, dn = e.label("poll"), e.label("polled")
        e(f"s_mov_b32 {sSPIN}, 0")
        e(f"{lp}:")
        e(f"buffer_load_dword {vtmp}, {voff}, {srd(SRD_WS)}, {soff} offen offset:{imm} sc1")
        e(f"s_add_u32 {sSPIN}, {sSPIN}, 1")
        e(f"s_cmp_ge_u32 {sSPIN}, {SPIN_MAX}")
        e("s_waitcnt vmcnt(0)")
        e(f"s_cbranch_scc1 {dn}")
        e(f"v_cmp_ne_u32 vcc, {sTAG}, {vtmp}")
        e(f"s_cbranch_vccnz {lp}")
        e(f"{dn}:")

    def acquire(self):
        e = self.e
        sk = e.label("acq")
        e(f"s_cmp_lg_u32 {sFAST}, 0")
        e(f"s_cbranch_scc1 {sk}")
        e("buffer_inv sc1")
        e("s_waitcnt vmcnt(0)")
        e(f"{sk}:")

    def publish(self, soff, vtmp, local=True):
        e = self.e
        e("s_waitcnt vmcnt(0)")
        e(f"v_mov_b32 {vtmp}, {sTAG}")
        if local:
            slow, dn = e.label("slowpub"), e.label("pub")
            e(f"s_cmp_lg_u32 {sFAST}, 0")
            e(f"s_cbranch_scc0 {slow}")
            e("s_mov_b64 exec, 1")
            e(f"buffer_store_dword {vtmp}, off, {srd(SRD_WS)}, {soff}")
            e(f"s_branch {dn}")
            e(f"{slow}:")
            e("buffer_wbl2 sc1")
            e("s_waitcnt vmcnt(0)")
            e("s_mov_b64 exec, 1")
            e(f"buffer_store_dword {vtmp}, off, {srd(SRD_WS)}, {soff} sc1")
            e(f"{dn}:")
        else:
            e("s_mov_b64 exec, 1")
            e(f"buffer_store_dword {vtmp}, off, {srd(SRD_WS)}, {soff} sc1")
        e("s_mov_b64 exec, -1")
        e.vm = ["flag"]

    def round_bf16(self, regs, tmp):
        e = self.e
        for a, b in zip(regs[::2], regs[1::2]):
            e(f"v_cvt_pk_bf16_f32 {tmp}, {a}, {b}")
            e(f"v_lshlrev_b32 {a}, 16, {tmp}")
            e(f"v_and_b32 {b}, 0xffff0000, {tmp}")

    def gather_mod(self, voff, g0, t0):
        e = self.e
        lp, dn = e.label("gath"), e.label("gathd")
        e(f"s_mov_b32 {sSPIN}, 0")
        e(f"s_mov_b32 {sD}, 0x0c0c0400")
        e(f"s_mov_b32 {sE}, 0x04000c0c")
        e(f"{lp}:")
        for q in range(4):
            e(f"s_mov_b32 {sA}, {WS_MODP + q * 10752}")
            e(f"buffer_load_dwordx4 {vr(g0 + 4 * q)}, {voff}, {srd(SRD_WS)}, {sA} offen sc1")
        e(f"s_add_u32 {sSPIN}, {sSPIN}, 1")
        e(f"s_cmp_ge_u32 {sSPIN}, {SPIN_MAX}")
        e("s_waitcnt vmcnt(0)")
        e(f"s_cbranch_scc1 {dn}")
        for q in range(4):
            b = g0 + 4 * q
            e(f"v_perm_b32 v{t0}, v{b + 1}, v{b}, {sD}")
            e(f"v_perm_b32 v{t0 + 1}, v{b + 3}, v{b + 2}, {sE}")
            e(f"v_or_b32 v{t0}, v{t0}, v{t0 + 1}")
            e(f"v_xor_b32 v{t0 + 2 + q}, {sTAG}, v{t0}")
        e(f"v_or3_b32 v{t0}, v{t0 + 2}, v{t0 + 3}, v{t0 + 4}")
        e(f"v_or_b32 v{t0}, v{t0}, v{t0 + 5}")
        e(f"v_cmp_ne_u32 vcc, 0, v{t0}")
        e(f"s_cbranch_vccnz {lp}")
        e(f"{dn}:")
        for k in range(16):
            e(f"v_and_b32 v{g0 + k}, 0xffffff00, v{g0 + k}")
        for k in range(4):
            e(f"v_add_f32 v{g0 + k}, v{g0 + k}, v{g0 + 4 + k}")
            e(f"v_add_f32 v{g0 + 8 + k}, v{g0 + 8 + k}, v{g0 + 12 + k}")
        for k in range(4):
            e(f"v_add_f32 v{g0 + k}, v{g0 + k}, v{g0 + 8 + k}")
        self.round_bf16([f"v{g0 + k}" for k in range(4)], f"v{t0}")

    def dma(self, voff, srdn, soff, lds, tag, mods=""):
        e = self.e
        e(f"s_mov_b32 m0, {lds}")
        e(f"buffer_load_dwordx4 {voff}, {srd(srdn)}, {soff} offen {mods} lds", tag)

    def entry(self):
        e = self.e
        e("s_cmp_ge_u32 s2, 256")
        e("s_cbranch_scc1 L_end")
        e("s_load_dwordx16 s[64:79], s[0:1], 0")
        e("s_load_dwordx8 s[80:87], s[0:1], 64")
        if self.ts:
            e(f"v_mov_b32 {vTS}, 0")
        self.stamp("start")
        e(f"v_lshrrev_b32 v4, 6, v0")
        e(f"v_and_b32 {vL}, 63, v0")
        e(f"v_readfirstlane_b32 {sW}, v4")
        e(f"v_lshlrev_b32 {vL16}, 4, {vL}")
        e(f"s_and_b32 {sI}, s2, 7")
        e(f"s_lshr_b32 {sR}, s2, 3")
        e(f"s_lshr_b32 {sH}, {sR}, 1")
        e(f"s_and_b32 {sB}, {sR}, 1")
        e(f"s_lshl_b32 {sT}, {sI}, 1")
        e(f"s_add_u32 {sT}, {sT}, {sB}")
        e(f"s_lshl_b32 {sT}, {sT}, 2")
        e(f"s_add_u32 {sT}, {sT}, {sW}")
        e(f"s_mul_i32 {sRB}, {sR}, 37")
        e(f"s_lshr_b32 {sRB}, {sRB}, 8")
        e(f"s_mul_i32 {sA}, {sRB}, 7")
        e(f"s_sub_u32 {sCG}, {sR}, {sA}")
        e(f"s_cmp_eq_u32 {sH}, 15")
        e(f"s_cselect_b32 {sADJ}, 8, 0")
        e(f"s_mov_b32 s{sHIp}, 0")
        e(f"s_mov_b32 s{sHIp + 1}, -1")
        sizes = {SRD_X: 1835008, SRD_WQKV: 1204224, SRD_WO: 401408, SRD_WG: 1605632, SRD_WU: 1605632, SRD_WD: 1605632,
                 SRD_C: 896, SRD_WM: 2408448, SRD_OUT: 1835008, SRD_DBG: 256, SRD_WS: WS_SIZE}
        for n, sz in sizes.items():
            e(f"s_mov_b32 s{n + 2}, {sz}")
            e(f"s_mov_b32 s{n + 3}, 0x00020000")
        e("s_waitcnt lgkmcnt(0)")
        src = {SRD_WS: 86, SRD_C: 78, SRD_WM: 80, SRD_X: 64, SRD_WQKV: 66, SRD_WO: 68, SRD_WG: 72, SRD_WU: 74, SRD_WD: 76,
               SRD_OUT: 82, SRD_DBG: 84}
        for n, s in src.items():
            e(f"s_mov_b64 s[{n}:{n + 1}], s[{s}:{s + 1}]")

    def wqkv_dma(self, lo, hi):
        e = self.e
        for n in range(lo, hi):
            mat, kk = divmod(n, 7)
            gcol = (896, 1792, 0)[mat]
            lbase = (L_WK, L_WV, L_WQ)[mat]
            e(f"s_add_u32 {sA}, {sC}, {gcol + kk * 4 * 16 * 2688}")
            e(f"s_add_u32 {sBt}, {sD}, {lbase + kk * 4096}")
            self.dma("v10", SRD_WQKV, sA, sBt, "wqkv")

    def front(self):
        e = self.e
        e(f"buffer_load_dword {vE}, off, {srd(SRD_WS)}, 0 sc1", "E")
        e(f"s_cmp_ge_u32 {sR}, 21")
        e("s_cbranch_scc1 L_nomod1")
        e(f"s_and_b32 {sA}, {sI}, 3")
        e(f"s_mul_i32 {sA}, {sA}, 112")
        e(f"s_mul_i32 {sBt}, {sW}, 28")
        e(f"s_add_u32 {sA}, {sA}, {sBt}")
        e(f"v_lshrrev_b32 v4, 4, {vL}")
        e(f"v_and_b32 v5, 15, {vL}")
        e(f"v_lshl_add_u32 v6, v5, 2, v4")
        e(f"v_add_u32 v6, {sA}, v6")
        e(f"v_lshlrev_b32 v6, 1, v6")
        e(f"buffer_load_ushort v16, v6, {srd(SRD_C)}, 0 offen", "c")
        e(f"v_mul_u32_u24 v7, 5376, v4")
        e(f"v_lshl_add_u32 v7, v5, 3, v7")
        e(f"s_lshr_b32 {sBt}, {sI}, 2")
        e(f"s_lshl_b32 {sC}, {sR}, 1")
        e(f"s_add_u32 {sBt}, {sBt}, {sC}")
        e(f"s_mul_i32 {sA}, {sA}, 5376")
        e(f"s_lshl_b32 {sC}, {sBt}, 7")
        e(f"s_add_u32 {sA}, {sA}, {sC}")
        for j in range(7):
            e(f"buffer_load_dwordx2 {vr(18 + 2 * j, 2)}, v7, {srd(SRD_WM)}, {sA} offen", "wm")
            if j < 6:
                e(f"s_add_u32 {sA}, {sA}, 21504")
        e("L_nomod1:")
        e(f"v_and_b32 v4, 7, {vL}")
        e(f"v_lshrrev_b32 v5, 3, {vL}")
        e(f"v_mul_u32_u24 v8, 896, v4")
        e(f"v_lshl_add_u32 v8, v5, 4, v8")
        e(f"v_cmp_gt_u32 vcc, 6, v5")
        e(f"v_add_u32 v9, 128, v8")
        e(f"v_mov_b32 v11, 0x7ffffff0")
        e(f"v_cndmask_b32 v9, v11, v9, vcc")
        e(f"s_lshl_b32 {sA}, {sI}, 5")
        e(f"s_add_u32 {sA}, {sA}, {sR}")
        e(f"s_mul_i32 {sA}, {sA}, 7168")
        e(f"s_mul_i32 {sBt}, {sW}, 224")
        e(f"s_add_u32 {sA}, {sA}, {sBt}")
        e(f"buffer_load_dwordx4 v[32:35], v8, {srd(SRD_X)}, {sA} offen", "x")
        e(f"buffer_load_dwordx4 v[36:39], v9, {srd(SRD_X)}, {sA} offen", "x")
        if self.o.get("codepf", 1):
            e("s_getpc_b64 s[88:89]")
            e("L_pc:")
            e("s_sub_u32 s88, s88, L_pc-" + NAME + "_kernel")
            e("s_subb_u32 s89, s89, 0")
            e(f"s_lshl_b32 {sA}, {sR}, 2")
            e(f"s_add_u32 {sA}, {sA}, {sW}")
            e(f"v_lshl_add_u32 v12, {vL}, 7, {sA}")
            e(f"v_lshlrev_b32 v12, 7, v12")
            e(f"v_min_u32 v12, L_end-" + NAME + "_kernel, v12")
            e("s_mov_b64 exec, 15")
            e("global_load_dword v13, v12, s[88:89]", "pf")
            e("s_mov_b64 exec, -1")
        e(f"v_lshrrev_b32 v10, 2, {vL}")
        e(f"v_mul_u32_u24 v10, 2688, v10")
        e(f"v_and_b32 v11, 3, {vL}")
        e(f"v_lshl_add_u32 v10, v11, 4, v10")
        e(f"s_mul_i32 {sC}, {sH}, 56")
        e(f"s_sub_u32 {sC}, {sC}, {sADJ}")
        e(f"s_mul_i32 {sA}, {sW}, {16 * 2688}")
        e(f"s_add_u32 {sC}, {sC}, {sA}")
        e(f"s_lshl_b32 {sD}, {sW}, 10")
        n_early = self.o.get("early_w", 7)
        self.wqkv_dma(0, n_early)
        full = list(e.vm)
        e.vm = [t for t in full if t not in ("c", "wm")]
        e.wait(vm="E")
        e.vm = full[1:]
        e(f"v_readfirstlane_b32 {sTAG}, {vE}")
        e(f"s_mul_i32 {sTAG}, {sTAG}, 1664525")
        e(f"s_add_u32 {sTAG}, {sTAG}, 1013904223")
        common = list(e.vm)
        e(f"s_cmp_lg_u32 {sW}, 3")
        e("s_cbranch_scc1 L_noxcc")
        e(f"s_getreg_b32 {sA}, hwreg(HW_REG_XCC_ID, 0, 4)")
        e(f"v_mov_b32 v14, {sTAG}")
        e(f"v_mov_b32 v15, {sA}")
        e(f"s_lshl_b32 {sA}, {sI}, 5")
        e(f"s_add_u32 {sA}, {sA}, {sR}")
        e(f"s_lshl_b32 {sA}, {sA}, 3")
        e(f"v_mov_b32 {vE}, 1")
        e("s_mov_b64 exec, 1")
        e(f"buffer_store_dwordx2 v[14:15], off, {srd(SRD_WS)}, {sA} offset:{WS_XCC} sc1")
        e(f"buffer_atomic_add {vE}, off, {srd(SRD_DBG)}, 0 sc0 sc1")
        e("s_mov_b64 exec, -1")
        e("L_noxcc:")
        e.vm = list(common)
        self.stamp("tag")
        e(f"s_cmp_ge_u32 {sR}, 21")
        e("s_cbranch_scc1 L_nomod2")
        e.wait(vm="c")
        e(f"v_lshlrev_b32 v16, 16, v16")
        e(f"v_mul_f32 v17, {fbits(-math.log2(math.e))}, v16")
        e("v_exp_f32 v17, v17")
        e("v_add_f32 v17, 1.0, v17")
        e("v_rcp_f32 v17, v17")
        e("v_mul_f32 v16, v16, v17")
        e("v_cvt_pk_bf16_f32 v16, v16, v16")
        e("v_lshlrev_b32 v16, 16, v16")
        for k in range(4):
            e(f"v_mov_b32 v{40 + k}, 0")
        e.wait(vm="wm")
        for j in range(7):
            a, b = 18 + 2 * j, 19 + 2 * j
            e(f"v_lshlrev_b32 v44, 16, v{a}")
            e(f"v_and_b32 v45, 0xffff0000, v{a}")
            e(f"v_lshlrev_b32 v46, 16, v{b}")
            e(f"v_and_b32 v47, 0xffff0000, v{b}")
            for k in range(4):
                e(f"v_fmac_f32_dpp v{40 + k}, v16, v{44 + k} row_newbcast:{j} row_mask:0xf bank_mask:0xf")
        e("v_permlane16_swap_b32 v40, v41")
        e("v_permlane16_swap_b32 v42, v43")
        e("v_add_f32 v40, v40, v41")
        e("v_add_f32 v42, v42, v43")
        e("v_permlane32_swap_b32 v40, v42")
        e("v_add_f32 v40, v40, v42")
        e(f"v_lshrrev_b32 v4, 4, {vL}")
        e(f"v_and_b32 v5, 15, {vL}")
        e(f"v_lshl_add_u32 v5, v5, 2, v4")
        e(f"s_lshl_b32 {sA}, {sW}, 8")
        e(f"v_lshl_add_u32 v5, v5, 2, {sA}")
        e(f"ds_write_b32 v5, v40 offset:{L_MODR}")
        e("s_waitcnt lgkmcnt(0)")
        e("s_barrier")
        e(f"s_cmp_lg_u32 {sW}, 0")
        e("s_cbranch_scc1 L_nomod2")
        e("s_mov_b64 exec, 0xffff")
        for k in range(4):
            e(f"ds_read_b128 {vr(40 + 4 * k)}, {vL16} offset:{L_MODR + 256 * k}")
        e(f"s_and_b32 {sA}, {sI}, 3")
        e(f"s_mul_i32 {sA}, {sA}, 10752")
        e(f"s_lshr_b32 {sBt}, {sI}, 2")
        e(f"s_lshl_b32 {sE}, {sR}, 1")
        e(f"s_add_u32 {sBt}, {sBt}, {sE}")
        e(f"s_lshl_b32 {sBt}, {sBt}, 8")
        e(f"s_add_u32 {sA}, {sA}, {sBt}")
        e(f"s_add_u32 {sA}, {sA}, {WS_MODP}")
        e("v_mov_b32 v5, 0xff")
        e("s_waitcnt lgkmcnt(0)")
        for k in range(4):
            e(f"v_add_f32 v{40 + k}, v{40 + k}, v{44 + k}")
            e(f"v_add_f32 v{48 + k}, v{48 + k}, v{52 + k}")
        for k in range(4):
            e(f"v_add_f32 v{40 + k}, v{40 + k}, v{48 + k}")
            e(f"s_lshr_b32 {sBt}, {sTAG}, {8 * k}")
            e(f"v_bfi_b32 v{40 + k}, v5, {sBt}, v{40 + k}")
        e(f"buffer_store_dwordx4 v[40:43], {vL16}, {srd(SRD_WS)}, {sA} offen sc1")
        e("s_mov_b64 exec, -1")
        e("L_nomod2:")
        e.vm = list(common)
        self.stamp("modpub")
        e.wait(vm="x")
        for k in range(8):
            e(f"v_lshlrev_b32 v{48 + 2 * k}, 16, v{32 + k}")
            e(f"v_and_b32 v{49 + 2 * k}, 0xffff0000, v{32 + k}")
        e("v_add_f32 v4, v48, v49")
        e("v_add_f32 v5, v50, v51")
        for k in range(4, 16, 2):
            e(f"v_add_f32 v4, v4, v{48 + k}")
            e(f"v_add_f32 v5, v5, v{49 + k}")
        e("v_add_f32 v4, v4, v5")
        self.reduce_hi3("v4", "v5")
        e(f"v_mul_f32 v6, {fbits(1.0 / 112)}, v4")
        e(f"v_lshrrev_b32 v5, 3, {vL}")
        e(f"v_cmp_gt_u32 s[90:91], 6, v5")
        e("v_mov_b32 v7, 0")
        e("v_mov_b32 v12, 0")
        for k in range(8):
            e(f"v_sub_f32 v5, v{48 + k}, v6")
            e(f"v_sub_f32 v11, v{56 + k}, v6")
            e("v_fmac_f32 v7, v5, v5")
            e("v_fmac_f32 v12, v11, v11")
        e("v_cndmask_b32 v12, 0, v12, s[90:91]")
        e("v_add_f32 v5, v7, v12")
        self.reduce_hi3("v5", "v7")
        e(f"s_lshl_b32 {sA}, {sW}, 6")
        e(f"v_and_b32 v6, 7, {vL}")
        e(f"v_lshlrev_b32 v6, 3, v6")
        e(f"v_add_u32 v7, {sA}, v6")
        e(f"ds_write_b64 v7, v[4:5] offset:{L_STATX}")
        e("v_mov_b32 v14, 0")
        e("v_mov_b32 v15, 0")
        e(f"v_lshlrev_b32 v7, 3, {vL}")
        e(f"v_add_u32 v7, {L_PAD}, v7")
        e(f"ds_write_b64 v7, v[14:15]")
        e("s_waitcnt lgkmcnt(0)")
        e("s_barrier")
        for k in range(4):
            e(f"ds_read_b64 {vr(16 + 2 * k, 2)}, v6 offset:{L_STATX + 64 * k}")
        e(f"s_mul_i32 {sC}, {sH}, 56")
        e(f"s_sub_u32 {sC}, {sC}, {sADJ}")
        e(f"s_mul_i32 {sA}, {sW}, {16 * 2688}")
        e(f"s_add_u32 {sC}, {sC}, {sA}")
        e(f"s_lshl_b32 {sD}, {sW}, 10")
        self.wqkv_dma(n_early, 21)
        e("s_waitcnt lgkmcnt(0)")
        e("v_add_f32 v4, v16, v18")
        e("v_add_f32 v5, v20, v22")
        e("v_add_f32 v4, v4, v5")
        e(f"v_mul_f32 v4, {fbits(1.0 / 448)}, v4")
        e("v_add_f32 v5, v17, v19")
        e("v_add_f32 v7, v21, v23")
        e("v_add_f32 v5, v5, v7")
        e(f"v_mov_b32 v12, {fbits(1.0 / 112)}")
        e("v_mov_b32 v7, 0")
        for k in range(4):
            e(f"v_fma_f32 v11, v{16 + 2 * k}, v12, -v4")
            e("v_fmac_f32 v7, v11, v11")
        e(f"v_mul_f32 v7, {fbits(112.0)}, v7")
        e("v_add_f32 v5, v5, v7")
        e(f"v_mul_f32 v5, {fbits(1.0 / 448)}, v5")
        self.round_bf16(["v4", "v5"], "v7")
        e(f"v_add_f32 v5, {fbits(1e-5)}, v5")
        e("v_cvt_pk_bf16_f32 v5, v5, v5")
        e("v_lshlrev_b32 v5, 16, v5")
        e("v_sqrt_f32 v5, v5")
        e("v_cvt_pk_bf16_f32 v5, v5, v5")
        e("v_lshlrev_b32 v5, 16, v5")
        e("v_rcp_f32 v5, v5")
        xs = [f"v{48 + k}" for k in range(16)]
        for x in xs:
            e(f"v_sub_f32 {x}, {x}, v4")
        self.round_bf16(xs, "v7")
        for x in xs:
            e(f"v_mul_f32 {x}, {x}, v5")
        self.round_bf16(xs, "v7")
        self.stamp("ln1")
        e(f"s_cmp_ge_u32 {sR}, 28")
        e("s_cbranch_scc1 L_nowo")
        e(f"v_lshrrev_b32 v4, 3, {vL}")
        e(f"v_and_b32 v5, 6, v4")
        e(f"v_and_b32 v6, 7, {vL}")
        e("v_xor_b32 v5, v5, v6")
        e("v_mul_u32_u24 v4, 896, v4")
        e("v_lshl_add_u32 v4, v5, 4, v4")
        e(f"s_lshl_b32 {sC}, {sCG}, 7")
        e(f"s_mul_i32 {sA}, {sW}, {14 * 8 * 896}")
        e(f"s_add_u32 {sC}, {sC}, {sA}")
        e(f"s_mul_i32 {sD}, {sW}, 14336")
        for n in range(14):
            e(f"s_add_u32 {sA}, {sC}, {n * 8 * 896}")
            e(f"s_add_u32 {sBt}, {sD}, {L_WO + n * 1024}")
            self.dma("v4", SRD_WO, sA, sBt, "wo")
        e("L_nowo:")
        self.pretouch()
        lp, dn = e.label("xcc"), e.label("xccd")
        e(f"v_and_b32 v4, 31, {vL}")
        e(f"v_lshlrev_b32 v4, 3, v4")
        e(f"s_lshl_b32 {sA}, {sI}, 8")
        e(f"s_mov_b32 {sSPIN}, 0")
        e(f"{lp}:")
        e(f"buffer_load_dwordx2 v[6:7], v4, {srd(SRD_WS)}, {sA} offen offset:{WS_XCC} sc1")
        e(f"s_add_u32 {sSPIN}, {sSPIN}, 1")
        e(f"s_cmp_ge_u32 {sSPIN}, {SPIN_MAX}")
        e("s_waitcnt vmcnt(0)")
        e(f"s_cbranch_scc1 {dn}")
        e(f"v_cmp_ne_u32 vcc, {sTAG}, v6")
        e(f"s_cbranch_vccnz {lp}")
        e(f"{dn}:")
        e(f"s_getreg_b32 {sA}, hwreg(HW_REG_XCC_ID, 0, 4)")
        e(f"v_cmp_ne_u32 vcc, {sA}, v7")
        e("s_cmp_eq_u64 vcc, 0")
        e(f"s_cselect_b32 {sFAST}, {0 if self.o.get('force_slow') else 1}, 0")
        e(f"s_cmp_lg_u32 {sW}, 3")
        e("s_cbranch_scc1 L_nobump")
        e(f"v_readfirstlane_b32 {sA}, {vE}")
        e(f"s_cmp_lg_u32 {sA}, 255")
        e("s_cbranch_scc1 L_nobump")
        e(f"v_mov_b32 v4, {sTAG}")
        e("s_mov_b64 exec, 1")
        e(f"buffer_store_dword v4, off, {srd(SRD_WS)}, 0 sc1")
        e("s_mov_b64 exec, -1")
        e("L_nobump:")
        e.vm = []
        self.stamp("xcc")

    def reduce_hi3(self, a, t):
        e = self.e
        e(f"v_add_f32_dpp {a}, {a}, {a} row_ror:8 row_mask:0xf bank_mask:0xf")
        self.reduce_hi2(a, t)

    def reduce_hi2(self, a, t, op="v_add_f32"):
        e = self.e
        e(f"v_mov_b32 {t}, {a}")
        e(f"v_permlane16_swap_b32 {a}, {t}")
        e(f"{op} {a}, {a}, {t}")
        e(f"v_mov_b32 {t}, {a}")
        e(f"v_permlane32_swap_b32 {a}, {t}")
        e(f"{op} {a}, {a}, {t}")

    def pretouch(self):
        if not self.o.get("pretouch", 1):
            return
        e = self.e
        e(f"s_lshl_b32 {sC}, {sR}, 2")
        e(f"s_add_u32 {sC}, {sC}, {sW}")
        areas = [(WS_H, 229376), (WS_O, 262144), (WS_Z, 229376), (WS_HID, 917504), (WS_STAT, 14336)]
        for base, per in areas:
            lines = per // 128
            per_wave = -(-lines // 128)
            e(f"s_mul_i32 {sA}, {sI}, {per}")
            e(f"s_add_u32 {sA}, {sA}, {base}")
            e(f"s_mul_i32 {sBt}, {sC}, {per_wave}")
            e(f"v_add_u32 v4, {sBt}, {vL}")
            e(f"v_min_u32 v4, {lines - 1}, v4")
            e(f"v_lshlrev_b32 v4, 7, v4")
            m = (1 << per_wave) - 1
            e(f"s_mov_b32 exec_lo, {hex(m & 0xffffffff)}")
            e(f"s_mov_b32 exec_hi, {hex(m >> 32)}")
            e(f"buffer_load_dword v13, v4, {srd(SRD_WS)}, {sA} offen sc1", "pt")
            e("s_mov_b64 exec, -1")
        e(f"v_and_b32 v4, 3, {vL}")
        e(f"v_lshlrev_b32 v4, 7, v4")
        e(f"v_lshrrev_b32 v5, 2, {vL}")
        e(f"v_lshl_add_u32 v4, v5, 12, v4")
        e(f"s_lshl_b32 {sA}, {sI}, 9")
        e(f"s_add_u32 {sA}, {sA}, {WS_FLH}")
        e("s_mov_b64 exec, 0xffff")
        e(f"buffer_load_dword v13, v4, {srd(SRD_WS)}, {sA} offen sc1", "pt")
        e("s_mov_b64 exec, -1")

    def f1(self):
        e = self.e
        e(f"v_lshrrev_b32 v5, 3, {vL}")
        e(f"v_bfe_u32 v6, {vL}, 2, 1")
        e(f"v_cmp_gt_u32 vcc, 6, v5")
        e(f"v_cndmask_b32 v6, 0, v6, vcc")
        e(f"v_lshl_add_u32 v6, v6, 3, v5")
        e(f"s_mul_i32 {sA}, {sW}, 14")
        e(f"v_add_u32 v6, {sA}, v6")
        e(f"v_bfe_u32 v7, {vL}, 1, 1")
        e(f"v_lshl_add_u32 v6, v6, 1, v7")
        e(f"v_and_b32 v7, 1, {vL}")
        e(f"v_mul_u32_u24 v7, 112, v7")
        e(f"v_add_u32 v6, v6, v7")
        e(f"v_lshlrev_b32 v8, 4, v6")
        self.gather_mod("v8", 16, 40)
        self.stamp("modgot")
        e(f"v_and_b32 v7, 1, {vL}")
        e(f"v_cvt_f32_u32 v7, v7")
        for k in range(4):
            e(f"v_add_f32 v{16 + k}, v{16 + k}, v7")
        self.round_bf16([f"v{16 + k}" for k in range(4)], "v40")
        e(f"s_lshl_b32 {sA}, {sW}, 12")
        e(f"s_add_u32 {sA}, {sA}, {L_SCR}")
        e(f"v_add_u32 v9, {sA}, {vL16}")
        e("ds_write_b128 v9, v[16:19]")
        e("v_and_b32 v9, 0xffffff80, v9")
        e("s_waitcnt lgkmcnt(0)")
        for it in range(8):
            e(f"ds_read_b128 {vr(64 + 4 * it)}, v9 offset:{16 * it}")
        e(f"v_and_b32 v4, 7, {vL}")
        e(f"v_lshlrev_b32 v4, 4, v4")
        e(f"v_lshl_add_u32 v4, v5, 9, v4")
        e(f"v_cmp_gt_u32 vcc, 6, v5")
        e(f"v_add_u32 v6, 4096, v4")
        e(f"v_mov_b32 v11, 0x7ffffff0")
        e(f"v_cndmask_b32 v6, v11, v6, vcc")
        e(f"s_lshr_b32 {sA}, {sR}, 2")
        e(f"s_lshl_b32 {sBt}, {sI}, 3")
        e(f"s_add_u32 {sBt}, {sBt}, {sA}")
        e(f"s_mul_i32 {sA}, {sBt}, 28672")
        e(f"s_and_b32 {sC}, {sR}, 3")
        e(f"s_lshl_b32 {sD}, {sC}, 7")
        e(f"s_add_u32 {sA}, {sA}, {sD}")
        e(f"s_mul_i32 {sD}, {sW}, 7168")
        e(f"s_add_u32 {sA}, {sA}, {sD}")
        e(f"s_add_u32 {sA}, {sA}, {WS_H}")
        e(f"s_lshl_b32 {sBt}, {sBt}, 6")
        e(f"s_lshl_b32 {sC}, {sC}, 4")
        e(f"s_add_u32 {sBt}, {sBt}, {sC}")
        e(f"s_lshl_b32 {sC}, {sW}, 2")
        e(f"s_add_u32 {sBt}, {sBt}, {sC}")
        e(f"s_add_u32 {sBt}, {sBt}, {WS_FLH}")
        e("s_waitcnt lgkmcnt(0)")
        for gs in range(2):
            xs = [f"v{48 + 8 * gs + k}" for k in range(8)]
            c1 = [f"v{64 + 4 * (4 * gs + 2 * (k >> 2) + 1) + (k & 3)}" for k in range(8)]
            c2 = [f"v{64 + 4 * (4 * gs + 2 * (k >> 2)) + (k & 3)}" for k in range(8)]
            if self.o.get("h_round", 1):
                for x, c in zip(xs, c1):
                    e(f"v_mul_f32 {x}, {x}, {c}")
                self.round_bf16(xs, "v7")
                for x, c in zip(xs, c2):
                    e(f"v_add_f32 {x}, {x}, {c}")
            else:
                for x, c, d in zip(xs, c1, c2):
                    e(f"v_fma_f32 {x}, {x}, {c}, {d}")
            for k in range(4):
                e(f"v_cvt_pk_bf16_f32 v{32 + 4 * gs + k}, {xs[2 * k]}, {xs[2 * k + 1]}")
            e(f"buffer_store_dwordx4 {vr(32 + 4 * gs)}, v{4 + 2 * gs}, {srd(SRD_WS)}, {sA} offen")
        self.publish(sBt, "v7")
        self.stamp("hpub")

    def p1(self):
        e = self.e
        ACK, ACV, ACQ = 16, 32, 48
        HB, WR = 0, 112
        e("s_barrier")
        e(f"v_lshrrev_b32 v4, 5, {vL}")
        e(f"v_lshlrev_b32 v4, 9, v4")
        e(f"v_bfe_u32 v5, {vL}, 2, 2")
        e(f"v_lshl_add_u32 v4, v5, 6, v4")
        e(f"v_bfe_u32 v5, {vL}, 4, 1")
        e(f"v_lshl_add_u32 v4, v5, 5, v4")
        e(f"v_and_b32 v5, 3, {vL}")
        e(f"v_lshl_add_u32 v4, v5, 3, v4")
        e(f"v_add_u32 v4, {sADJ}, v4")
        e(f"v_add_u32 v8, {L_WQ}, v4")
        e(f"v_add_u32 v9, {L_WK}, v4")
        DEPTH = 3

        def rd(addr, off, dst, tag):
            e(f"ds_read_b64_tr_b16 {ar(dst, 2)}, {addr} offset:{off}", tag)
            e(f"ds_read_b64_tr_b16 {ar(dst + 2, 2)}, {addr} offset:{off + 256}", tag)

        def rd_kv(ks):
            b = WR + 8 * (ks % 4)
            rd("v9", ks * 1024, b, ("kv", ks))
            rd("v9", 28672 + ks * 1024, b + 4, ("kv", ks))

        for ks in range(DEPTH):
            rd_kv(ks)
        e(f"v_and_b32 v4, 15, {vL}")
        e(f"v_lshlrev_b32 v4, 2, v4")
        e(f"s_lshl_b32 {sA}, {sT}, 6")
        e(f"s_add_u32 {sA}, {sA}, {WS_FLH}")
        self.poll("v4", sA, "v5")
        self.acquire()
        self.stamp("hflag")
        e(f"s_mul_i32 {sA}, {sT}, 28672")
        e(f"s_add_u32 {sA}, {sA}, {WS_H}")
        for ks in range(28):
            if ks and ks % 4 == 0:
                e(f"s_add_u32 {sA}, {sA}, 4096")
            e(f"buffer_load_dwordx4 {ar(HB + 4 * ks)}, {vL16}, {srd(SRD_WS)}, {sA} offen offset:{(ks % 4) * 1024} sc1", ("h", ks))
        for ks in range(28):
            if ks + DEPTH < 28:
                rd_kv(ks + DEPTH)
            e.wait(vm=("h", ks), lg=("kv", ks))
            b = WR + 8 * (ks % 4)
            ck = "0" if ks == 0 else vr(ACK, 16)
            cv = "0" if ks == 0 else vr(ACV, 16)
            e(f"v_mfma_f32_32x32x16_bf16 {vr(ACK, 16)}, {ar(b)}, {ar(HB + 4 * ks)}, {ck}")
            e(f"v_mfma_f32_32x32x16_bf16 {vr(ACV, 16)}, {ar(HB + 4 * ks)}, {ar(b + 4)}, {cv}")
        self.stamp("kvgemm")
        QR = WR + 32

        def rd_q(ks):
            rd("v8", ks * 1024, QR + 4 * (ks % 8), ("q", ks))

        for ks in range(4):
            rd_q(ks)
        e(f"s_mul_i32 {sA}, {sH}, 64")
        e(f"s_add_u32 {sA}, {sA}, {sT}")
        e(f"s_lshl_b32 {sA}, {sA}, 12")
        e(f"s_add_u32 {sA}, {sA}, {WS_KV}")
        e(f"s_lshl_b32 {sBt}, {sW}, 12")
        e(f"s_add_u32 {sBt}, {sBt}, {L_KV + 8 * 4096}")
        e(f"v_add_u32 v10, {sBt}, {vL16}")
        e(f"v_and_b32 v4, 31, {vL}")
        e(f"v_cmp_eq_u32 s[90:91], 28, v4")
        e("v_mov_b32 v11, 0x3f803f80")
        for k in range(8):
            e(f"v_cvt_pk_bf16_f32 v{64 + k}, v{ACK + 2 * k}, v{ACK + 2 * k + 1}")
        e(f"v_cndmask_b32 v70, v70, 0, {sHI}")
        e(f"v_cndmask_b32 v71, v71, 0, {sHI}")
        for f in range(2):
            e(f"buffer_store_dwordx4 {vr(64 + 4 * f)}, {vL16}, {srd(SRD_WS)}, {sA} offen offset:{f * 1024} sc1", "kvst")
        for k in range(8):
            e(f"v_cvt_pk_bf16_f32 v{72 + k}, v{ACV + 2 * k}, v{ACV + 2 * k + 1}")
            e(f"v_cndmask_b32 v{72 + k}, v{72 + k}, v11, s[90:91]")
        for f in range(2, 4):
            e(f"buffer_store_dwordx4 {vr(64 + 4 * f)}, {vL16}, {srd(SRD_WS)}, {sA} offen offset:{f * 1024} sc1", "kvst")
        for f in range(4):
            e(f"ds_write_b128 v10, {vr(64 + 4 * f)} offset:{f * 1024}", "kvw")
        for ks in range(28):
            if ks + 4 < 28:
                rd_q(ks + 4)
            e.wait(lg=("q", ks))
            cq = "0" if ks == 0 else vr(ACQ, 16)
            e(f"v_mfma_f32_32x32x16_bf16 {vr(ACQ, 16)}, {ar(QR + 4 * (ks % 8))}, {ar(HB + 4 * ks)}, {cq}")
        e(f"s_lshl_b32 {sA}, {sH}, 4")
        e(f"s_lshr_b32 {sBt}, {sT}, 2")
        e(f"s_add_u32 {sA}, {sA}, {sBt}")
        e(f"s_lshl_b32 {sA}, {sA}, 7")
        e(f"s_lshl_b32 {sBt}, {sW}, 2")
        e(f"s_add_u32 {sA}, {sA}, {sBt}")
        e(f"s_add_u32 {sA}, {sA}, {WS_FLKV}")
        self.publish(sA, "v7", local=False)
        self.stamp("kvpub")
        qs = 28 ** -0.5 * math.log2(math.e)
        e(f"s_mov_b32 {sA}, {fbits(qs)}")
        for k in range(16):
            e(f"v_mul_f32 v{ACQ + k}, {sA}, v{ACQ + k}")
        for k in range(8):
            e(f"v_cvt_pk_bf16_f32 v{64 + k}, v{ACQ + 2 * k}, v{ACQ + 2 * k + 1}")
        e("v_mov_b32 v11, 0x00003f80")
        e(f"v_cndmask_b32 v70, v70, v11, {sHI}")
        e(f"v_cndmask_b32 v71, v71, 0, {sHI}")
        e("s_waitcnt lgkmcnt(0)")
        e("s_barrier")

    def late_consts(self):
        e = self.e
        e(f"s_cmp_ge_u32 {sR}, 28")
        e("s_cbranch_scc1 L_nolate")
        e(f"s_lshl_b32 {sA}, {sW}, 6")
        e(f"v_add_u32 v4, {sA}, {vL}")
        e("v_cmp_gt_u32 vcc, 112, v4")
        e(f"s_movk_i32 {sBt}, 224")
        e(f"v_cmp_gt_u32 s[90:91], {sBt}, v4")
        e("v_subrev_u32 v5, 112, v4")
        e("v_cndmask_b32 v5, v5, v4, vcc")
        e("v_mov_b32 v6, 336")
        e("v_mov_b32 v7, 448")
        e("v_cndmask_b32 v6, v6, v7, vcc")
        e("v_add_u32 v6, v6, v5")
        e("v_and_b32 v7, 15, v4")
        e(f"s_lshl_b32 {sA}, {sCG}, 4")
        e(f"v_add_u32 v7, {sA}, v7")
        e("v_bfe_u32 v8, v4, 4, 1")
        e("v_mul_u32_u24 v8, 336, v8")
        e("v_add_u32 v7, v7, v8")
        e("v_add_u32 v7, 224, v7")
        e("v_cndmask_b32 v6, v7, v6, s[90:91]")
        e("v_lshlrev_b32 v8, 4, v6")
        e("s_mov_b64 s[92:93], vcc")
        self.gather_mod("v8", 16, 40)
        e("v_cndmask_b32 v7, 0, 1.0, s[92:93]")
        for k in range(4):
            e(f"v_add_f32 v{20 + k}, v{16 + k}, v7")
        e("v_cvt_pk_bf16_f32 v20, v20, v21")
        e("v_cvt_pk_bf16_f32 v21, v22, v23")
        e("v_lshrrev_b32 v6, 3, v5")
        e("v_lshlrev_b32 v6, 6, v6")
        e("v_and_b32 v7, 3, v5")
        e("v_lshl_add_u32 v6, v7, 4, v6")
        e("v_bfe_u32 v7, v5, 2, 1")
        e("v_lshl_add_u32 v6, v7, 3, v6")
        e("v_mov_b32 v7, 896")
        e("v_cndmask_b32 v7, v7, 0, s[92:93]")
        e("v_add_u32 v6, v6, v7")
        e("v_and_b32 v7, 31, v4")
        e("v_lshlrev_b32 v7, 4, v7")
        e("s_mov_b64 exec, s[90:91]")
        e(f"ds_write_b64 v6, v[20:21] offset:{L_CVEC}")
        e("s_not_b64 exec, exec")
        e(f"ds_write_b128 v7, v[16:19] offset:{L_GAB}")
        e("s_mov_b64 exec, -1")
        e(f"v_lshrrev_b32 v4, 2, {vL}")
        e(f"v_mul_u32_u24 v4, 896, v4")
        e(f"v_and_b32 v5, 3, {vL}")
        e(f"v_lshl_add_u32 v15, v5, 4, v4")
        e(f"s_lshl_b32 {sA}, {sI}, 2")
        e(f"s_add_u32 {sA}, {sA}, {sRB}")
        e(f"s_lshl_b32 {sA}, {sA}, 2")
        e(f"s_add_u32 {sA}, {sA}, {sW}")
        e(f"s_mul_i32 {sA}, {sA}, 14336")
        e(f"s_lshl_b32 {sBt}, {sCG}, 7")
        e(f"s_add_u32 s100, {sA}, {sBt}")
        e(f"buffer_load_dwordx4 v[240:243], v15, {srd(SRD_X)}, s100 offen")
        e(f"buffer_load_dwordx4 v[244:247], v15, {srd(SRD_X)}, s100 offen offset:64")
        e("L_nolate:")
        e.vm = []
        e.lg = []

    def p2(self):
        e = self.e
        QF = 64
        e(f"s_and_b32 {sA}, {sT}, 0xfc")
        e(f"s_lshl_b32 {sBt}, {sW}, 1")
        e(f"s_add_u32 {sA}, {sA}, {sBt}")
        e(f"s_lshl_b32 {sD}, {sW}, 13")
        e(f"s_add_u32 {sD}, {sD}, {L_KV}")
        e(f"s_cmp_lt_u32 {sA}, 8")
        e("s_cbranch_scc1 L_kvfill")
        e(f"s_sub_u32 {sC}, {sA}, 8")
        e(f"s_lshl_b32 {sA}, {sH}, 4")
        e(f"s_lshr_b32 {sBt}, {sC}, 2")
        e(f"s_add_u32 {sA}, {sA}, {sBt}")
        e(f"s_lshl_b32 {sA}, {sA}, 7")
        e(f"s_and_b32 {sBt}, {sC}, 3")
        e(f"s_lshl_b32 {sBt}, {sBt}, 2")
        e(f"s_add_u32 {sA}, {sA}, {sBt}")
        e(f"s_add_u32 {sA}, {sA}, {WS_FLKV}")
        e(f"v_and_b32 v4, 1, {vL}")
        e(f"v_lshlrev_b32 v4, 2, v4")
        self.poll("v4", sA, "v5")
        self.acquire()
        e(f"s_lshl_b32 {sA}, {sH}, 6")
        e(f"s_add_u32 {sA}, {sA}, {sC}")
        e(f"s_lshl_b32 {sA}, {sA}, 12")
        e(f"s_add_u32 {sA}, {sA}, {WS_KV}")
        for t in range(2):
            e(f"s_mov_b32 m0, {sD}")
            for f in range(4):
                e(f"buffer_load_dwordx4 {vL16}, {srd(SRD_WS)}, {sA} offen offset:{f * 1024} sc1 lds")
            if t == 0:
                e(f"s_add_u32 {sA}, {sA}, 4096")
                e(f"s_add_u32 {sD}, {sD}, 4096")
        e("s_branch L_kvdone")
        e("L_kvfill:")
        for k in range(8):
            e(f"v_mov_b32 v{16 + k}, 0")
        e("v_mov_b32 v4, 0x0000f149")
        e(f"v_cndmask_b32 v22, 0, v4, {sHI}")
        e(f"v_add_u32 v4, {sD}, {vL16}")
        for t in range(2):
            for f in range(4):
                e(f"ds_write_b128 v4, {vr(20 if f == 1 else 16)} offset:{t * 4096 + f * 1024}")
        e("L_kvdone:")
        e(f"v_and_b32 v4, 31, {vL}")
        e(f"v_lshrrev_b32 v5, 5, {vL}")
        e(f"v_lshlrev_b32 v5, 2, v5")
        e("v_sub_u32 v4, v4, v5")
        MK = 72
        e("v_mov_b32 v6, 0xffff")
        e("v_mov_b32 v7, 0xffff0000")
        for r in range(16):
            e(f"v_cmp_le_i32 s[{SMASK + 2 * r}:{SMASK + 2 * r + 1}], {(r >> 2) * 8 + (r & 3)}, v4")
        for k in range(8):
            e(f"v_cndmask_b32 v8, 0, v6, s[{SMASK + 4 * k}:{SMASK + 4 * k + 1}]")
            e(f"v_cndmask_b32 v9, 0, v7, s[{SMASK + 4 * k + 2}:{SMASK + 4 * k + 3}]")
            e(f"v_or_b32 v{MK + k}, v8, v9")
        e(f"s_lshl_b32 {sA}, {sW}, 12")
        e(f"s_add_u32 {sA}, {sA}, {L_KV}")
        e(f"v_add_u32 v10, {sA}, {vL16}")
        e("s_waitcnt vmcnt(0) lgkmcnt(0)")
        e("s_barrier")
        self.stamp("kvgot")
        KF, VF = 0, 72
        order = [0, 8, 1, 2, 3, 4, 5, 6, 7]
        for t in order:
            for f in range(2):
                e(f"ds_read_b128 {ar(KF + 8 * t + 4 * f)}, v10 offset:{t * 4096 + f * 1024}", ("k", t))
        S = [80, 96, 112]
        MG, NM, OA, PF = 128, 144, 160, 176
        vM = "v11"

        def s_mfma(t, dst, c):
            e(f"v_mfma_f32_32x32x16_bf16 {vr(dst, 16)}, {ar(KF + 8 * t)}, {vr(QF)}, {c}")
            e(f"v_mfma_f32_32x32x16_bf16 {vr(dst, 16)}, {ar(KF + 8 * t + 4)}, {vr(QF + 4)}, {vr(dst, 16)}")

        def maxred(src, first):
            for k in range(8):
                if first and k == 0:
                    e(f"v_max_f32 {vM}, v{src}, v{src + 1}")
                else:
                    e(f"v_max3_f32 {vM}, {vM}, v{src + 2 * k}, v{src + 2 * k + 1}")

        vq = list(order)
        e.wait(lg=("k", 0))
        s_mfma(0, S[0], "0")
        e.wait(lg=("k", 8))
        s_mfma(8, S[1], "0")
        e.wait(lg=("k", 1))
        s_mfma(1, S[2], "0")
        for r in range(16):
            e(f"v_cndmask_b32 v{MG + r}, v{S[0] + r}, v{S[1] + r}, s[{SMASK + 2 * r}:{SMASK + 2 * r + 1}]")
        for t in range(2, 9):
            if t < 8:
                e.wait(lg=("k", t))
                s_mfma(t, S[(t + 1) % 3], "0")
            for _ in range(2 if t < 5 else 1):
                if vq:
                    tv = vq.pop(0)
                    for f in range(2):
                        e(f"ds_read_b128 {ar(VF + 8 * tv + 4 * f)}, v10 offset:{tv * 4096 + 2048 + f * 1024}", ("v", tv))
            if t == 2:
                maxred(MG, True)
            maxred(S[t % 3], False)
        e(f"v_mov_b32 v4, {vM}")
        e(f"v_permlane32_swap_b32 {vM}, v4")
        e(f"v_max_f32 {vM}, {vM}, v4")
        for r in range(16):
            e(f"v_sub_f32 v{NM + r}, 0, {vM}")
        s_mfma(1, S[0], vr(NM, 16))
        s_mfma(2, S[1], vr(NM, 16))
        for r in range(16):
            e(f"v_sub_f32 v{MG + r}, v{MG + r}, {vM}")
        for r in range(16):
            e(f"v_exp_f32 v{MG + r}, v{MG + r}")
        for k in range(8):
            e(f"v_cvt_pk_bf16_f32 v{PF + k}, v{MG + 2 * k}, v{MG + 2 * k + 1}")
        for k in range(8):
            e(f"v_and_b32 v{PF + 8 + k}, v{PF + k}, v{MK + k}")
            e(f"v_xor_b32 v{PF + k}, v{PF + k}, v{PF + 8 + k}")
        e.wait(lg=("v", 8))
        e(f"v_mfma_f32_32x32x16_bf16 {vr(OA, 16)}, {ar(VF)}, {vr(PF)}, 0")
        e(f"v_mfma_f32_32x32x16_bf16 {vr(OA, 16)}, {ar(VF + 4)}, {vr(PF + 4)}, {vr(OA, 16)}")
        e(f"v_mfma_f32_32x32x16_bf16 {vr(OA, 16)}, {ar(VF + 64)}, {vr(PF + 8)}, {vr(OA, 16)}")
        e(f"v_mfma_f32_32x32x16_bf16 {vr(OA, 16)}, {ar(VF + 68)}, {vr(PF + 12)}, {vr(OA, 16)}")
        e("s_waitcnt lgkmcnt(0)")
        for t in range(1, 8):
            src = S[(t - 1) % 3]
            pf = PF + 16 + 8 * (t & 1)
            for r in range(8):
                e(f"v_exp_f32 v{src + r}, v{src + r}")
            if t + 2 < 8:
                e(f"v_mfma_f32_32x32x16_bf16 {vr(S[(t + 1) % 3], 16)}, {ar(KF + 8 * (t + 2))}, {vr(QF)}, {vr(NM, 16)}")
            for k in range(4):
                e(f"v_cvt_pk_bf16_f32 v{pf + k}, v{src + 2 * k}, v{src + 2 * k + 1}")
            for r in range(8, 12):
                e(f"v_exp_f32 v{src + r}, v{src + r}")
            e(f"v_mfma_f32_32x32x16_bf16 {vr(OA, 16)}, {ar(VF + 8 * t)}, {vr(pf)}, {vr(OA, 16)}")
            for r in range(12, 16):
                e(f"v_exp_f32 v{src + r}, v{src + r}")
            if t + 2 < 8:
                d = S[(t + 1) % 3]
                e(f"v_mfma_f32_32x32x16_bf16 {vr(d, 16)}, {ar(KF + 8 * (t + 2) + 4)}, {vr(QF + 4)}, {vr(d, 16)}")
            for k in range(4, 8):
                e(f"v_cvt_pk_bf16_f32 v{pf + k}, v{src + 2 * k}, v{src + 2 * k + 1}")
            e(f"v_mfma_f32_32x32x16_bf16 {vr(OA, 16)}, {ar(VF + 8 * t + 4)}, {vr(pf + 4)}, {vr(OA, 16)}")
        e(f"v_bfe_u32 v4, {vL}, 4, 1")
        e(f"v_lshlrev_b32 v4, 14, v4")
        e(f"v_lshrrev_b32 v5, 5, {vL}")
        e(f"v_lshl_add_u32 v4, v5, 8, v4")
        e(f"v_and_b32 v5, 15, {vL}")
        e(f"v_lshl_add_u32 v4, v5, 4, v4")
        e(f"s_lshl_b32 {sA}, {sT}, 5")
        e(f"s_add_u32 {sA}, {sA}, {sH}")
        e(f"s_lshl_b32 {sA}, {sA}, 10")
        e(f"s_add_u32 {sA}, {sA}, {WS_O}")
        e(f"s_lshl_b32 {sBt}, {sT}, 4")
        e(f"s_add_u32 {sBt}, {sBt}, {sH}")
        e(f"s_lshl_b32 {sBt}, {sBt}, 2")
        e(f"s_add_u32 {sBt}, {sBt}, {WS_FLO}")
        e(f"v_mov_b32 v5, v{OA + 12}")
        e(f"v_mov_b32 v6, v{OA + 12}")
        e("v_permlane32_swap_b32 v5, v6")
        e("v_rcp_f32 v6, v6")
        for r in range(16):
            e(f"v_mul_f32 v{OA + r}, v6, v{OA + r}")
        for k in range(8):
            e(f"v_cvt_pk_bf16_f32 v{PF + k}, v{OA + 2 * k}, v{OA + 2 * k + 1}")
        e(f"v_cndmask_b32 v{PF + 6}, v{PF + 6}, 0, {sHI}")
        e(f"v_cndmask_b32 v{PF + 7}, v{PF + 7}, 0, {sHI}")
        for f in range(2):
            e(f"buffer_store_dwordx4 {vr(PF + 4 * f)}, v4, {srd(SRD_WS)}, {sA} offen offset:{f * 512}")
        self.stamp("attn")
        self.publish(sBt, "v7")
        self.stamp("opub")
        e(f"s_cmp_ge_u32 {sR}, 28")
        e("s_cbranch_scc1 L_fin")

    def wgu_addr(self):
        e = self.e
        e(f"v_lshrrev_b32 v12, 3, {vL}")
        e(f"v_and_b32 v5, 2, v12")
        e(f"v_lshlrev_b32 v5, 1, v5")
        e(f"v_and_b32 v6, 7, {vL}")
        e("v_xor_b32 v5, v5, v6")
        e("v_mul_u32_u24 v13, 896, v12")
        e("v_lshl_add_u32 v13, v5, 4, v13")
        e("v_mul_u32_u24 v12, 3584, v12")
        e("v_lshl_add_u32 v12, v5, 4, v12")

    def wgu_dma(self, pieces):
        e = self.e
        e(f"s_lshl_b32 {sC}, {sR}, 7")
        e(f"s_mul_i32 {sA}, {sW}, {8 * 3584}")
        e(f"s_add_u32 {sC}, {sC}, {sA}")
        e(f"s_lshl_b32 {sD}, {sW}, 10")
        for mat, n in pieces:
            e(f"s_add_u32 {sA}, {sC}, {n * 32 * 3584}")
            e(f"s_add_u32 {sBt}, {sD}, {(L_WG, L_WU)[mat] + n * 4096}")
            self.dma("v12", (SRD_WG, SRD_WU)[mat], sA, sBt, "wgu")

    def p3(self):
        e = self.e
        OB, WR, AC = 0, 64, 16
        GA, CB, XR = 32, 48, 64
        e("s_barrier")
        self.wgu_addr()
        self.wgu_dma([(0, n) for n in range(14)] + [(1, n) for n in range(11)])
        e(f"v_lshrrev_b32 v4, 5, {vL}")
        e(f"v_lshlrev_b32 v4, 4, v4")
        e(f"v_bfe_u32 v5, {vL}, 4, 1")
        e(f"v_lshl_add_u32 v4, v5, 2, v4")
        e(f"v_bfe_u32 v6, {vL}, 2, 2")
        e("v_add_u32 v4, v4, v6")
        e("v_lshlrev_b32 v4, 7, v4")
        e("v_lshrrev_b32 v6, 1, v6")
        e("v_lshl_add_u32 v5, v5, 1, v6")
        e(f"v_and_b32 v6, 3, {vL}")
        e("v_lshl_add_u32 v4, v6, 3, v4")
        e(f"v_add_u32 v4, {L_WO}, v4")
        for t in range(4):
            e(f"v_xor_b32 v6, {t}, v5")
            e(f"v_lshl_add_u32 v{8 + t}, v6, 5, v4")

        def rd_wo(hd):
            for t in range(4):
                a = 8 + (t ^ (2 * (hd & 1)))
                d = WR + 16 * (hd % 4) + 4 * t
                e(f"ds_read_b64_tr_b16 {ar(d, 2)}, v{a} offset:{hd * 3584}", ("wo", hd))
                e(f"ds_read_b64_tr_b16 {ar(d + 2, 2)}, v{a} offset:{hd * 3584 + 1024}", ("wo", hd))

        rd_wo(0)
        e(f"v_and_b32 v4, 15, {vL}")
        e(f"v_lshlrev_b32 v4, 2, v4")
        e(f"s_lshl_b32 {sA}, {sI}, 2")
        e(f"s_add_u32 {sE}, {sA}, {sRB}")
        e(f"s_lshl_b32 {sA}, {sE}, 1")
        e(f"s_lshr_b32 {sBt}, {sW}, 1")
        e(f"s_add_u32 {sA}, {sA}, {sBt}")
        e(f"s_mov_b32 s101, {sA}")
        e(f"s_lshl_b32 {sA}, {sA}, 6")
        e(f"s_add_u32 {sA}, {sA}, {WS_FLO}")
        self.poll("v4", sA, "v5")
        self.acquire()
        self.stamp("oflag")
        e(f"s_lshl_b32 {sA}, {sE}, 2")
        e(f"s_add_u32 {sA}, {sA}, {sW}")
        e(f"s_lshl_b32 {sA}, {sA}, 14")
        e(f"s_add_u32 {sA}, {sA}, {WS_O}")
        for hd in range(16):
            if hd and hd % 4 == 0:
                e(f"s_add_u32 {sA}, {sA}, 4096")
            e(f"buffer_load_dwordx4 {ar(OB + 4 * hd)}, {vL16}, {srd(SRD_WS)}, {sA} offen offset:{(hd % 4) * 1024} sc1", ("o", hd))
        for hd in range(16):
            if hd + 1 < 16:
                rd_wo(hd + 1)
            e.wait(vm=("o", hd), lg=("wo", hd))
            for t in range(4):
                c = "0" if hd == 0 else vr(AC + 4 * t)
                e(f"v_mfma_f32_16x16x32_bf16 {vr(AC + 4 * t)}, {ar(WR + 16 * (hd % 4) + 4 * t)}, {ar(OB + 4 * hd)}, {c}")
        self.stamp("oproj")
        e("s_barrier")
        self.wgu_dma([(1, n) for n in range(11, 14)])
        e(f"s_lshl_b32 {sA}, {sW}, 11")
        e(f"s_add_u32 {sA}, {sA}, {L_X1}")
        e(f"v_lshrrev_b32 v4, 2, {vL}")
        e(f"v_lshlrev_b32 v4, 7, v4")
        e(f"v_and_b32 v5, 3, {vL}")
        e(f"v_lshl_add_u32 v4, v5, 4, v4")
        e(f"v_add_u32 v8, {sA}, v4")
        e(f"v_and_b32 v4, 15, {vL}")
        e(f"v_lshlrev_b32 v4, 7, v4")
        e(f"v_lshrrev_b32 v5, 4, {vL}")
        e(f"v_lshl_add_u32 v4, v5, 3, v4")
        e(f"v_add_u32 v9, {sA}, v4")
        e("ds_write_b128 v8, v[240:243]")
        e("ds_write_b128 v8, v[244:247] offset:64")
        e(f"v_lshlrev_b32 v10, 4, v5")
        for t in range(4):
            e(f"ds_read_b128 {vr(GA + 4 * t)}, v10 offset:{L_GAB + 64 * t}")
        e(f"s_lshl_b32 {sA}, {sCG}, 7")
        e(f"v_add_u32 v10, {sA}, v10")
        for pp in range(2):
            e(f"ds_read_b128 {vr(XR + 16 + 4 * pp)}, v10 offset:{L_CVEC + 64 * pp}")
        for t in range(4):
            e(f"ds_read_b64 {vr(XR + 24 + 2 * t, 2)}, v9 offset:{32 * t}")
        e("s_waitcnt lgkmcnt(0)")
        for k in range(8):
            e(f"v_lshlrev_b32 v{XR + 2 * k}, 16, v{XR + 24 + k}")
            e(f"v_and_b32 v{XR + 2 * k + 1}, 0xffff0000, v{XR + 24 + k}")
            e(f"v_lshlrev_b32 v{CB + 2 * k}, 16, v{XR + 16 + k}")
            e(f"v_and_b32 v{CB + 2 * k + 1}, 0xffff0000, v{XR + 16 + k}")
        for k in range(16):
            e(f"v_fmac_f32 v{XR + k}, v{GA + k}, v{AC + k}")
        for k in range(8):
            e(f"v_cvt_pk_bf16_f32 v{XR + 16 + k}, v{XR + 2 * k}, v{XR + 2 * k + 1}")
        for k in range(8):
            e(f"v_lshlrev_b32 v{XR + 2 * k}, 16, v{XR + 16 + k}")
            e(f"v_and_b32 v{XR + 2 * k + 1}, 0xffff0000, v{XR + 16 + k}")
        for k in range(16):
            e(f"v_mul_f32 v{CB + k}, v{CB + k}, v{XR + k}")
        for k in range(8):
            e(f"v_cvt_pk_bf16_f32 v{AC + k}, v{CB + 2 * k}, v{CB + 2 * k + 1}")
        e(f"v_and_b32 v4, 15, {vL}")
        e(f"v_lshlrev_b32 v4, 4, v4")
        e(f"v_lshl_add_u32 v4, v5, 9, v4")
        e(f"s_mul_i32 {sA}, s101, 28672")
        e(f"s_lshl_b32 {sBt}, {sCG}, 12")
        e(f"s_add_u32 {sA}, {sA}, {sBt}")
        e(f"s_and_b32 {sBt}, {sW}, 1")
        e(f"s_lshl_b32 {sBt}, {sBt}, 8")
        e(f"s_add_u32 {sA}, {sA}, {sBt}")
        e(f"s_add_u32 {sA}, {sA}, {WS_Z}")
        for pp in range(2):
            e(f"buffer_store_dwordx4 {vr(AC + 4 * pp)}, v4, {srd(SRD_WS)}, {sA} offen offset:{pp * 2048}")
        e(f"v_add_f32 v6, v{XR}, v{XR + 1}")
        e(f"v_add_f32 v7, v{XR + 2}, v{XR + 3}")
        for k in range(4, 16, 2):
            e(f"v_add_f32 v6, v6, v{XR + k}")
            e(f"v_add_f32 v7, v7, v{XR + k + 1}")
        e("v_add_f32 v6, v6, v7")
        self.reduce_hi2("v6", "v7")
        e(f"v_mul_f32 v11, {fbits(1.0 / 64)}, v6")
        e("v_mov_b32 v7, 0")
        e("v_mov_b32 v10, 0")
        for k in range(0, 16, 2):
            e(f"v_sub_f32 v{GA}, v{XR + k}, v11")
            e(f"v_sub_f32 v{GA + 1}, v{XR + k + 1}, v11")
            e(f"v_fmac_f32 v7, v{GA}, v{GA}")
            e(f"v_fmac_f32 v10, v{GA + 1}, v{GA + 1}")
        e("v_add_f32 v7, v7, v10")
        self.reduce_hi2("v7", "v10")
        e(f"s_mul_i32 {sA}, {sE}, 7")
        e(f"s_add_u32 {sA}, {sA}, {sCG}")
        e(f"s_lshl_b32 {sA}, {sA}, 9")
        e(f"s_lshl_b32 {sBt}, {sW}, 7")
        e(f"s_add_u32 {sA}, {sA}, {sBt}")
        e(f"s_add_u32 {sA}, {sA}, {WS_STAT}")
        e(f"v_lshlrev_b32 v4, 3, {vL}")
        e("s_mov_b64 exec, 0xffff")
        e(f"buffer_store_dwordx2 v[6:7], v4, {srd(SRD_WS)}, {sA} offen")
        e("s_mov_b64 exec, -1")
        for t in range(4):
            e(f"ds_write_b64 v9, {vr(XR + 16 + 2 * t, 2)} offset:{32 * t}")
        e(f"s_lshl_b32 {sA}, {sE}, 5")
        e(f"s_lshl_b32 {sBt}, {sCG}, 2")
        e(f"s_add_u32 {sA}, {sA}, {sBt}")
        e(f"s_add_u32 {sA}, {sA}, {sW}")
        e(f"s_lshl_b32 {sA}, {sA}, 2")
        e(f"s_add_u32 {sA}, {sA}, {WS_FLZ}")
        self.publish(sA, "v7")
        e("s_waitcnt lgkmcnt(0)")
        e("ds_read_b128 v[16:19], v8")
        e("ds_read_b128 v[20:23], v8 offset:64")
        e("s_waitcnt lgkmcnt(0)")
        self.stamp("zpub")

    def p4(self):
        e = self.e
        AC, BR, AR, WD = 128, 64, 224, 0
        XB, R2 = 112, 120
        e("s_barrier")
        e(f"v_lshrrev_b32 v4, 5, {vL}")
        e(f"v_lshlrev_b32 v4, 2, v4")
        e(f"v_bfe_u32 v5, {vL}, 2, 2")
        e("v_add_u32 v4, v4, v5")
        e("v_lshlrev_b32 v4, 7, v4")
        e(f"v_bfe_u32 v6, {vL}, 4, 1")
        e("v_lshl_add_u32 v4, v6, 5, v4")
        e(f"v_and_b32 v6, 3, {vL}")
        e("v_lshl_add_u32 v4, v6, 3, v4")
        e("v_lshrrev_b32 v5, 1, v5")
        e("v_lshl_add_u32 v8, v5, 6, v4")
        e("v_xor_b32 v9, 64, v8")
        e(f"v_add_u32 v10, {L_WU}, v8")
        e(f"v_add_u32 v11, {L_WU}, v9")
        e(f"s_lshl_b32 {sA}, {sW}, 13")
        e(f"s_add_u32 s99, {sA}, {L_STG}")
        e(f"v_add_u32 v24, s99, v8")
        e(f"v_add_u32 v25, s99, v9")
        e(f"v_add_u32 v8, {L_WG}, v8")
        e(f"v_add_u32 v9, {L_WG}, v9")

        def aoff(ks):
            return (32 * (ks >> 1) + 8 * (ks & 1)) * 128

        e(f"s_and_b32 {sA}, {sW}, 1")
        e(f"s_lshl_b32 {sA}, {sA}, 6")
        e(f"v_xor_b32 v26, {sA}, v8")
        e(f"s_lshr_b32 {sA}, {sW}, 1")
        e(f"s_mul_i32 {sA}, {sA}, {L_WU - L_WG}")
        e(f"v_add_u32 v26, {sA}, v26")
        e(f"v_and_b32 v4, 1, {vL}")
        e(f"v_mul_u32_u24 v4, 896, v4")
        e(f"v_lshrrev_b32 v5, 5, {vL}")
        e(f"v_lshl_add_u32 v27, v5, 4, v4")
        e(f"v_add_u32 v27, {L_CVEC}, v27")

        def rd_b(ks):
            d = AR + 8 * (ks % 4)
            e(f"ds_read_b128 {ar(d)}, v27 offset:{ks * 32}", ("b", ks))
            e(f"ds_read_b64_tr_b16 {ar(d + 4, 2)}, v26 offset:{aoff(ks)}", ("b", ks))
            e(f"ds_read_b64_tr_b16 {ar(d + 6, 2)}, v26 offset:{aoff(ks) + 2048}", ("b", ks))

        for ks in range(3):
            rd_b(ks)
        for ks in range(28):
            if ks + 3 < 28:
                rd_b(ks + 3)
            e.wait(lg=("b", ks))
            d = AR + 8 * (ks % 4)
            c = "0" if ks == 0 else vr(32, 16)
            e(f"v_mfma_f32_32x32x16_bf16 {vr(32, 16)}, {ar(d)}, {ar(d + 4)}, {c}")
        e("v_cvt_pk_bf16_f32 v4, v32, v33")
        e("v_lshlrev_b32 v5, 16, v4")
        e("v_and_b32 v6, 0xffff0000, v4")
        e("v_sub_f32 v5, v32, v5")
        e("v_sub_f32 v6, v33, v6")
        e("v_cvt_pk_bf16_f32 v5, v5, v6")
        e(f"s_mov_b32 {sA}, 0x05040100")
        e(f"s_mov_b32 {sBt}, 0x03020706")
        e(f"v_perm_b32 v48, v5, v4, {sA}")
        e("v_mov_b32 v49, v4")
        e(f"v_perm_b32 v50, v5, v4, {sBt}")
        e("v_mov_b32 v51, 0")
        for k in range(3):
            e(f"v_cndmask_b32 v{48 + k}, v{48 + k}, 0, {sHI}")
        e(f"s_lshl_b32 {sA}, {sW}, 10")
        e(f"s_add_u32 {sA}, {sA}, {L_XA}")
        e(f"v_add_u32 v4, {sA}, {vL16}")
        e("ds_write_b128 v4, v[48:51]")
        e("s_waitcnt lgkmcnt(0)")
        e("s_barrier")
        self.stamp("bias")

        def rd_a(ks):
            d = AR + 16 * (ks % 2)
            if ks == 28:
                e(f"v_add_u32 v4, {L_XA}, {vL16}")
                for t in range(4):
                    e(f"ds_read_b128 {ar(d + 4 * t)}, v4 offset:{t * 1024}", ("a", ks, t))
                return
            for t in range(4):
                e(f"ds_read_b64_tr_b16 {ar(d + 4 * t, 2)}, v{8 + t} offset:{aoff(ks)}", ("a", ks, t))
                e(f"ds_read_b64_tr_b16 {ar(d + 4 * t + 2, 2)}, v{8 + t} offset:{aoff(ks) + 2048}", ("a", ks, t))

        rd_a(0)
        e(f"v_min_u32 v4, 27, {vL}")
        e(f"v_lshlrev_b32 v4, 2, v4")
        e(f"s_lshl_b32 {sE}, {sI}, 2")
        e(f"s_add_u32 {sE}, {sE}, {sW}")
        e(f"s_lshl_b32 {sA}, {sE}, 7")
        e(f"s_add_u32 {sA}, {sA}, {WS_FLZ}")
        self.poll("v4", sA, "v5")
        self.acquire()
        self.stamp("zflag")
        NB = 6
        e(f"s_mul_i32 s88, {sE}, 57344")
        e(f"s_add_u32 s88, s88, {WS_Z}")
        e(f"s_add_u32 s89, s88, 28672")

        def ld_b(ks):
            if ks and ks % 4 == 0:
                e("s_add_u32 s88, s88, 4096")
                e("s_add_u32 s89, s89, 4096")
            for tt in range(2):
                e(f"buffer_load_dwordx4 {vr(BR + 8 * (ks % NB) + 4 * tt)}, {vL16}, {srd(SRD_WS)}, s{88 + tt} offen offset:{(ks % 4) * 1024} sc1", ("z", ks))

        for ks in range(NB - 1):
            ld_b(ks)
        e(f"s_mul_i32 {sA}, {sE}, 3584")
        e(f"s_add_u32 {sA}, {sA}, {WS_STAT}")
        e(f"v_lshlrev_b32 v4, 3, {vL}")
        for cg in range(7):
            e(f"buffer_load_dwordx2 {vr(32 + 2 * cg, 2)}, v4, {srd(SRD_WS)}, {sA} offen offset:{cg * 512} sc1", "stat")
        e(f"s_mul_i32 s90, {sW}, {448 * 896}")
        e(f"s_lshl_b32 {sA}, {sCG}, 7")
        e(f"s_add_u32 s90, s90, {sA}")

        def wd_dma(j):
            for hlf in range(2):
                e(f"s_add_u32 {sA}, s90, {(16 * j + 8 * hlf) * 896}")
                e(f"s_add_u32 {sBt}, s99, {(j % 4) * 2048 + hlf * 1024}")
                self.dma("v13", SRD_WD, sA, sBt, ("wd", j))

        def wd_rd(j):
            for ct in range(2):
                d = WD + 8 * j + 4 * ct
                e(f"ds_read_b64_tr_b16 {ar(d, 2)}, v{24 + ct} offset:{(j % 4) * 2048}", ("wdr", j))
                e(f"ds_read_b64_tr_b16 {ar(d + 2, 2)}, v{24 + ct} offset:{(j % 4) * 2048 + 1024}", ("wdr", j))

        def stats():
            e.wait(vm="stat")
            e("v_add_f32 v4, v32, v34")
            e("v_add_f32 v5, v36, v38")
            e("v_add_f32 v6, v40, v42")
            e("v_add_f32 v4, v4, v5")
            e("v_add_f32 v6, v6, v44")
            e("v_add_f32 v4, v4, v6")
            e(f"v_mul_f32 v4, {fbits(1.0 / 448)}, v4")
            e("v_add_f32 v5, v33, v35")
            e("v_add_f32 v6, v37, v39")
            e("v_add_f32 v7, v41, v43")
            e("v_add_f32 v5, v5, v6")
            e("v_add_f32 v7, v7, v45")
            e("v_add_f32 v5, v5, v7")
            e(f"v_mov_b32 v7, {fbits(1.0 / 64)}")
            e("v_mov_b32 v6, 0")
            for cg in range(7):
                e(f"v_fma_f32 v46, v{32 + 2 * cg}, v7, -v4")
                e("v_fmac_f32 v6, v46, v46")
            e(f"v_mul_f32 v6, {fbits(64.0)}, v6")
            e("v_add_f32 v5, v5, v6")
            e(f"v_mul_f32 v5, {fbits(1.0 / 448)}, v5")
            e(f"v_add_f32 v5, {fbits(1e-5)}, v5")
            e(f"v_rcp_f32 v{R2}, v5")
            e("v_sqrt_f32 v5, v5")
            e("v_sub_f32 v4, 0, v4")
            e("v_cvt_pk_bf16_f32 v6, v4, v5")
            e("v_lshlrev_b32 v7, 16, v6")
            e("v_and_b32 v46, 0xffff0000, v6")
            e("v_sub_f32 v4, v4, v7")
            e("v_sub_f32 v5, v5, v46")
            e("v_cvt_pk_bf16_f32 v7, v4, v5")
            e(f"s_mov_b32 {sA}, 0x01000100")
            e(f"s_mov_b32 {sBt}, 0x03020504")
            e(f"s_mov_b32 {sC}, 0x07060302")
            e(f"v_perm_b32 v{XB}, v7, v6, {sA}")
            e(f"v_perm_b32 v{XB + 1}, v7, v6, {sBt}")
            e(f"v_perm_b32 v{XB + 2}, v7, v6, {sC}")
            e(f"v_mov_b32 v{XB + 3}, 0")
            e(f"v_mov_b32 v{XB + 7}, 0")
            for k in range(3):
                e(f"v_mov_b32 v{XB + 4 + k}, v{XB + k}")
            e(f"v_mov_b32 v{R2 + 1}, v{R2}")
            for k in range(3):
                e(f"v_permlane32_swap_b32 v{XB + k}, v{XB + 4 + k}")
            e(f"v_permlane32_swap_b32 v{R2}, v{R2 + 1}")

        for ks in range(29):
            if ks + NB - 1 < 28:
                ld_b(ks + NB - 1)
            if ks < 28:
                if ks >= 4:
                    e.wait(lg=("wdr", ks - 4))
                wd_dma(ks)
            if ks + 1 <= 28:
                rd_a(ks + 1)
            if ks >= 3:
                e.wait(vm=("wd", ks - 3))
                wd_rd(ks - 3)
            if ks == 10:
                stats()
            if ks < 28:
                e.wait(vm=("z", ks))
            d = AR + 16 * (ks % 2)
            for t in range(4):
                e.wait(lg=("a", ks, t))
                for tt in range(2):
                    acc = AC + 64 * tt + 16 * t
                    b = vr(BR + 8 * (ks % NB) + 4 * tt) if ks < 28 else vr(XB + 4 * tt)
                    c = "0" if ks == 0 else vr(acc, 16)
                    e(f"v_mfma_f32_32x32x16_bf16 {vr(acc, 16)}, {ar(d + 4 * t)}, {b}, {c}")
        for j in (26, 27):
            e.wait(vm=("wd", j))
            wd_rd(j)
        self.stamp("gemm4")
        e(f"s_mul_i32 {sA}, {sE}, {2 * 114688}")
        e(f"s_lshl_b32 {sBt}, {sR}, 12")
        e(f"s_add_u32 {sA}, {sA}, {sBt}")
        e(f"s_add_u32 {sA}, {sA}, {WS_HID}")
        for tt in range(2):
            for ct in range(2):
                g, u = AC + 64 * tt + 16 * ct, AC + 64 * tt + 32 + 16 * ct
                for r in range(16):
                    e(f"v_max_f32 v{g + r}, 0, v{g + r}")
                    e(f"v_mul_f32 v{u + r}, v{R2 + tt}, v{u + r}")
                d = BR + 16 * tt + 8 * ct
                for k in range(8):
                    e(f"v_mul_f32 v{g + 2 * k}, v{g + 2 * k}, v{u + 2 * k}")
                    e(f"v_mul_f32 v{g + 2 * k + 1}, v{g + 2 * k + 1}, v{u + 2 * k + 1}")
                    e(f"v_cvt_pk_bf16_f32 v{d + k}, v{g + 2 * k}, v{g + 2 * k + 1}")
                for s in range(2):
                    e(f"buffer_store_dwordx4 {vr(d + 4 * s)}, {vL16}, {srd(SRD_WS)}, {sA} offen offset:{(2 * ct + s) * 1024}")
            if tt == 0:
                e(f"s_add_u32 {sA}, {sA}, 114688")
        e(f"s_lshl_b32 {sA}, {sE}, 5")
        e(f"s_add_u32 {sA}, {sA}, {sR}")
        e(f"s_lshl_b32 {sA}, {sA}, 2")
        e(f"s_add_u32 {sA}, {sA}, {WS_FLD}")
        self.stamp("epi4")
        self.publish(sA, "v7")
        self.stamp("hidpub")

    def p5(self):
        e = self.e
        AC, WD = 128, 0
        bufs = [vr(64 + 4 * k) for k in range(16)] + [vr(192 + 4 * k) for k in range(16)] + [ar(224 + 4 * k) for k in range(8)]
        NB = len(bufs) // 2
        e(f"s_lshl_b32 {sE}, {sI}, 2")
        e(f"s_add_u32 {sE}, {sE}, {sRB}")
        e(f"v_min_u32 v4, 6, {vL}")
        e(f"v_lshlrev_b32 v4, 2, v4")
        e(f"s_lshl_b32 {sA}, {sE}, 7")
        e(f"s_mul_i32 {sBt}, {sW}, 28")
        e(f"s_add_u32 {sA}, {sA}, {sBt}")
        e(f"s_add_u32 {sA}, {sA}, {WS_FLD}")
        e("s_waitcnt lgkmcnt(0)")
        self.poll("v4", sA, "v5")
        self.acquire()
        self.stamp("hidflag")
        e(f"s_mul_i32 s88, {sE}, {2 * 114688}")
        e(f"s_mul_i32 {sBt}, {sW}, 28672")
        e(f"s_add_u32 s88, s88, {sBt}")
        e(f"s_add_u32 s88, s88, {WS_HID}")
        e(f"s_add_u32 s89, s88, 114688")

        def ld_b(j):
            if j and j % 4 == 0:
                e("s_add_u32 s88, s88, 4096")
                e("s_add_u32 s89, s89, 4096")
            for tt in range(2):
                e(f"buffer_load_dwordx4 {bufs[2 * (j % NB) + tt]}, {vL16}, {srd(SRD_WS)}, s{88 + tt} offen offset:{(j % 4) * 1024} sc1", ("d", j))

        for j in range(NB - 1):
            ld_b(j)
        e(f"v_and_b32 v4, 31, {vL}")
        e(f"v_and_b32 v5, 7, {vL}")
        e(f"v_and_b32 v6, 4, {vL}")
        e("v_lshl_add_u32 v5, v6, 1, v5")
        e(f"v_lshrrev_b32 v6, 5, {vL}")
        e("v_xor_b32 v5, v5, v6")
        e("v_lshlrev_b32 v4, 8, v4")
        e(f"s_lshl_b32 {sA}, {sW}, 14")
        e(f"v_add_u32 v4, {sA}, v4")
        for p in range(8):
            e(f"v_xor_b32 v6, {2 * p}, v5")
            e(f"v_lshl_add_u32 v{32 + p}, v6, 4, v4")
        e(f"v_lshrrev_b32 v4, 2, {vL}")
        e("v_and_b32 v5, 7, v4")
        e("v_and_b32 v6, 4, v4")
        e("v_lshl_add_u32 v5, v6, 1, v5")
        e(f"v_and_b32 v6, 3, {vL}")
        e("v_lshlrev_b32 v7, 1, v6")
        e("v_xor_b32 v5, v5, v7")
        e("v_lshlrev_b32 v4, 8, v4")
        e(f"s_lshl_b32 {sA}, {sW}, 12")
        e(f"v_add_u32 v4, {sA}, v4")
        for n, p in enumerate((0, 1, 8, 9)):
            e(f"v_xor_b32 v7, {p}, v5")
            e(f"v_lshl_add_u32 v{40 + n}, v7, 4, v4")
        e("v_lshlrev_b32 v6, 5, v6")
        for n in range(4):
            e(f"ds_read_b128 {vr(48 + 4 * n)}, v6 offset:{L_GAB + 256 + (n >> 1) * 128 + (n & 1) * 16}")
        for j in range(28):
            if j + NB - 1 < 28:
                ld_b(j + NB - 1)
            e.wait(vm=("d", j))
            for tt in range(2):
                for ct in range(2):
                    acc = AC + 32 * tt + 16 * ct
                    c = "0" if j == 0 else vr(acc, 16)
                    e(f"v_mfma_f32_32x32x16_bf16 {vr(acc, 16)}, {ar(WD + 8 * j + 4 * ct)}, {bufs[2 * (j % NB) + tt]}, {c}")
        self.stamp("gemm5")
        e("s_waitcnt lgkmcnt(0)")
        e("s_barrier")
        for tt in range(2):
            for ct in range(2):
                for q in range(4):
                    e(f"ds_write_b128 v{32 + 4 * ct + q}, {vr(AC + 32 * tt + 16 * ct + 4 * q)} offset:{L_RED + tt * 8192}")
        for k in range(8):
            e(f"v_lshlrev_b32 v{64 + 2 * k}, 16, v{16 + k}")
            e(f"v_and_b32 v{65 + 2 * k}, 0xffff0000, v{16 + k}")
        e("s_waitcnt lgkmcnt(0)")
        e("s_barrier")
        for n in range(4):
            for s in range(4):
                e(f"ds_read_b128 {vr(128 + 16 * n + 4 * s)}, v{40 + n} offset:{L_RED + s * 16384}", ("r", n))
        for n in range(4):
            e.wait(lg=("r", n))
            b = 128 + 16 * n
            for k in range(4):
                e(f"v_add_f32 v{b + k}, v{b + k}, v{b + 4 + k}")
                e(f"v_add_f32 v{b + 8 + k}, v{b + 8 + k}, v{b + 12 + k}")
            for k in range(4):
                e(f"v_add_f32 v{b + k}, v{b + k}, v{b + 8 + k}")
            for k in range(4):
                e(f"v_fmac_f32 v{64 + 4 * n + k}, v{48 + 4 * n + k}, v{b + k}")
            e(f"v_cvt_pk_bf16_f32 v{80 + 2 * n}, v{64 + 4 * n}, v{65 + 4 * n}")
            e(f"v_cvt_pk_bf16_f32 v{81 + 2 * n}, v{66 + 4 * n}, v{67 + 4 * n}")
            if n & 1:
                e(f"buffer_store_dwordx4 {vr(80 + 4 * (n >> 1))}, v15, {srd(SRD_OUT)}, s100 offen offset:{64 * (n >> 1)}")
        self.stamp("end")

    def finish(self):
        e = self.e
        e("L_fin:")
        if self.ts:
            e("s_lshl_b32 s88, s2, 2")
            e(f"s_add_u32 s88, s88, {sW}")
            e("s_lshl_b32 s88, s88, 7")
            e(f"s_add_u32 s88, s88, {WS_TS}")
            e(f"v_lshlrev_b32 v4, 2, {vL}")
            e("s_mov_b32 exec_hi, 0")
            e(f"buffer_store_dword {vTS}, v4, {srd(SRD_WS)}, s88 offen")
        e("L_end:")
        e("s_endpgm")

    def build(self):
        phases = [self.entry, self.front, self.f1, self.p1, self.late_consts, self.p2, self.p3, self.p4, self.p5]
        for ph in phases:
            self.e(f"; ---- {ph.__name__}")
            ph()
            if self.stop_after == ph.__name__:
                break
        self.finish()
        body, nops = self.e.text()
        head = open(f"cdna_kernels/{NAME}.s.ref").read().split("; Override launch")[0]
        txt = head
        txt += f"; @launch grid=(256,1,1) block=(256,1,1) lds={LDS_BYTES}\n"
        txt += '.amdgcn_target "amdgcn-amd-amdhsa--gfx950"\n.text\n'
        txt += f".globl {NAME}_kernel\n.p2align 8\n.type {NAME}_kernel,@function\n{NAME}_kernel:\n"
        txt += body
        txt += '.section .rodata,"a"\n.p2align 6\n'
        txt += f".amdhsa_kernel {NAME}_kernel\n"
        txt += ("  .amdhsa_next_free_vgpr 512\n  .amdhsa_next_free_sgpr 102\n  .amdhsa_accum_offset 256\n"
                "  .amdhsa_group_segment_fixed_size 0\n  .amdhsa_kernarg_size 96\n  .amdhsa_user_sgpr_count 2\n"
                "  .amdhsa_user_sgpr_kernarg_segment_ptr 1\n  .amdhsa_system_sgpr_workgroup_id_x 1\n"
                "  .amdhsa_float_denorm_mode_32 3\n"
                ".end_amdhsa_kernel\n")
        return txt, nops


def parse_opts(args):
    o = {}
    for a in args:
        k, v = a.split("=")
        o[k] = int(v)
    return o


if __name__ == "__main__":
    out = sys.argv[1]
    o = parse_opts(sys.argv[2:])
    g = Gen(ts=bool(o.pop("ts", 0)), opts=o)
    txt, nops = g.build()
    open(out, "w").write(txt)
    if g.ts:
        open(out + ".ts", "w").write("\n".join(g.ts_names))
    print("written", out, "lines", txt.count("\n"), "nop pads", nops)
```

```python
import math
import struct
import sys

sys.path.insert(0, "work")
from emit import Emit

NAME = "adaLN_cond__sliding_block__glu_gated_reglu__prompt"

WS_EPOCH = 0x0
WS_XCC = 0x400
WS_FLH = 0x1000
WS_FLO = 0x2000
WS_FLZ = 0x3000
WS_FLD = 0x4000
WS_FLKV = 0x8000
WS_MODP = 0x10000
WS_STAT = 0x20000
WS_TS = 0x40000
WS_H = 0x100000
WS_O = 0x300000
WS_KV = 0x500000
WS_HID = 0x900000
WS_Z = 0x1000000
WS_SIZE = 0x1200000

L_CVEC = 0
L_GAB = 1792
L_STATX = 2304
L_MODR = 2560
L_WQ, L_WK, L_WV = 3584, 32256, 60928
L_KV = 56832
L_SCR = 89600
L_WO = 105984
L_PAD = 163328
L_WG, L_WU = 3584, 60928
L_STG = 118272
L_XA = 151040
L_X1 = 155136
L_RED = 3584
LDS_BYTES = 163840

SRD_X, SRD_WQKV, SRD_WO, SRD_WG, SRD_WU, SRD_WD = 4, 8, 12, 16, 20, 24
SRD_C, SRD_WM, SRD_OUT, SRD_DBG, SRD_WS = 28, 32, 36, 40, 44
sI, sR, sW, sH, sB, sT, sTAG, sFAST = "s48", "s49", "s50", "s51", "s52", "s53", "s54", "s55"
sA, sBt, sC, sD, sE = "s56", "s57", "s58", "s59", "s60"
sRB, sCG, sSPIN = "s61", "s62", "s63"
SMASK = 64
sHI, sHIp = "s[96:97]", 96
sTSp = 0
sADJ = "s3"

vL, vL16, vTS, vE = "v0", "v1", "v2", "v3"

SPIN_MAX = 1 << 17


def srd(n):
    return f"s[{n}:{n + 3}]"


def vr(n, k=4):
    return f"v[{n}:{n + k - 1}]" if k > 1 else f"v{n}"


def ar(n, k=4):
    return f"a[{n}:{n + k - 1}]" if k > 1 else f"a{n}"


def fbits(x):
    return "0x%08x" % struct.unpack("<I", struct.pack("<f", x))[0]


class Gen:
    def __init__(self, ts=False, stop_after=None, opts=None):
        self.e = Emit()
        self.ts = ts
        self.stop_after = stop_after
        self.o = dict(opts or {})
        self.nts = 0
        self.ts_names = []

    def stamp(self, name):
        if not self.ts:
            return
        e = self.e
        e(f"s_memrealtime s[{sTSp}:{sTSp + 1}]")
        e("s_waitcnt lgkmcnt(0)")
        e(f"v_writelane_b32 {vTS}, s{sTSp}, {self.nts}")
        self.ts_names.append(name)
        self.nts += 1

    def poll(self, voff, soff, vtmp, imm=0):
        e = self.e
        lp, dn = e.label("poll"), e.label("polled")
        e(f"s_mov_b32 {sSPIN}, 0")
        e(f"{lp}:")
        e(f"buffer_load_dword {vtmp}, {voff}, {srd(SRD_WS)}, {soff} offen offset:{imm} sc1")
        e(f"s_add_u32 {sSPIN}, {sSPIN}, 1")
        e(f"s_cmp_ge_u32 {sSPIN}, {SPIN_MAX}")
        e("s_waitcnt vmcnt(0)")
        e(f"s_cbranch_scc1 {dn}")
        e(f"v_cmp_ne_u32 vcc, {sTAG}, {vtmp}")
        e(f"s_cbranch_vccnz {lp}")
        e(f"{dn}:")

    def acquire(self):
        e = self.e
        sk = e.label("acq")
        e(f"s_cmp_lg_u32 {sFAST}, 0")
        e(f"s_cbranch_scc1 {sk}")
        e("buffer_inv sc1")
        e("s_waitcnt vmcnt(0)")
        e(f"{sk}:")

    def publish(self, soff, vtmp, local=True):
        e = self.e
        e("s_waitcnt vmcnt(0)")
        e(f"v_mov_b32 {vtmp}, {sTAG}")
        if local:
            slow, dn = e.label("slowpub"), e.label("pub")
            e(f"s_cmp_lg_u32 {sFAST}, 0")
            e(f"s_cbranch_scc0 {slow}")
            e("s_mov_b64 exec, 1")
            e(f"buffer_store_dword {vtmp}, off, {srd(SRD_WS)}, {soff}")
            e(f"s_branch {dn}")
            e(f"{slow}:")
            e("buffer_wbl2 sc1")
            e("s_waitcnt vmcnt(0)")
            e("s_mov_b64 exec, 1")
            e(f"buffer_store_dword {vtmp}, off, {srd(SRD_WS)}, {soff} sc1")
            e(f"{dn}:")
        else:
            e("s_mov_b64 exec, 1")
            e(f"buffer_store_dword {vtmp}, off, {srd(SRD_WS)}, {soff} sc1")
        e("s_mov_b64 exec, -1")
        e.vm = ["flag"]

    def round_bf16(self, regs, tmp):
        e = self.e
        for a, b in zip(regs[::2], regs[1::2]):
            e(f"v_cvt_pk_bf16_f32 {tmp}, {a}, {b}")
            e(f"v_lshlrev_b32 {a}, 16, {tmp}")
            e(f"v_and_b32 {b}, 0xffff0000, {tmp}")

    def gather_mod(self, voff, g0, t0):
        e = self.e
        lp, dn = e.label("gath"), e.label("gathd")
        e(f"s_mov_b32 {sSPIN}, 0")
        e(f"s_mov_b32 {sD}, 0x0c0c0400")
        e(f"s_mov_b32 {sE}, 0x04000c0c")
        e(f"{lp}:")
        for q in range(4):
            e(f"s_mov_b32 {sA}, {WS_MODP + q * 10752}")
            e(f"buffer_load_dwordx4 {vr(g0 + 4 * q)}, {voff}, {srd(SRD_WS)}, {sA} offen sc1")
        e(f"s_add_u32 {sSPIN}, {sSPIN}, 1")
        e(f"s_cmp_ge_u32 {sSPIN}, {SPIN_MAX}")
        e("s_waitcnt vmcnt(0)")
        e(f"s_cbranch_scc1 {dn}")
        for q in range(4):
            b = g0 + 4 * q
            e(f"v_perm_b32 v{t0}, v{b + 1}, v{b}, {sD}")
            e(f"v_perm_b32 v{t0 + 1}, v{b + 3}, v{b + 2}, {sE}")
            e(f"v_or_b32 v{t0}, v{t0}, v{t0 + 1}")
            e(f"v_xor_b32 v{t0 + 2 + q}, {sTAG}, v{t0}")
        e(f"v_or3_b32 v{t0}, v{t0 + 2}, v{t0 + 3}, v{t0 + 4}")
        e(f"v_or_b32 v{t0}, v{t0}, v{t0 + 5}")
        e(f"v_cmp_ne_u32 vcc, 0, v{t0}")
        e(f"s_cbranch_vccnz {lp}")
        e(f"{dn}:")
        for k in range(16):
            e(f"v_and_b32 v{g0 + k}, 0xffffff00, v{g0 + k}")
        for k in range(4):
            e(f"v_add_f32 v{g0 + k}, v{g0 + k}, v{g0 + 4 + k}")
            e(f"v_add_f32 v{g0 + 8 + k}, v{g0 + 8 + k}, v{g0 + 12 + k}")
        for k in range(4):
            e(f"v_add_f32 v{g0 + k}, v{g0 + k}, v{g0 + 8 + k}")
        self.round_bf16([f"v{g0 + k}" for k in range(4)], f"v{t0}")

    def dma(self, voff, srdn, soff, lds, tag, mods=""):
        e = self.e
        e(f"s_mov_b32 m0, {lds}")
        e(f"buffer_load_dwordx4 {voff}, {srd(srdn)}, {soff} offen {mods} lds", tag)

    def entry(self):
        e = self.e
        e("s_cmp_ge_u32 s2, 256")
        e("s_cbranch_scc1 L_end")
        e("s_load_dwordx16 s[64:79], s[0:1], 0")
        e("s_load_dwordx8 s[80:87], s[0:1], 64")
        if self.ts:
            e(f"v_mov_b32 {vTS}, 0")
        self.stamp("start")
        e(f"v_lshrrev_b32 v4, 6, v0")
        e(f"v_and_b32 {vL}, 63, v0")
        e(f"v_readfirstlane_b32 {sW}, v4")
        e(f"v_lshlrev_b32 {vL16}, 4, {vL}")
        e(f"s_and_b32 {sI}, s2, 7")
        e(f"s_lshr_b32 {sR}, s2, 3")
        e(f"s_lshr_b32 {sH}, {sR}, 1")
        e(f"s_and_b32 {sB}, {sR}, 1")
        e(f"s_lshl_b32 {sT}, {sI}, 1")
        e(f"s_add_u32 {sT}, {sT}, {sB}")
        e(f"s_lshl_b32 {sT}, {sT}, 2")
        e(f"s_add_u32 {sT}, {sT}, {sW}")
        e(f"s_mul_i32 {sRB}, {sR}, 37")
        e(f"s_lshr_b32 {sRB}, {sRB}, 8")
        e(f"s_mul_i32 {sA}, {sRB}, 7")
        e(f"s_sub_u32 {sCG}, {sR}, {sA}")
        e(f"s_cmp_eq_u32 {sH}, 15")
        e(f"s_cselect_b32 {sADJ}, 8, 0")
        e(f"s_mov_b32 s{sHIp}, 0")
        e(f"s_mov_b32 s{sHIp + 1}, -1")
        sizes = {SRD_X: 1835008, SRD_WQKV: 1204224, SRD_WO: 401408, SRD_WG: 1605632, SRD_WU: 1605632, SRD_WD: 1605632,
                 SRD_C: 896, SRD_WM: 2408448, SRD_OUT: 1835008, SRD_DBG: 256, SRD_WS: WS_SIZE}
        for n, sz in sizes.items():
            e(f"s_mov_b32 s{n + 2}, {sz}")
            e(f"s_mov_b32 s{n + 3}, 0x00020000")
        e("s_waitcnt lgkmcnt(0)")
        src = {SRD_WS: 86, SRD_C: 78, SRD_WM: 80, SRD_X: 64, SRD_WQKV: 66, SRD_WO: 68, SRD_WG: 72, SRD_WU: 74, SRD_WD: 76,
               SRD_OUT: 82, SRD_DBG: 84}
        for n, s in src.items():
            e(f"s_mov_b64 s[{n}:{n + 1}], s[{s}:{s + 1}]")

    def wqkv_dma(self, lo, hi):
        e = self.e
        for n in range(lo, hi):
            mat, kk = divmod(n, 7)
            gcol = (896, 1792, 0)[mat]
            lbase = (L_WK, L_WV, L_WQ)[mat]
            e(f"s_add_u32 {sA}, {sC}, {gcol + kk * 4 * 16 * 2688}")
            e(f"s_add_u32 {sBt}, {sD}, {lbase + kk * 4096}")
            self.dma("v10", SRD_WQKV, sA, sBt, "wqkv")

    def front(self):
        e = self.e
        e(f"buffer_load_dword {vE}, off, {srd(SRD_WS)}, 0 sc1", "E")
        e(f"s_cmp_ge_u32 {sR}, 21")
        e("s_cbranch_scc1 L_nomod1")
        e(f"s_and_b32 {sA}, {sI}, 3")
        e(f"s_mul_i32 {sA}, {sA}, 112")
        e(f"s_mul_i32 {sBt}, {sW}, 28")
        e(f"s_add_u32 {sA}, {sA}, {sBt}")
        e(f"v_lshrrev_b32 v4, 4, {vL}")
        e(f"v_and_b32 v5, 15, {vL}")
        e(f"v_lshl_add_u32 v6, v5, 2, v4")
        e(f"v_add_u32 v6, {sA}, v6")
        e(f"v_lshlrev_b32 v6, 1, v6")
        e(f"buffer_load_ushort v16, v6, {srd(SRD_C)}, 0 offen", "c")
        e(f"v_mul_u32_u24 v7, 5376, v4")
        e(f"v_lshl_add_u32 v7, v5, 3, v7")
        e(f"s_lshr_b32 {sBt}, {sI}, 2")
        e(f"s_lshl_b32 {sC}, {sR}, 1")
        e(f"s_add_u32 {sBt}, {sBt}, {sC}")
        e(f"s_mul_i32 {sA}, {sA}, 5376")
        e(f"s_lshl_b32 {sC}, {sBt}, 7")
        e(f"s_add_u32 {sA}, {sA}, {sC}")
        for j in range(7):
            e(f"buffer_load_dwordx2 {vr(18 + 2 * j, 2)}, v7, {srd(SRD_WM)}, {sA} offen", "wm")
            if j < 6:
                e(f"s_add_u32 {sA}, {sA}, 21504")
        e("L_nomod1:")
        e(f"v_and_b32 v4, 7, {vL}")
        e(f"v_lshrrev_b32 v5, 3, {vL}")
        e(f"v_mul_u32_u24 v8, 896, v4")
        e(f"v_lshl_add_u32 v8, v5, 4, v8")
        e(f"v_cmp_gt_u32 vcc, 6, v5")
        e(f"v_add_u32 v9, 128, v8")
        e(f"v_mov_b32 v11, 0x7ffffff0")
        e(f"v_cndmask_b32 v9, v11, v9, vcc")
        e(f"s_lshl_b32 {sA}, {sI}, 5")
        e(f"s_add_u32 {sA}, {sA}, {sR}")
        e(f"s_mul_i32 {sA}, {sA}, 7168")
        e(f"s_mul_i32 {sBt}, {sW}, 224")
        e(f"s_add_u32 {sA}, {sA}, {sBt}")
        e(f"buffer_load_dwordx4 v[32:35], v8, {srd(SRD_X)}, {sA} offen", "x")
        e(f"buffer_load_dwordx4 v[36:39], v9, {srd(SRD_X)}, {sA} offen", "x")
        if self.o.get("codepf", 1):
            e("s_getpc_b64 s[88:89]")
            e("L_pc:")
            e("s_sub_u32 s88, s88, L_pc-" + NAME + "_kernel")
            e("s_subb_u32 s89, s89, 0")
            e(f"s_lshl_b32 {sA}, {sR}, 2")
            e(f"s_add_u32 {sA}, {sA}, {sW}")
            e(f"v_lshl_add_u32 v12, {vL}, 7, {sA}")
            e(f"v_lshlrev_b32 v12, 7, v12")
            e(f"v_min_u32 v12, L_end-" + NAME + "_kernel, v12")
            e("s_mov_b64 exec, 15")
            e("global_load_dword v13, v12, s[88:89]", "pf")
            e("s_mov_b64 exec, -1")
        e(f"v_lshrrev_b32 v10, 2, {vL}")
        e(f"v_mul_u32_u24 v10, 2688, v10")
        e(f"v_and_b32 v11, 3, {vL}")
        e(f"v_lshl_add_u32 v10, v11, 4, v10")
        e(f"s_mul_i32 {sC}, {sH}, 56")
        e(f"s_sub_u32 {sC}, {sC}, {sADJ}")
        e(f"s_mul_i32 {sA}, {sW}, {16 * 2688}")
        e(f"s_add_u32 {sC}, {sC}, {sA}")
        e(f"s_lshl_b32 {sD}, {sW}, 10")
        n_early = self.o.get("early_w", 7)
        self.wqkv_dma(0, n_early)
        full = list(e.vm)
        e.vm = [t for t in full if t not in ("c", "wm")]
        e.wait(vm="E")
        e.vm = full[1:]
        e(f"v_readfirstlane_b32 {sTAG}, {vE}")
        e(f"s_mul_i32 {sTAG}, {sTAG}, 1664525")
        e(f"s_add_u32 {sTAG}, {sTAG}, 1013904223")
        common = list(e.vm)
        e(f"s_cmp_lg_u32 {sW}, 3")
        e("s_cbranch_scc1 L_noxcc")
        e(f"s_getreg_b32 {sA}, hwreg(HW_REG_XCC_ID, 0, 4)")
        e(f"v_mov_b32 v14, {sTAG}")
        e(f"v_mov_b32 v15, {sA}")
        e(f"s_lshl_b32 {sA}, {sI}, 5")
        e(f"s_add_u32 {sA}, {sA}, {sR}")
        e(f"s_lshl_b32 {sA}, {sA}, 3")
        e(f"v_mov_b32 {vE}, 1")
        e("s_mov_b64 exec, 1")
        e(f"buffer_store_dwordx2 v[14:15], off, {srd(SRD_WS)}, {sA} offset:{WS_XCC} sc1")
        e(f"buffer_atomic_add {vE}, off, {srd(SRD_DBG)}, 0 sc0 sc1")
        e("s_mov_b64 exec, -1")
        e("L_noxcc:")
        e.vm = list(common)
        self.stamp("tag")
        e(f"s_cmp_ge_u32 {sR}, 21")
        e("s_cbranch_scc1 L_nomod2")
        e.wait(vm="c")
        e(f"v_lshlrev_b32 v16, 16, v16")
        e(f"v_mul_f32 v17, {fbits(-math.log2(math.e))}, v16")
        e("v_exp_f32 v17, v17")
        e("v_add_f32 v17, 1.0, v17")
        e("v_rcp_f32 v17, v17")
        e("v_mul_f32 v16, v16, v17")
        e("v_cvt_pk_bf16_f32 v16, v16, v16")
        e("v_lshlrev_b32 v16, 16, v16")
        for k in range(4):
            e(f"v_mov_b32 v{40 + k}, 0")
        e.wait(vm="wm")
        for j in range(7):
            a, b = 18 + 2 * j, 19 + 2 * j
            e(f"v_lshlrev_b32 v44, 16, v{a}")
            e(f"v_and_b32 v45, 0xffff0000, v{a}")
            e(f"v_lshlrev_b32 v46, 16, v{b}")
            e(f"v_and_b32 v47, 0xffff0000, v{b}")
            for k in range(4):
                e(f"v_fmac_f32_dpp v{40 + k}, v16, v{44 + k} row_newbcast:{j} row_mask:0xf bank_mask:0xf")
        e("v_permlane16_swap_b32 v40, v41")
        e("v_permlane16_swap_b32 v42, v43")
        e("v_add_f32 v40, v40, v41")
        e("v_add_f32 v42, v42, v43")
        e("v_permlane32_swap_b32 v40, v42")
        e("v_add_f32 v40, v40, v42")
        e(f"v_lshrrev_b32 v4, 4, {vL}")
        e(f"v_and_b32 v5, 15, {vL}")
        e(f"v_lshl_add_u32 v5, v5, 2, v4")
        e(f"s_lshl_b32 {sA}, {sW}, 8")
        e(f"v_lshl_add_u32 v5, v5, 2, {sA}")
        e(f"ds_write_b32 v5, v40 offset:{L_MODR}")
        e("s_waitcnt lgkmcnt(0)")
        e("s_barrier")
        e(f"s_cmp_lg_u32 {sW}, 0")
        e("s_cbranch_scc1 L_nomod2")
        e("s_mov_b64 exec, 0xffff")
        for k in range(4):
            e(f"ds_read_b128 {vr(40 + 4 * k)}, {vL16} offset:{L_MODR + 256 * k}")
        e(f"s_and_b32 {sA}, {sI}, 3")
        e(f"s_mul_i32 {sA}, {sA}, 10752")
        e(f"s_lshr_b32 {sBt}, {sI}, 2")
        e(f"s_lshl_b32 {sE}, {sR}, 1")
        e(f"s_add_u32 {sBt}, {sBt}, {sE}")
        e(f"s_lshl_b32 {sBt}, {sBt}, 8")
        e(f"s_add_u32 {sA}, {sA}, {sBt}")
        e(f"s_add_u32 {sA}, {sA}, {WS_MODP}")
        e("v_mov_b32 v5, 0xff")
        e("s_waitcnt lgkmcnt(0)")
        for k in range(4):
            e(f"v_add_f32 v{40 + k}, v{40 + k}, v{44 + k}")
            e(f"v_add_f32 v{48 + k}, v{48 + k}, v{52 + k}")
        for k in range(4):
            e(f"v_add_f32 v{40 + k}, v{40 + k}, v{48 + k}")
            e(f"s_lshr_b32 {sBt}, {sTAG}, {8 * k}")
            e(f"v_bfi_b32 v{40 + k}, v5, {sBt}, v{40 + k}")
        e(f"buffer_store_dwordx4 v[40:43], {vL16}, {srd(SRD_WS)}, {sA} offen sc1")
        e("s_mov_b64 exec, -1")
        e("L_nomod2:")
        e.vm = list(common)
        self.stamp("modpub")
        e.wait(vm="x")
        for k in range(8):
            e(f"v_lshlrev_b32 v{48 + 2 * k}, 16, v{32 + k}")
            e(f"v_and_b32 v{49 + 2 * k}, 0xffff0000, v{32 + k}")
        e("v_add_f32 v4, v48, v49")
        e("v_add_f32 v5, v50, v51")
        for k in range(4, 16, 2):
            e(f"v_add_f32 v4, v4, v{48 + k}")
            e(f"v_add_f32 v5, v5, v{49 + k}")
        e("v_add_f32 v4, v4, v5")
        self.reduce_hi3("v4", "v5")
        e(f"v_mul_f32 v6, {fbits(1.0 / 112)}, v4")
        e(f"v_lshrrev_b32 v5, 3, {vL}")
        e(f"v_cmp_gt_u32 s[90:91], 6, v5")
        e("v_mov_b32 v7, 0")
        e("v_mov_b32 v12, 0")
        for k in range(8):
            e(f"v_sub_f32 v5, v{48 + k}, v6")
            e(f"v_sub_f32 v11, v{56 + k}, v6")
            e("v_fmac_f32 v7, v5, v5")
            e("v_fmac_f32 v12, v11, v11")
        e("v_cndmask_b32 v12, 0, v12, s[90:91]")
        e("v_add_f32 v5, v7, v12")
        self.reduce_hi3("v5", "v7")
        e(f"s_lshl_b32 {sA}, {sW}, 6")
        e(f"v_and_b32 v6, 7, {vL}")
        e(f"v_lshlrev_b32 v6, 3, v6")
        e(f"v_add_u32 v7, {sA}, v6")
        e(f"ds_write_b64 v7, v[4:5] offset:{L_STATX}")
        e("v_mov_b32 v14, 0")
        e("v_mov_b32 v15, 0")
        e(f"v_lshlrev_b32 v7, 3, {vL}")
        e(f"v_add_u32 v7, {L_PAD}, v7")
        e(f"ds_write_b64 v7, v[14:15]")
        e("s_waitcnt lgkmcnt(0)")
        e("s_barrier")
        for k in range(4):
            e(f"ds_read_b64 {vr(16 + 2 * k, 2)}, v6 offset:{L_STATX + 64 * k}")
        e(f"s_mul_i32 {sC}, {sH}, 56")
        e(f"s_sub_u32 {sC}, {sC}, {sADJ}")
        e(f"s_mul_i32 {sA}, {sW}, {16 * 2688}")
        e(f"s_add_u32 {sC}, {sC}, {sA}")
        e(f"s_lshl_b32 {sD}, {sW}, 10")
        self.wqkv_dma(n_early, 21)
        e("s_waitcnt lgkmcnt(0)")
        e("v_add_f32 v4, v16, v18")
        e("v_add_f32 v5, v20, v22")
        e("v_add_f32 v4, v4, v5")
        e(f"v_mul_f32 v4, {fbits(1.0 / 448)}, v4")
        e("v_add_f32 v5, v17, v19")
        e("v_add_f32 v7, v21, v23")
        e("v_add_f32 v5, v5, v7")
        e(f"v_mov_b32 v12, {fbits(1.0 / 112)}")
        e("v_mov_b32 v7, 0")
        for k in range(4):
            e(f"v_fma_f32 v11, v{16 + 2 * k}, v12, -v4")
            e("v_fmac_f32 v7, v11, v11")
        e(f"v_mul_f32 v7, {fbits(112.0)}, v7")
        e("v_add_f32 v5, v5, v7")
        e(f"v_mul_f32 v5, {fbits(1.0 / 448)}, v5")
        self.round_bf16(["v4", "v5"], "v7")
        e(f"v_add_f32 v5, {fbits(1e-5)}, v5")
        e("v_cvt_pk_bf16_f32 v5, v5, v5")
        e("v_lshlrev_b32 v5, 16, v5")
        e("v_sqrt_f32 v5, v5")
        e("v_cvt_pk_bf16_f32 v5, v5, v5")
        e("v_lshlrev_b32 v5, 16, v5")
        e("v_rcp_f32 v5, v5")
        xs = [f"v{48 + k}" for k in range(16)]
        for x in xs:
            e(f"v_sub_f32 {x}, {x}, v4")
        self.round_bf16(xs, "v7")
        for x in xs:
            e(f"v_mul_f32 {x}, {x}, v5")
        self.round_bf16(xs, "v7")
        self.stamp("ln1")
        e(f"s_cmp_ge_u32 {sR}, 28")
        e("s_cbranch_scc1 L_nowo")
        e(f"v_lshrrev_b32 v4, 3, {vL}")
        e(f"v_and_b32 v5, 6, v4")
        e(f"v_and_b32 v6, 7, {vL}")
        e("v_xor_b32 v5, v5, v6")
        e("v_mul_u32_u24 v4, 896, v4")
        e("v_lshl_add_u32 v4, v5, 4, v4")
        e(f"s_lshl_b32 {sC}, {sCG}, 7")
        e(f"s_mul_i32 {sA}, {sW}, {14 * 8 * 896}")
        e(f"s_add_u32 {sC}, {sC}, {sA}")
        e(f"s_mul_i32 {sD}, {sW}, 14336")
        for n in range(14):
            e(f"s_add_u32 {sA}, {sC}, {n * 8 * 896}")
            e(f"s_add_u32 {sBt}, {sD}, {L_WO + n * 1024}")
            self.dma("v4", SRD_WO, sA, sBt, "wo")
        e("L_nowo:")
        self.pretouch()
        lp, dn = e.label("xcc"), e.label("xccd")
        e(f"v_and_b32 v4, 31, {vL}")
        e(f"v_lshlrev_b32 v4, 3, v4")
        e(f"s_lshl_b32 {sA}, {sI}, 8")
        e(f"s_mov_b32 {sSPIN}, 0")
        e(f"{lp}:")
        e(f"buffer_load_dwordx2 v[6:7], v4, {srd(SRD_WS)}, {sA} offen offset:{WS_XCC} sc1")
        e(f"s_add_u32 {sSPIN}, {sSPIN}, 1")
        e(f"s_cmp_ge_u32 {sSPIN}, {SPIN_MAX}")
        e("s_waitcnt vmcnt(0)")
        e(f"s_cbranch_scc1 {dn}")
        e(f"v_cmp_ne_u32 vcc, {sTAG}, v6")
        e(f"s_cbranch_vccnz {lp}")
        e(f"{dn}:")
        e(f"s_getreg_b32 {sA}, hwreg(HW_REG_XCC_ID, 0, 4)")
        e(f"v_cmp_ne_u32 vcc, {sA}, v7")
        e("s_cmp_eq_u64 vcc, 0")
        e(f"s_cselect_b32 {sFAST}, {0 if self.o.get('force_slow') else 1}, 0")
        e(f"s_cmp_lg_u32 {sW}, 3")
        e("s_cbranch_scc1 L_nobump")
        e(f"v_readfirstlane_b32 {sA}, {vE}")
        e(f"s_cmp_lg_u32 {sA}, 255")
        e("s_cbranch_scc1 L_nobump")
        e(f"v_mov_b32 v4, {sTAG}")
        e("s_mov_b64 exec, 1")
        e(f"buffer_store_dword v4, off, {srd(SRD_WS)}, 0 sc1")
        e("s_mov_b64 exec, -1")
        e("L_nobump:")
        e.vm = []
        self.stamp("xcc")

    def reduce_hi3(self, a, t):
        e = self.e
        e(f"v_add_f32_dpp {a}, {a}, {a} row_ror:8 row_mask:0xf bank_mask:0xf")
        self.reduce_hi2(a, t)

    def reduce_hi2(self, a, t, op="v_add_f32"):
        e = self.e
        e(f"v_mov_b32 {t}, {a}")
        e(f"v_permlane16_swap_b32 {a}, {t}")
        e(f"{op} {a}, {a}, {t}")
        e(f"v_mov_b32 {t}, {a}")
        e(f"v_permlane32_swap_b32 {a}, {t}")
        e(f"{op} {a}, {a}, {t}")

    def pretouch(self):
        if not self.o.get("pretouch", 1):
            return
        e = self.e
        e(f"s_lshl_b32 {sC}, {sR}, 2")
        e(f"s_add_u32 {sC}, {sC}, {sW}")
        areas = [(WS_H, 229376), (WS_O, 262144), (WS_Z, 229376), (WS_HID, 917504), (WS_STAT, 14336)]
        for base, per in areas:
            lines = per // 128
            per_wave = -(-lines // 128)
            e(f"s_mul_i32 {sA}, {sI}, {per}")
            e(f"s_add_u32 {sA}, {sA}, {base}")
            e(f"s_mul_i32 {sBt}, {sC}, {per_wave}")
            e(f"v_add_u32 v4, {sBt}, {vL}")
            e(f"v_min_u32 v4, {lines - 1}, v4")
            e(f"v_lshlrev_b32 v4, 7, v4")
            m = (1 << per_wave) - 1
            e(f"s_mov_b32 exec_lo, {hex(m & 0xffffffff)}")
            e(f"s_mov_b32 exec_hi, {hex(m >> 32)}")
            e(f"buffer_load_dword v13, v4, {srd(SRD_WS)}, {sA} offen sc1", "pt")
            e("s_mov_b64 exec, -1")
        e(f"v_and_b32 v4, 3, {vL}")
        e(f"v_lshlrev_b32 v4, 7, v4")
        e(f"v_lshrrev_b32 v5, 2, {vL}")
        e(f"v_lshl_add_u32 v4, v5, 12, v4")
        e(f"s_lshl_b32 {sA}, {sI}, 9")
        e(f"s_add_u32 {sA}, {sA}, {WS_FLH}")
        e("s_mov_b64 exec, 0xffff")
        e(f"buffer_load_dword v13, v4, {srd(SRD_WS)}, {sA} offen sc1", "pt")
        e("s_mov_b64 exec, -1")

    def f1(self):
        e = self.e
        e(f"v_lshrrev_b32 v5, 3, {vL}")
        e(f"v_bfe_u32 v6, {vL}, 2, 1")
        e(f"v_cmp_gt_u32 vcc, 6, v5")
        e(f"v_cndmask_b32 v6, 0, v6, vcc")
        e(f"v_lshl_add_u32 v6, v6, 3, v5")
        e(f"s_mul_i32 {sA}, {sW}, 14")
        e(f"v_add_u32 v6, {sA}, v6")
        e(f"v_bfe_u32 v7, {vL}, 1, 1")
        e(f"v_lshl_add_u32 v6, v6, 1, v7")
        e(f"v_and_b32 v7, 1, {vL}")
        e(f"v_mul_u32_u24 v7, 112, v7")
        e(f"v_add_u32 v6, v6, v7")
        e(f"v_lshlrev_b32 v8, 4, v6")
        self.gather_mod("v8", 16, 40)
        self.stamp("modgot")
        e(f"v_and_b32 v7, 1, {vL}")
        e(f"v_cvt_f32_u32 v7, v7")
        for k in range(4):
            e(f"v_add_f32 v{16 + k}, v{16 + k}, v7")
        self.round_bf16([f"v{16 + k}" for k in range(4)], "v40")
        e(f"s_lshl_b32 {sA}, {sW}, 12")
        e(f"s_add_u32 {sA}, {sA}, {L_SCR}")
        e(f"v_add_u32 v9, {sA}, {vL16}")
        e("ds_write_b128 v9, v[16:19]")
        e("v_and_b32 v9, 0xffffff80, v9")
        e("s_waitcnt lgkmcnt(0)")
        for it in range(8):
            e(f"ds_read_b128 {vr(64 + 4 * it)}, v9 offset:{16 * it}")
        e(f"v_and_b32 v4, 7, {vL}")
        e(f"v_lshlrev_b32 v4, 4, v4")
        e(f"v_lshl_add_u32 v4, v5, 9, v4")
        e(f"v_cmp_gt_u32 vcc, 6, v5")
        e(f"v_add_u32 v6, 4096, v4")
        e(f"v_mov_b32 v11, 0x7ffffff0")
        e(f"v_cndmask_b32 v6, v11, v6, vcc")
        e(f"s_lshr_b32 {sA}, {sR}, 2")
        e(f"s_lshl_b32 {sBt}, {sI}, 3")
        e(f"s_add_u32 {sBt}, {sBt}, {sA}")
        e(f"s_mul_i32 {sA}, {sBt}, 28672")
        e(f"s_and_b32 {sC}, {sR}, 3")
        e(f"s_lshl_b32 {sD}, {sC}, 7")
        e(f"s_add_u32 {sA}, {sA}, {sD}")
        e(f"s_mul_i32 {sD}, {sW}, 7168")
        e(f"s_add_u32 {sA}, {sA}, {sD}")
        e(f"s_add_u32 {sA}, {sA}, {WS_H}")
        e(f"s_lshl_b32 {sBt}, {sBt}, 6")
        e(f"s_lshl_b32 {sC}, {sC}, 4")
        e(f"s_add_u32 {sBt}, {sBt}, {sC}")
        e(f"s_lshl_b32 {sC}, {sW}, 2")
        e(f"s_add_u32 {sBt}, {sBt}, {sC}")
        e(f"s_add_u32 {sBt}, {sBt}, {WS_FLH}")
        e("s_waitcnt lgkmcnt(0)")
        for gs in range(2):
            xs = [f"v{48 + 8 * gs + k}" for k in range(8)]
            c1 = [f"v{64 + 4 * (4 * gs + 2 * (k >> 2) + 1) + (k & 3)}" for k in range(8)]
            c2 = [f"v{64 + 4 * (4 * gs + 2 * (k >> 2)) + (k & 3)}" for k in range(8)]
            if self.o.get("h_round", 1):
                for x, c in zip(xs, c1):
                    e(f"v_mul_f32 {x}, {x}, {c}")
                self.round_bf16(xs, "v7")
                for x, c in zip(xs, c2):
                    e(f"v_add_f32 {x}, {x}, {c}")
            else:
                for x, c, d in zip(xs, c1, c2):
                    e(f"v_fma_f32 {x}, {x}, {c}, {d}")
            for k in range(4):
                e(f"v_cvt_pk_bf16_f32 v{32 + 4 * gs + k}, {xs[2 * k]}, {xs[2 * k + 1]}")
            e(f"buffer_store_dwordx4 {vr(32 + 4 * gs)}, v{4 + 2 * gs}, {srd(SRD_WS)}, {sA} offen")
        self.publish(sBt, "v7")
        self.stamp("hpub")

    def p1(self):
        e = self.e
        ACK, ACV, ACQ = 16, 32, 48
        HB, WR = 0, 112
        e("s_barrier")
        e(f"v_lshrrev_b32 v4, 5, {vL}")
        e(f"v_lshlrev_b32 v4, 9, v4")
        e(f"v_bfe_u32 v5, {vL}, 2, 2")
        e(f"v_lshl_add_u32 v4, v5, 6, v4")
        e(f"v_bfe_u32 v5, {vL}, 4, 1")
        e(f"v_lshl_add_u32 v4, v5, 5, v4")
        e(f"v_and_b32 v5, 3, {vL}")
        e(f"v_lshl_add_u32 v4, v5, 3, v4")
        e(f"v_add_u32 v4, {sADJ}, v4")
        e(f"v_add_u32 v8, {L_WQ}, v4")
        e(f"v_add_u32 v9, {L_WK}, v4")
        DEPTH = 3

        def rd(addr, off, dst, tag):
            e(f"ds_read_b64_tr_b16 {ar(dst, 2)}, {addr} offset:{off}", tag)
            e(f"ds_read_b64_tr_b16 {ar(dst + 2, 2)}, {addr} offset:{off + 256}", tag)

        def rd_kv(ks):
            b = WR + 8 * (ks % 4)
            rd("v9", ks * 1024, b, ("kv", ks))
            rd("v9", 28672 + ks * 1024, b + 4, ("kv", ks))

        for ks in range(DEPTH):
            rd_kv(ks)
        e(f"v_and_b32 v4, 15, {vL}")
        e(f"v_lshlrev_b32 v4, 2, v4")
        e(f"s_lshl_b32 {sA}, {sT}, 6")
        e(f"s_add_u32 {sA}, {sA}, {WS_FLH}")
        self.poll("v4", sA, "v5")
        self.acquire()
        self.stamp("hflag")
        e(f"s_mul_i32 {sA}, {sT}, 28672")
        e(f"s_add_u32 {sA}, {sA}, {WS_H}")
        for ks in range(28):
            if ks and ks % 4 == 0:
                e(f"s_add_u32 {sA}, {sA}, 4096")
            e(f"buffer_load_dwordx4 {ar(HB + 4 * ks)}, {vL16}, {srd(SRD_WS)}, {sA} offen offset:{(ks % 4) * 1024} sc1", ("h", ks))
        for ks in range(28):
            if ks + DEPTH < 28:
                rd_kv(ks + DEPTH)
            e.wait(vm=("h", ks), lg=("kv", ks))
            b = WR + 8 * (ks % 4)
            ck = "0" if ks == 0 else vr(ACK, 16)
            cv = "0" if ks == 0 else vr(ACV, 16)
            e(f"v_mfma_f32_32x32x16_bf16 {vr(ACK, 16)}, {ar(b)}, {ar(HB + 4 * ks)}, {ck}")
            e(f"v_mfma_f32_32x32x16_bf16 {vr(ACV, 16)}, {ar(HB + 4 * ks)}, {ar(b + 4)}, {cv}")
        self.stamp("kvgemm")
        QR = WR + 32

        def rd_q(ks):
            rd("v8", ks * 1024, QR + 4 * (ks % 8), ("q", ks))

        for ks in range(4):
            rd_q(ks)
        e(f"s_mul_i32 {sA}, {sH}, 64")
        e(f"s_add_u32 {sA}, {sA}, {sT}")
        e(f"s_lshl_b32 {sA}, {sA}, 12")
        e(f"s_add_u32 {sA}, {sA}, {WS_KV}")
        e(f"s_lshl_b32 {sBt}, {sW}, 12")
        e(f"s_add_u32 {sBt}, {sBt}, {L_KV + 8 * 4096}")
        e(f"v_add_u32 v10, {sBt}, {vL16}")
        e(f"v_and_b32 v4, 31, {vL}")
        e(f"v_cmp_eq_u32 s[90:91], 28, v4")
        e("v_mov_b32 v11, 0x3f803f80")
        for k in range(8):
            e(f"v_cvt_pk_bf16_f32 v{64 + k}, v{ACK + 2 * k}, v{ACK + 2 * k + 1}")
        e(f"v_cndmask_b32 v70, v70, 0, {sHI}")
        e(f"v_cndmask_b32 v71, v71, 0, {sHI}")
        for f in range(2):
            e(f"buffer_store_dwordx4 {vr(64 + 4 * f)}, {vL16}, {srd(SRD_WS)}, {sA} offen offset:{f * 1024} sc1", "kvst")
        for k in range(8):
            e(f"v_cvt_pk_bf16_f32 v{72 + k}, v{ACV + 2 * k}, v{ACV + 2 * k + 1}")
            e(f"v_cndmask_b32 v{72 + k}, v{72 + k}, v11, s[90:91]")
        for f in range(2, 4):
            e(f"buffer_store_dwordx4 {vr(64 + 4 * f)}, {vL16}, {srd(SRD_WS)}, {sA} offen offset:{f * 1024} sc1", "kvst")
        for f in range(4):
            e(f"ds_write_b128 v10, {vr(64 + 4 * f)} offset:{f * 1024}", "kvw")
        for ks in range(28):
            if ks + 4 < 28:
                rd_q(ks + 4)
            e.wait(lg=("q", ks))
            cq = "0" if ks == 0 else vr(ACQ, 16)
            e(f"v_mfma_f32_32x32x16_bf16 {vr(ACQ, 16)}, {ar(QR + 4 * (ks % 8))}, {ar(HB + 4 * ks)}, {cq}")
        e(f"s_lshl_b32 {sA}, {sH}, 4")
        e(f"s_lshr_b32 {sBt}, {sT}, 2")
        e(f"s_add_u32 {sA}, {sA}, {sBt}")
        e(f"s_lshl_b32 {sA}, {sA}, 7")
        e(f"s_lshl_b32 {sBt}, {sW}, 2")
        e(f"s_add_u32 {sA}, {sA}, {sBt}")
        e(f"s_add_u32 {sA}, {sA}, {WS_FLKV}")
        self.publish(sA, "v7", local=False)
        self.stamp("kvpub")
        qs = 28 ** -0.5 * math.log2(math.e)
        e(f"s_mov_b32 {sA}, {fbits(qs)}")
        for k in range(16):
            e(f"v_mul_f32 v{ACQ + k}, {sA}, v{ACQ + k}")
        for k in range(8):
            e(f"v_cvt_pk_bf16_f32 v{64 + k}, v{ACQ + 2 * k}, v{ACQ + 2 * k + 1}")
        e("v_mov_b32 v11, 0x00003f80")
        e(f"v_cndmask_b32 v70, v70, v11, {sHI}")
        e(f"v_cndmask_b32 v71, v71, 0, {sHI}")
        e("s_waitcnt lgkmcnt(0)")
        e("s_barrier")

    def late_consts(self):
        e = self.e
        e(f"s_cmp_ge_u32 {sR}, 28")
        e("s_cbranch_scc1 L_nolate")
        e(f"s_lshl_b32 {sA}, {sW}, 6")
        e(f"v_add_u32 v4, {sA}, {vL}")
        e("v_cmp_gt_u32 vcc, 112, v4")
        e(f"s_movk_i32 {sBt}, 224")
        e(f"v_cmp_gt_u32 s[90:91], {sBt}, v4")
        e("v_subrev_u32 v5, 112, v4")
        e("v_cndmask_b32 v5, v5, v4, vcc")
        e("v_mov_b32 v6, 336")
        e("v_mov_b32 v7, 448")
        e("v_cndmask_b32 v6, v6, v7, vcc")
        e("v_add_u32 v6, v6, v5")
        e("v_and_b32 v7, 15, v4")
        e(f"s_lshl_b32 {sA}, {sCG}, 4")
        e(f"v_add_u32 v7, {sA}, v7")
        e("v_bfe_u32 v8, v4, 4, 1")
        e("v_mul_u32_u24 v8, 336, v8")
        e("v_add_u32 v7, v7, v8")
        e("v_add_u32 v7, 224, v7")
        e("v_cndmask_b32 v6, v7, v6, s[90:91]")
        e("v_lshlrev_b32 v8, 4, v6")
        e("s_mov_b64 s[92:93], vcc")
        self.gather_mod("v8", 16, 40)
        e("v_cndmask_b32 v7, 0, 1.0, s[92:93]")
        for k in range(4):
            e(f"v_add_f32 v{20 + k}, v{16 + k}, v7")
        e("v_cvt_pk_bf16_f32 v20, v20, v21")
        e("v_cvt_pk_bf16_f32 v21, v22, v23")
        e("v_lshrrev_b32 v6, 3, v5")
        e("v_lshlrev_b32 v6, 6, v6")
        e("v_and_b32 v7, 3, v5")
        e("v_lshl_add_u32 v6, v7, 4, v6")
        e("v_bfe_u32 v7, v5, 2, 1")
        e("v_lshl_add_u32 v6, v7, 3, v6")
        e("v_mov_b32 v7, 896")
        e("v_cndmask_b32 v7, v7, 0, s[92:93]")
        e("v_add_u32 v6, v6, v7")
        e("v_and_b32 v7, 31, v4")
        e("v_lshlrev_b32 v7, 4, v7")
        e("s_mov_b64 exec, s[90:91]")
        e(f"ds_write_b64 v6, v[20:21] offset:{L_CVEC}")
        e("s_not_b64 exec, exec")
        e(f"ds_write_b128 v7, v[16:19] offset:{L_GAB}")
        e("s_mov_b64 exec, -1")
        e(f"v_lshrrev_b32 v4, 2, {vL}")
        e(f"v_mul_u32_u24 v4, 896, v4")
        e(f"v_and_b32 v5, 3, {vL}")
        e(f"v_lshl_add_u32 v15, v5, 4, v4")
        e(f"s_lshl_b32 {sA}, {sI}, 2")
        e(f"s_add_u32 {sA}, {sA}, {sRB}")
        e(f"s_lshl_b32 {sA}, {sA}, 2")
        e(f"s_add_u32 {sA}, {sA}, {sW}")
        e(f"s_mul_i32 {sA}, {sA}, 14336")
        e(f"s_lshl_b32 {sBt}, {sCG}, 7")
        e(f"s_add_u32 s100, {sA}, {sBt}")
        e(f"buffer_load_dwordx4 v[240:243], v15, {srd(SRD_X)}, s100 offen")
        e(f"buffer_load_dwordx4 v[244:247], v15, {srd(SRD_X)}, s100 offen offset:64")
        e("L_nolate:")
        e.vm = []
        e.lg = []

    def p2(self):
        e = self.e
        QF = 64
        e(f"s_and_b32 {sA}, {sT}, 0xfc")
        e(f"s_lshl_b32 {sBt}, {sW}, 1")
        e(f"s_add_u32 {sA}, {sA}, {sBt}")
        e(f"s_lshl_b32 {sD}, {sW}, 13")
        e(f"s_add_u32 {sD}, {sD}, {L_KV}")
        e(f"s_cmp_lt_u32 {sA}, 8")
        e("s_cbranch_scc1 L_kvfill")
        e(f"s_sub_u32 {sC}, {sA}, 8")
        e(f"s_lshl_b32 {sA}, {sH}, 4")
        e(f"s_lshr_b32 {sBt}, {sC}, 2")
        e(f"s_add_u32 {sA}, {sA}, {sBt}")
        e(f"s_lshl_b32 {sA}, {sA}, 7")
        e(f"s_and_b32 {sBt}, {sC}, 3")
        e(f"s_lshl_b32 {sBt}, {sBt}, 2")
        e(f"s_add_u32 {sA}, {sA}, {sBt}")
        e(f"s_add_u32 {sA}, {sA}, {WS_FLKV}")
        e(f"v_and_b32 v4, 1, {vL}")
        e(f"v_lshlrev_b32 v4, 2, v4")
        self.poll("v4", sA, "v5")
        self.acquire()
        e(f"s_lshl_b32 {sA}, {sH}, 6")
        e(f"s_add_u32 {sA}, {sA}, {sC}")
        e(f"s_lshl_b32 {sA}, {sA}, 12")
        e(f"s_add_u32 {sA}, {sA}, {WS_KV}")
        for t in range(2):
            e(f"s_mov_b32 m0, {sD}")
            for f in range(4):
                e(f"buffer_load_dwordx4 {vL16}, {srd(SRD_WS)}, {sA} offen offset:{f * 1024} sc1 lds")
            if t == 0:
                e(f"s_add_u32 {sA}, {sA}, 4096")
                e(f"s_add_u32 {sD}, {sD}, 4096")
        e("s_branch L_kvdone")
        e("L_kvfill:")
        for k in range(8):
            e(f"v_mov_b32 v{16 + k}, 0")
        e("v_mov_b32 v4, 0x0000f149")
        e(f"v_cndmask_b32 v22, 0, v4, {sHI}")
        e(f"v_add_u32 v4, {sD}, {vL16}")
        for t in range(2):
            for f in range(4):
                e(f"ds_write_b128 v4, {vr(20 if f == 1 else 16)} offset:{t * 4096 + f * 1024}")
        e("L_kvdone:")
        e(f"v_and_b32 v4, 31, {vL}")
        e(f"v_lshrrev_b32 v5, 5, {vL}")
        e(f"v_lshlrev_b32 v5, 2, v5")
        e("v_sub_u32 v4, v4, v5")
        MK = 72
        e("v_mov_b32 v6, 0xffff")
        e("v_mov_b32 v7, 0xffff0000")
        for r in range(16):
            e(f"v_cmp_le_i32 s[{SMASK + 2 * r}:{SMASK + 2 * r + 1}], {(r >> 2) * 8 + (r & 3)}, v4")
        for k in range(8):
            e(f"v_cndmask_b32 v8, 0, v6, s[{SMASK + 4 * k}:{SMASK + 4 * k + 1}]")
            e(f"v_cndmask_b32 v9, 0, v7, s[{SMASK + 4 * k + 2}:{SMASK + 4 * k + 3}]")
            e(f"v_or_b32 v{MK + k}, v8, v9")
        e(f"s_lshl_b32 {sA}, {sW}, 12")
        e(f"s_add_u32 {sA}, {sA}, {L_KV}")
        e(f"v_add_u32 v10, {sA}, {vL16}")
        e("s_waitcnt vmcnt(0) lgkmcnt(0)")
        e("s_barrier")
        self.stamp("kvgot")
        KF, VF = 0, 72
        order = [0, 8, 1, 2, 3, 4, 5, 6, 7]
        for t in order:
            for f in range(2):
                e(f"ds_read_b128 {ar(KF + 8 * t + 4 * f)}, v10 offset:{t * 4096 + f * 1024}", ("k", t))
        S = [80, 96, 112]
        MG, NM, OA, PF = 128, 144, 160, 176
        vM = "v11"

        def s_mfma(t, dst, c):
            e(f"v_mfma_f32_32x32x16_bf16 {vr(dst, 16)}, {ar(KF + 8 * t)}, {vr(QF)}, {c}")
            e(f"v_mfma_f32_32x32x16_bf16 {vr(dst, 16)}, {ar(KF + 8 * t + 4)}, {vr(QF + 4)}, {vr(dst, 16)}")

        def maxred(src, first):
            for k in range(8):
                if first and k == 0:
                    e(f"v_max_f32 {vM}, v{src}, v{src + 1}")
                else:
                    e(f"v_max3_f32 {vM}, {vM}, v{src + 2 * k}, v{src + 2 * k + 1}")

        vq = list(order)
        e.wait(lg=("k", 0))
        s_mfma(0, S[0], "0")
        e.wait(lg=("k", 8))
        s_mfma(8, S[1], "0")
        e.wait(lg=("k", 1))
        s_mfma(1, S[2], "0")
        for r in range(16):
            e(f"v_cndmask_b32 v{MG + r}, v{S[0] + r}, v{S[1] + r}, s[{SMASK + 2 * r}:{SMASK + 2 * r + 1}]")
        for t in range(2, 9):
            if t < 8:
                e.wait(lg=("k", t))
                s_mfma(t, S[(t + 1) % 3], "0")
            for _ in range(2 if t < 5 else 1):
                if vq:
                    tv = vq.pop(0)
                    for f in range(2):
                        e(f"ds_read_b128 {ar(VF + 8 * tv + 4 * f)}, v10 offset:{tv * 4096 + 2048 + f * 1024}", ("v", tv))
            if t == 2:
                maxred(MG, True)
            maxred(S[t % 3], False)
        e(f"v_mov_b32 v4, {vM}")
        e(f"v_permlane32_swap_b32 {vM}, v4")
        e(f"v_max_f32 {vM}, {vM}, v4")
        for r in range(16):
            e(f"v_sub_f32 v{NM + r}, 0, {vM}")
        s_mfma(1, S[0], vr(NM, 16))
        s_mfma(2, S[1], vr(NM, 16))
        for r in range(16):
            e(f"v_sub_f32 v{MG + r}, v{MG + r}, {vM}")
        for r in range(16):
            e(f"v_exp_f32 v{MG + r}, v{MG + r}")
        for k in range(8):
            e(f"v_cvt_pk_bf16_f32 v{PF + k}, v{MG + 2 * k}, v{MG + 2 * k + 1}")
        for k in range(8):
            e(f"v_and_b32 v{PF + 8 + k}, v{PF + k}, v{MK + k}")
            e(f"v_xor_b32 v{PF + k}, v{PF + k}, v{PF + 8 + k}")
        e.wait(lg=("v", 8))
        e(f"v_mfma_f32_32x32x16_bf16 {vr(OA, 16)}, {ar(VF)}, {vr(PF)}, 0")
        e(f"v_mfma_f32_32x32x16_bf16 {vr(OA, 16)}, {ar(VF + 4)}, {vr(PF + 4)}, {vr(OA, 16)}")
        e(f"v_mfma_f32_32x32x16_bf16 {vr(OA, 16)}, {ar(VF + 64)}, {vr(PF + 8)}, {vr(OA, 16)}")
        e(f"v_mfma_f32_32x32x16_bf16 {vr(OA, 16)}, {ar(VF + 68)}, {vr(PF + 12)}, {vr(OA, 16)}")
        e("s_waitcnt lgkmcnt(0)")
        for t in range(1, 8):
            src = S[(t - 1) % 3]
            pf = PF + 16 + 8 * (t & 1)
            for r in range(8):
                e(f"v_exp_f32 v{src + r}, v{src + r}")
            if t + 2 < 8:
                e(f"v_mfma_f32_32x32x16_bf16 {vr(S[(t + 1) % 3], 16)}, {ar(KF + 8 * (t + 2))}, {vr(QF)}, {vr(NM, 16)}")
            for k in range(4):
                e(f"v_cvt_pk_bf16_f32 v{pf + k}, v{src + 2 * k}, v{src + 2 * k + 1}")
            for r in range(8, 12):
                e(f"v_exp_f32 v{src + r}, v{src + r}")
            e(f"v_mfma_f32_32x32x16_bf16 {vr(OA, 16)}, {ar(VF + 8 * t)}, {vr(pf)}, {vr(OA, 16)}")
            for r in range(12, 16):
                e(f"v_exp_f32 v{src + r}, v{src + r}")
            if t + 2 < 8:
                d = S[(t + 1) % 3]
                e(f"v_mfma_f32_32x32x16_bf16 {vr(d, 16)}, {ar(KF + 8 * (t + 2) + 4)}, {vr(QF + 4)}, {vr(d, 16)}")
            for k in range(4, 8):
                e(f"v_cvt_pk_bf16_f32 v{pf + k}, v{src + 2 * k}, v{src + 2 * k + 1}")
            e(f"v_mfma_f32_32x32x16_bf16 {vr(OA, 16)}, {ar(VF + 8 * t + 4)}, {vr(pf + 4)}, {vr(OA, 16)}")
        e(f"v_bfe_u32 v4, {vL}, 4, 1")
        e(f"v_lshlrev_b32 v4, 14, v4")
        e(f"v_lshrrev_b32 v5, 5, {vL}")
        e(f"v_lshl_add_u32 v4, v5, 8, v4")
        e(f"v_and_b32 v5, 15, {vL}")
        e(f"v_lshl_add_u32 v4, v5, 4, v4")
        e(f"s_lshl_b32 {sA}, {sT}, 5")
        e(f"s_add_u32 {sA}, {sA}, {sH}")
        e(f"s_lshl_b32 {sA}, {sA}, 10")
        e(f"s_add_u32 {sA}, {sA}, {WS_O}")
        e(f"s_lshl_b32 {sBt}, {sT}, 4")
        e(f"s_add_u32 {sBt}, {sBt}, {sH}")
        e(f"s_lshl_b32 {sBt}, {sBt}, 2")
        e(f"s_add_u32 {sBt}, {sBt}, {WS_FLO}")
        e(f"v_mov_b32 v5, v{OA + 12}")
        e(f"v_mov_b32 v6, v{OA + 12}")
        e("v_permlane32_swap_b32 v5, v6")
        e("v_rcp_f32 v6, v6")
        for r in range(16):
            e(f"v_mul_f32 v{OA + r}, v6, v{OA + r}")
        for k in range(8):
            e(f"v_cvt_pk_bf16_f32 v{PF + k}, v{OA + 2 * k}, v{OA + 2 * k + 1}")
        e(f"v_cndmask_b32 v{PF + 6}, v{PF + 6}, 0, {sHI}")
        e(f"v_cndmask_b32 v{PF + 7}, v{PF + 7}, 0, {sHI}")
        for f in range(2):
            e(f"buffer_store_dwordx4 {vr(PF + 4 * f)}, v4, {srd(SRD_WS)}, {sA} offen offset:{f * 512}")
        self.stamp("attn")
        self.publish(sBt, "v7")
        self.stamp("opub")
        e(f"s_cmp_ge_u32 {sR}, 28")
        e("s_cbranch_scc1 L_fin")

    def wgu_addr(self):
        e = self.e
        e(f"v_lshrrev_b32 v12, 3, {vL}")
        e(f"v_and_b32 v5, 2, v12")
        e(f"v_lshlrev_b32 v5, 1, v5")
        e(f"v_and_b32 v6, 7, {vL}")
        e("v_xor_b32 v5, v5, v6")
        e("v_mul_u32_u24 v13, 896, v12")
        e("v_lshl_add_u32 v13, v5, 4, v13")
        e("v_mul_u32_u24 v12, 3584, v12")
        e("v_lshl_add_u32 v12, v5, 4, v12")

    def wgu_dma(self, pieces):
        e = self.e
        e(f"s_lshl_b32 {sC}, {sR}, 7")
        e(f"s_mul_i32 {sA}, {sW}, {8 * 3584}")
        e(f"s_add_u32 {sC}, {sC}, {sA}")
        e(f"s_lshl_b32 {sD}, {sW}, 10")
        for mat, n in pieces:
            e(f"s_add_u32 {sA}, {sC}, {n * 32 * 3584}")
            e(f"s_add_u32 {sBt}, {sD}, {(L_WG, L_WU)[mat] + n * 4096}")
            self.dma("v12", (SRD_WG, SRD_WU)[mat], sA, sBt, "wgu")

    def p3(self):
        e = self.e
        OB, WR, AC = 0, 64, 16
        GA, CB, XR = 32, 48, 64
        e("s_barrier")
        self.wgu_addr()
        self.wgu_dma([(0, n) for n in range(14)] + [(1, n) for n in range(11)])
        e(f"v_lshrrev_b32 v4, 5, {vL}")
        e(f"v_lshlrev_b32 v4, 4, v4")
        e(f"v_bfe_u32 v5, {vL}, 4, 1")
        e(f"v_lshl_add_u32 v4, v5, 2, v4")
        e(f"v_bfe_u32 v6, {vL}, 2, 2")
        e("v_add_u32 v4, v4, v6")
        e("v_lshlrev_b32 v4, 7, v4")
        e("v_lshrrev_b32 v6, 1, v6")
        e("v_lshl_add_u32 v5, v5, 1, v6")
        e(f"v_and_b32 v6, 3, {vL}")
        e("v_lshl_add_u32 v4, v6, 3, v4")
        e(f"v_add_u32 v4, {L_WO}, v4")
        for t in range(4):
            e(f"v_xor_b32 v6, {t}, v5")
            e(f"v_lshl_add_u32 v{8 + t}, v6, 5, v4")

        def rd_wo(hd):
            for t in range(4):
                a = 8 + (t ^ (2 * (hd & 1)))
                d = WR + 16 * (hd % 4) + 4 * t
                e(f"ds_read_b64_tr_b16 {ar(d, 2)}, v{a} offset:{hd * 3584}", ("wo", hd))
                e(f"ds_read_b64_tr_b16 {ar(d + 2, 2)}, v{a} offset:{hd * 3584 + 1024}", ("wo", hd))

        rd_wo(0)
        e(f"v_and_b32 v4, 15, {vL}")
        e(f"v_lshlrev_b32 v4, 2, v4")
        e(f"s_lshl_b32 {sA}, {sI}, 2")
        e(f"s_add_u32 {sE}, {sA}, {sRB}")
        e(f"s_lshl_b32 {sA}, {sE}, 1")
        e(f"s_lshr_b32 {sBt}, {sW}, 1")
        e(f"s_add_u32 {sA}, {sA}, {sBt}")
        e(f"s_mov_b32 s101, {sA}")
        e(f"s_lshl_b32 {sA}, {sA}, 6")
        e(f"s_add_u32 {sA}, {sA}, {WS_FLO}")
        self.poll("v4", sA, "v5")
        self.acquire()
        self.stamp("oflag")
        e(f"s_lshl_b32 {sA}, {sE}, 2")
        e(f"s_add_u32 {sA}, {sA}, {sW}")
        e(f"s_lshl_b32 {sA}, {sA}, 14")
        e(f"s_add_u32 {sA}, {sA}, {WS_O}")
        for hd in range(16):
            if hd and hd % 4 == 0:
                e(f"s_add_u32 {sA}, {sA}, 4096")
            e(f"buffer_load_dwordx4 {ar(OB + 4 * hd)}, {vL16}, {srd(SRD_WS)}, {sA} offen offset:{(hd % 4) * 1024} sc1", ("o", hd))
        for hd in range(16):
            if hd + 1 < 16:
                rd_wo(hd + 1)
            e.wait(vm=("o", hd), lg=("wo", hd))
            for t in range(4):
                c = "0" if hd == 0 else vr(AC + 4 * t)
                e(f"v_mfma_f32_16x16x32_bf16 {vr(AC + 4 * t)}, {ar(WR + 16 * (hd % 4) + 4 * t)}, {ar(OB + 4 * hd)}, {c}")
        self.stamp("oproj")
        e("s_barrier")
        self.wgu_dma([(1, n) for n in range(11, 14)])
        e(f"s_lshl_b32 {sA}, {sW}, 11")
        e(f"s_add_u32 {sA}, {sA}, {L_X1}")
        e(f"v_lshrrev_b32 v4, 2, {vL}")
        e(f"v_lshlrev_b32 v4, 7, v4")
        e(f"v_and_b32 v5, 3, {vL}")
        e(f"v_lshl_add_u32 v4, v5, 4, v4")
        e(f"v_add_u32 v8, {sA}, v4")
        e(f"v_and_b32 v4, 15, {vL}")
        e(f"v_lshlrev_b32 v4, 7, v4")
        e(f"v_lshrrev_b32 v5, 4, {vL}")
        e(f"v_lshl_add_u32 v4, v5, 3, v4")
        e(f"v_add_u32 v9, {sA}, v4")
        e("ds_write_b128 v8, v[240:243]")
        e("ds_write_b128 v8, v[244:247] offset:64")
        e(f"v_lshlrev_b32 v10, 4, v5")
        for t in range(4):
            e(f"ds_read_b128 {vr(GA + 4 * t)}, v10 offset:{L_GAB + 64 * t}")
        e(f"s_lshl_b32 {sA}, {sCG}, 7")
        e(f"v_add_u32 v10, {sA}, v10")
        for pp in range(2):
            e(f"ds_read_b128 {vr(XR + 16 + 4 * pp)}, v10 offset:{L_CVEC + 64 * pp}")
        for t in range(4):
            e(f"ds_read_b64 {vr(XR + 24 + 2 * t, 2)}, v9 offset:{32 * t}")
        e("s_waitcnt lgkmcnt(0)")
        for k in range(8):
            e(f"v_lshlrev_b32 v{XR + 2 * k}, 16, v{XR + 24 + k}")
            e(f"v_and_b32 v{XR + 2 * k + 1}, 0xffff0000, v{XR + 24 + k}")
            e(f"v_lshlrev_b32 v{CB + 2 * k}, 16, v{XR + 16 + k}")
            e(f"v_and_b32 v{CB + 2 * k + 1}, 0xffff0000, v{XR + 16 + k}")
        for k in range(16):
            e(f"v_fmac_f32 v{XR + k}, v{GA + k}, v{AC + k}")
        for k in range(8):
            e(f"v_cvt_pk_bf16_f32 v{XR + 16 + k}, v{XR + 2 * k}, v{XR + 2 * k + 1}")
        for k in range(8):
            e(f"v_lshlrev_b32 v{XR + 2 * k}, 16, v{XR + 16 + k}")
            e(f"v_and_b32 v{XR + 2 * k + 1}, 0xffff0000, v{XR + 16 + k}")
        for k in range(16):
            e(f"v_mul_f32 v{CB + k}, v{CB + k}, v{XR + k}")
        for k in range(8):
            e(f"v_cvt_pk_bf16_f32 v{AC + k}, v{CB + 2 * k}, v{CB + 2 * k + 1}")
        e(f"v_and_b32 v4, 15, {vL}")
        e(f"v_lshlrev_b32 v4, 4, v4")
        e(f"v_lshl_add_u32 v4, v5, 9, v4")
        e(f"s_mul_i32 {sA}, s101, 28672")
        e(f"s_lshl_b32 {sBt}, {sCG}, 12")
        e(f"s_add_u32 {sA}, {sA}, {sBt}")
        e(f"s_and_b32 {sBt}, {sW}, 1")
        e(f"s_lshl_b32 {sBt}, {sBt}, 8")
        e(f"s_add_u32 {sA}, {sA}, {sBt}")
        e(f"s_add_u32 {sA}, {sA}, {WS_Z}")
        for pp in range(2):
            e(f"buffer_store_dwordx4 {vr(AC + 4 * pp)}, v4, {srd(SRD_WS)}, {sA} offen offset:{pp * 2048}")
        e(f"v_add_f32 v6, v{XR}, v{XR + 1}")
        e(f"v_add_f32 v7, v{XR + 2}, v{XR + 3}")
        for k in range(4, 16, 2):
            e(f"v_add_f32 v6, v6, v{XR + k}")
            e(f"v_add_f32 v7, v7, v{XR + k + 1}")
        e("v_add_f32 v6, v6, v7")
        self.reduce_hi2("v6", "v7")
        e(f"v_mul_f32 v11, {fbits(1.0 / 64)}, v6")
        e("v_mov_b32 v7, 0")
        e("v_mov_b32 v10, 0")
        for k in range(0, 16, 2):
            e(f"v_sub_f32 v{GA}, v{XR + k}, v11")
            e(f"v_sub_f32 v{GA + 1}, v{XR + k + 1}, v11")
            e(f"v_fmac_f32 v7, v{GA}, v{GA}")
            e(f"v_fmac_f32 v10, v{GA + 1}, v{GA + 1}")
        e("v_add_f32 v7, v7, v10")
        self.reduce_hi2("v7", "v10")
        e(f"s_mul_i32 {sA}, {sE}, 7")
        e(f"s_add_u32 {sA}, {sA}, {sCG}")
        e(f"s_lshl_b32 {sA}, {sA}, 9")
        e(f"s_lshl_b32 {sBt}, {sW}, 7")
        e(f"s_add_u32 {sA}, {sA}, {sBt}")
        e(f"s_add_u32 {sA}, {sA}, {WS_STAT}")
        e(f"v_lshlrev_b32 v4, 3, {vL}")
        e("s_mov_b64 exec, 0xffff")
        e(f"buffer_store_dwordx2 v[6:7], v4, {srd(SRD_WS)}, {sA} offen")
        e("s_mov_b64 exec, -1")
        for t in range(4):
            e(f"ds_write_b64 v9, {vr(XR + 16 + 2 * t, 2)} offset:{32 * t}")
        e(f"s_lshl_b32 {sA}, {sE}, 5")
        e(f"s_lshl_b32 {sBt}, {sCG}, 2")
        e(f"s_add_u32 {sA}, {sA}, {sBt}")
        e(f"s_add_u32 {sA}, {sA}, {sW}")
        e(f"s_lshl_b32 {sA}, {sA}, 2")
        e(f"s_add_u32 {sA}, {sA}, {WS_FLZ}")
        self.publish(sA, "v7")
        e("s_waitcnt lgkmcnt(0)")
        e("ds_read_b128 v[16:19], v8")
        e("ds_read_b128 v[20:23], v8 offset:64")
        e("s_waitcnt lgkmcnt(0)")
        self.stamp("zpub")

    def p4(self):
        e = self.e
        AC, BR, AR, WD = 128, 64, 224, 0
        XB, R2 = 112, 120
        e("s_barrier")
        e(f"v_lshrrev_b32 v4, 5, {vL}")
        e(f"v_lshlrev_b32 v4, 2, v4")
        e(f"v_bfe_u32 v5, {vL}, 2, 2")
        e("v_add_u32 v4, v4, v5")
        e("v_lshlrev_b32 v4, 7, v4")
        e(f"v_bfe_u32 v6, {vL}, 4, 1")
        e("v_lshl_add_u32 v4, v6, 5, v4")
        e(f"v_and_b32 v6, 3, {vL}")
        e("v_lshl_add_u32 v4, v6, 3, v4")
        e("v_lshrrev_b32 v5, 1, v5")
        e("v_lshl_add_u32 v8, v5, 6, v4")
        e("v_xor_b32 v9, 64, v8")
        e(f"v_add_u32 v10, {L_WU}, v8")
        e(f"v_add_u32 v11, {L_WU}, v9")
        e(f"s_lshl_b32 {sA}, {sW}, 13")
        e(f"s_add_u32 s99, {sA}, {L_STG}")
        e(f"v_add_u32 v24, s99, v8")
        e(f"v_add_u32 v25, s99, v9")
        e(f"v_add_u32 v8, {L_WG}, v8")
        e(f"v_add_u32 v9, {L_WG}, v9")

        def aoff(ks):
            return (32 * (ks >> 1) + 8 * (ks & 1)) * 128

        e(f"s_and_b32 {sA}, {sW}, 1")
        e(f"s_lshl_b32 {sA}, {sA}, 6")
        e(f"v_xor_b32 v26, {sA}, v8")
        e(f"s_lshr_b32 {sA}, {sW}, 1")
        e(f"s_mul_i32 {sA}, {sA}, {L_WU - L_WG}")
        e(f"v_add_u32 v26, {sA}, v26")
        e(f"v_and_b32 v4, 1, {vL}")
        e(f"v_mul_u32_u24 v4, 896, v4")
        e(f"v_lshrrev_b32 v5, 5, {vL}")
        e(f"v_lshl_add_u32 v27, v5, 4, v4")
        e(f"v_add_u32 v27, {L_CVEC}, v27")

        def rd_b(ks):
            d = AR + 8 * (ks % 4)
            e(f"ds_read_b128 {ar(d)}, v27 offset:{ks * 32}", ("b", ks))
            e(f"ds_read_b64_tr_b16 {ar(d + 4, 2)}, v26 offset:{aoff(ks)}", ("b", ks))
            e(f"ds_read_b64_tr_b16 {ar(d + 6, 2)}, v26 offset:{aoff(ks) + 2048}", ("b", ks))

        for ks in range(3):
            rd_b(ks)
        for ks in range(28):
            if ks + 3 < 28:
                rd_b(ks + 3)
            e.wait(lg=("b", ks))
            d = AR + 8 * (ks % 4)
            c = "0" if ks == 0 else vr(32, 16)
            e(f"v_mfma_f32_32x32x16_bf16 {vr(32, 16)}, {ar(d)}, {ar(d + 4)}, {c}")
        e("v_cvt_pk_bf16_f32 v4, v32, v33")
        e("v_lshlrev_b32 v5, 16, v4")
        e("v_and_b32 v6, 0xffff0000, v4")
        e("v_sub_f32 v5, v32, v5")
        e("v_sub_f32 v6, v33, v6")
        e("v_cvt_pk_bf16_f32 v5, v5, v6")
        e(f"s_mov_b32 {sA}, 0x05040100")
        e(f"s_mov_b32 {sBt}, 0x03020706")
        e(f"v_perm_b32 v48, v5, v4, {sA}")
        e("v_mov_b32 v49, v4")
        e(f"v_perm_b32 v50, v5, v4, {sBt}")
        e("v_mov_b32 v51, 0")
        for k in range(3):
            e(f"v_cndmask_b32 v{48 + k}, v{48 + k}, 0, {sHI}")
        e(f"s_lshl_b32 {sA}, {sW}, 10")
        e(f"s_add_u32 {sA}, {sA}, {L_XA}")
        e(f"v_add_u32 v4, {sA}, {vL16}")
        e("ds_write_b128 v4, v[48:51]")
        e("s_waitcnt lgkmcnt(0)")
        e("s_barrier")
        self.stamp("bias")

        def rd_a(ks):
            d = AR + 16 * (ks % 2)
            if ks == 28:
                e(f"v_add_u32 v4, {L_XA}, {vL16}")
                for t in range(4):
                    e(f"ds_read_b128 {ar(d + 4 * t)}, v4 offset:{t * 1024}", ("a", ks, t))
                return
            for t in range(4):
                e(f"ds_read_b64_tr_b16 {ar(d + 4 * t, 2)}, v{8 + t} offset:{aoff(ks)}", ("a", ks, t))
                e(f"ds_read_b64_tr_b16 {ar(d + 4 * t + 2, 2)}, v{8 + t} offset:{aoff(ks) + 2048}", ("a", ks, t))

        rd_a(0)
        e(f"v_min_u32 v4, 27, {vL}")
        e(f"v_lshlrev_b32 v4, 2, v4")
        e(f"s_lshl_b32 {sE}, {sI}, 2")
        e(f"s_add_u32 {sE}, {sE}, {sW}")
        e(f"s_lshl_b32 {sA}, {sE}, 7")
        e(f"s_add_u32 {sA}, {sA}, {WS_FLZ}")
        self.poll("v4", sA, "v5")
        self.acquire()
        self.stamp("zflag")
        NB = 6
        e(f"s_mul_i32 s88, {sE}, 57344")
        e(f"s_add_u32 s88, s88, {WS_Z}")
        e(f"s_add_u32 s89, s88, 28672")

        def ld_b(ks):
            if ks and ks % 4 == 0:
                e("s_add_u32 s88, s88, 4096")
                e("s_add_u32 s89, s89, 4096")
            for tt in range(2):
                e(f"buffer_load_dwordx4 {vr(BR + 8 * (ks % NB) + 4 * tt)}, {vL16}, {srd(SRD_WS)}, s{88 + tt} offen offset:{(ks % 4) * 1024} sc1", ("z", ks))

        for ks in range(NB - 1):
            ld_b(ks)
        e(f"s_mul_i32 {sA}, {sE}, 3584")
        e(f"s_add_u32 {sA}, {sA}, {WS_STAT}")
        e(f"v_lshlrev_b32 v4, 3, {vL}")
        for cg in range(7):
            e(f"buffer_load_dwordx2 {vr(32 + 2 * cg, 2)}, v4, {srd(SRD_WS)}, {sA} offen offset:{cg * 512} sc1", "stat")
        e(f"s_mul_i32 s90, {sW}, {448 * 896}")
        e(f"s_lshl_b32 {sA}, {sCG}, 7")
        e(f"s_add_u32 s90, s90, {sA}")

        def wd_dma(j):
            for hlf in range(2):
                e(f"s_add_u32 {sA}, s90, {(16 * j + 8 * hlf) * 896}")
                e(f"s_add_u32 {sBt}, s99, {(j % 4) * 2048 + hlf * 1024}")
                self.dma("v13", SRD_WD, sA, sBt, ("wd", j))

        def wd_rd(j):
            for ct in range(2):
                d = WD + 8 * j + 4 * ct
                e(f"ds_read_b64_tr_b16 {ar(d, 2)}, v{24 + ct} offset:{(j % 4) * 2048}", ("wdr", j))
                e(f"ds_read_b64_tr_b16 {ar(d + 2, 2)}, v{24 + ct} offset:{(j % 4) * 2048 + 1024}", ("wdr", j))

        def stats():
            e.wait(vm="stat")
            e("v_add_f32 v4, v32, v34")
            e("v_add_f32 v5, v36, v38")
            e("v_add_f32 v6, v40, v42")
            e("v_add_f32 v4, v4, v5")
            e("v_add_f32 v6, v6, v44")
            e("v_add_f32 v4, v4, v6")
            e(f"v_mul_f32 v4, {fbits(1.0 / 448)}, v4")
            e("v_add_f32 v5, v33, v35")
            e("v_add_f32 v6, v37, v39")
            e("v_add_f32 v7, v41, v43")
            e("v_add_f32 v5, v5, v6")
            e("v_add_f32 v7, v7, v45")
            e("v_add_f32 v5, v5, v7")
            e(f"v_mov_b32 v7, {fbits(1.0 / 64)}")
            e("v_mov_b32 v6, 0")
            for cg in range(7):
                e(f"v_fma_f32 v46, v{32 + 2 * cg}, v7, -v4")
                e("v_fmac_f32 v6, v46, v46")
            e(f"v_mul_f32 v6, {fbits(64.0)}, v6")
            e("v_add_f32 v5, v5, v6")
            e(f"v_mul_f32 v5, {fbits(1.0 / 448)}, v5")
            e(f"v_add_f32 v5, {fbits(1e-5)}, v5")
            e(f"v_rcp_f32 v{R2}, v5")
            e("v_sqrt_f32 v5, v5")
            e("v_sub_f32 v4, 0, v4")
            e("v_cvt_pk_bf16_f32 v6, v4, v5")
            e("v_lshlrev_b32 v7, 16, v6")
            e("v_and_b32 v46, 0xffff0000, v6")
            e("v_sub_f32 v4, v4, v7")
            e("v_sub_f32 v5, v5, v46")
            e("v_cvt_pk_bf16_f32 v7, v4, v5")
            e(f"s_mov_b32 {sA}, 0x01000100")
            e(f"s_mov_b32 {sBt}, 0x03020504")
            e(f"s_mov_b32 {sC}, 0x07060302")
            e(f"v_perm_b32 v{XB}, v7, v6, {sA}")
            e(f"v_perm_b32 v{XB + 1}, v7, v6, {sBt}")
            e(f"v_perm_b32 v{XB + 2}, v7, v6, {sC}")
            e(f"v_mov_b32 v{XB + 3}, 0")
            e(f"v_mov_b32 v{XB + 7}, 0")
            for k in range(3):
                e(f"v_mov_b32 v{XB + 4 + k}, v{XB + k}")
            e(f"v_mov_b32 v{R2 + 1}, v{R2}")
            for k in range(3):
                e(f"v_permlane32_swap_b32 v{XB + k}, v{XB + 4 + k}")
            e(f"v_permlane32_swap_b32 v{R2}, v{R2 + 1}")

        for ks in range(29):
            if ks + NB - 1 < 28:
                ld_b(ks + NB - 1)
            if ks < 28:
                if ks >= 4:
                    e.wait(lg=("wdr", ks - 4))
                wd_dma(ks)
            if ks + 1 <= 28:
                rd_a(ks + 1)
            if ks >= 3:
                e.wait(vm=("wd", ks - 3))
                wd_rd(ks - 3)
            if ks == 10:
                stats()
            if ks < 28:
                e.wait(vm=("z", ks))
            d = AR + 16 * (ks % 2)
            for t in range(4):
                e.wait(lg=("a", ks, t))
                for tt in range(2):
                    acc = AC + 64 * tt + 16 * t
                    b = vr(BR + 8 * (ks % NB) + 4 * tt) if ks < 28 else vr(XB + 4 * tt)
                    c = "0" if ks == 0 else vr(acc, 16)
                    e(f"v_mfma_f32_32x32x16_bf16 {vr(acc, 16)}, {ar(d + 4 * t)}, {b}, {c}")
        for j in (26, 27):
            e.wait(vm=("wd", j))
            wd_rd(j)
        self.stamp("gemm4")
        e(f"s_mul_i32 {sA}, {sE}, {2 * 114688}")
        e(f"s_lshl_b32 {sBt}, {sR}, 12")
        e(f"s_add_u32 {sA}, {sA}, {sBt}")
        e(f"s_add_u32 {sA}, {sA}, {WS_HID}")
        for tt in range(2):
            for ct in range(2):
                g, u = AC + 64 * tt + 16 * ct, AC + 64 * tt + 32 + 16 * ct
                for r in range(16):
                    e(f"v_max_f32 v{g + r}, 0, v{g + r}")
                    e(f"v_mul_f32 v{u + r}, v{R2 + tt}, v{u + r}")
                d = BR + 16 * tt + 8 * ct
                for k in range(8):
                    e(f"v_mul_f32 v{g + 2 * k}, v{g + 2 * k}, v{u + 2 * k}")
                    e(f"v_mul_f32 v{g + 2 * k + 1}, v{g + 2 * k + 1}, v{u + 2 * k + 1}")
                    e(f"v_cvt_pk_bf16_f32 v{d + k}, v{g + 2 * k}, v{g + 2 * k + 1}")
                for s in range(2):
                    e(f"buffer_store_dwordx4 {vr(d + 4 * s)}, {vL16}, {srd(SRD_WS)}, {sA} offen offset:{(2 * ct + s) * 1024}")
            if tt == 0:
                e(f"s_add_u32 {sA}, {sA}, 114688")
        e(f"s_lshl_b32 {sA}, {sE}, 5")
        e(f"s_add_u32 {sA}, {sA}, {sR}")
        e(f"s_lshl_b32 {sA}, {sA}, 2")
        e(f"s_add_u32 {sA}, {sA}, {WS_FLD}")
        self.stamp("epi4")
        self.publish(sA, "v7")
        self.stamp("hidpub")

    def p5(self):
        e = self.e
        AC, WD = 128, 0
        bufs = [vr(64 + 4 * k) for k in range(16)] + [vr(192 + 4 * k) for k in range(16)] + [ar(224 + 4 * k) for k in range(8)]
        NB = len(bufs) // 2
        e(f"s_lshl_b32 {sE}, {sI}, 2")
        e(f"s_add_u32 {sE}, {sE}, {sRB}")
        e(f"v_min_u32 v4, 6, {vL}")
        e(f"v_lshlrev_b32 v4, 2, v4")
        e(f"s_lshl_b32 {sA}, {sE}, 7")
        e(f"s_mul_i32 {sBt}, {sW}, 28")
        e(f"s_add_u32 {sA}, {sA}, {sBt}")
        e(f"s_add_u32 {sA}, {sA}, {WS_FLD}")
        e("s_waitcnt lgkmcnt(0)")
        self.poll("v4", sA, "v5")
        self.acquire()
        self.stamp("hidflag")
        e(f"s_mul_i32 s88, {sE}, {2 * 114688}")
        e(f"s_mul_i32 {sBt}, {sW}, 28672")
        e(f"s_add_u32 s88, s88, {sBt}")
        e(f"s_add_u32 s88, s88, {WS_HID}")
        e(f"s_add_u32 s89, s88, 114688")

        def ld_b(j):
            if j and j % 4 == 0:
                e("s_add_u32 s88, s88, 4096")
                e("s_add_u32 s89, s89, 4096")
            for tt in range(2):
                e(f"buffer_load_dwordx4 {bufs[2 * (j % NB) + tt]}, {vL16}, {srd(SRD_WS)}, s{88 + tt} offen offset:{(j % 4) * 1024} sc1", ("d", j))

        for j in range(NB - 1):
            ld_b(j)
        e(f"v_and_b32 v4, 31, {vL}")
        e(f"v_and_b32 v5, 7, {vL}")
        e(f"v_and_b32 v6, 4, {vL}")
        e("v_lshl_add_u32 v5, v6, 1, v5")
        e(f"v_lshrrev_b32 v6, 5, {vL}")
        e("v_xor_b32 v5, v5, v6")
        e("v_lshlrev_b32 v4, 8, v4")
        e(f"s_lshl_b32 {sA}, {sW}, 14")
        e(f"v_add_u32 v4, {sA}, v4")
        for p in range(8):
            e(f"v_xor_b32 v6, {2 * p}, v5")
            e(f"v_lshl_add_u32 v{32 + p}, v6, 4, v4")
        e(f"v_lshrrev_b32 v4, 2, {vL}")
        e("v_and_b32 v5, 7, v4")
        e("v_and_b32 v6, 4, v4")
        e("v_lshl_add_u32 v5, v6, 1, v5")
        e(f"v_and_b32 v6, 3, {vL}")
        e("v_lshlrev_b32 v7, 1, v6")
        e("v_xor_b32 v5, v5, v7")
        e("v_lshlrev_b32 v4, 8, v4")
        e(f"s_lshl_b32 {sA}, {sW}, 12")
        e(f"v_add_u32 v4, {sA}, v4")
        for n, p in enumerate((0, 1, 8, 9)):
            e(f"v_xor_b32 v7, {p}, v5")
            e(f"v_lshl_add_u32 v{40 + n}, v7, 4, v4")
        e("v_lshlrev_b32 v6, 5, v6")
        for n in range(4):
            e(f"ds_read_b128 {vr(48 + 4 * n)}, v6 offset:{L_GAB + 256 + (n >> 1) * 128 + (n & 1) * 16}")
        for j in range(28):
            if j + NB - 1 < 28:
                ld_b(j + NB - 1)
            e.wait(vm=("d", j))
            for tt in range(2):
                for ct in range(2):
                    acc = AC + 32 * tt + 16 * ct
                    c = "0" if j == 0 else vr(acc, 16)
                    e(f"v_mfma_f32_32x32x16_bf16 {vr(acc, 16)}, {ar(WD + 8 * j + 4 * ct)}, {bufs[2 * (j % NB) + tt]}, {c}")
        self.stamp("gemm5")
        e("s_waitcnt lgkmcnt(0)")
        e("s_barrier")
        for tt in range(2):
            for ct in range(2):
                for q in range(4):
                    e(f"ds_write_b128 v{32 + 4 * ct + q}, {vr(AC + 32 * tt + 16 * ct + 4 * q)} offset:{L_RED + tt * 8192}")
        for k in range(8):
            e(f"v_lshlrev_b32 v{64 + 2 * k}, 16, v{16 + k}")
            e(f"v_and_b32 v{65 + 2 * k}, 0xffff0000, v{16 + k}")
        e("s_waitcnt lgkmcnt(0)")
        e("s_barrier")
        for n in range(4):
            for s in range(4):
                e(f"ds_read_b128 {vr(128 + 16 * n + 4 * s)}, v{40 + n} offset:{L_RED + s * 16384}", ("r", n))
        for n in range(4):
            e.wait(lg=("r", n))
            b = 128 + 16 * n
            for k in range(4):
                e(f"v_add_f32 v{b + k}, v{b + k}, v{b + 4 + k}")
                e(f"v_add_f32 v{b + 8 + k}, v{b + 8 + k}, v{b + 12 + k}")
            for k in range(4):
                e(f"v_add_f32 v{b + k}, v{b + k}, v{b + 8 + k}")
            for k in range(4):
                e(f"v_fmac_f32 v{64 + 4 * n + k}, v{48 + 4 * n + k}, v{b + k}")
            if n == 0 and self.o.get("dbg_one"):
                e(f"s_lshl_b32 {sA}, s2, 2")
                e(f"s_add_u32 {sA}, {sA}, {sW}")
                e(f"v_add_u32 v4, {sA}, {vL}")
                e("v_cmp_eq_u32 vcc, 0, v4")
                e(f"v_mov_b32 v5, {fbits(self.o['dbg_one'] / 1000.0)}")
                e("v_cndmask_b32 v5, 0, v5, vcc")
                e("v_add_f32 v65, v65, v5")
            if self.o.get("dbg_scale"):
                for k in range(4):
                    e(f"v_mul_f32 v{64 + 4 * n + k}, {fbits(1 + self.o['dbg_scale'] / 1000.0)}, v{64 + 4 * n + k}")
            e(f"v_cvt_pk_bf16_f32 v{80 + 2 * n}, v{64 + 4 * n}, v{65 + 4 * n}")
            e(f"v_cvt_pk_bf16_f32 v{81 + 2 * n}, v{66 + 4 * n}, v{67 + 4 * n}")
            if n & 1:
                e(f"buffer_store_dwordx4 {vr(80 + 4 * (n >> 1))}, v15, {srd(SRD_OUT)}, s100 offen offset:{64 * (n >> 1)}")
        self.stamp("end")

    def finish(self):
        e = self.e
        e("L_fin:")
        if self.ts:
            e("s_lshl_b32 s88, s2, 2")
            e(f"s_add_u32 s88, s88, {sW}")
            e("s_lshl_b32 s88, s88, 7")
            e(f"s_add_u32 s88, s88, {WS_TS}")
            e(f"v_lshlrev_b32 v4, 2, {vL}")
            e("s_mov_b32 exec_hi, 0")
            e(f"buffer_store_dword {vTS}, v4, {srd(SRD_WS)}, s88 offen")
        e("L_end:")
        e("s_endpgm")

    def build(self):
        phases = [self.entry, self.front, self.f1, self.p1, self.late_consts, self.p2, self.p3, self.p4, self.p5]
        for ph in phases:
            self.e(f"; ---- {ph.__name__}")
            ph()
            if self.stop_after == ph.__name__:
                break
        self.finish()
        body, nops = self.e.text()
        head = open(f"cdna_kernels/{NAME}.s.ref").read().split("; Override launch")[0]
        txt = head
        txt += f"; @launch grid=(256,1,1) block=(256,1,1) lds={LDS_BYTES}\n"
        txt += '.amdgcn_target "amdgcn-amd-amdhsa--gfx950"\n.text\n'
        txt += f".globl {NAME}_kernel\n.p2align 8\n.type {NAME}_kernel,@function\n{NAME}_kernel:\n"
        txt += body
        txt += '.section .rodata,"a"\n.p2align 6\n'
        txt += f".amdhsa_kernel {NAME}_kernel\n"
        txt += ("  .amdhsa_next_free_vgpr 512\n  .amdhsa_next_free_sgpr 102\n  .amdhsa_accum_offset 256\n"
                "  .amdhsa_group_segment_fixed_size 0\n  .amdhsa_kernarg_size 96\n  .amdhsa_user_sgpr_count 2\n"
                "  .amdhsa_user_sgpr_kernarg_segment_ptr 1\n  .amdhsa_system_sgpr_workgroup_id_x 1\n"
                "  .amdhsa_float_denorm_mode_32 3\n"
                ".end_amdhsa_kernel\n")
        return txt, nops


def parse_opts(args):
    o = {}
    for a in args:
        k, v = a.split("=")
        o[k] = int(v)
    return o


if __name__ == "__main__":
    out = sys.argv[1]
    o = parse_opts(sys.argv[2:])
    g = Gen(ts=bool(o.pop("ts", 0)), opts=o)
    txt, nops = g.build()
    open(out, "w").write(txt)
    if g.ts:
        open(out + ".ts", "w").write("\n".join(g.ts_names))
    print("written", out, "lines", txt.count("\n"), "nop pads", nops)
```

```python
import math
import struct
import sys

sys.path.insert(0, "work")
from emit import Emit

NAME = "adaLN_cond__sliding_block__glu_gated_reglu__prompt"

WS_EPOCH = 0x0
WS_XCC = 0x400
WS_FLH = 0x1000
WS_FLO = 0x2000
WS_FLZ = 0x3000
WS_FLD = 0x4000
WS_FLKV = 0x8000
WS_MODP = 0x10000
WS_STAT = 0x20000
WS_TS = 0x40000
WS_H = 0x100000
WS_O = 0x300000
WS_KV = 0x500000
WS_HID = 0x900000
WS_Z = 0x1000000
WS_SIZE = 0x1200000

L_CVEC = 0
L_GAB = 1792
L_STATX = 2304
L_MODR = 2560
L_WQ, L_WK, L_WV = 3584, 32256, 60928
L_KV = 56832
L_SCR = 89600
L_WO = 105984
L_PAD = 163328
L_WG, L_WU = 3584, 60928
L_STG = 118272
L_XA = 151040
L_X1 = 155136
L_RED = 3584
LDS_BYTES = 163840

SRD_X, SRD_WQKV, SRD_WO, SRD_WG, SRD_WU, SRD_WD = 4, 8, 12, 16, 20, 24
SRD_C, SRD_WM, SRD_OUT, SRD_DBG, SRD_WS = 28, 32, 36, 40, 44
sI, sR, sW, sH, sB, sT, sTAG, sFAST = "s48", "s49", "s50", "s51", "s52", "s53", "s54", "s55"
sA, sBt, sC, sD, sE = "s56", "s57", "s58", "s59", "s60"
sRB, sCG, sSPIN = "s61", "s62", "s63"
SMASK = 64
sHI, sHIp = "s[96:97]", 96
sTSp = 0
sADJ = "s3"

vL, vL16, vTS, vE = "v0", "v1", "v2", "v3"

SPIN_MAX = 1 << 17


def srd(n):
    return f"s[{n}:{n + 3}]"


def vr(n, k=4):
    return f"v[{n}:{n + k - 1}]" if k > 1 else f"v{n}"


def ar(n, k=4):
    return f"a[{n}:{n + k - 1}]" if k > 1 else f"a{n}"


def fbits(x):
    return "0x%08x" % struct.unpack("<I", struct.pack("<f", x))[0]


class Gen:
    def __init__(self, ts=False, stop_after=None, opts=None):
        self.e = Emit()
        self.ts = ts
        self.stop_after = stop_after
        self.o = dict(opts or {})
        self.nts = 0
        self.ts_names = []

    def stamp(self, name):
        if not self.ts:
            return
        if self.o.get("dbgts") and name not in ("start", "tag", "modpub", "ln1", "xcc", "hpub", "kvgemm", "kvgot", "attn", "oflag", "zpub", "zflag", "gemm4", "hidflag", "end"):
            return
        e = self.e
        e(f"s_memrealtime s[{sTSp}:{sTSp + 1}]")
        e("s_waitcnt lgkmcnt(0)")
        e(f"v_writelane_b32 {vTS}, s{sTSp}, {self.nts}")
        self.ts_names.append(name)
        self.nts += 1

    def poll(self, voff, soff, vtmp, imm=0):
        e = self.e
        lp, dn = e.label("poll"), e.label("polled")
        e(f"s_mov_b32 {sSPIN}, 0")
        e(f"{lp}:")
        e(f"buffer_load_dword {vtmp}, {voff}, {srd(SRD_WS)}, {soff} offen offset:{imm} sc1")
        e(f"s_add_u32 {sSPIN}, {sSPIN}, 1")
        e(f"s_cmp_ge_u32 {sSPIN}, {SPIN_MAX}")
        e("s_waitcnt vmcnt(0)")
        e(f"s_cbranch_scc1 {dn}")
        e(f"v_cmp_ne_u32 vcc, {sTAG}, {vtmp}")
        e(f"s_cbranch_vccnz {lp}")
        e(f"{dn}:")

    def acquire(self):
        e = self.e
        sk = e.label("acq")
        e(f"s_cmp_lg_u32 {sFAST}, 0")
        e(f"s_cbranch_scc1 {sk}")
        e("buffer_inv sc1")
        e("s_waitcnt vmcnt(0)")
        e(f"{sk}:")

    def publish(self, soff, vtmp, local=True):
        e = self.e
        e("s_waitcnt vmcnt(0)")
        e(f"v_mov_b32 {vtmp}, {sTAG}")
        if local:
            slow, dn = e.label("slowpub"), e.label("pub")
            e(f"s_cmp_lg_u32 {sFAST}, 0")
            e(f"s_cbranch_scc0 {slow}")
            e("s_mov_b64 exec, 1")
            e(f"buffer_store_dword {vtmp}, off, {srd(SRD_WS)}, {soff}")
            e(f"s_branch {dn}")
            e(f"{slow}:")
            e("buffer_wbl2 sc1")
            e("s_waitcnt vmcnt(0)")
            e("s_mov_b64 exec, 1")
            e(f"buffer_store_dword {vtmp}, off, {srd(SRD_WS)}, {soff} sc1")
            e(f"{dn}:")
        else:
            e("s_mov_b64 exec, 1")
            e(f"buffer_store_dword {vtmp}, off, {srd(SRD_WS)}, {soff} sc1")
        e("s_mov_b64 exec, -1")
        e.vm = ["flag"]

    def round_bf16(self, regs, tmp):
        e = self.e
        for a, b in zip(regs[::2], regs[1::2]):
            e(f"v_cvt_pk_bf16_f32 {tmp}, {a}, {b}")
            e(f"v_lshlrev_b32 {a}, 16, {tmp}")
            e(f"v_and_b32 {b}, 0xffff0000, {tmp}")

    def gather_mod(self, voff, g0, t0):
        e = self.e
        lp, dn = e.label("gath"), e.label("gathd")
        e(f"s_mov_b32 {sSPIN}, 0")
        e(f"s_mov_b32 {sD}, 0x0c0c0400")
        e(f"s_mov_b32 {sE}, 0x04000c0c")
        e(f"{lp}:")
        for q in range(4):
            e(f"s_mov_b32 {sA}, {WS_MODP + q * 10752}")
            e(f"buffer_load_dwordx4 {vr(g0 + 4 * q)}, {voff}, {srd(SRD_WS)}, {sA} offen sc1")
        e(f"s_add_u32 {sSPIN}, {sSPIN}, 1")
        e(f"s_cmp_ge_u32 {sSPIN}, {SPIN_MAX}")
        e("s_waitcnt vmcnt(0)")
        e(f"s_cbranch_scc1 {dn}")
        for q in range(4):
            b = g0 + 4 * q
            e(f"v_perm_b32 v{t0}, v{b + 1}, v{b}, {sD}")
            e(f"v_perm_b32 v{t0 + 1}, v{b + 3}, v{b + 2}, {sE}")
            e(f"v_or_b32 v{t0}, v{t0}, v{t0 + 1}")
            e(f"v_xor_b32 v{t0 + 2 + q}, {sTAG}, v{t0}")
        e(f"v_or3_b32 v{t0}, v{t0 + 2}, v{t0 + 3}, v{t0 + 4}")
        e(f"v_or_b32 v{t0}, v{t0}, v{t0 + 5}")
        e(f"v_cmp_ne_u32 vcc, 0, v{t0}")
        e(f"s_cbranch_vccnz {lp}")
        e(f"{dn}:")
        for k in range(16):
            e(f"v_and_b32 v{g0 + k}, 0xffffff00, v{g0 + k}")
        for k in range(4):
            e(f"v_add_f32 v{g0 + k}, v{g0 + k}, v{g0 + 4 + k}")
            e(f"v_add_f32 v{g0 + 8 + k}, v{g0 + 8 + k}, v{g0 + 12 + k}")
        for k in range(4):
            e(f"v_add_f32 v{g0 + k}, v{g0 + k}, v{g0 + 8 + k}")
        self.round_bf16([f"v{g0 + k}" for k in range(4)], f"v{t0}")

    def dma(self, voff, srdn, soff, lds, tag, mods=""):
        e = self.e
        e(f"s_mov_b32 m0, {lds}")
        e(f"buffer_load_dwordx4 {voff}, {srd(srdn)}, {soff} offen {mods} lds", tag)

    def entry(self):
        e = self.e
        e("s_cmp_ge_u32 s2, 256")
        e("s_cbranch_scc1 L_end")
        e("s_load_dwordx16 s[64:79], s[0:1], 0")
        e("s_load_dwordx8 s[80:87], s[0:1], 64")
        if self.ts:
            e(f"v_mov_b32 {vTS}, 0")
        self.stamp("start")
        e(f"v_lshrrev_b32 v4, 6, v0")
        e(f"v_and_b32 {vL}, 63, v0")
        e(f"v_readfirstlane_b32 {sW}, v4")
        e(f"v_lshlrev_b32 {vL16}, 4, {vL}")
        e(f"s_and_b32 {sI}, s2, 7")
        e(f"s_lshr_b32 {sR}, s2, 3")
        e(f"s_lshr_b32 {sH}, {sR}, 1")
        e(f"s_and_b32 {sB}, {sR}, 1")
        e(f"s_lshl_b32 {sT}, {sI}, 1")
        e(f"s_add_u32 {sT}, {sT}, {sB}")
        e(f"s_lshl_b32 {sT}, {sT}, 2")
        e(f"s_add_u32 {sT}, {sT}, {sW}")
        e(f"s_mul_i32 {sRB}, {sR}, 37")
        e(f"s_lshr_b32 {sRB}, {sRB}, 8")
        e(f"s_mul_i32 {sA}, {sRB}, 7")
        e(f"s_sub_u32 {sCG}, {sR}, {sA}")
        e(f"s_cmp_eq_u32 {sH}, 15")
        e(f"s_cselect_b32 {sADJ}, 8, 0")
        e(f"s_mov_b32 s{sHIp}, 0")
        e(f"s_mov_b32 s{sHIp + 1}, -1")
        sizes = {SRD_X: 1835008, SRD_WQKV: 1204224, SRD_WO: 401408, SRD_WG: 1605632, SRD_WU: 1605632, SRD_WD: 1605632,
                 SRD_C: 896, SRD_WM: 2408448, SRD_OUT: 1835008, SRD_DBG: 256, SRD_WS: WS_SIZE}
        for n, sz in sizes.items():
            e(f"s_mov_b32 s{n + 2}, {sz}")
            e(f"s_mov_b32 s{n + 3}, 0x00020000")
        e("s_waitcnt lgkmcnt(0)")
        src = {SRD_WS: 86, SRD_C: 78, SRD_WM: 80, SRD_X: 64, SRD_WQKV: 66, SRD_WO: 68, SRD_WG: 72, SRD_WU: 74, SRD_WD: 76,
               SRD_OUT: 82, SRD_DBG: 84}
        for n, s in src.items():
            e(f"s_mov_b64 s[{n}:{n + 1}], s[{s}:{s + 1}]")

    def wqkv_dma(self, lo, hi):
        e = self.e
        for n in range(lo, hi):
            mat, kk = divmod(n, 7)
            gcol = (896, 1792, 0)[mat]
            lbase = (L_WK, L_WV, L_WQ)[mat]
            e(f"s_add_u32 {sA}, {sC}, {gcol + kk * 4 * 16 * 2688}")
            e(f"s_add_u32 {sBt}, {sD}, {lbase + kk * 4096}")
            self.dma("v10", SRD_WQKV, sA, sBt, "wqkv")

    def front(self):
        e = self.e
        e(f"buffer_load_dword {vE}, off, {srd(SRD_WS)}, 0 sc1", "E")
        e(f"s_cmp_ge_u32 {sR}, 21")
        e("s_cbranch_scc1 L_nomod1")
        e(f"s_and_b32 {sA}, {sI}, 3")
        e(f"s_mul_i32 {sA}, {sA}, 112")
        e(f"s_mul_i32 {sBt}, {sW}, 28")
        e(f"s_add_u32 {sA}, {sA}, {sBt}")
        e(f"v_lshrrev_b32 v4, 4, {vL}")
        e(f"v_and_b32 v5, 15, {vL}")
        e(f"v_lshl_add_u32 v6, v5, 2, v4")
        e(f"v_add_u32 v6, {sA}, v6")
        e(f"v_lshlrev_b32 v6, 1, v6")
        e(f"buffer_load_ushort v16, v6, {srd(SRD_C)}, 0 offen", "c")
        e(f"v_mul_u32_u24 v7, 5376, v4")
        e(f"v_lshl_add_u32 v7, v5, 3, v7")
        e(f"s_lshr_b32 {sBt}, {sI}, 2")
        e(f"s_lshl_b32 {sC}, {sR}, 1")
        e(f"s_add_u32 {sBt}, {sBt}, {sC}")
        e(f"s_mul_i32 {sA}, {sA}, 5376")
        e(f"s_lshl_b32 {sC}, {sBt}, 7")
        e(f"s_add_u32 {sA}, {sA}, {sC}")
        for j in range(7):
            e(f"buffer_load_dwordx2 {vr(18 + 2 * j, 2)}, v7, {srd(SRD_WM)}, {sA} offen", "wm")
            if j < 6:
                e(f"s_add_u32 {sA}, {sA}, 21504")
        e("L_nomod1:")
        e(f"v_and_b32 v4, 7, {vL}")
        e(f"v_lshrrev_b32 v5, 3, {vL}")
        e(f"v_mul_u32_u24 v8, 896, v4")
        e(f"v_lshl_add_u32 v8, v5, 4, v8")
        e(f"v_cmp_gt_u32 vcc, 6, v5")
        e(f"v_add_u32 v9, 128, v8")
        e(f"v_mov_b32 v11, 0x7ffffff0")
        e(f"v_cndmask_b32 v9, v11, v9, vcc")
        e(f"s_lshl_b32 {sA}, {sI}, 5")
        e(f"s_add_u32 {sA}, {sA}, {sR}")
        e(f"s_mul_i32 {sA}, {sA}, 7168")
        e(f"s_mul_i32 {sBt}, {sW}, 224")
        e(f"s_add_u32 {sA}, {sA}, {sBt}")
        e(f"buffer_load_dwordx4 v[32:35], v8, {srd(SRD_X)}, {sA} offen", "x")
        e(f"buffer_load_dwordx4 v[36:39], v9, {srd(SRD_X)}, {sA} offen", "x")
        if self.o.get("codepf", 1):
            e("s_getpc_b64 s[88:89]")
            e("L_pc:")
            e("s_sub_u32 s88, s88, L_pc-" + NAME + "_kernel")
            e("s_subb_u32 s89, s89, 0")
            e(f"s_lshl_b32 {sA}, {sR}, 2")
            e(f"s_add_u32 {sA}, {sA}, {sW}")
            e(f"v_lshl_add_u32 v12, {vL}, 7, {sA}")
            e(f"v_lshlrev_b32 v12, 7, v12")
            e(f"v_min_u32 v12, L_end-" + NAME + "_kernel, v12")
            e("s_mov_b64 exec, 15")
            e("global_load_dword v13, v12, s[88:89]", "pf")
            e("s_mov_b64 exec, -1")
        e(f"v_lshrrev_b32 v10, 2, {vL}")
        e(f"v_mul_u32_u24 v10, 2688, v10")
        e(f"v_and_b32 v11, 3, {vL}")
        e(f"v_lshl_add_u32 v10, v11, 4, v10")
        e(f"s_mul_i32 {sC}, {sH}, 56")
        e(f"s_sub_u32 {sC}, {sC}, {sADJ}")
        e(f"s_mul_i32 {sA}, {sW}, {16 * 2688}")
        e(f"s_add_u32 {sC}, {sC}, {sA}")
        e(f"s_lshl_b32 {sD}, {sW}, 10")
        n_early = self.o.get("early_w", 7)
        self.wqkv_dma(0, n_early)
        full = list(e.vm)
        e.vm = [t for t in full if t not in ("c", "wm")]
        e.wait(vm="E")
        e.vm = full[1:]
        e(f"v_readfirstlane_b32 {sTAG}, {vE}")
        e(f"s_mul_i32 {sTAG}, {sTAG}, 1664525")
        e(f"s_add_u32 {sTAG}, {sTAG}, 1013904223")
        common = list(e.vm)
        e(f"s_cmp_lg_u32 {sW}, 3")
        e("s_cbranch_scc1 L_noxcc")
        e(f"s_getreg_b32 {sA}, hwreg(HW_REG_XCC_ID, 0, 4)")
        e(f"v_mov_b32 v14, {sTAG}")
        e(f"v_mov_b32 v15, {sA}")
        e(f"s_lshl_b32 {sA}, {sI}, 5")
        e(f"s_add_u32 {sA}, {sA}, {sR}")
        e(f"s_lshl_b32 {sA}, {sA}, 3")
        e(f"v_mov_b32 {vE}, 1")
        e("s_mov_b64 exec, 1")
        e(f"buffer_store_dwordx2 v[14:15], off, {srd(SRD_WS)}, {sA} offset:{WS_XCC} sc1")
        e(f"buffer_atomic_add {vE}, off, {srd(SRD_DBG)}, 0 sc0 sc1")
        e("s_mov_b64 exec, -1")
        e("L_noxcc:")
        e.vm = list(common)
        self.stamp("tag")
        e(f"s_cmp_ge_u32 {sR}, 21")
        e("s_cbranch_scc1 L_nomod2")
        e.wait(vm="c")
        e(f"v_lshlrev_b32 v16, 16, v16")
        e(f"v_mul_f32 v17, {fbits(-math.log2(math.e))}, v16")
        e("v_exp_f32 v17, v17")
        e("v_add_f32 v17, 1.0, v17")
        e("v_rcp_f32 v17, v17")
        e("v_mul_f32 v16, v16, v17")
        e("v_cvt_pk_bf16_f32 v16, v16, v16")
        e("v_lshlrev_b32 v16, 16, v16")
        for k in range(4):
            e(f"v_mov_b32 v{40 + k}, 0")
        e.wait(vm="wm")
        for j in range(7):
            a, b = 18 + 2 * j, 19 + 2 * j
            e(f"v_lshlrev_b32 v44, 16, v{a}")
            e(f"v_and_b32 v45, 0xffff0000, v{a}")
            e(f"v_lshlrev_b32 v46, 16, v{b}")
            e(f"v_and_b32 v47, 0xffff0000, v{b}")
            for k in range(4):
                e(f"v_fmac_f32_dpp v{40 + k}, v16, v{44 + k} row_newbcast:{j} row_mask:0xf bank_mask:0xf")
        e("v_permlane16_swap_b32 v40, v41")
        e("v_permlane16_swap_b32 v42, v43")
        e("v_add_f32 v40, v40, v41")
        e("v_add_f32 v42, v42, v43")
        e("v_permlane32_swap_b32 v40, v42")
        e("v_add_f32 v40, v40, v42")
        e(f"v_lshrrev_b32 v4, 4, {vL}")
        e(f"v_and_b32 v5, 15, {vL}")
        e(f"v_lshl_add_u32 v5, v5, 2, v4")
        e(f"s_lshl_b32 {sA}, {sW}, 8")
        e(f"v_lshl_add_u32 v5, v5, 2, {sA}")
        e(f"ds_write_b32 v5, v40 offset:{L_MODR}")
        e("s_waitcnt lgkmcnt(0)")
        e("s_barrier")
        e(f"s_cmp_lg_u32 {sW}, 0")
        e("s_cbranch_scc1 L_nomod2")
        e("s_mov_b64 exec, 0xffff")
        for k in range(4):
            e(f"ds_read_b128 {vr(40 + 4 * k)}, {vL16} offset:{L_MODR + 256 * k}")
        e(f"s_and_b32 {sA}, {sI}, 3")
        e(f"s_mul_i32 {sA}, {sA}, 10752")
        e(f"s_lshr_b32 {sBt}, {sI}, 2")
        e(f"s_lshl_b32 {sE}, {sR}, 1")
        e(f"s_add_u32 {sBt}, {sBt}, {sE}")
        e(f"s_lshl_b32 {sBt}, {sBt}, 8")
        e(f"s_add_u32 {sA}, {sA}, {sBt}")
        e(f"s_add_u32 {sA}, {sA}, {WS_MODP}")
        e("v_mov_b32 v5, 0xff")
        e("s_waitcnt lgkmcnt(0)")
        for k in range(4):
            e(f"v_add_f32 v{40 + k}, v{40 + k}, v{44 + k}")
            e(f"v_add_f32 v{48 + k}, v{48 + k}, v{52 + k}")
        for k in range(4):
            e(f"v_add_f32 v{40 + k}, v{40 + k}, v{48 + k}")
            e(f"s_lshr_b32 {sBt}, {sTAG}, {8 * k}")
            e(f"v_bfi_b32 v{40 + k}, v5, {sBt}, v{40 + k}")
        e(f"buffer_store_dwordx4 v[40:43], {vL16}, {srd(SRD_WS)}, {sA} offen sc1")
        e("s_mov_b64 exec, -1")
        e("L_nomod2:")
        e.vm = list(common)
        self.stamp("modpub")
        e.wait(vm="x")
        for k in range(8):
            e(f"v_lshlrev_b32 v{48 + 2 * k}, 16, v{32 + k}")
            e(f"v_and_b32 v{49 + 2 * k}, 0xffff0000, v{32 + k}")
        e("v_add_f32 v4, v48, v49")
        e("v_add_f32 v5, v50, v51")
        for k in range(4, 16, 2):
            e(f"v_add_f32 v4, v4, v{48 + k}")
            e(f"v_add_f32 v5, v5, v{49 + k}")
        e("v_add_f32 v4, v4, v5")
        self.reduce_hi3("v4", "v5")
        e(f"v_mul_f32 v6, {fbits(1.0 / 112)}, v4")
        e(f"v_lshrrev_b32 v5, 3, {vL}")
        e(f"v_cmp_gt_u32 s[90:91], 6, v5")
        e("v_mov_b32 v7, 0")
        e("v_mov_b32 v12, 0")
        for k in range(8):
            e(f"v_sub_f32 v5, v{48 + k}, v6")
            e(f"v_sub_f32 v11, v{56 + k}, v6")
            e("v_fmac_f32 v7, v5, v5")
            e("v_fmac_f32 v12, v11, v11")
        e("v_cndmask_b32 v12, 0, v12, s[90:91]")
        e("v_add_f32 v5, v7, v12")
        self.reduce_hi3("v5", "v7")
        e(f"s_lshl_b32 {sA}, {sW}, 6")
        e(f"v_and_b32 v6, 7, {vL}")
        e(f"v_lshlrev_b32 v6, 3, v6")
        e(f"v_add_u32 v7, {sA}, v6")
        e(f"ds_write_b64 v7, v[4:5] offset:{L_STATX}")
        e("v_mov_b32 v14, 0")
        e("v_mov_b32 v15, 0")
        e(f"v_lshlrev_b32 v7, 3, {vL}")
        e(f"v_add_u32 v7, {L_PAD}, v7")
        e(f"ds_write_b64 v7, v[14:15]")
        e("s_waitcnt lgkmcnt(0)")
        e("s_barrier")
        for k in range(4):
            e(f"ds_read_b64 {vr(16 + 2 * k, 2)}, v6 offset:{L_STATX + 64 * k}")
        e(f"s_mul_i32 {sC}, {sH}, 56")
        e(f"s_sub_u32 {sC}, {sC}, {sADJ}")
        e(f"s_mul_i32 {sA}, {sW}, {16 * 2688}")
        e(f"s_add_u32 {sC}, {sC}, {sA}")
        e(f"s_lshl_b32 {sD}, {sW}, 10")
        self.wqkv_dma(n_early, 21)
        e("s_waitcnt lgkmcnt(0)")
        e("v_add_f32 v4, v16, v18")
        e("v_add_f32 v5, v20, v22")
        e("v_add_f32 v4, v4, v5")
        e(f"v_mul_f32 v4, {fbits(1.0 / 448)}, v4")
        e("v_add_f32 v5, v17, v19")
        e("v_add_f32 v7, v21, v23")
        e("v_add_f32 v5, v5, v7")
        e(f"v_mov_b32 v12, {fbits(1.0 / 112)}")
        e("v_mov_b32 v7, 0")
        for k in range(4):
            e(f"v_fma_f32 v11, v{16 + 2 * k}, v12, -v4")
            e("v_fmac_f32 v7, v11, v11")
        e(f"v_mul_f32 v7, {fbits(112.0)}, v7")
        e("v_add_f32 v5, v5, v7")
        e(f"v_mul_f32 v5, {fbits(1.0 / 448)}, v5")
        self.round_bf16(["v4", "v5"], "v7")
        e(f"v_add_f32 v5, {fbits(1e-5)}, v5")
        e("v_cvt_pk_bf16_f32 v5, v5, v5")
        e("v_lshlrev_b32 v5, 16, v5")
        e("v_sqrt_f32 v5, v5")
        e("v_cvt_pk_bf16_f32 v5, v5, v5")
        e("v_lshlrev_b32 v5, 16, v5")
        e("v_rcp_f32 v5, v5")
        xs = [f"v{48 + k}" for k in range(16)]
        for x in xs:
            e(f"v_sub_f32 {x}, {x}, v4")
        self.round_bf16(xs, "v7")
        for x in xs:
            e(f"v_mul_f32 {x}, {x}, v5")
        self.round_bf16(xs, "v7")
        self.stamp("ln1")
        e(f"s_cmp_ge_u32 {sR}, 28")
        e("s_cbranch_scc1 L_nowo")
        e(f"v_lshrrev_b32 v4, 3, {vL}")
        e(f"v_and_b32 v5, 6, v4")
        e(f"v_and_b32 v6, 7, {vL}")
        e("v_xor_b32 v5, v5, v6")
        e("v_mul_u32_u24 v4, 896, v4")
        e("v_lshl_add_u32 v4, v5, 4, v4")
        e(f"s_lshl_b32 {sC}, {sCG}, 7")
        e(f"s_mul_i32 {sA}, {sW}, {14 * 8 * 896}")
        e(f"s_add_u32 {sC}, {sC}, {sA}")
        e(f"s_mul_i32 {sD}, {sW}, 14336")
        for n in range(14):
            e(f"s_add_u32 {sA}, {sC}, {n * 8 * 896}")
            e(f"s_add_u32 {sBt}, {sD}, {L_WO + n * 1024}")
            self.dma("v4", SRD_WO, sA, sBt, "wo")
        e("L_nowo:")
        self.pretouch()
        lp, dn = e.label("xcc"), e.label("xccd")
        e(f"v_and_b32 v4, 31, {vL}")
        e(f"v_lshlrev_b32 v4, 3, v4")
        e(f"s_lshl_b32 {sA}, {sI}, 8")
        e(f"s_mov_b32 {sSPIN}, 0")
        e(f"{lp}:")
        e(f"buffer_load_dwordx2 v[6:7], v4, {srd(SRD_WS)}, {sA} offen offset:{WS_XCC} sc1")
        e(f"s_add_u32 {sSPIN}, {sSPIN}, 1")
        e(f"s_cmp_ge_u32 {sSPIN}, {SPIN_MAX}")
        e("s_waitcnt vmcnt(0)")
        e(f"s_cbranch_scc1 {dn}")
        e(f"v_cmp_ne_u32 vcc, {sTAG}, v6")
        e(f"s_cbranch_vccnz {lp}")
        e(f"{dn}:")
        e(f"s_getreg_b32 {sA}, hwreg(HW_REG_XCC_ID, 0, 4)")
        e(f"v_cmp_ne_u32 vcc, {sA}, v7")
        e("s_cmp_eq_u64 vcc, 0")
        e(f"s_cselect_b32 {sFAST}, {0 if self.o.get('force_slow') else 1}, 0")
        e(f"s_cmp_lg_u32 {sW}, 3")
        e("s_cbranch_scc1 L_nobump")
        e(f"v_readfirstlane_b32 {sA}, {vE}")
        e(f"s_cmp_lg_u32 {sA}, 255")
        e("s_cbranch_scc1 L_nobump")
        e(f"v_mov_b32 v4, {sTAG}")
        e("s_mov_b64 exec, 1")
        e(f"buffer_store_dword v4, off, {srd(SRD_WS)}, 0 sc1")
        e("s_mov_b64 exec, -1")
        e("L_nobump:")
        e.vm = []
        self.stamp("xcc")

    def reduce_hi3(self, a, t):
        e = self.e
        e(f"v_add_f32_dpp {a}, {a}, {a} row_ror:8 row_mask:0xf bank_mask:0xf")
        self.reduce_hi2(a, t)

    def reduce_hi2(self, a, t, op="v_add_f32"):
        e = self.e
        e(f"v_mov_b32 {t}, {a}")
        e(f"v_permlane16_swap_b32 {a}, {t}")
        e(f"{op} {a}, {a}, {t}")
        e(f"v_mov_b32 {t}, {a}")
        e(f"v_permlane32_swap_b32 {a}, {t}")
        e(f"{op} {a}, {a}, {t}")

    def pretouch(self):
        if not self.o.get("pretouch", 1):
            return
        e = self.e
        e(f"s_lshl_b32 {sC}, {sR}, 2")
        e(f"s_add_u32 {sC}, {sC}, {sW}")
        areas = [(WS_H, 229376), (WS_O, 262144), (WS_Z, 229376), (WS_HID, 917504), (WS_STAT, 14336)]
        for base, per in areas:
            lines = per // 128
            per_wave = -(-lines // 128)
            e(f"s_mul_i32 {sA}, {sI}, {per}")
            e(f"s_add_u32 {sA}, {sA}, {base}")
            e(f"s_mul_i32 {sBt}, {sC}, {per_wave}")
            e(f"v_add_u32 v4, {sBt}, {vL}")
            e(f"v_min_u32 v4, {lines - 1}, v4")
            e(f"v_lshlrev_b32 v4, 7, v4")
            m = (1 << per_wave) - 1
            e(f"s_mov_b32 exec_lo, {hex(m & 0xffffffff)}")
            e(f"s_mov_b32 exec_hi, {hex(m >> 32)}")
            e(f"buffer_load_dword v13, v4, {srd(SRD_WS)}, {sA} offen sc1", "pt")
            e("s_mov_b64 exec, -1")
        e(f"v_and_b32 v4, 3, {vL}")
        e(f"v_lshlrev_b32 v4, 7, v4")
        e(f"v_lshrrev_b32 v5, 2, {vL}")
        e(f"v_lshl_add_u32 v4, v5, 12, v4")
        e(f"s_lshl_b32 {sA}, {sI}, 9")
        e(f"s_add_u32 {sA}, {sA}, {WS_FLH}")
        e("s_mov_b64 exec, 0xffff")
        e(f"buffer_load_dword v13, v4, {srd(SRD_WS)}, {sA} offen sc1", "pt")
        e("s_mov_b64 exec, -1")

    def f1(self):
        e = self.e
        e(f"v_lshrrev_b32 v5, 3, {vL}")
        e(f"v_bfe_u32 v6, {vL}, 2, 1")
        e(f"v_cmp_gt_u32 vcc, 6, v5")
        e(f"v_cndmask_b32 v6, 0, v6, vcc")
        e(f"v_lshl_add_u32 v6, v6, 3, v5")
        e(f"s_mul_i32 {sA}, {sW}, 14")
        e(f"v_add_u32 v6, {sA}, v6")
        e(f"v_bfe_u32 v7, {vL}, 1, 1")
        e(f"v_lshl_add_u32 v6, v6, 1, v7")
        e(f"v_and_b32 v7, 1, {vL}")
        e(f"v_mul_u32_u24 v7, 112, v7")
        e(f"v_add_u32 v6, v6, v7")
        e(f"v_lshlrev_b32 v8, 4, v6")
        self.gather_mod("v8", 16, 40)
        self.stamp("modgot")
        e(f"v_and_b32 v7, 1, {vL}")
        e(f"v_cvt_f32_u32 v7, v7")
        for k in range(4):
            e(f"v_add_f32 v{16 + k}, v{16 + k}, v7")
        self.round_bf16([f"v{16 + k}" for k in range(4)], "v40")
        e(f"s_lshl_b32 {sA}, {sW}, 12")
        e(f"s_add_u32 {sA}, {sA}, {L_SCR}")
        e(f"v_add_u32 v9, {sA}, {vL16}")
        e("ds_write_b128 v9, v[16:19]")
        e("v_and_b32 v9, 0xffffff80, v9")
        e("s_waitcnt lgkmcnt(0)")
        for it in range(8):
            e(f"ds_read_b128 {vr(64 + 4 * it)}, v9 offset:{16 * it}")
        e(f"v_and_b32 v4, 7, {vL}")
        e(f"v_lshlrev_b32 v4, 4, v4")
        e(f"v_lshl_add_u32 v4, v5, 9, v4")
        e(f"v_cmp_gt_u32 vcc, 6, v5")
        e(f"v_add_u32 v6, 4096, v4")
        e(f"v_mov_b32 v11, 0x7ffffff0")
        e(f"v_cndmask_b32 v6, v11, v6, vcc")
        e(f"s_lshr_b32 {sA}, {sR}, 2")
        e(f"s_lshl_b32 {sBt}, {sI}, 3")
        e(f"s_add_u32 {sBt}, {sBt}, {sA}")
        e(f"s_mul_i32 {sA}, {sBt}, 28672")
        e(f"s_and_b32 {sC}, {sR}, 3")
        e(f"s_lshl_b32 {sD}, {sC}, 7")
        e(f"s_add_u32 {sA}, {sA}, {sD}")
        e(f"s_mul_i32 {sD}, {sW}, 7168")
        e(f"s_add_u32 {sA}, {sA}, {sD}")
        e(f"s_add_u32 {sA}, {sA}, {WS_H}")
        e(f"s_lshl_b32 {sBt}, {sBt}, 6")
        e(f"s_lshl_b32 {sC}, {sC}, 4")
        e(f"s_add_u32 {sBt}, {sBt}, {sC}")
        e(f"s_lshl_b32 {sC}, {sW}, 2")
        e(f"s_add_u32 {sBt}, {sBt}, {sC}")
        e(f"s_add_u32 {sBt}, {sBt}, {WS_FLH}")
        e("s_waitcnt lgkmcnt(0)")
        for gs in range(2):
            xs = [f"v{48 + 8 * gs + k}" for k in range(8)]
            c1 = [f"v{64 + 4 * (4 * gs + 2 * (k >> 2) + 1) + (k & 3)}" for k in range(8)]
            c2 = [f"v{64 + 4 * (4 * gs + 2 * (k >> 2)) + (k & 3)}" for k in range(8)]
            if self.o.get("h_round", 1):
                for x, c in zip(xs, c1):
                    e(f"v_mul_f32 {x}, {x}, {c}")
                self.round_bf16(xs, "v7")
                for x, c in zip(xs, c2):
                    e(f"v_add_f32 {x}, {x}, {c}")
            else:
                for x, c, d in zip(xs, c1, c2):
                    e(f"v_fma_f32 {x}, {x}, {c}, {d}")
            for k in range(4):
                e(f"v_cvt_pk_bf16_f32 v{32 + 4 * gs + k}, {xs[2 * k]}, {xs[2 * k + 1]}")
            e(f"buffer_store_dwordx4 {vr(32 + 4 * gs)}, v{4 + 2 * gs}, {srd(SRD_WS)}, {sA} offen")
        self.publish(sBt, "v7")
        self.stamp("hpub")

    def p1(self):
        e = self.e
        ACK, ACV, ACQ = 16, 32, 48
        HB, WR = 0, 112
        e("s_barrier")
        e(f"v_lshrrev_b32 v4, 5, {vL}")
        e(f"v_lshlrev_b32 v4, 9, v4")
        e(f"v_bfe_u32 v5, {vL}, 2, 2")
        e(f"v_lshl_add_u32 v4, v5, 6, v4")
        e(f"v_bfe_u32 v5, {vL}, 4, 1")
        e(f"v_lshl_add_u32 v4, v5, 5, v4")
        e(f"v_and_b32 v5, 3, {vL}")
        e(f"v_lshl_add_u32 v4, v5, 3, v4")
        e(f"v_add_u32 v4, {sADJ}, v4")
        e(f"v_add_u32 v8, {L_WQ}, v4")
        e(f"v_add_u32 v9, {L_WK}, v4")
        DEPTH = 3

        def rd(addr, off, dst, tag):
            e(f"ds_read_b64_tr_b16 {ar(dst, 2)}, {addr} offset:{off}", tag)
            e(f"ds_read_b64_tr_b16 {ar(dst + 2, 2)}, {addr} offset:{off + 256}", tag)

        def rd_kv(ks):
            b = WR + 8 * (ks % 4)
            rd("v9", ks * 1024, b, ("kv", ks))
            rd("v9", 28672 + ks * 1024, b + 4, ("kv", ks))

        for ks in range(DEPTH):
            rd_kv(ks)
        e(f"v_and_b32 v4, 15, {vL}")
        e(f"v_lshlrev_b32 v4, 2, v4")
        e(f"s_lshl_b32 {sA}, {sT}, 6")
        e(f"s_add_u32 {sA}, {sA}, {WS_FLH}")
        self.poll("v4", sA, "v5")
        self.acquire()
        self.stamp("hflag")
        e(f"s_mul_i32 {sA}, {sT}, 28672")
        e(f"s_add_u32 {sA}, {sA}, {WS_H}")
        for ks in range(28):
            if ks and ks % 4 == 0:
                e(f"s_add_u32 {sA}, {sA}, 4096")
            e(f"buffer_load_dwordx4 {ar(HB + 4 * ks)}, {vL16}, {srd(SRD_WS)}, {sA} offen offset:{(ks % 4) * 1024} sc1", ("h", ks))
        for ks in range(28):
            if ks + DEPTH < 28:
                rd_kv(ks + DEPTH)
            e.wait(vm=("h", ks), lg=("kv", ks))
            b = WR + 8 * (ks % 4)
            ck = "0" if ks == 0 else vr(ACK, 16)
            cv = "0" if ks == 0 else vr(ACV, 16)
            e(f"v_mfma_f32_32x32x16_bf16 {vr(ACK, 16)}, {ar(b)}, {ar(HB + 4 * ks)}, {ck}")
            e(f"v_mfma_f32_32x32x16_bf16 {vr(ACV, 16)}, {ar(HB + 4 * ks)}, {ar(b + 4)}, {cv}")
        self.stamp("kvgemm")
        QR = WR + 32

        def rd_q(ks):
            rd("v8", ks * 1024, QR + 4 * (ks % 8), ("q", ks))

        for ks in range(4):
            rd_q(ks)
        e(f"s_mul_i32 {sA}, {sH}, 64")
        e(f"s_add_u32 {sA}, {sA}, {sT}")
        e(f"s_lshl_b32 {sA}, {sA}, 12")
        e(f"s_add_u32 {sA}, {sA}, {WS_KV}")
        e(f"s_lshl_b32 {sBt}, {sW}, 12")
        e(f"s_add_u32 {sBt}, {sBt}, {L_KV + 8 * 4096}")
        e(f"v_add_u32 v10, {sBt}, {vL16}")
        e(f"v_and_b32 v4, 31, {vL}")
        e(f"v_cmp_eq_u32 s[90:91], 28, v4")
        e("v_mov_b32 v11, 0x3f803f80")
        for k in range(8):
            e(f"v_cvt_pk_bf16_f32 v{64 + k}, v{ACK + 2 * k}, v{ACK + 2 * k + 1}")
        e(f"v_cndmask_b32 v70, v70, 0, {sHI}")
        e(f"v_cndmask_b32 v71, v71, 0, {sHI}")
        for f in range(2):
            e(f"buffer_store_dwordx4 {vr(64 + 4 * f)}, {vL16}, {srd(SRD_WS)}, {sA} offen offset:{f * 1024} sc1", "kvst")
        for k in range(8):
            e(f"v_cvt_pk_bf16_f32 v{72 + k}, v{ACV + 2 * k}, v{ACV + 2 * k + 1}")
            e(f"v_cndmask_b32 v{72 + k}, v{72 + k}, v11, s[90:91]")
        for f in range(2, 4):
            e(f"buffer_store_dwordx4 {vr(64 + 4 * f)}, {vL16}, {srd(SRD_WS)}, {sA} offen offset:{f * 1024} sc1", "kvst")
        for f in range(4):
            e(f"ds_write_b128 v10, {vr(64 + 4 * f)} offset:{f * 1024}", "kvw")
        for ks in range(28):
            if ks + 4 < 28:
                rd_q(ks + 4)
            e.wait(lg=("q", ks))
            cq = "0" if ks == 0 else vr(ACQ, 16)
            e(f"v_mfma_f32_32x32x16_bf16 {vr(ACQ, 16)}, {ar(QR + 4 * (ks % 8))}, {ar(HB + 4 * ks)}, {cq}")
        e(f"s_lshl_b32 {sA}, {sH}, 4")
        e(f"s_lshr_b32 {sBt}, {sT}, 2")
        e(f"s_add_u32 {sA}, {sA}, {sBt}")
        e(f"s_lshl_b32 {sA}, {sA}, 7")
        e(f"s_lshl_b32 {sBt}, {sW}, 2")
        e(f"s_add_u32 {sA}, {sA}, {sBt}")
        e(f"s_add_u32 {sA}, {sA}, {WS_FLKV}")
        self.publish(sA, "v7", local=False)
        self.stamp("kvpub")
        qs = 28 ** -0.5 * math.log2(math.e)
        e(f"s_mov_b32 {sA}, {fbits(qs)}")
        for k in range(16):
            e(f"v_mul_f32 v{ACQ + k}, {sA}, v{ACQ + k}")
        for k in range(8):
            e(f"v_cvt_pk_bf16_f32 v{64 + k}, v{ACQ + 2 * k}, v{ACQ + 2 * k + 1}")
        e("v_mov_b32 v11, 0x00003f80")
        e(f"v_cndmask_b32 v70, v70, v11, {sHI}")
        e(f"v_cndmask_b32 v71, v71, 0, {sHI}")
        e("s_waitcnt lgkmcnt(0)")
        e("s_barrier")

    def late_consts(self):
        e = self.e
        e(f"s_cmp_ge_u32 {sR}, 28")
        e("s_cbranch_scc1 L_nolate")
        e(f"s_lshl_b32 {sA}, {sW}, 6")
        e(f"v_add_u32 v4, {sA}, {vL}")
        e("v_cmp_gt_u32 vcc, 112, v4")
        e(f"s_movk_i32 {sBt}, 224")
        e(f"v_cmp_gt_u32 s[90:91], {sBt}, v4")
        e("v_subrev_u32 v5, 112, v4")
        e("v_cndmask_b32 v5, v5, v4, vcc")
        e("v_mov_b32 v6, 336")
        e("v_mov_b32 v7, 448")
        e("v_cndmask_b32 v6, v6, v7, vcc")
        e("v_add_u32 v6, v6, v5")
        e("v_and_b32 v7, 15, v4")
        e(f"s_lshl_b32 {sA}, {sCG}, 4")
        e(f"v_add_u32 v7, {sA}, v7")
        e("v_bfe_u32 v8, v4, 4, 1")
        e("v_mul_u32_u24 v8, 336, v8")
        e("v_add_u32 v7, v7, v8")
        e("v_add_u32 v7, 224, v7")
        e("v_cndmask_b32 v6, v7, v6, s[90:91]")
        e("v_lshlrev_b32 v8, 4, v6")
        e("s_mov_b64 s[92:93], vcc")
        self.gather_mod("v8", 16, 40)
        e("v_cndmask_b32 v7, 0, 1.0, s[92:93]")
        for k in range(4):
            e(f"v_add_f32 v{20 + k}, v{16 + k}, v7")
        e("v_cvt_pk_bf16_f32 v20, v20, v21")
        e("v_cvt_pk_bf16_f32 v21, v22, v23")
        e("v_lshrrev_b32 v6, 3, v5")
        e("v_lshlrev_b32 v6, 6, v6")
        e("v_and_b32 v7, 3, v5")
        e("v_lshl_add_u32 v6, v7, 4, v6")
        e("v_bfe_u32 v7, v5, 2, 1")
        e("v_lshl_add_u32 v6, v7, 3, v6")
        e("v_mov_b32 v7, 896")
        e("v_cndmask_b32 v7, v7, 0, s[92:93]")
        e("v_add_u32 v6, v6, v7")
        e("v_and_b32 v7, 31, v4")
        e("v_lshlrev_b32 v7, 4, v7")
        e("s_mov_b64 exec, s[90:91]")
        e(f"ds_write_b64 v6, v[20:21] offset:{L_CVEC}")
        e("s_not_b64 exec, exec")
        e(f"ds_write_b128 v7, v[16:19] offset:{L_GAB}")
        e("s_mov_b64 exec, -1")
        e(f"v_lshrrev_b32 v4, 2, {vL}")
        e(f"v_mul_u32_u24 v4, 896, v4")
        e(f"v_and_b32 v5, 3, {vL}")
        e(f"v_lshl_add_u32 v15, v5, 4, v4")
        e(f"s_lshl_b32 {sA}, {sI}, 2")
        e(f"s_add_u32 {sA}, {sA}, {sRB}")
        e(f"s_lshl_b32 {sA}, {sA}, 2")
        e(f"s_add_u32 {sA}, {sA}, {sW}")
        e(f"s_mul_i32 {sA}, {sA}, 14336")
        e(f"s_lshl_b32 {sBt}, {sCG}, 7")
        e(f"s_add_u32 s100, {sA}, {sBt}")
        e(f"buffer_load_dwordx4 v[240:243], v15, {srd(SRD_X)}, s100 offen")
        e(f"buffer_load_dwordx4 v[244:247], v15, {srd(SRD_X)}, s100 offen offset:64")
        e("L_nolate:")
        e.vm = []
        e.lg = []

    def p2(self):
        e = self.e
        QF = 64
        e(f"s_and_b32 {sA}, {sT}, 0xfc")
        e(f"s_lshl_b32 {sBt}, {sW}, 1")
        e(f"s_add_u32 {sA}, {sA}, {sBt}")
        e(f"s_lshl_b32 {sD}, {sW}, 13")
        e(f"s_add_u32 {sD}, {sD}, {L_KV}")
        e(f"s_cmp_lt_u32 {sA}, 8")
        e("s_cbranch_scc1 L_kvfill")
        e(f"s_sub_u32 {sC}, {sA}, 8")
        e(f"s_lshl_b32 {sA}, {sH}, 4")
        e(f"s_lshr_b32 {sBt}, {sC}, 2")
        e(f"s_add_u32 {sA}, {sA}, {sBt}")
        e(f"s_lshl_b32 {sA}, {sA}, 7")
        e(f"s_and_b32 {sBt}, {sC}, 3")
        e(f"s_lshl_b32 {sBt}, {sBt}, 2")
        e(f"s_add_u32 {sA}, {sA}, {sBt}")
        e(f"s_add_u32 {sA}, {sA}, {WS_FLKV}")
        e(f"v_and_b32 v4, 1, {vL}")
        e(f"v_lshlrev_b32 v4, 2, v4")
        self.poll("v4", sA, "v5")
        self.acquire()
        e(f"s_lshl_b32 {sA}, {sH}, 6")
        e(f"s_add_u32 {sA}, {sA}, {sC}")
        e(f"s_lshl_b32 {sA}, {sA}, 12")
        e(f"s_add_u32 {sA}, {sA}, {WS_KV}")
        for t in range(2):
            e(f"s_mov_b32 m0, {sD}")
            for f in range(4):
                e(f"buffer_load_dwordx4 {vL16}, {srd(SRD_WS)}, {sA} offen offset:{f * 1024} sc1 lds")
            if t == 0:
                e(f"s_add_u32 {sA}, {sA}, 4096")
                e(f"s_add_u32 {sD}, {sD}, 4096")
        e("s_branch L_kvdone")
        e("L_kvfill:")
        for k in range(8):
            e(f"v_mov_b32 v{16 + k}, 0")
        e("v_mov_b32 v4, 0x0000f149")
        e(f"v_cndmask_b32 v22, 0, v4, {sHI}")
        e(f"v_add_u32 v4, {sD}, {vL16}")
        for t in range(2):
            for f in range(4):
                e(f"ds_write_b128 v4, {vr(20 if f == 1 else 16)} offset:{t * 4096 + f * 1024}")
        e("L_kvdone:")
        e(f"v_and_b32 v4, 31, {vL}")
        e(f"v_lshrrev_b32 v5, 5, {vL}")
        e(f"v_lshlrev_b32 v5, 2, v5")
        e("v_sub_u32 v4, v4, v5")
        MK = 72
        e("v_mov_b32 v6, 0xffff")
        e("v_mov_b32 v7, 0xffff0000")
        for r in range(16):
            e(f"v_cmp_le_i32 s[{SMASK + 2 * r}:{SMASK + 2 * r + 1}], {(r >> 2) * 8 + (r & 3)}, v4")
        for k in range(8):
            e(f"v_cndmask_b32 v8, 0, v6, s[{SMASK + 4 * k}:{SMASK + 4 * k + 1}]")
            e(f"v_cndmask_b32 v9, 0, v7, s[{SMASK + 4 * k + 2}:{SMASK + 4 * k + 3}]")
            e(f"v_or_b32 v{MK + k}, v8, v9")
        e(f"s_lshl_b32 {sA}, {sW}, 12")
        e(f"s_add_u32 {sA}, {sA}, {L_KV}")
        e(f"v_add_u32 v10, {sA}, {vL16}")
        e("s_waitcnt vmcnt(0) lgkmcnt(0)")
        e("s_barrier")
        self.stamp("kvgot")
        KF, VF = 0, 72
        order = [0, 8, 1, 2, 3, 4, 5, 6, 7]
        for t in order:
            for f in range(2):
                e(f"ds_read_b128 {ar(KF + 8 * t + 4 * f)}, v10 offset:{t * 4096 + f * 1024}", ("k", t))
        S = [80, 96, 112]
        MG, NM, OA, PF = 128, 144, 160, 176
        vM = "v11"

        def s_mfma(t, dst, c):
            e(f"v_mfma_f32_32x32x16_bf16 {vr(dst, 16)}, {ar(KF + 8 * t)}, {vr(QF)}, {c}")
            e(f"v_mfma_f32_32x32x16_bf16 {vr(dst, 16)}, {ar(KF + 8 * t + 4)}, {vr(QF + 4)}, {vr(dst, 16)}")

        def maxred(src, first):
            for k in range(8):
                if first and k == 0:
                    e(f"v_max_f32 {vM}, v{src}, v{src + 1}")
                else:
                    e(f"v_max3_f32 {vM}, {vM}, v{src + 2 * k}, v{src + 2 * k + 1}")

        vq = list(order)
        e.wait(lg=("k", 0))
        s_mfma(0, S[0], "0")
        e.wait(lg=("k", 8))
        s_mfma(8, S[1], "0")
        e.wait(lg=("k", 1))
        s_mfma(1, S[2], "0")
        for r in range(16):
            e(f"v_cndmask_b32 v{MG + r}, v{S[0] + r}, v{S[1] + r}, s[{SMASK + 2 * r}:{SMASK + 2 * r + 1}]")
        for t in range(2, 9):
            if t < 8:
                e.wait(lg=("k", t))
                s_mfma(t, S[(t + 1) % 3], "0")
            for _ in range(2 if t < 5 else 1):
                if vq:
                    tv = vq.pop(0)
                    for f in range(2):
                        e(f"ds_read_b128 {ar(VF + 8 * tv + 4 * f)}, v10 offset:{tv * 4096 + 2048 + f * 1024}", ("v", tv))
            if t == 2:
                maxred(MG, True)
            maxred(S[t % 3], False)
        e(f"v_mov_b32 v4, {vM}")
        e(f"v_permlane32_swap_b32 {vM}, v4")
        e(f"v_max_f32 {vM}, {vM}, v4")
        for r in range(16):
            e(f"v_sub_f32 v{NM + r}, 0, {vM}")
        s_mfma(1, S[0], vr(NM, 16))
        s_mfma(2, S[1], vr(NM, 16))
        for r in range(16):
            e(f"v_sub_f32 v{MG + r}, v{MG + r}, {vM}")
        for r in range(16):
            e(f"v_exp_f32 v{MG + r}, v{MG + r}")
        for k in range(8):
            e(f"v_cvt_pk_bf16_f32 v{PF + k}, v{MG + 2 * k}, v{MG + 2 * k + 1}")
        for k in range(8):
            e(f"v_and_b32 v{PF + 8 + k}, v{PF + k}, v{MK + k}")
            e(f"v_xor_b32 v{PF + k}, v{PF + k}, v{PF + 8 + k}")
        e.wait(lg=("v", 8))
        e(f"v_mfma_f32_32x32x16_bf16 {vr(OA, 16)}, {ar(VF)}, {vr(PF)}, 0")
        e(f"v_mfma_f32_32x32x16_bf16 {vr(OA, 16)}, {ar(VF + 4)}, {vr(PF + 4)}, {vr(OA, 16)}")
        e(f"v_mfma_f32_32x32x16_bf16 {vr(OA, 16)}, {ar(VF + 64)}, {vr(PF + 8)}, {vr(OA, 16)}")
        e(f"v_mfma_f32_32x32x16_bf16 {vr(OA, 16)}, {ar(VF + 68)}, {vr(PF + 12)}, {vr(OA, 16)}")
        e("s_waitcnt lgkmcnt(0)")
        for t in range(1, 8):
            src = S[(t - 1) % 3]
            pf = PF + 16 + 8 * (t & 1)
            for r in range(8):
                e(f"v_exp_f32 v{src + r}, v{src + r}")
            if t + 2 < 8:
                e(f"v_mfma_f32_32x32x16_bf16 {vr(S[(t + 1) % 3], 16)}, {ar(KF + 8 * (t + 2))}, {vr(QF)}, {vr(NM, 16)}")
            for k in range(4):
                e(f"v_cvt_pk_bf16_f32 v{pf + k}, v{src + 2 * k}, v{src + 2 * k + 1}")
            for r in range(8, 12):
                e(f"v_exp_f32 v{src + r}, v{src + r}")
            e(f"v_mfma_f32_32x32x16_bf16 {vr(OA, 16)}, {ar(VF + 8 * t)}, {vr(pf)}, {vr(OA, 16)}")
            for r in range(12, 16):
                e(f"v_exp_f32 v{src + r}, v{src + r}")
            if t + 2 < 8:
                d = S[(t + 1) % 3]
                e(f"v_mfma_f32_32x32x16_bf16 {vr(d, 16)}, {ar(KF + 8 * (t + 2) + 4)}, {vr(QF + 4)}, {vr(d, 16)}")
            for k in range(4, 8):
                e(f"v_cvt_pk_bf16_f32 v{pf + k}, v{src + 2 * k}, v{src + 2 * k + 1}")
            e(f"v_mfma_f32_32x32x16_bf16 {vr(OA, 16)}, {ar(VF + 8 * t + 4)}, {vr(pf + 4)}, {vr(OA, 16)}")
        e(f"v_bfe_u32 v4, {vL}, 4, 1")
        e(f"v_lshlrev_b32 v4, 14, v4")
        e(f"v_lshrrev_b32 v5, 5, {vL}")
        e(f"v_lshl_add_u32 v4, v5, 8, v4")
        e(f"v_and_b32 v5, 15, {vL}")
        e(f"v_lshl_add_u32 v4, v5, 4, v4")
        e(f"s_lshl_b32 {sA}, {sT}, 5")
        e(f"s_add_u32 {sA}, {sA}, {sH}")
        e(f"s_lshl_b32 {sA}, {sA}, 10")
        e(f"s_add_u32 {sA}, {sA}, {WS_O}")
        e(f"s_lshl_b32 {sBt}, {sT}, 4")
        e(f"s_add_u32 {sBt}, {sBt}, {sH}")
        e(f"s_lshl_b32 {sBt}, {sBt}, 2")
        e(f"s_add_u32 {sBt}, {sBt}, {WS_FLO}")
        e(f"v_mov_b32 v5, v{OA + 12}")
        e(f"v_mov_b32 v6, v{OA + 12}")
        e("v_permlane32_swap_b32 v5, v6")
        e("v_rcp_f32 v6, v6")
        for r in range(16):
            e(f"v_mul_f32 v{OA + r}, v6, v{OA + r}")
        for k in range(8):
            e(f"v_cvt_pk_bf16_f32 v{PF + k}, v{OA + 2 * k}, v{OA + 2 * k + 1}")
        e(f"v_cndmask_b32 v{PF + 6}, v{PF + 6}, 0, {sHI}")
        e(f"v_cndmask_b32 v{PF + 7}, v{PF + 7}, 0, {sHI}")
        for f in range(2):
            e(f"buffer_store_dwordx4 {vr(PF + 4 * f)}, v4, {srd(SRD_WS)}, {sA} offen offset:{f * 512}")
        self.stamp("attn")
        self.publish(sBt, "v7")
        self.stamp("opub")
        e(f"s_cmp_ge_u32 {sR}, 28")
        e("s_cbranch_scc1 L_fin")

    def wgu_addr(self):
        e = self.e
        e(f"v_lshrrev_b32 v12, 3, {vL}")
        e(f"v_and_b32 v5, 2, v12")
        e(f"v_lshlrev_b32 v5, 1, v5")
        e(f"v_and_b32 v6, 7, {vL}")
        e("v_xor_b32 v5, v5, v6")
        e("v_mul_u32_u24 v13, 896, v12")
        e("v_lshl_add_u32 v13, v5, 4, v13")
        e("v_mul_u32_u24 v12, 3584, v12")
        e("v_lshl_add_u32 v12, v5, 4, v12")

    def wgu_dma(self, pieces):
        e = self.e
        e(f"s_lshl_b32 {sC}, {sR}, 7")
        e(f"s_mul_i32 {sA}, {sW}, {8 * 3584}")
        e(f"s_add_u32 {sC}, {sC}, {sA}")
        e(f"s_lshl_b32 {sD}, {sW}, 10")
        for mat, n in pieces:
            e(f"s_add_u32 {sA}, {sC}, {n * 32 * 3584}")
            e(f"s_add_u32 {sBt}, {sD}, {(L_WG, L_WU)[mat] + n * 4096}")
            self.dma("v12", (SRD_WG, SRD_WU)[mat], sA, sBt, "wgu")

    def p3(self):
        e = self.e
        OB, WR, AC = 0, 64, 16
        GA, CB, XR = 32, 48, 64
        e("s_barrier")
        self.wgu_addr()
        self.wgu_dma([(0, n) for n in range(14)] + [(1, n) for n in range(11)])
        e(f"v_lshrrev_b32 v4, 5, {vL}")
        e(f"v_lshlrev_b32 v4, 4, v4")
        e(f"v_bfe_u32 v5, {vL}, 4, 1")
        e(f"v_lshl_add_u32 v4, v5, 2, v4")
        e(f"v_bfe_u32 v6, {vL}, 2, 2")
        e("v_add_u32 v4, v4, v6")
        e("v_lshlrev_b32 v4, 7, v4")
        e("v_lshrrev_b32 v6, 1, v6")
        e("v_lshl_add_u32 v5, v5, 1, v6")
        e(f"v_and_b32 v6, 3, {vL}")
        e("v_lshl_add_u32 v4, v6, 3, v4")
        e(f"v_add_u32 v4, {L_WO}, v4")
        for t in range(4):
            e(f"v_xor_b32 v6, {t}, v5")
            e(f"v_lshl_add_u32 v{8 + t}, v6, 5, v4")

        def rd_wo(hd):
            for t in range(4):
                a = 8 + (t ^ (2 * (hd & 1)))
                d = WR + 16 * (hd % 4) + 4 * t
                e(f"ds_read_b64_tr_b16 {ar(d, 2)}, v{a} offset:{hd * 3584}", ("wo", hd))
                e(f"ds_read_b64_tr_b16 {ar(d + 2, 2)}, v{a} offset:{hd * 3584 + 1024}", ("wo", hd))

        rd_wo(0)
        e(f"v_and_b32 v4, 15, {vL}")
        e(f"v_lshlrev_b32 v4, 2, v4")
        e(f"s_lshl_b32 {sA}, {sI}, 2")
        e(f"s_add_u32 {sE}, {sA}, {sRB}")
        e(f"s_lshl_b32 {sA}, {sE}, 1")
        e(f"s_lshr_b32 {sBt}, {sW}, 1")
        e(f"s_add_u32 {sA}, {sA}, {sBt}")
        e(f"s_mov_b32 s101, {sA}")
        e(f"s_lshl_b32 {sA}, {sA}, 6")
        e(f"s_add_u32 {sA}, {sA}, {WS_FLO}")
        self.poll("v4", sA, "v5")
        self.acquire()
        self.stamp("oflag")
        e(f"s_lshl_b32 {sA}, {sE}, 2")
        e(f"s_add_u32 {sA}, {sA}, {sW}")
        e(f"s_lshl_b32 {sA}, {sA}, 14")
        e(f"s_add_u32 {sA}, {sA}, {WS_O}")
        for hd in range(16):
            if hd and hd % 4 == 0:
                e(f"s_add_u32 {sA}, {sA}, 4096")
            e(f"buffer_load_dwordx4 {ar(OB + 4 * hd)}, {vL16}, {srd(SRD_WS)}, {sA} offen offset:{(hd % 4) * 1024} sc1", ("o", hd))
        for hd in range(16):
            if hd + 1 < 16:
                rd_wo(hd + 1)
            e.wait(vm=("o", hd), lg=("wo", hd))
            for t in range(4):
                c = "0" if hd == 0 else vr(AC + 4 * t)
                e(f"v_mfma_f32_16x16x32_bf16 {vr(AC + 4 * t)}, {ar(WR + 16 * (hd % 4) + 4 * t)}, {ar(OB + 4 * hd)}, {c}")
        self.stamp("oproj")
        e("s_barrier")
        self.wgu_dma([(1, n) for n in range(11, 14)])
        e(f"s_lshl_b32 {sA}, {sW}, 11")
        e(f"s_add_u32 {sA}, {sA}, {L_X1}")
        e(f"v_lshrrev_b32 v4, 2, {vL}")
        e(f"v_lshlrev_b32 v4, 7, v4")
        e(f"v_and_b32 v5, 3, {vL}")
        e(f"v_lshl_add_u32 v4, v5, 4, v4")
        e(f"v_add_u32 v8, {sA}, v4")
        e(f"v_and_b32 v4, 15, {vL}")
        e(f"v_lshlrev_b32 v4, 7, v4")
        e(f"v_lshrrev_b32 v5, 4, {vL}")
        e(f"v_lshl_add_u32 v4, v5, 3, v4")
        e(f"v_add_u32 v9, {sA}, v4")
        e("ds_write_b128 v8, v[240:243]")
        e("ds_write_b128 v8, v[244:247] offset:64")
        e(f"v_lshlrev_b32 v10, 4, v5")
        for t in range(4):
            e(f"ds_read_b128 {vr(GA + 4 * t)}, v10 offset:{L_GAB + 64 * t}")
        e(f"s_lshl_b32 {sA}, {sCG}, 7")
        e(f"v_add_u32 v10, {sA}, v10")
        for pp in range(2):
            e(f"ds_read_b128 {vr(XR + 16 + 4 * pp)}, v10 offset:{L_CVEC + 64 * pp}")
        for t in range(4):
            e(f"ds_read_b64 {vr(XR + 24 + 2 * t, 2)}, v9 offset:{32 * t}")
        e("s_waitcnt lgkmcnt(0)")
        for k in range(8):
            e(f"v_lshlrev_b32 v{XR + 2 * k}, 16, v{XR + 24 + k}")
            e(f"v_and_b32 v{XR + 2 * k + 1}, 0xffff0000, v{XR + 24 + k}")
            e(f"v_lshlrev_b32 v{CB + 2 * k}, 16, v{XR + 16 + k}")
            e(f"v_and_b32 v{CB + 2 * k + 1}, 0xffff0000, v{XR + 16 + k}")
        for k in range(16):
            e(f"v_fmac_f32 v{XR + k}, v{GA + k}, v{AC + k}")
        for k in range(8):
            e(f"v_cvt_pk_bf16_f32 v{XR + 16 + k}, v{XR + 2 * k}, v{XR + 2 * k + 1}")
        for k in range(8):
            e(f"v_lshlrev_b32 v{XR + 2 * k}, 16, v{XR + 16 + k}")
            e(f"v_and_b32 v{XR + 2 * k + 1}, 0xffff0000, v{XR + 16 + k}")
        for k in range(16):
            e(f"v_mul_f32 v{CB + k}, v{CB + k}, v{XR + k}")
        for k in range(8):
            e(f"v_cvt_pk_bf16_f32 v{AC + k}, v{CB + 2 * k}, v{CB + 2 * k + 1}")
        e(f"v_and_b32 v4, 15, {vL}")
        e(f"v_lshlrev_b32 v4, 4, v4")
        e(f"v_lshl_add_u32 v4, v5, 9, v4")
        e(f"s_mul_i32 {sA}, s101, 28672")
        e(f"s_lshl_b32 {sBt}, {sCG}, 12")
        e(f"s_add_u32 {sA}, {sA}, {sBt}")
        e(f"s_and_b32 {sBt}, {sW}, 1")
        e(f"s_lshl_b32 {sBt}, {sBt}, 8")
        e(f"s_add_u32 {sA}, {sA}, {sBt}")
        e(f"s_add_u32 {sA}, {sA}, {WS_Z}")
        for pp in range(2):
            e(f"buffer_store_dwordx4 {vr(AC + 4 * pp)}, v4, {srd(SRD_WS)}, {sA} offen offset:{pp * 2048}")
        e(f"v_add_f32 v6, v{XR}, v{XR + 1}")
        e(f"v_add_f32 v7, v{XR + 2}, v{XR + 3}")
        for k in range(4, 16, 2):
            e(f"v_add_f32 v6, v6, v{XR + k}")
            e(f"v_add_f32 v7, v7, v{XR + k + 1}")
        e("v_add_f32 v6, v6, v7")
        self.reduce_hi2("v6", "v7")
        e(f"v_mul_f32 v11, {fbits(1.0 / 64)}, v6")
        e("v_mov_b32 v7, 0")
        e("v_mov_b32 v10, 0")
        for k in range(0, 16, 2):
            e(f"v_sub_f32 v{GA}, v{XR + k}, v11")
            e(f"v_sub_f32 v{GA + 1}, v{XR + k + 1}, v11")
            e(f"v_fmac_f32 v7, v{GA}, v{GA}")
            e(f"v_fmac_f32 v10, v{GA + 1}, v{GA + 1}")
        e("v_add_f32 v7, v7, v10")
        self.reduce_hi2("v7", "v10")
        e(f"s_mul_i32 {sA}, {sE}, 7")
        e(f"s_add_u32 {sA}, {sA}, {sCG}")
        e(f"s_lshl_b32 {sA}, {sA}, 9")
        e(f"s_lshl_b32 {sBt}, {sW}, 7")
        e(f"s_add_u32 {sA}, {sA}, {sBt}")
        e(f"s_add_u32 {sA}, {sA}, {WS_STAT}")
        e(f"v_lshlrev_b32 v4, 3, {vL}")
        e("s_mov_b64 exec, 0xffff")
        e(f"buffer_store_dwordx2 v[6:7], v4, {srd(SRD_WS)}, {sA} offen")
        e("s_mov_b64 exec, -1")
        for t in range(4):
            e(f"ds_write_b64 v9, {vr(XR + 16 + 2 * t, 2)} offset:{32 * t}")
        e(f"s_lshl_b32 {sA}, {sE}, 5")
        e(f"s_lshl_b32 {sBt}, {sCG}, 2")
        e(f"s_add_u32 {sA}, {sA}, {sBt}")
        e(f"s_add_u32 {sA}, {sA}, {sW}")
        e(f"s_lshl_b32 {sA}, {sA}, 2")
        e(f"s_add_u32 {sA}, {sA}, {WS_FLZ}")
        self.publish(sA, "v7")
        e("s_waitcnt lgkmcnt(0)")
        e("ds_read_b128 v[16:19], v8")
        e("ds_read_b128 v[20:23], v8 offset:64")
        e("s_waitcnt lgkmcnt(0)")
        self.stamp("zpub")

    def p4(self):
        e = self.e
        AC, BR, AR, WD = 128, 64, 224, 0
        XB, R2 = 112, 120
        e("s_barrier")
        e(f"v_lshrrev_b32 v4, 5, {vL}")
        e(f"v_lshlrev_b32 v4, 2, v4")
        e(f"v_bfe_u32 v5, {vL}, 2, 2")
        e("v_add_u32 v4, v4, v5")
        e("v_lshlrev_b32 v4, 7, v4")
        e(f"v_bfe_u32 v6, {vL}, 4, 1")
        e("v_lshl_add_u32 v4, v6, 5, v4")
        e(f"v_and_b32 v6, 3, {vL}")
        e("v_lshl_add_u32 v4, v6, 3, v4")
        e("v_lshrrev_b32 v5, 1, v5")
        e("v_lshl_add_u32 v8, v5, 6, v4")
        e("v_xor_b32 v9, 64, v8")
        e(f"v_add_u32 v10, {L_WU}, v8")
        e(f"v_add_u32 v11, {L_WU}, v9")
        e(f"s_lshl_b32 {sA}, {sW}, 13")
        e(f"s_add_u32 s99, {sA}, {L_STG}")
        e(f"v_add_u32 v24, s99, v8")
        e(f"v_add_u32 v25, s99, v9")
        e(f"v_add_u32 v8, {L_WG}, v8")
        e(f"v_add_u32 v9, {L_WG}, v9")

        def aoff(ks):
            return (32 * (ks >> 1) + 8 * (ks & 1)) * 128

        e(f"s_and_b32 {sA}, {sW}, 1")
        e(f"s_lshl_b32 {sA}, {sA}, 6")
        e(f"v_xor_b32 v26, {sA}, v8")
        e(f"s_lshr_b32 {sA}, {sW}, 1")
        e(f"s_mul_i32 {sA}, {sA}, {L_WU - L_WG}")
        e(f"v_add_u32 v26, {sA}, v26")
        e(f"v_and_b32 v4, 1, {vL}")
        e(f"v_mul_u32_u24 v4, 896, v4")
        e(f"v_lshrrev_b32 v5, 5, {vL}")
        e(f"v_lshl_add_u32 v27, v5, 4, v4")
        e(f"v_add_u32 v27, {L_CVEC}, v27")

        def rd_b(ks):
            d = AR + 8 * (ks % 4)
            e(f"ds_read_b128 {ar(d)}, v27 offset:{ks * 32}", ("b", ks))
            e(f"ds_read_b64_tr_b16 {ar(d + 4, 2)}, v26 offset:{aoff(ks)}", ("b", ks))
            e(f"ds_read_b64_tr_b16 {ar(d + 6, 2)}, v26 offset:{aoff(ks) + 2048}", ("b", ks))

        for ks in range(3):
            rd_b(ks)
        for ks in range(28):
            if ks + 3 < 28:
                rd_b(ks + 3)
            e.wait(lg=("b", ks))
            d = AR + 8 * (ks % 4)
            c = "0" if ks == 0 else vr(32, 16)
            e(f"v_mfma_f32_32x32x16_bf16 {vr(32, 16)}, {ar(d)}, {ar(d + 4)}, {c}")
        e("v_cvt_pk_bf16_f32 v4, v32, v33")
        e("v_lshlrev_b32 v5, 16, v4")
        e("v_and_b32 v6, 0xffff0000, v4")
        e("v_sub_f32 v5, v32, v5")
        e("v_sub_f32 v6, v33, v6")
        e("v_cvt_pk_bf16_f32 v5, v5, v6")
        e(f"s_mov_b32 {sA}, 0x05040100")
        e(f"s_mov_b32 {sBt}, 0x03020706")
        e(f"v_perm_b32 v48, v5, v4, {sA}")
        e("v_mov_b32 v49, v4")
        e(f"v_perm_b32 v50, v5, v4, {sBt}")
        e("v_mov_b32 v51, 0")
        for k in range(3):
            e(f"v_cndmask_b32 v{48 + k}, v{48 + k}, 0, {sHI}")
        e(f"s_lshl_b32 {sA}, {sW}, 10")
        e(f"s_add_u32 {sA}, {sA}, {L_XA}")
        e(f"v_add_u32 v4, {sA}, {vL16}")
        e("ds_write_b128 v4, v[48:51]")
        e("s_waitcnt lgkmcnt(0)")
        e("s_barrier")
        self.stamp("bias")

        def rd_a(ks):
            d = AR + 16 * (ks % 2)
            if ks == 28:
                e(f"v_add_u32 v4, {L_XA}, {vL16}")
                for t in range(4):
                    e(f"ds_read_b128 {ar(d + 4 * t)}, v4 offset:{t * 1024}", ("a", ks, t))
                return
            for t in range(4):
                e(f"ds_read_b64_tr_b16 {ar(d + 4 * t, 2)}, v{8 + t} offset:{aoff(ks)}", ("a", ks, t))
                e(f"ds_read_b64_tr_b16 {ar(d + 4 * t + 2, 2)}, v{8 + t} offset:{aoff(ks) + 2048}", ("a", ks, t))

        rd_a(0)
        e(f"v_min_u32 v4, 27, {vL}")
        e(f"v_lshlrev_b32 v4, 2, v4")
        e(f"s_lshl_b32 {sE}, {sI}, 2")
        e(f"s_add_u32 {sE}, {sE}, {sW}")
        e(f"s_lshl_b32 {sA}, {sE}, 7")
        e(f"s_add_u32 {sA}, {sA}, {WS_FLZ}")
        self.poll("v4", sA, "v5")
        self.acquire()
        self.stamp("zflag")
        NB = 6
        e(f"s_mul_i32 s88, {sE}, 57344")
        e(f"s_add_u32 s88, s88, {WS_Z}")
        e(f"s_add_u32 s89, s88, 28672")

        def ld_b(ks):
            if ks and ks % 4 == 0:
                e("s_add_u32 s88, s88, 4096")
                e("s_add_u32 s89, s89, 4096")
            for tt in range(2):
                e(f"buffer_load_dwordx4 {vr(BR + 8 * (ks % NB) + 4 * tt)}, {vL16}, {srd(SRD_WS)}, s{88 + tt} offen offset:{(ks % 4) * 1024} sc1", ("z", ks))

        for ks in range(NB - 1):
            ld_b(ks)
        e(f"s_mul_i32 {sA}, {sE}, 3584")
        e(f"s_add_u32 {sA}, {sA}, {WS_STAT}")
        e(f"v_lshlrev_b32 v4, 3, {vL}")
        for cg in range(7):
            e(f"buffer_load_dwordx2 {vr(32 + 2 * cg, 2)}, v4, {srd(SRD_WS)}, {sA} offen offset:{cg * 512} sc1", "stat")
        e(f"s_mul_i32 s90, {sW}, {448 * 896}")
        e(f"s_lshl_b32 {sA}, {sCG}, 7")
        e(f"s_add_u32 s90, s90, {sA}")

        def wd_dma(j):
            for hlf in range(2):
                e(f"s_add_u32 {sA}, s90, {(16 * j + 8 * hlf) * 896}")
                e(f"s_add_u32 {sBt}, s99, {(j % 4) * 2048 + hlf * 1024}")
                self.dma("v13", SRD_WD, sA, sBt, ("wd", j))

        def wd_rd(j):
            for ct in range(2):
                d = WD + 8 * j + 4 * ct
                e(f"ds_read_b64_tr_b16 {ar(d, 2)}, v{24 + ct} offset:{(j % 4) * 2048}", ("wdr", j))
                e(f"ds_read_b64_tr_b16 {ar(d + 2, 2)}, v{24 + ct} offset:{(j % 4) * 2048 + 1024}", ("wdr", j))

        def stats():
            e.wait(vm="stat")
            e("v_add_f32 v4, v32, v34")
            e("v_add_f32 v5, v36, v38")
            e("v_add_f32 v6, v40, v42")
            e("v_add_f32 v4, v4, v5")
            e("v_add_f32 v6, v6, v44")
            e("v_add_f32 v4, v4, v6")
            e(f"v_mul_f32 v4, {fbits(1.0 / 448)}, v4")
            e("v_add_f32 v5, v33, v35")
            e("v_add_f32 v6, v37, v39")
            e("v_add_f32 v7, v41, v43")
            e("v_add_f32 v5, v5, v6")
            e("v_add_f32 v7, v7, v45")
            e("v_add_f32 v5, v5, v7")
            e(f"v_mov_b32 v7, {fbits(1.0 / 64)}")
            e("v_mov_b32 v6, 0")
            for cg in range(7):
                e(f"v_fma_f32 v46, v{32 + 2 * cg}, v7, -v4")
                e("v_fmac_f32 v6, v46, v46")
            e(f"v_mul_f32 v6, {fbits(64.0)}, v6")
            e("v_add_f32 v5, v5, v6")
            e(f"v_mul_f32 v5, {fbits(1.0 / 448)}, v5")
            e(f"v_add_f32 v5, {fbits(1e-5)}, v5")
            e(f"v_rcp_f32 v{R2}, v5")
            e("v_sqrt_f32 v5, v5")
            e("v_sub_f32 v4, 0, v4")
            e("v_cvt_pk_bf16_f32 v6, v4, v5")
            e("v_lshlrev_b32 v7, 16, v6")
            e("v_and_b32 v46, 0xffff0000, v6")
            e("v_sub_f32 v4, v4, v7")
            e("v_sub_f32 v5, v5, v46")
            e("v_cvt_pk_bf16_f32 v7, v4, v5")
            e(f"s_mov_b32 {sA}, 0x01000100")
            e(f"s_mov_b32 {sBt}, 0x03020504")
            e(f"s_mov_b32 {sC}, 0x07060302")
            e(f"v_perm_b32 v{XB}, v7, v6, {sA}")
            e(f"v_perm_b32 v{XB + 1}, v7, v6, {sBt}")
            e(f"v_perm_b32 v{XB + 2}, v7, v6, {sC}")
            e(f"v_mov_b32 v{XB + 3}, 0")
            e(f"v_mov_b32 v{XB + 7}, 0")
            for k in range(3):
                e(f"v_mov_b32 v{XB + 4 + k}, v{XB + k}")
            e(f"v_mov_b32 v{R2 + 1}, v{R2}")
            for k in range(3):
                e(f"v_permlane32_swap_b32 v{XB + k}, v{XB + 4 + k}")
            e(f"v_permlane32_swap_b32 v{R2}, v{R2 + 1}")

        for ks in range(29):
            if ks + NB - 1 < 28:
                ld_b(ks + NB - 1)
            if ks < 28:
                if ks >= 4:
                    e.wait(lg=("wdr", ks - 4))
                wd_dma(ks)
            if ks + 1 <= 28:
                rd_a(ks + 1)
            if ks >= 3:
                e.wait(vm=("wd", ks - 3))
                wd_rd(ks - 3)
            if ks == 10:
                stats()
            if ks < 28:
                e.wait(vm=("z", ks))
            d = AR + 16 * (ks % 2)
            for t in range(4):
                e.wait(lg=("a", ks, t))
                for tt in range(2):
                    acc = AC + 64 * tt + 16 * t
                    b = vr(BR + 8 * (ks % NB) + 4 * tt) if ks < 28 else vr(XB + 4 * tt)
                    c = "0" if ks == 0 else vr(acc, 16)
                    e(f"v_mfma_f32_32x32x16_bf16 {vr(acc, 16)}, {ar(d + 4 * t)}, {b}, {c}")
        for j in (26, 27):
            e.wait(vm=("wd", j))
            wd_rd(j)
        self.stamp("gemm4")
        e(f"s_mul_i32 {sA}, {sE}, {2 * 114688}")
        e(f"s_lshl_b32 {sBt}, {sR}, 12")
        e(f"s_add_u32 {sA}, {sA}, {sBt}")
        e(f"s_add_u32 {sA}, {sA}, {WS_HID}")
        for tt in range(2):
            for ct in range(2):
                g, u = AC + 64 * tt + 16 * ct, AC + 64 * tt + 32 + 16 * ct
                for r in range(16):
                    e(f"v_max_f32 v{g + r}, 0, v{g + r}")
                    e(f"v_mul_f32 v{u + r}, v{R2 + tt}, v{u + r}")
                d = BR + 16 * tt + 8 * ct
                for k in range(8):
                    e(f"v_mul_f32 v{g + 2 * k}, v{g + 2 * k}, v{u + 2 * k}")
                    e(f"v_mul_f32 v{g + 2 * k + 1}, v{g + 2 * k + 1}, v{u + 2 * k + 1}")
                    e(f"v_cvt_pk_bf16_f32 v{d + k}, v{g + 2 * k}, v{g + 2 * k + 1}")
                for s in range(2):
                    e(f"buffer_store_dwordx4 {vr(d + 4 * s)}, {vL16}, {srd(SRD_WS)}, {sA} offen offset:{(2 * ct + s) * 1024}")
            if tt == 0:
                e(f"s_add_u32 {sA}, {sA}, 114688")
        e(f"s_lshl_b32 {sA}, {sE}, 5")
        e(f"s_add_u32 {sA}, {sA}, {sR}")
        e(f"s_lshl_b32 {sA}, {sA}, 2")
        e(f"s_add_u32 {sA}, {sA}, {WS_FLD}")
        self.stamp("epi4")
        self.publish(sA, "v7")
        self.stamp("hidpub")

    def p5(self):
        e = self.e
        AC, WD = 128, 0
        bufs = [vr(64 + 4 * k) for k in range(16)] + [vr(192 + 4 * k) for k in range(16)] + [ar(224 + 4 * k) for k in range(8)]
        NB = len(bufs) // 2
        e(f"s_lshl_b32 {sE}, {sI}, 2")
        e(f"s_add_u32 {sE}, {sE}, {sRB}")
        e(f"v_min_u32 v4, 6, {vL}")
        e(f"v_lshlrev_b32 v4, 2, v4")
        e(f"s_lshl_b32 {sA}, {sE}, 7")
        e(f"s_mul_i32 {sBt}, {sW}, 28")
        e(f"s_add_u32 {sA}, {sA}, {sBt}")
        e(f"s_add_u32 {sA}, {sA}, {WS_FLD}")
        e("s_waitcnt lgkmcnt(0)")
        self.poll("v4", sA, "v5")
        self.acquire()
        self.stamp("hidflag")
        e(f"s_mul_i32 s88, {sE}, {2 * 114688}")
        e(f"s_mul_i32 {sBt}, {sW}, 28672")
        e(f"s_add_u32 s88, s88, {sBt}")
        e(f"s_add_u32 s88, s88, {WS_HID}")
        e(f"s_add_u32 s89, s88, 114688")

        def ld_b(j):
            if j and j % 4 == 0:
                e("s_add_u32 s88, s88, 4096")
                e("s_add_u32 s89, s89, 4096")
            for tt in range(2):
                e(f"buffer_load_dwordx4 {bufs[2 * (j % NB) + tt]}, {vL16}, {srd(SRD_WS)}, s{88 + tt} offen offset:{(j % 4) * 1024} sc1", ("d", j))

        for j in range(NB - 1):
            ld_b(j)
        e(f"v_and_b32 v4, 31, {vL}")
        e(f"v_and_b32 v5, 7, {vL}")
        e(f"v_and_b32 v6, 4, {vL}")
        e("v_lshl_add_u32 v5, v6, 1, v5")
        e(f"v_lshrrev_b32 v6, 5, {vL}")
        e("v_xor_b32 v5, v5, v6")
        e("v_lshlrev_b32 v4, 8, v4")
        e(f"s_lshl_b32 {sA}, {sW}, 14")
        e(f"v_add_u32 v4, {sA}, v4")
        for p in range(8):
            e(f"v_xor_b32 v6, {2 * p}, v5")
            e(f"v_lshl_add_u32 v{32 + p}, v6, 4, v4")
        e(f"v_lshrrev_b32 v4, 2, {vL}")
        e("v_and_b32 v5, 7, v4")
        e("v_and_b32 v6, 4, v4")
        e("v_lshl_add_u32 v5, v6, 1, v5")
        e(f"v_and_b32 v6, 3, {vL}")
        e("v_lshlrev_b32 v7, 1, v6")
        e("v_xor_b32 v5, v5, v7")
        e("v_lshlrev_b32 v4, 8, v4")
        e(f"s_lshl_b32 {sA}, {sW}, 12")
        e(f"v_add_u32 v4, {sA}, v4")
        for n, p in enumerate((0, 1, 8, 9)):
            e(f"v_xor_b32 v7, {p}, v5")
            e(f"v_lshl_add_u32 v{40 + n}, v7, 4, v4")
        e("v_lshlrev_b32 v6, 5, v6")
        for n in range(4):
            e(f"ds_read_b128 {vr(48 + 4 * n)}, v6 offset:{L_GAB + 256 + (n >> 1) * 128 + (n & 1) * 16}")
        for j in range(28):
            if j + NB - 1 < 28:
                ld_b(j + NB - 1)
            e.wait(vm=("d", j))
            for tt in range(2):
                for ct in range(2):
                    acc = AC + 32 * tt + 16 * ct
                    c = "0" if j == 0 else vr(acc, 16)
                    e(f"v_mfma_f32_32x32x16_bf16 {vr(acc, 16)}, {ar(WD + 8 * j + 4 * ct)}, {bufs[2 * (j % NB) + tt]}, {c}")
        self.stamp("gemm5")
        e("s_waitcnt lgkmcnt(0)")
        e("s_barrier")
        for tt in range(2):
            for ct in range(2):
                for q in range(4):
                    e(f"ds_write_b128 v{32 + 4 * ct + q}, {vr(AC + 32 * tt + 16 * ct + 4 * q)} offset:{L_RED + tt * 8192}")
        for k in range(8):
            e(f"v_lshlrev_b32 v{64 + 2 * k}, 16, v{16 + k}")
            e(f"v_and_b32 v{65 + 2 * k}, 0xffff0000, v{16 + k}")
        e("s_waitcnt lgkmcnt(0)")
        e("s_barrier")
        for n in range(4):
            for s in range(4):
                e(f"ds_read_b128 {vr(128 + 16 * n + 4 * s)}, v{40 + n} offset:{L_RED + s * 16384}", ("r", n))
        for n in range(4):
            e.wait(lg=("r", n))
            b = 128 + 16 * n
            for k in range(4):
                e(f"v_add_f32 v{b + k}, v{b + k}, v{b + 4 + k}")
                e(f"v_add_f32 v{b + 8 + k}, v{b + 8 + k}, v{b + 12 + k}")
            for k in range(4):
                e(f"v_add_f32 v{b + k}, v{b + k}, v{b + 8 + k}")
            for k in range(4):
                e(f"v_fmac_f32 v{64 + 4 * n + k}, v{48 + 4 * n + k}, v{b + k}")
            if n == 0 and self.o.get("dbg_one"):
                e(f"s_lshl_b32 {sA}, s2, 2")
                e(f"s_add_u32 {sA}, {sA}, {sW}")
                e(f"v_add_u32 v4, {sA}, {vL}")
                e("v_cmp_eq_u32 vcc, 0, v4")
                e(f"v_mov_b32 v5, {fbits(self.o['dbg_one'] / 1000.0)}")
                e("v_cndmask_b32 v5, 0, v5, vcc")
                e("v_add_f32 v65, v65, v5")
            if self.o.get("dbg_scale"):
                for k in range(4):
                    e(f"v_mul_f32 v{64 + 4 * n + k}, {fbits(1 + self.o['dbg_scale'] / 1000.0)}, v{64 + 4 * n + k}")
            e(f"v_cvt_pk_bf16_f32 v{80 + 2 * n}, v{64 + 4 * n}, v{65 + 4 * n}")
            e(f"v_cvt_pk_bf16_f32 v{81 + 2 * n}, v{66 + 4 * n}, v{67 + 4 * n}")
            if n & 1:
                e(f"buffer_store_dwordx4 {vr(80 + 4 * (n >> 1))}, v15, {srd(SRD_OUT)}, s100 offen offset:{64 * (n >> 1)}")
        self.stamp("end")

    def finish(self):
        e = self.e
        e("L_fin:")
        if self.ts:
            e("s_lshl_b32 s88, s2, 2")
            e(f"s_add_u32 s88, s88, {sW}")
            e("s_lshl_b32 s88, s88, 7")
            e(f"s_add_u32 s88, s88, {WS_TS}")
            e(f"v_lshlrev_b32 v4, 2, {vL}")
            e("s_mov_b32 exec_hi, 0")
            e(f"buffer_store_dword {vTS}, v4, {srd(SRD_WS)}, s88 offen")
            if self.o.get("dbgts"):
                e(f"v_not_b32 v5, {vTS}")
                e(f"v_cmp_eq_u32 vcc, 0, {vL}")
                e(f"v_cndmask_b32 v5, {vTS}, v5, vcc")
                e("v_add_u32 v4, 4, v4")
                e("s_mov_b64 exec, 0x7fff")
                e(f"buffer_atomic_umax v5, v4, {srd(SRD_DBG)}, 0 offen sc1")
        e("L_end:")
        e("s_endpgm")

    def build(self):
        phases = [self.entry, self.front, self.f1, self.p1, self.late_consts, self.p2, self.p3, self.p4, self.p5]
        for ph in phases:
            self.e(f"; ---- {ph.__name__}")
            ph()
            if self.stop_after == ph.__name__:
                break
        self.finish()
        body, nops = self.e.text()
        head = open(f"cdna_kernels/{NAME}.s.ref").read().split("; Override launch")[0]
        txt = head
        txt += f"; @launch grid=(256,1,1) block=(256,1,1) lds={LDS_BYTES}\n"
        txt += '.amdgcn_target "amdgcn-amd-amdhsa--gfx950"\n.text\n'
        txt += f".globl {NAME}_kernel\n.p2align 8\n.type {NAME}_kernel,@function\n{NAME}_kernel:\n"
        txt += body
        txt += '.section .rodata,"a"\n.p2align 6\n'
        txt += f".amdhsa_kernel {NAME}_kernel\n"
        txt += ("  .amdhsa_next_free_vgpr 512\n  .amdhsa_next_free_sgpr 102\n  .amdhsa_accum_offset 256\n"
                "  .amdhsa_group_segment_fixed_size 0\n  .amdhsa_kernarg_size 96\n  .amdhsa_user_sgpr_count 2\n"
                "  .amdhsa_user_sgpr_kernarg_segment_ptr 1\n  .amdhsa_system_sgpr_workgroup_id_x 1\n"
                "  .amdhsa_float_denorm_mode_32 3\n"
                ".end_amdhsa_kernel\n")
        return txt, nops


def parse_opts(args):
    o = {}
    for a in args:
        k, v = a.split("=")
        o[k] = int(v)
    return o


if __name__ == "__main__":
    out = sys.argv[1]
    o = parse_opts(sys.argv[2:])
    g = Gen(ts=bool(o.pop("ts", 0)), opts=o)
    txt, nops = g.build()
    open(out, "w").write(txt)
    if g.ts:
        open(out + ".ts", "w").write("\n".join(g.ts_names))
    print("written", out, "lines", txt.count("\n"), "nop pads", nops)
```

```python
import math
import struct
import sys

sys.path.insert(0, "work")
from emit import Emit

NAME = "adaLN_cond__sliding_block__glu_gated_reglu__prompt"

WS_EPOCH = 0x0
WS_XCC = 0x400
WS_FLH = 0x1000
WS_FLO = 0x2000
WS_FLZ = 0x3000
WS_FLD = 0x4000
WS_FLKV = 0x8000
WS_MODP = 0x10000
WS_STAT = 0x20000
WS_TS = 0x40000
WS_H = 0x100000
WS_O = 0x300000
WS_KV = 0x500000
WS_HID = 0x900000
WS_Z = 0x1000000
WS_SIZE = 0x1200000

L_CVEC = 0
L_GAB = 1792
L_STATX = 2304
L_MODR = 2560
L_WQ, L_WK, L_WV = 3584, 32256, 60928
L_KV = 56832
L_SCR = 89600
L_WO = 105984
L_PAD = 163328
L_WG, L_WU = 3584, 60928
L_STG = 118272
L_XA = 151040
L_X1 = 155136
L_RED = 3584
LDS_BYTES = 163840

SRD_X, SRD_WQKV, SRD_WO, SRD_WG, SRD_WU, SRD_WD = 4, 8, 12, 16, 20, 24
SRD_C, SRD_WM, SRD_OUT, SRD_DBG, SRD_WS = 28, 32, 36, 40, 44
sI, sR, sW, sH, sB, sT, sTAG, sFAST = "s48", "s49", "s50", "s51", "s52", "s53", "s54", "s55"
sA, sBt, sC, sD, sE = "s56", "s57", "s58", "s59", "s60"
sRB, sCG, sSPIN = "s61", "s62", "s63"
SMASK = 64
sHI, sHIp = "s[96:97]", 96
sTSp = 0
sADJ = "s3"

vL, vL16, vTS, vE = "v0", "v1", "v2", "v3"

SPIN_MAX = 1 << 17


def srd(n):
    return f"s[{n}:{n + 3}]"


def vr(n, k=4):
    return f"v[{n}:{n + k - 1}]" if k > 1 else f"v{n}"


def ar(n, k=4):
    return f"a[{n}:{n + k - 1}]" if k > 1 else f"a{n}"


def fbits(x):
    return "0x%08x" % struct.unpack("<I", struct.pack("<f", x))[0]


class Gen:
    def __init__(self, ts=False, stop_after=None, opts=None):
        self.e = Emit()
        self.ts = ts
        self.stop_after = stop_after
        self.o = dict(opts or {})
        self.nts = 0
        self.ts_names = []

    def stamp(self, name):
        if not self.ts:
            return
        if self.o.get("dbgts") and name not in ("start", "tag", "modpub", "ln1", "xcc", "hpub", "kvgemm", "kvgot", "attn", "oflag", "zpub", "zflag", "gemm4", "hidflag", "end"):
            return
        e = self.e
        e(f"s_memrealtime s[{sTSp}:{sTSp + 1}]")
        e("s_waitcnt lgkmcnt(0)")
        e(f"v_writelane_b32 {vTS}, s{sTSp}, {self.nts}")
        if self.o.get("clk"):
            e(f"s_memtime s[{sTSp}:{sTSp + 1}]")
            e("s_waitcnt lgkmcnt(0)")
            e(f"v_writelane_b32 {vTS}, s{sTSp}, {self.nts + 32}")
        self.ts_names.append(name)
        self.nts += 1

    def poll(self, voff, soff, vtmp, imm=0):
        e = self.e
        lp, dn = e.label("poll"), e.label("polled")
        e(f"s_mov_b32 {sSPIN}, 0")
        e(f"{lp}:")
        e(f"buffer_load_dword {vtmp}, {voff}, {srd(SRD_WS)}, {soff} offen offset:{imm} sc1")
        e(f"s_add_u32 {sSPIN}, {sSPIN}, 1")
        e(f"s_cmp_ge_u32 {sSPIN}, {SPIN_MAX}")
        e("s_waitcnt vmcnt(0)")
        e(f"s_cbranch_scc1 {dn}")
        e(f"v_cmp_ne_u32 vcc, {sTAG}, {vtmp}")
        e(f"s_cbranch_vccnz {lp}")
        e(f"{dn}:")

    def acquire(self):
        e = self.e
        sk = e.label("acq")
        e(f"s_cmp_lg_u32 {sFAST}, 0")
        e(f"s_cbranch_scc1 {sk}")
        e("buffer_inv sc1")
        e("s_waitcnt vmcnt(0)")
        e(f"{sk}:")

    def publish(self, soff, vtmp, local=True):
        e = self.e
        e("s_waitcnt vmcnt(0)")
        e(f"v_mov_b32 {vtmp}, {sTAG}")
        if local:
            slow, dn = e.label("slowpub"), e.label("pub")
            e(f"s_cmp_lg_u32 {sFAST}, 0")
            e(f"s_cbranch_scc0 {slow}")
            e("s_mov_b64 exec, 1")
            e(f"buffer_store_dword {vtmp}, off, {srd(SRD_WS)}, {soff}")
            e(f"s_branch {dn}")
            e(f"{slow}:")
            e("buffer_wbl2 sc1")
            e("s_waitcnt vmcnt(0)")
            e("s_mov_b64 exec, 1")
            e(f"buffer_store_dword {vtmp}, off, {srd(SRD_WS)}, {soff} sc1")
            e(f"{dn}:")
        else:
            e("s_mov_b64 exec, 1")
            e(f"buffer_store_dword {vtmp}, off, {srd(SRD_WS)}, {soff} sc1")
        e("s_mov_b64 exec, -1")
        e.vm = ["flag"]

    def round_bf16(self, regs, tmp):
        e = self.e
        for a, b in zip(regs[::2], regs[1::2]):
            e(f"v_cvt_pk_bf16_f32 {tmp}, {a}, {b}")
            e(f"v_lshlrev_b32 {a}, 16, {tmp}")
            e(f"v_and_b32 {b}, 0xffff0000, {tmp}")

    def gather_mod(self, voff, g0, t0):
        e = self.e
        lp, dn = e.label("gath"), e.label("gathd")
        e(f"s_mov_b32 {sSPIN}, 0")
        e(f"s_mov_b32 {sD}, 0x0c0c0400")
        e(f"s_mov_b32 {sE}, 0x04000c0c")
        e(f"{lp}:")
        for q in range(4):
            e(f"s_mov_b32 {sA}, {WS_MODP + q * 10752}")
            e(f"buffer_load_dwordx4 {vr(g0 + 4 * q)}, {voff}, {srd(SRD_WS)}, {sA} offen sc1")
        e(f"s_add_u32 {sSPIN}, {sSPIN}, 1")
        e(f"s_cmp_ge_u32 {sSPIN}, {SPIN_MAX}")
        e("s_waitcnt vmcnt(0)")
        e(f"s_cbranch_scc1 {dn}")
        for q in range(4):
            b = g0 + 4 * q
            e(f"v_perm_b32 v{t0}, v{b + 1}, v{b}, {sD}")
            e(f"v_perm_b32 v{t0 + 1}, v{b + 3}, v{b + 2}, {sE}")
            e(f"v_or_b32 v{t0}, v{t0}, v{t0 + 1}")
            e(f"v_xor_b32 v{t0 + 2 + q}, {sTAG}, v{t0}")
        e(f"v_or3_b32 v{t0}, v{t0 + 2}, v{t0 + 3}, v{t0 + 4}")
        e(f"v_or_b32 v{t0}, v{t0}, v{t0 + 5}")
        e(f"v_cmp_ne_u32 vcc, 0, v{t0}")
        e(f"s_cbranch_vccnz {lp}")
        e(f"{dn}:")
        for k in range(16):
            e(f"v_and_b32 v{g0 + k}, 0xffffff00, v{g0 + k}")
        for k in range(4):
            e(f"v_add_f32 v{g0 + k}, v{g0 + k}, v{g0 + 4 + k}")
            e(f"v_add_f32 v{g0 + 8 + k}, v{g0 + 8 + k}, v{g0 + 12 + k}")
        for k in range(4):
            e(f"v_add_f32 v{g0 + k}, v{g0 + k}, v{g0 + 8 + k}")
        self.round_bf16([f"v{g0 + k}" for k in range(4)], f"v{t0}")

    def dma(self, voff, srdn, soff, lds, tag, mods=""):
        e = self.e
        e(f"s_mov_b32 m0, {lds}")
        e(f"buffer_load_dwordx4 {voff}, {srd(srdn)}, {soff} offen {mods} lds", tag)

    def merge(self, main, fill):
        for i, m in enumerate(main):
            m()
            for f in fill.get(i, []):
                f()

    @staticmethod
    def spread(fill, items, lo, hi):
        n = len(items)
        for k, it in enumerate(items):
            fill.setdefault(lo + (k * (hi - lo)) // max(n, 1), []).append(it)

    def entry(self):
        e = self.e
        e("s_cmp_ge_u32 s2, 256")
        e("s_cbranch_scc1 L_end")
        e("s_load_dwordx16 s[64:79], s[0:1], 0")
        e("s_load_dwordx8 s[80:87], s[0:1], 64")
        if self.ts:
            e(f"v_mov_b32 {vTS}, 0")
        self.stamp("start")
        e(f"v_lshrrev_b32 v4, 6, v0")
        e(f"v_and_b32 {vL}, 63, v0")
        e(f"v_readfirstlane_b32 {sW}, v4")
        e(f"v_lshlrev_b32 {vL16}, 4, {vL}")
        e(f"s_and_b32 {sI}, s2, 7")
        e(f"s_lshr_b32 {sR}, s2, 3")
        e(f"s_lshr_b32 {sH}, {sR}, 1")
        e(f"s_and_b32 {sB}, {sR}, 1")
        e(f"s_lshl_b32 {sT}, {sI}, 1")
        e(f"s_add_u32 {sT}, {sT}, {sB}")
        e(f"s_lshl_b32 {sT}, {sT}, 2")
        e(f"s_add_u32 {sT}, {sT}, {sW}")
        e(f"s_mul_i32 {sRB}, {sR}, 37")
        e(f"s_lshr_b32 {sRB}, {sRB}, 8")
        e(f"s_mul_i32 {sA}, {sRB}, 7")
        e(f"s_sub_u32 {sCG}, {sR}, {sA}")
        e(f"s_cmp_eq_u32 {sH}, 15")
        e(f"s_cselect_b32 {sADJ}, 8, 0")
        e(f"s_mov_b32 s{sHIp}, 0")
        e(f"s_mov_b32 s{sHIp + 1}, -1")
        sizes = {SRD_X: 1835008, SRD_WQKV: 1204224, SRD_WO: 401408, SRD_WG: 1605632, SRD_WU: 1605632, SRD_WD: 1605632,
                 SRD_C: 896, SRD_WM: 2408448, SRD_OUT: 1835008, SRD_DBG: 256, SRD_WS: WS_SIZE}
        for n, sz in sizes.items():
            e(f"s_mov_b32 s{n + 2}, {sz}")
            e(f"s_mov_b32 s{n + 3}, 0x00020000")
        e("s_waitcnt lgkmcnt(0)")
        src = {SRD_WS: 86, SRD_C: 78, SRD_WM: 80, SRD_X: 64, SRD_WQKV: 66, SRD_WO: 68, SRD_WG: 72, SRD_WU: 74, SRD_WD: 76,
               SRD_OUT: 82, SRD_DBG: 84}
        for n, s in src.items():
            e(f"s_mov_b64 s[{n}:{n + 1}], s[{s}:{s + 1}]")

    def wqkv_dma(self, lo, hi):
        e = self.e
        for n in range(lo, hi):
            mat, kk = divmod(n, 7)
            gcol = (896, 1792, 0)[mat]
            lbase = (L_WK, L_WV, L_WQ)[mat]
            e(f"s_add_u32 {sA}, {sC}, {gcol + kk * 4 * 16 * 2688}")
            e(f"s_add_u32 {sBt}, {sD}, {lbase + kk * 4096}")
            self.dma("v10", SRD_WQKV, sA, sBt, "wqkv")

    def front(self):
        e = self.e
        e(f"buffer_load_dword {vE}, off, {srd(SRD_WS)}, 0 sc1", "E")
        e(f"s_cmp_ge_u32 {sR}, 21")
        e("s_cbranch_scc1 L_nomod1")
        e(f"s_and_b32 {sA}, {sI}, 3")
        e(f"s_mul_i32 {sA}, {sA}, 112")
        e(f"s_mul_i32 {sBt}, {sW}, 28")
        e(f"s_add_u32 {sA}, {sA}, {sBt}")
        e(f"v_lshrrev_b32 v4, 4, {vL}")
        e(f"v_and_b32 v5, 15, {vL}")
        e(f"v_lshl_add_u32 v6, v5, 2, v4")
        e(f"v_add_u32 v6, {sA}, v6")
        e(f"v_lshlrev_b32 v6, 1, v6")
        e(f"buffer_load_ushort v16, v6, {srd(SRD_C)}, 0 offen", "c")
        e(f"v_mul_u32_u24 v7, 5376, v4")
        e(f"v_lshl_add_u32 v7, v5, 3, v7")
        e(f"s_lshr_b32 {sBt}, {sI}, 2")
        e(f"s_lshl_b32 {sC}, {sR}, 1")
        e(f"s_add_u32 {sBt}, {sBt}, {sC}")
        e(f"s_mul_i32 {sA}, {sA}, 5376")
        e(f"s_lshl_b32 {sC}, {sBt}, 7")
        e(f"s_add_u32 {sA}, {sA}, {sC}")
        for j in range(7):
            e(f"buffer_load_dwordx2 {vr(18 + 2 * j, 2)}, v7, {srd(SRD_WM)}, {sA} offen", "wm")
            if j < 6:
                e(f"s_add_u32 {sA}, {sA}, 21504")
        e("L_nomod1:")
        e(f"v_and_b32 v4, 7, {vL}")
        e(f"v_lshrrev_b32 v5, 3, {vL}")
        e(f"v_mul_u32_u24 v8, 896, v4")
        e(f"v_lshl_add_u32 v8, v5, 4, v8")
        e(f"v_cmp_gt_u32 vcc, 6, v5")
        e(f"v_add_u32 v9, 128, v8")
        e(f"v_mov_b32 v11, 0x7ffffff0")
        e(f"v_cndmask_b32 v9, v11, v9, vcc")
        e(f"s_lshl_b32 {sA}, {sI}, 5")
        e(f"s_add_u32 {sA}, {sA}, {sR}")
        e(f"s_mul_i32 {sA}, {sA}, 7168")
        e(f"s_mul_i32 {sBt}, {sW}, 224")
        e(f"s_add_u32 {sA}, {sA}, {sBt}")
        e(f"buffer_load_dwordx4 v[32:35], v8, {srd(SRD_X)}, {sA} offen", "x")
        e(f"buffer_load_dwordx4 v[36:39], v9, {srd(SRD_X)}, {sA} offen", "x")
        if self.o.get("codepf", 1):
            e("s_getpc_b64 s[88:89]")
            e("L_pc:")
            e("s_sub_u32 s88, s88, L_pc-" + NAME + "_kernel")
            e("s_subb_u32 s89, s89, 0")
            e(f"s_lshl_b32 {sA}, {sR}, 2")
            e(f"s_add_u32 {sA}, {sA}, {sW}")
            e(f"v_lshl_add_u32 v12, {vL}, 7, {sA}")
            e(f"v_lshlrev_b32 v12, 7, v12")
            e(f"v_min_u32 v12, L_end-" + NAME + "_kernel, v12")
            e("s_mov_b64 exec, 15")
            e("global_load_dword v13, v12, s[88:89]", "pf")
            e("s_mov_b64 exec, -1")
        e(f"v_lshrrev_b32 v10, 2, {vL}")
        e(f"v_mul_u32_u24 v10, 2688, v10")
        e(f"v_and_b32 v11, 3, {vL}")
        e(f"v_lshl_add_u32 v10, v11, 4, v10")
        e(f"s_mul_i32 {sC}, {sH}, 56")
        e(f"s_sub_u32 {sC}, {sC}, {sADJ}")
        e(f"s_mul_i32 {sA}, {sW}, {16 * 2688}")
        e(f"s_add_u32 {sC}, {sC}, {sA}")
        e(f"s_lshl_b32 {sD}, {sW}, 10")
        n_early = self.o.get("early_w", 7)
        self.wqkv_dma(0, n_early)
        full = list(e.vm)
        e.vm = [t for t in full if t not in ("c", "wm")]
        e.wait(vm="E")
        e.vm = full[1:]
        e(f"v_readfirstlane_b32 {sTAG}, {vE}")
        e(f"s_mul_i32 {sTAG}, {sTAG}, 1664525")
        e(f"s_add_u32 {sTAG}, {sTAG}, 1013904223")
        common = list(e.vm)
        e(f"s_cmp_lg_u32 {sW}, 3")
        e("s_cbranch_scc1 L_noxcc")
        e(f"s_getreg_b32 {sA}, hwreg(HW_REG_XCC_ID, 0, 4)")
        e(f"v_mov_b32 v14, {sTAG}")
        e(f"v_mov_b32 v15, {sA}")
        e(f"s_lshl_b32 {sA}, {sI}, 5")
        e(f"s_add_u32 {sA}, {sA}, {sR}")
        e(f"s_lshl_b32 {sA}, {sA}, 3")
        e(f"v_mov_b32 {vE}, 1")
        e("s_mov_b64 exec, 1")
        e(f"buffer_store_dwordx2 v[14:15], off, {srd(SRD_WS)}, {sA} offset:{WS_XCC} sc1")
        e(f"buffer_atomic_add {vE}, off, {srd(SRD_DBG)}, 0 sc0 sc1")
        e("s_mov_b64 exec, -1")
        e("L_noxcc:")
        e.vm = list(common)
        self.stamp("tag")
        e(f"s_cmp_ge_u32 {sR}, 21")
        e("s_cbranch_scc1 L_nomod2")
        e.wait(vm="c")
        e(f"v_lshlrev_b32 v16, 16, v16")
        e(f"v_mul_f32 v17, {fbits(-math.log2(math.e))}, v16")
        e("v_exp_f32 v17, v17")
        e("v_add_f32 v17, 1.0, v17")
        e("v_rcp_f32 v17, v17")
        e("v_mul_f32 v16, v16, v17")
        e("v_cvt_pk_bf16_f32 v16, v16, v16")
        e("v_lshlrev_b32 v16, 16, v16")
        for k in range(4):
            e(f"v_mov_b32 v{40 + k}, 0")
        e.wait(vm="wm")
        for j in range(7):
            a, b = 18 + 2 * j, 19 + 2 * j
            e(f"v_lshlrev_b32 v44, 16, v{a}")
            e(f"v_and_b32 v45, 0xffff0000, v{a}")
            e(f"v_lshlrev_b32 v46, 16, v{b}")
            e(f"v_and_b32 v47, 0xffff0000, v{b}")
            for k in range(4):
                e(f"v_fmac_f32_dpp v{40 + k}, v16, v{44 + k} row_newbcast:{j} row_mask:0xf bank_mask:0xf")
        e("v_permlane16_swap_b32 v40, v41")
        e("v_permlane16_swap_b32 v42, v43")
        e("v_add_f32 v40, v40, v41")
        e("v_add_f32 v42, v42, v43")
        e("v_permlane32_swap_b32 v40, v42")
        e("v_add_f32 v40, v40, v42")
        e(f"v_lshrrev_b32 v4, 4, {vL}")
        e(f"v_and_b32 v5, 15, {vL}")
        e(f"v_lshl_add_u32 v5, v5, 2, v4")
        e(f"s_lshl_b32 {sA}, {sW}, 8")
        e(f"v_lshl_add_u32 v5, v5, 2, {sA}")
        e(f"ds_write_b32 v5, v40 offset:{L_MODR}")
        e("s_waitcnt lgkmcnt(0)")
        e("s_barrier")
        e(f"s_cmp_lg_u32 {sW}, 0")
        e("s_cbranch_scc1 L_nomod2")
        e("s_mov_b64 exec, 0xffff")
        for k in range(4):
            e(f"ds_read_b128 {vr(40 + 4 * k)}, {vL16} offset:{L_MODR + 256 * k}")
        e(f"s_and_b32 {sA}, {sI}, 3")
        e(f"s_mul_i32 {sA}, {sA}, 10752")
        e(f"s_lshr_b32 {sBt}, {sI}, 2")
        e(f"s_lshl_b32 {sE}, {sR}, 1")
        e(f"s_add_u32 {sBt}, {sBt}, {sE}")
        e(f"s_lshl_b32 {sBt}, {sBt}, 8")
        e(f"s_add_u32 {sA}, {sA}, {sBt}")
        e(f"s_add_u32 {sA}, {sA}, {WS_MODP}")
        e("v_mov_b32 v5, 0xff")
        e("s_waitcnt lgkmcnt(0)")
        for k in range(4):
            e(f"v_add_f32 v{40 + k}, v{40 + k}, v{44 + k}")
            e(f"v_add_f32 v{48 + k}, v{48 + k}, v{52 + k}")
        for k in range(4):
            e(f"v_add_f32 v{40 + k}, v{40 + k}, v{48 + k}")
            e(f"s_lshr_b32 {sBt}, {sTAG}, {8 * k}")
            e(f"v_bfi_b32 v{40 + k}, v5, {sBt}, v{40 + k}")
        e(f"buffer_store_dwordx4 v[40:43], {vL16}, {srd(SRD_WS)}, {sA} offen sc1")
        e("s_mov_b64 exec, -1")
        e("L_nomod2:")
        e.vm = list(common)
        self.stamp("modpub")
        e.wait(vm="x")
        for k in range(8):
            e(f"v_lshlrev_b32 v{48 + 2 * k}, 16, v{32 + k}")
            e(f"v_and_b32 v{49 + 2 * k}, 0xffff0000, v{32 + k}")
        e("v_add_f32 v4, v48, v49")
        e("v_add_f32 v5, v50, v51")
        for k in range(4, 16, 2):
            e(f"v_add_f32 v4, v4, v{48 + k}")
            e(f"v_add_f32 v5, v5, v{49 + k}")
        e("v_add_f32 v4, v4, v5")
        self.reduce_hi3("v4", "v5")
        e(f"v_mul_f32 v6, {fbits(1.0 / 112)}, v4")
        e(f"v_lshrrev_b32 v5, 3, {vL}")
        e(f"v_cmp_gt_u32 s[90:91], 6, v5")
        e("v_mov_b32 v7, 0")
        e("v_mov_b32 v12, 0")
        for k in range(8):
            e(f"v_sub_f32 v5, v{48 + k}, v6")
            e(f"v_sub_f32 v11, v{56 + k}, v6")
            e("v_fmac_f32 v7, v5, v5")
            e("v_fmac_f32 v12, v11, v11")
        e("v_cndmask_b32 v12, 0, v12, s[90:91]")
        e("v_add_f32 v5, v7, v12")
        self.reduce_hi3("v5", "v7")
        e(f"s_lshl_b32 {sA}, {sW}, 6")
        e(f"v_and_b32 v6, 7, {vL}")
        e(f"v_lshlrev_b32 v6, 3, v6")
        e(f"v_add_u32 v7, {sA}, v6")
        e(f"ds_write_b64 v7, v[4:5] offset:{L_STATX}")
        e("v_mov_b32 v14, 0")
        e("v_mov_b32 v15, 0")
        e(f"v_lshlrev_b32 v7, 3, {vL}")
        e(f"v_add_u32 v7, {L_PAD}, v7")
        e(f"ds_write_b64 v7, v[14:15]")
        e("s_waitcnt lgkmcnt(0)")
        e("s_barrier")
        for k in range(4):
            e(f"ds_read_b64 {vr(16 + 2 * k, 2)}, v6 offset:{L_STATX + 64 * k}")
        e(f"s_mul_i32 {sC}, {sH}, 56")
        e(f"s_sub_u32 {sC}, {sC}, {sADJ}")
        e(f"s_mul_i32 {sA}, {sW}, {16 * 2688}")
        e(f"s_add_u32 {sC}, {sC}, {sA}")
        e(f"s_lshl_b32 {sD}, {sW}, 10")
        self.wqkv_dma(n_early, 21)
        e("s_waitcnt lgkmcnt(0)")
        e("v_add_f32 v4, v16, v18")
        e("v_add_f32 v5, v20, v22")
        e("v_add_f32 v4, v4, v5")
        e(f"v_mul_f32 v4, {fbits(1.0 / 448)}, v4")
        e("v_add_f32 v5, v17, v19")
        e("v_add_f32 v7, v21, v23")
        e("v_add_f32 v5, v5, v7")
        e(f"v_mov_b32 v12, {fbits(1.0 / 112)}")
        e("v_mov_b32 v7, 0")
        for k in range(4):
            e(f"v_fma_f32 v11, v{16 + 2 * k}, v12, -v4")
            e("v_fmac_f32 v7, v11, v11")
        e(f"v_mul_f32 v7, {fbits(112.0)}, v7")
        e("v_add_f32 v5, v5, v7")
        e(f"v_mul_f32 v5, {fbits(1.0 / 448)}, v5")
        self.round_bf16(["v4", "v5"], "v7")
        e(f"v_add_f32 v5, {fbits(1e-5)}, v5")
        e("v_cvt_pk_bf16_f32 v5, v5, v5")
        e("v_lshlrev_b32 v5, 16, v5")
        e("v_sqrt_f32 v5, v5")
        e("v_cvt_pk_bf16_f32 v5, v5, v5")
        e("v_lshlrev_b32 v5, 16, v5")
        e("v_rcp_f32 v5, v5")
        xs = [f"v{48 + k}" for k in range(16)]
        for x in xs:
            e(f"v_sub_f32 {x}, {x}, v4")
        self.round_bf16(xs, "v7")
        for x in xs:
            e(f"v_mul_f32 {x}, {x}, v5")
        self.round_bf16(xs, "v7")
        self.stamp("ln1")
        e(f"s_cmp_ge_u32 {sR}, 28")
        e("s_cbranch_scc1 L_nowo")
        e(f"v_lshrrev_b32 v4, 3, {vL}")
        e(f"v_and_b32 v5, 6, v4")
        e(f"v_and_b32 v6, 7, {vL}")
        e("v_xor_b32 v5, v5, v6")
        e("v_mul_u32_u24 v4, 896, v4")
        e("v_lshl_add_u32 v4, v5, 4, v4")
        e(f"s_lshl_b32 {sC}, {sCG}, 7")
        e(f"s_mul_i32 {sA}, {sW}, {14 * 8 * 896}")
        e(f"s_add_u32 {sC}, {sC}, {sA}")
        e(f"s_mul_i32 {sD}, {sW}, 14336")
        for n in range(14):
            e(f"s_add_u32 {sA}, {sC}, {n * 8 * 896}")
            e(f"s_add_u32 {sBt}, {sD}, {L_WO + n * 1024}")
            self.dma("v4", SRD_WO, sA, sBt, "wo")
        e("L_nowo:")
        self.pretouch()
        lp, dn = e.label("xcc"), e.label("xccd")
        e(f"v_and_b32 v4, 31, {vL}")
        e(f"v_lshlrev_b32 v4, 3, v4")
        e(f"s_lshl_b32 {sA}, {sI}, 8")
        e(f"s_mov_b32 {sSPIN}, 0")
        e(f"{lp}:")
        e(f"buffer_load_dwordx2 v[6:7], v4, {srd(SRD_WS)}, {sA} offen offset:{WS_XCC} sc1")
        e(f"s_add_u32 {sSPIN}, {sSPIN}, 1")
        e(f"s_cmp_ge_u32 {sSPIN}, {SPIN_MAX}")
        e("s_waitcnt vmcnt(0)")
        e(f"s_cbranch_scc1 {dn}")
        e(f"v_cmp_ne_u32 vcc, {sTAG}, v6")
        e(f"s_cbranch_vccnz {lp}")
        e(f"{dn}:")
        e(f"s_getreg_b32 {sA}, hwreg(HW_REG_XCC_ID, 0, 4)")
        e(f"v_cmp_ne_u32 vcc, {sA}, v7")
        e("s_cmp_eq_u64 vcc, 0")
        e(f"s_cselect_b32 {sFAST}, {0 if self.o.get('force_slow') else 1}, 0")
        e(f"s_cmp_lg_u32 {sW}, 3")
        e("s_cbranch_scc1 L_nobump")
        e(f"v_readfirstlane_b32 {sA}, {vE}")
        e(f"s_cmp_lg_u32 {sA}, 255")
        e("s_cbranch_scc1 L_nobump")
        e(f"v_mov_b32 v4, {sTAG}")
        e("s_mov_b64 exec, 1")
        e(f"buffer_store_dword v4, off, {srd(SRD_WS)}, 0 sc1")
        e("s_mov_b64 exec, -1")
        e("L_nobump:")
        e.vm = []
        self.stamp("xcc")

    def reduce_hi3(self, a, t):
        e = self.e
        e(f"v_add_f32_dpp {a}, {a}, {a} row_ror:8 row_mask:0xf bank_mask:0xf")
        self.reduce_hi2(a, t)

    def reduce_hi2(self, a, t, op="v_add_f32"):
        e = self.e
        e(f"v_mov_b32 {t}, {a}")
        e(f"v_permlane16_swap_b32 {a}, {t}")
        e(f"{op} {a}, {a}, {t}")
        e(f"v_mov_b32 {t}, {a}")
        e(f"v_permlane32_swap_b32 {a}, {t}")
        e(f"{op} {a}, {a}, {t}")

    def pretouch(self):
        if not self.o.get("pretouch", 1):
            return
        e = self.e
        e(f"s_lshl_b32 {sC}, {sR}, 2")
        e(f"s_add_u32 {sC}, {sC}, {sW}")
        areas = [(WS_H, 229376), (WS_O, 262144), (WS_Z, 229376), (WS_HID, 917504), (WS_STAT, 14336)]
        for base, per in areas:
            lines = per // 128
            per_wave = -(-lines // 128)
            e(f"s_mul_i32 {sA}, {sI}, {per}")
            e(f"s_add_u32 {sA}, {sA}, {base}")
            e(f"s_mul_i32 {sBt}, {sC}, {per_wave}")
            e(f"v_add_u32 v4, {sBt}, {vL}")
            e(f"v_min_u32 v4, {lines - 1}, v4")
            e(f"v_lshlrev_b32 v4, 7, v4")
            m = (1 << per_wave) - 1
            e(f"s_mov_b32 exec_lo, {hex(m & 0xffffffff)}")
            e(f"s_mov_b32 exec_hi, {hex(m >> 32)}")
            e(f"buffer_load_dword v13, v4, {srd(SRD_WS)}, {sA} offen sc1", "pt")
            e("s_mov_b64 exec, -1")
        e(f"v_and_b32 v4, 3, {vL}")
        e(f"v_lshlrev_b32 v4, 7, v4")
        e(f"v_lshrrev_b32 v5, 2, {vL}")
        e(f"v_lshl_add_u32 v4, v5, 12, v4")
        e(f"s_lshl_b32 {sA}, {sI}, 9")
        e(f"s_add_u32 {sA}, {sA}, {WS_FLH}")
        e("s_mov_b64 exec, 0xffff")
        e(f"buffer_load_dword v13, v4, {srd(SRD_WS)}, {sA} offen sc1", "pt")
        e("s_mov_b64 exec, -1")

    def f1(self):
        e = self.e
        e(f"v_lshrrev_b32 v5, 3, {vL}")
        e(f"v_bfe_u32 v6, {vL}, 2, 1")
        e(f"v_cmp_gt_u32 vcc, 6, v5")
        e(f"v_cndmask_b32 v6, 0, v6, vcc")
        e(f"v_lshl_add_u32 v6, v6, 3, v5")
        e(f"s_mul_i32 {sA}, {sW}, 14")
        e(f"v_add_u32 v6, {sA}, v6")
        e(f"v_bfe_u32 v7, {vL}, 1, 1")
        e(f"v_lshl_add_u32 v6, v6, 1, v7")
        e(f"v_and_b32 v7, 1, {vL}")
        e(f"v_mul_u32_u24 v7, 112, v7")
        e(f"v_add_u32 v6, v6, v7")
        e(f"v_lshlrev_b32 v8, 4, v6")
        self.gather_mod("v8", 16, 40)
        self.stamp("modgot")
        e(f"v_and_b32 v7, 1, {vL}")
        e(f"v_cvt_f32_u32 v7, v7")
        for k in range(4):
            e(f"v_add_f32 v{16 + k}, v{16 + k}, v7")
        self.round_bf16([f"v{16 + k}" for k in range(4)], "v40")
        e(f"s_lshl_b32 {sA}, {sW}, 12")
        e(f"s_add_u32 {sA}, {sA}, {L_SCR}")
        e(f"v_add_u32 v9, {sA}, {vL16}")
        e("ds_write_b128 v9, v[16:19]")
        e("v_and_b32 v9, 0xffffff80, v9")
        e("s_waitcnt lgkmcnt(0)")
        for it in range(8):
            e(f"ds_read_b128 {vr(64 + 4 * it)}, v9 offset:{16 * it}")
        e(f"v_and_b32 v4, 7, {vL}")
        e(f"v_lshlrev_b32 v4, 4, v4")
        e(f"v_lshl_add_u32 v4, v5, 9, v4")
        e(f"v_cmp_gt_u32 vcc, 6, v5")
        e(f"v_add_u32 v6, 4096, v4")
        e(f"v_mov_b32 v11, 0x7ffffff0")
        e(f"v_cndmask_b32 v6, v11, v6, vcc")
        e(f"s_lshr_b32 {sA}, {sR}, 2")
        e(f"s_lshl_b32 {sBt}, {sI}, 3")
        e(f"s_add_u32 {sBt}, {sBt}, {sA}")
        e(f"s_mul_i32 {sA}, {sBt}, 28672")
        e(f"s_and_b32 {sC}, {sR}, 3")
        e(f"s_lshl_b32 {sD}, {sC}, 7")
        e(f"s_add_u32 {sA}, {sA}, {sD}")
        e(f"s_mul_i32 {sD}, {sW}, 7168")
        e(f"s_add_u32 {sA}, {sA}, {sD}")
        e(f"s_add_u32 {sA}, {sA}, {WS_H}")
        e(f"s_lshl_b32 {sBt}, {sBt}, 6")
        e(f"s_lshl_b32 {sC}, {sC}, 4")
        e(f"s_add_u32 {sBt}, {sBt}, {sC}")
        e(f"s_lshl_b32 {sC}, {sW}, 2")
        e(f"s_add_u32 {sBt}, {sBt}, {sC}")
        e(f"s_add_u32 {sBt}, {sBt}, {WS_FLH}")
        e("s_waitcnt lgkmcnt(0)")
        for gs in range(2):
            xs = [f"v{48 + 8 * gs + k}" for k in range(8)]
            c1 = [f"v{64 + 4 * (4 * gs + 2 * (k >> 2) + 1) + (k & 3)}" for k in range(8)]
            c2 = [f"v{64 + 4 * (4 * gs + 2 * (k >> 2)) + (k & 3)}" for k in range(8)]
            if self.o.get("h_round", 1):
                for x, c in zip(xs, c1):
                    e(f"v_mul_f32 {x}, {x}, {c}")
                self.round_bf16(xs, "v7")
                for x, c in zip(xs, c2):
                    e(f"v_add_f32 {x}, {x}, {c}")
            else:
                for x, c, d in zip(xs, c1, c2):
                    e(f"v_fma_f32 {x}, {x}, {c}, {d}")
            for k in range(4):
                e(f"v_cvt_pk_bf16_f32 v{32 + 4 * gs + k}, {xs[2 * k]}, {xs[2 * k + 1]}")
            e(f"buffer_store_dwordx4 {vr(32 + 4 * gs)}, v{4 + 2 * gs}, {srd(SRD_WS)}, {sA} offen")
        self.publish(sBt, "v7")
        self.stamp("hpub")

    def p1(self):
        e = self.e
        ACK, ACV, ACQ = 16, 32, 48
        HB, WR = 0, 112
        e("s_barrier")
        e(f"v_lshrrev_b32 v4, 5, {vL}")
        e(f"v_lshlrev_b32 v4, 9, v4")
        e(f"v_bfe_u32 v5, {vL}, 2, 2")
        e(f"v_lshl_add_u32 v4, v5, 6, v4")
        e(f"v_bfe_u32 v5, {vL}, 4, 1")
        e(f"v_lshl_add_u32 v4, v5, 5, v4")
        e(f"v_and_b32 v5, 3, {vL}")
        e(f"v_lshl_add_u32 v4, v5, 3, v4")
        e(f"v_add_u32 v4, {sADJ}, v4")
        e(f"v_add_u32 v8, {L_WQ}, v4")
        e(f"v_add_u32 v9, {L_WK}, v4")
        DEPTH = 3

        def rd(addr, off, dst, tag):
            e(f"ds_read_b64_tr_b16 {ar(dst, 2)}, {addr} offset:{off}", tag)
            e(f"ds_read_b64_tr_b16 {ar(dst + 2, 2)}, {addr} offset:{off + 256}", tag)

        def rd_kv(ks):
            b = WR + 8 * (ks % 4)
            rd("v9", ks * 1024, b, ("kv", ks))
            rd("v9", 28672 + ks * 1024, b + 4, ("kv", ks))

        for ks in range(DEPTH):
            rd_kv(ks)
        e(f"v_and_b32 v4, 15, {vL}")
        e(f"v_lshlrev_b32 v4, 2, v4")
        e(f"s_lshl_b32 {sA}, {sT}, 6")
        e(f"s_add_u32 {sA}, {sA}, {WS_FLH}")
        self.poll("v4", sA, "v5")
        self.acquire()
        self.stamp("hflag")
        e(f"s_mul_i32 {sA}, {sT}, 28672")
        e(f"s_add_u32 {sA}, {sA}, {WS_H}")

        def ld_h(ks):
            if ks and ks % 4 == 0:
                e(f"s_add_u32 {sA}, {sA}, 4096")
            e(f"buffer_load_dwordx4 {ar(HB + 4 * ks)}, {vL16}, {srd(SRD_WS)}, {sA} offen offset:{(ks % 4) * 1024} sc1", ("h", ks))

        PRE = self.o.get("p1pre", 8)
        for ks in range(PRE):
            ld_h(ks)
        for ks in range(28):
            e.wait(vm=("h", ks), lg=("kv", ks))
            b = WR + 8 * (ks % 4)
            ck = "0" if ks == 0 else vr(ACK, 16)
            cv = "0" if ks == 0 else vr(ACV, 16)
            e(f"v_mfma_f32_32x32x16_bf16 {vr(ACK, 16)}, {ar(b)}, {ar(HB + 4 * ks)}, {ck}")
            if ks + PRE < 28:
                ld_h(ks + PRE)
            if ks + DEPTH < 28:
                rd("v9", (ks + DEPTH) * 1024, WR + 8 * ((ks + DEPTH) % 4), ("kv", ks + DEPTH))
            e(f"v_mfma_f32_32x32x16_bf16 {vr(ACV, 16)}, {ar(HB + 4 * ks)}, {ar(b + 4)}, {cv}")
            if ks + DEPTH < 28:
                rd("v9", 28672 + (ks + DEPTH) * 1024, WR + 8 * ((ks + DEPTH) % 4) + 4, ("kv", ks + DEPTH))
        self.stamp("kvgemm")
        QR = WR + 32

        def rd_q(ks):
            rd("v8", ks * 1024, QR + 4 * (ks % 8), ("q", ks))

        for ks in range(4):
            rd_q(ks)
        e(f"s_mul_i32 {sA}, {sH}, 64")
        e(f"s_add_u32 {sA}, {sA}, {sT}")
        e(f"s_lshl_b32 {sA}, {sA}, 12")
        e(f"s_add_u32 {sA}, {sA}, {WS_KV}")
        e(f"s_lshl_b32 {sBt}, {sW}, 12")
        e(f"s_add_u32 {sBt}, {sBt}, {L_KV + 8 * 4096}")
        e(f"v_add_u32 v10, {sBt}, {vL16}")
        e(f"v_and_b32 v4, 31, {vL}")
        e(f"v_cmp_eq_u32 s[90:91], 28, v4")
        e("v_mov_b32 v11, 0x3f803f80")
        for k in range(8):
            e(f"v_cvt_pk_bf16_f32 v{64 + k}, v{ACK + 2 * k}, v{ACK + 2 * k + 1}")
        e(f"v_cndmask_b32 v70, v70, 0, {sHI}")
        e(f"v_cndmask_b32 v71, v71, 0, {sHI}")
        for f in range(2):
            e(f"buffer_store_dwordx4 {vr(64 + 4 * f)}, {vL16}, {srd(SRD_WS)}, {sA} offen offset:{f * 1024} sc1", "kvst")
        for k in range(8):
            e(f"v_cvt_pk_bf16_f32 v{72 + k}, v{ACV + 2 * k}, v{ACV + 2 * k + 1}")
            e(f"v_cndmask_b32 v{72 + k}, v{72 + k}, v11, s[90:91]")
        for f in range(2, 4):
            e(f"buffer_store_dwordx4 {vr(64 + 4 * f)}, {vL16}, {srd(SRD_WS)}, {sA} offen offset:{f * 1024} sc1", "kvst")
        for f in range(4):
            e(f"ds_write_b128 v10, {vr(64 + 4 * f)} offset:{f * 1024}", "kvw")
        for ks in range(28):
            e.wait(lg=("q", ks))
            cq = "0" if ks == 0 else vr(ACQ, 16)
            e(f"v_mfma_f32_32x32x16_bf16 {vr(ACQ, 16)}, {ar(QR + 4 * (ks % 8))}, {ar(HB + 4 * ks)}, {cq}")
            if ks + 4 < 28:
                rd_q(ks + 4)
        e(f"s_lshl_b32 {sA}, {sH}, 4")
        e(f"s_lshr_b32 {sBt}, {sT}, 2")
        e(f"s_add_u32 {sA}, {sA}, {sBt}")
        e(f"s_lshl_b32 {sA}, {sA}, 7")
        e(f"s_lshl_b32 {sBt}, {sW}, 2")
        e(f"s_add_u32 {sA}, {sA}, {sBt}")
        e(f"s_add_u32 {sA}, {sA}, {WS_FLKV}")
        self.publish(sA, "v7", local=False)
        self.stamp("kvpub")
        qs = 28 ** -0.5 * math.log2(math.e)
        e(f"s_mov_b32 {sA}, {fbits(qs)}")
        for k in range(16):
            e(f"v_mul_f32 v{ACQ + k}, {sA}, v{ACQ + k}")
        for k in range(8):
            e(f"v_cvt_pk_bf16_f32 v{64 + k}, v{ACQ + 2 * k}, v{ACQ + 2 * k + 1}")
        e("v_mov_b32 v11, 0x00003f80")
        e(f"v_cndmask_b32 v70, v70, v11, {sHI}")
        e(f"v_cndmask_b32 v71, v71, 0, {sHI}")
        e("s_waitcnt lgkmcnt(0)")
        e("s_barrier")

    def late_consts(self):
        e = self.e
        e(f"s_cmp_ge_u32 {sR}, 28")
        e("s_cbranch_scc1 L_nolate")
        e(f"s_lshl_b32 {sA}, {sW}, 6")
        e(f"v_add_u32 v4, {sA}, {vL}")
        e("v_cmp_gt_u32 vcc, 112, v4")
        e(f"s_movk_i32 {sBt}, 224")
        e(f"v_cmp_gt_u32 s[90:91], {sBt}, v4")
        e("v_subrev_u32 v5, 112, v4")
        e("v_cndmask_b32 v5, v5, v4, vcc")
        e("v_mov_b32 v6, 336")
        e("v_mov_b32 v7, 448")
        e("v_cndmask_b32 v6, v6, v7, vcc")
        e("v_add_u32 v6, v6, v5")
        e("v_and_b32 v7, 15, v4")
        e(f"s_lshl_b32 {sA}, {sCG}, 4")
        e(f"v_add_u32 v7, {sA}, v7")
        e("v_bfe_u32 v8, v4, 4, 1")
        e("v_mul_u32_u24 v8, 336, v8")
        e("v_add_u32 v7, v7, v8")
        e("v_add_u32 v7, 224, v7")
        e("v_cndmask_b32 v6, v7, v6, s[90:91]")
        e("v_lshlrev_b32 v8, 4, v6")
        e("s_mov_b64 s[92:93], vcc")
        self.gather_mod("v8", 16, 40)
        e("v_cndmask_b32 v7, 0, 1.0, s[92:93]")
        for k in range(4):
            e(f"v_add_f32 v{20 + k}, v{16 + k}, v7")
        e("v_cvt_pk_bf16_f32 v20, v20, v21")
        e("v_cvt_pk_bf16_f32 v21, v22, v23")
        e("v_lshrrev_b32 v6, 3, v5")
        e("v_lshlrev_b32 v6, 6, v6")
        e("v_and_b32 v7, 3, v5")
        e("v_lshl_add_u32 v6, v7, 4, v6")
        e("v_bfe_u32 v7, v5, 2, 1")
        e("v_lshl_add_u32 v6, v7, 3, v6")
        e("v_mov_b32 v7, 896")
        e("v_cndmask_b32 v7, v7, 0, s[92:93]")
        e("v_add_u32 v6, v6, v7")
        e("v_and_b32 v7, 31, v4")
        e("v_lshlrev_b32 v7, 4, v7")
        e("s_mov_b64 exec, s[90:91]")
        e(f"ds_write_b64 v6, v[20:21] offset:{L_CVEC}")
        e("s_not_b64 exec, exec")
        e(f"ds_write_b128 v7, v[16:19] offset:{L_GAB}")
        e("s_mov_b64 exec, -1")
        e(f"v_lshrrev_b32 v4, 2, {vL}")
        e(f"v_mul_u32_u24 v4, 896, v4")
        e(f"v_and_b32 v5, 3, {vL}")
        e(f"v_lshl_add_u32 v15, v5, 4, v4")
        e(f"s_lshl_b32 {sA}, {sI}, 2")
        e(f"s_add_u32 {sA}, {sA}, {sRB}")
        e(f"s_lshl_b32 {sA}, {sA}, 2")
        e(f"s_add_u32 {sA}, {sA}, {sW}")
        e(f"s_mul_i32 {sA}, {sA}, 14336")
        e(f"s_lshl_b32 {sBt}, {sCG}, 7")
        e(f"s_add_u32 s100, {sA}, {sBt}")
        e(f"buffer_load_dwordx4 v[240:243], v15, {srd(SRD_X)}, s100 offen")
        e(f"buffer_load_dwordx4 v[244:247], v15, {srd(SRD_X)}, s100 offen offset:64")
        e("L_nolate:")
        e.vm = []
        e.lg = []

    def p2(self):
        e = self.e
        QF = 64
        e(f"s_and_b32 {sA}, {sT}, 0xfc")
        e(f"s_lshl_b32 {sBt}, {sW}, 1")
        e(f"s_add_u32 {sA}, {sA}, {sBt}")
        e(f"s_lshl_b32 {sD}, {sW}, 13")
        e(f"s_add_u32 {sD}, {sD}, {L_KV}")
        e(f"s_cmp_lt_u32 {sA}, 8")
        e("s_cbranch_scc1 L_kvfill")
        e(f"s_sub_u32 {sC}, {sA}, 8")
        e(f"s_lshl_b32 {sA}, {sH}, 4")
        e(f"s_lshr_b32 {sBt}, {sC}, 2")
        e(f"s_add_u32 {sA}, {sA}, {sBt}")
        e(f"s_lshl_b32 {sA}, {sA}, 7")
        e(f"s_and_b32 {sBt}, {sC}, 3")
        e(f"s_lshl_b32 {sBt}, {sBt}, 2")
        e(f"s_add_u32 {sA}, {sA}, {sBt}")
        e(f"s_add_u32 {sA}, {sA}, {WS_FLKV}")
        e(f"v_and_b32 v4, 1, {vL}")
        e(f"v_lshlrev_b32 v4, 2, v4")
        self.poll("v4", sA, "v5")
        self.acquire()
        e(f"s_lshl_b32 {sA}, {sH}, 6")
        e(f"s_add_u32 {sA}, {sA}, {sC}")
        e(f"s_lshl_b32 {sA}, {sA}, 12")
        e(f"s_add_u32 {sA}, {sA}, {WS_KV}")
        for t in range(2):
            e(f"s_mov_b32 m0, {sD}")
            for f in range(4):
                e(f"buffer_load_dwordx4 {vL16}, {srd(SRD_WS)}, {sA} offen offset:{f * 1024} sc1 lds")
            if t == 0:
                e(f"s_add_u32 {sA}, {sA}, 4096")
                e(f"s_add_u32 {sD}, {sD}, 4096")
        e("s_branch L_kvdone")
        e("L_kvfill:")
        for k in range(8):
            e(f"v_mov_b32 v{16 + k}, 0")
        e("v_mov_b32 v4, 0x0000f149")
        e(f"v_cndmask_b32 v22, 0, v4, {sHI}")
        e(f"v_add_u32 v4, {sD}, {vL16}")
        for t in range(2):
            for f in range(4):
                e(f"ds_write_b128 v4, {vr(20 if f == 1 else 16)} offset:{t * 4096 + f * 1024}")
        e("L_kvdone:")
        e(f"v_and_b32 v4, 31, {vL}")
        e(f"v_lshrrev_b32 v5, 5, {vL}")
        e(f"v_lshlrev_b32 v5, 2, v5")
        e("v_sub_u32 v4, v4, v5")
        MK = 72
        e("v_mov_b32 v6, 0xffff")
        e("v_mov_b32 v7, 0xffff0000")
        for r in range(16):
            e(f"v_cmp_le_i32 s[{SMASK + 2 * r}:{SMASK + 2 * r + 1}], {(r >> 2) * 8 + (r & 3)}, v4")
        for k in range(8):
            e(f"v_cndmask_b32 v8, 0, v6, s[{SMASK + 4 * k}:{SMASK + 4 * k + 1}]")
            e(f"v_cndmask_b32 v9, 0, v7, s[{SMASK + 4 * k + 2}:{SMASK + 4 * k + 3}]")
            e(f"v_or_b32 v{MK + k}, v8, v9")
        e(f"s_lshl_b32 {sA}, {sW}, 12")
        e(f"s_add_u32 {sA}, {sA}, {L_KV}")
        e(f"v_add_u32 v10, {sA}, {vL16}")
        e("s_waitcnt vmcnt(0) lgkmcnt(0)")
        e("s_barrier")
        self.stamp("kvgot")
        KF, VF = 0, 72
        order = [0, 8, 1, 2, 3, 4, 5, 6, 7]
        for t in order:
            for f in range(2):
                e(f"ds_read_b128 {ar(KF + 8 * t + 4 * f)}, v10 offset:{t * 4096 + f * 1024}", ("k", t))
        S = [80, 96, 112]
        MG, NM, OA, PF = 128, 144, 160, 176
        vM = "v11"

        def s_mfma(t, dst, c):
            e(f"v_mfma_f32_32x32x16_bf16 {vr(dst, 16)}, {ar(KF + 8 * t)}, {vr(QF)}, {c}")
            e(f"v_mfma_f32_32x32x16_bf16 {vr(dst, 16)}, {ar(KF + 8 * t + 4)}, {vr(QF + 4)}, {vr(dst, 16)}")

        def maxred(src, first):
            for k in range(8):
                if first and k == 0:
                    e(f"v_max_f32 {vM}, v{src}, v{src + 1}")
                else:
                    e(f"v_max3_f32 {vM}, {vM}, v{src + 2 * k}, v{src + 2 * k + 1}")

        vq = list(order)
        e.wait(lg=("k", 0))
        s_mfma(0, S[0], "0")
        e.wait(lg=("k", 8))
        s_mfma(8, S[1], "0")
        e.wait(lg=("k", 1))
        s_mfma(1, S[2], "0")
        for r in range(16):
            e(f"v_cndmask_b32 v{MG + r}, v{S[0] + r}, v{S[1] + r}, s[{SMASK + 2 * r}:{SMASK + 2 * r + 1}]")
        for t in range(2, 9):
            if t < 8:
                e.wait(lg=("k", t))
                s_mfma(t, S[(t + 1) % 3], "0")
            for _ in range(2 if t < 5 else 1):
                if vq:
                    tv = vq.pop(0)
                    for f in range(2):
                        e(f"ds_read_b128 {ar(VF + 8 * tv + 4 * f)}, v10 offset:{tv * 4096 + 2048 + f * 1024}", ("v", tv))
            if t == 2:
                maxred(MG, True)
            maxred(S[t % 3], False)
        e(f"v_mov_b32 v4, {vM}")
        e(f"v_permlane32_swap_b32 {vM}, v4")
        e(f"v_max_f32 {vM}, {vM}, v4")
        for r in range(16):
            e(f"v_sub_f32 v{NM + r}, 0, {vM}")
        s_mfma(1, S[0], vr(NM, 16))
        s_mfma(2, S[1], vr(NM, 16))
        for r in range(16):
            e(f"v_sub_f32 v{MG + r}, v{MG + r}, {vM}")
        for r in range(16):
            e(f"v_exp_f32 v{MG + r}, v{MG + r}")
        for k in range(8):
            e(f"v_cvt_pk_bf16_f32 v{PF + k}, v{MG + 2 * k}, v{MG + 2 * k + 1}")
        for k in range(8):
            e(f"v_and_b32 v{PF + 8 + k}, v{PF + k}, v{MK + k}")
            e(f"v_xor_b32 v{PF + k}, v{PF + k}, v{PF + 8 + k}")
        e.wait(lg=("v", 8))
        e(f"v_mfma_f32_32x32x16_bf16 {vr(OA, 16)}, {ar(VF)}, {vr(PF)}, 0")
        e(f"v_mfma_f32_32x32x16_bf16 {vr(OA, 16)}, {ar(VF + 4)}, {vr(PF + 4)}, {vr(OA, 16)}")
        e(f"v_mfma_f32_32x32x16_bf16 {vr(OA, 16)}, {ar(VF + 64)}, {vr(PF + 8)}, {vr(OA, 16)}")
        e(f"v_mfma_f32_32x32x16_bf16 {vr(OA, 16)}, {ar(VF + 68)}, {vr(PF + 12)}, {vr(OA, 16)}")
        e("s_waitcnt lgkmcnt(0)")
        for t in range(1, 8):
            src = S[(t - 1) % 3]
            pf = PF + 16 + 8 * (t & 1)
            for r in range(8):
                e(f"v_exp_f32 v{src + r}, v{src + r}")
            if t + 2 < 8:
                e(f"v_mfma_f32_32x32x16_bf16 {vr(S[(t + 1) % 3], 16)}, {ar(KF + 8 * (t + 2))}, {vr(QF)}, {vr(NM, 16)}")
            for k in range(4):
                e(f"v_cvt_pk_bf16_f32 v{pf + k}, v{src + 2 * k}, v{src + 2 * k + 1}")
            for r in range(8, 12):
                e(f"v_exp_f32 v{src + r}, v{src + r}")
            e(f"v_mfma_f32_32x32x16_bf16 {vr(OA, 16)}, {ar(VF + 8 * t)}, {vr(pf)}, {vr(OA, 16)}")
            for r in range(12, 16):
                e(f"v_exp_f32 v{src + r}, v{src + r}")
            if t + 2 < 8:
                d = S[(t + 1) % 3]
                e(f"v_mfma_f32_32x32x16_bf16 {vr(d, 16)}, {ar(KF + 8 * (t + 2) + 4)}, {vr(QF + 4)}, {vr(d, 16)}")
            for k in range(4, 8):
                e(f"v_cvt_pk_bf16_f32 v{pf + k}, v{src + 2 * k}, v{src + 2 * k + 1}")
            e(f"v_mfma_f32_32x32x16_bf16 {vr(OA, 16)}, {ar(VF + 8 * t + 4)}, {vr(pf + 4)}, {vr(OA, 16)}")
        e(f"v_bfe_u32 v4, {vL}, 4, 1")
        e(f"v_lshlrev_b32 v4, 14, v4")
        e(f"v_lshrrev_b32 v5, 5, {vL}")
        e(f"v_lshl_add_u32 v4, v5, 8, v4")
        e(f"v_and_b32 v5, 15, {vL}")
        e(f"v_lshl_add_u32 v4, v5, 4, v4")
        e(f"s_lshl_b32 {sA}, {sT}, 5")
        e(f"s_add_u32 {sA}, {sA}, {sH}")
        e(f"s_lshl_b32 {sA}, {sA}, 10")
        e(f"s_add_u32 {sA}, {sA}, {WS_O}")
        e(f"s_lshl_b32 {sBt}, {sT}, 4")
        e(f"s_add_u32 {sBt}, {sBt}, {sH}")
        e(f"s_lshl_b32 {sBt}, {sBt}, 2")
        e(f"s_add_u32 {sBt}, {sBt}, {WS_FLO}")
        e(f"v_mov_b32 v5, v{OA + 12}")
        e(f"v_mov_b32 v6, v{OA + 12}")
        e("v_permlane32_swap_b32 v5, v6")
        e("v_rcp_f32 v6, v6")
        for r in range(16):
            e(f"v_mul_f32 v{OA + r}, v6, v{OA + r}")
        for k in range(8):
            e(f"v_cvt_pk_bf16_f32 v{PF + k}, v{OA + 2 * k}, v{OA + 2 * k + 1}")
        e(f"v_cndmask_b32 v{PF + 6}, v{PF + 6}, 0, {sHI}")
        e(f"v_cndmask_b32 v{PF + 7}, v{PF + 7}, 0, {sHI}")
        for f in range(2):
            e(f"buffer_store_dwordx4 {vr(PF + 4 * f)}, v4, {srd(SRD_WS)}, {sA} offen offset:{f * 512}")
        self.stamp("attn")
        self.publish(sBt, "v7")
        self.stamp("opub")
        e(f"s_cmp_ge_u32 {sR}, 28")
        e("s_cbranch_scc1 L_fin")

    def wgu_addr(self):
        e = self.e
        e(f"v_lshrrev_b32 v12, 3, {vL}")
        e(f"v_and_b32 v5, 2, v12")
        e(f"v_lshlrev_b32 v5, 1, v5")
        e(f"v_and_b32 v6, 7, {vL}")
        e("v_xor_b32 v5, v5, v6")
        e("v_mul_u32_u24 v13, 896, v12")
        e("v_lshl_add_u32 v13, v5, 4, v13")
        e("v_mul_u32_u24 v12, 3584, v12")
        e("v_lshl_add_u32 v12, v5, 4, v12")

    def wgu_dma(self, pieces):
        e = self.e
        e(f"s_lshl_b32 {sC}, {sR}, 7")
        e(f"s_mul_i32 {sA}, {sW}, {8 * 3584}")
        e(f"s_add_u32 {sC}, {sC}, {sA}")
        e(f"s_lshl_b32 {sD}, {sW}, 10")
        for mat, n in pieces:
            e(f"s_add_u32 {sA}, {sC}, {n * 32 * 3584}")
            e(f"s_add_u32 {sBt}, {sD}, {(L_WG, L_WU)[mat] + n * 4096}")
            self.dma("v12", (SRD_WG, SRD_WU)[mat], sA, sBt, "wgu")

    def p3(self):
        e = self.e
        OB, WR, AC = 0, 64, 16
        GA, CB, XR = 32, 48, 64
        e("s_barrier")
        self.wgu_addr()
        self.wgu_dma([(0, n) for n in range(14)] + [(1, n) for n in range(11)])
        e(f"v_lshrrev_b32 v4, 5, {vL}")
        e(f"v_lshlrev_b32 v4, 4, v4")
        e(f"v_bfe_u32 v5, {vL}, 4, 1")
        e(f"v_lshl_add_u32 v4, v5, 2, v4")
        e(f"v_bfe_u32 v6, {vL}, 2, 2")
        e("v_add_u32 v4, v4, v6")
        e("v_lshlrev_b32 v4, 7, v4")
        e("v_lshrrev_b32 v6, 1, v6")
        e("v_lshl_add_u32 v5, v5, 1, v6")
        e(f"v_and_b32 v6, 3, {vL}")
        e("v_lshl_add_u32 v4, v6, 3, v4")
        e(f"v_add_u32 v4, {L_WO}, v4")
        for t in range(4):
            e(f"v_xor_b32 v6, {t}, v5")
            e(f"v_lshl_add_u32 v{8 + t}, v6, 5, v4")

        NWO = 12

        def rd_wo(hd, tiles=range(4)):
            for t in tiles:
                a = 8 + (t ^ (2 * (hd & 1)))
                d = WR + 16 * (hd % NWO) + 4 * t
                e(f"ds_read_b64_tr_b16 {ar(d, 2)}, v{a} offset:{hd * 3584}", ("wo", hd))
                e(f"ds_read_b64_tr_b16 {ar(d + 2, 2)}, v{a} offset:{hd * 3584 + 1024}", ("wo", hd))

        for hd in range(NWO - 1):
            rd_wo(hd)
        e(f"v_and_b32 v4, 15, {vL}")
        e(f"v_lshlrev_b32 v4, 2, v4")
        e(f"s_lshl_b32 {sA}, {sI}, 2")
        e(f"s_add_u32 {sE}, {sA}, {sRB}")
        e(f"s_lshl_b32 {sA}, {sE}, 1")
        e(f"s_lshr_b32 {sBt}, {sW}, 1")
        e(f"s_add_u32 {sA}, {sA}, {sBt}")
        e(f"s_mov_b32 s101, {sA}")
        e(f"s_lshl_b32 {sA}, {sA}, 6")
        e(f"s_add_u32 {sA}, {sA}, {WS_FLO}")
        self.poll("v4", sA, "v5")
        self.acquire()
        self.stamp("oflag")
        e(f"s_lshl_b32 {sA}, {sE}, 2")
        e(f"s_add_u32 {sA}, {sA}, {sW}")
        e(f"s_lshl_b32 {sA}, {sA}, 14")
        e(f"s_add_u32 {sA}, {sA}, {WS_O}")
        def ld_o(hd):
            if hd and hd % 4 == 0:
                e(f"s_add_u32 {sA}, {sA}, 4096")
            e(f"buffer_load_dwordx4 {ar(OB + 4 * hd)}, {vL16}, {srd(SRD_WS)}, {sA} offen offset:{(hd % 4) * 1024} sc1", ("o", hd))

        PRE = self.o.get("p3pre", 6)
        for hd in range(PRE):
            ld_o(hd)
        for hd in range(16):
            e.wait(vm=("o", hd), lg=("wo", hd))
            for t in range(4):
                c = "0" if hd == 0 else vr(AC + 4 * t)
                e(f"v_mfma_f32_16x16x32_bf16 {vr(AC + 4 * t)}, {ar(WR + 16 * (hd % NWO) + 4 * t)}, {ar(OB + 4 * hd)}, {c}")
                if t == 0 and hd + PRE < 16:
                    ld_o(hd + PRE)
                if hd + NWO - 1 < 16:
                    rd_wo(hd + NWO - 1, [t])
        self.stamp("oproj")
        e("s_barrier")
        self.wgu_dma([(1, n) for n in range(11, 14)])
        e(f"s_lshl_b32 {sA}, {sW}, 11")
        e(f"s_add_u32 {sA}, {sA}, {L_X1}")
        e(f"v_lshrrev_b32 v4, 2, {vL}")
        e(f"v_lshlrev_b32 v4, 7, v4")
        e(f"v_and_b32 v5, 3, {vL}")
        e(f"v_lshl_add_u32 v4, v5, 4, v4")
        e(f"v_add_u32 v8, {sA}, v4")
        e(f"v_and_b32 v4, 15, {vL}")
        e(f"v_lshlrev_b32 v4, 7, v4")
        e(f"v_lshrrev_b32 v5, 4, {vL}")
        e(f"v_lshl_add_u32 v4, v5, 3, v4")
        e(f"v_add_u32 v9, {sA}, v4")
        e("ds_write_b128 v8, v[240:243]")
        e("ds_write_b128 v8, v[244:247] offset:64")
        e(f"v_lshlrev_b32 v10, 4, v5")
        for t in range(4):
            e(f"ds_read_b128 {vr(GA + 4 * t)}, v10 offset:{L_GAB + 64 * t}")
        e(f"s_lshl_b32 {sA}, {sCG}, 7")
        e(f"v_add_u32 v10, {sA}, v10")
        for pp in range(2):
            e(f"ds_read_b128 {vr(XR + 16 + 4 * pp)}, v10 offset:{L_CVEC + 64 * pp}")
        for t in range(4):
            e(f"ds_read_b64 {vr(XR + 24 + 2 * t, 2)}, v9 offset:{32 * t}")
        e("s_waitcnt lgkmcnt(0)")
        for k in range(8):
            e(f"v_lshlrev_b32 v{XR + 2 * k}, 16, v{XR + 24 + k}")
            e(f"v_and_b32 v{XR + 2 * k + 1}, 0xffff0000, v{XR + 24 + k}")
            e(f"v_lshlrev_b32 v{CB + 2 * k}, 16, v{XR + 16 + k}")
            e(f"v_and_b32 v{CB + 2 * k + 1}, 0xffff0000, v{XR + 16 + k}")
        for k in range(16):
            e(f"v_fmac_f32 v{XR + k}, v{GA + k}, v{AC + k}")
        for k in range(8):
            e(f"v_cvt_pk_bf16_f32 v{XR + 16 + k}, v{XR + 2 * k}, v{XR + 2 * k + 1}")
        for k in range(8):
            e(f"v_lshlrev_b32 v{XR + 2 * k}, 16, v{XR + 16 + k}")
            e(f"v_and_b32 v{XR + 2 * k + 1}, 0xffff0000, v{XR + 16 + k}")
        for k in range(16):
            e(f"v_mul_f32 v{CB + k}, v{CB + k}, v{XR + k}")
        for k in range(8):
            e(f"v_cvt_pk_bf16_f32 v{AC + k}, v{CB + 2 * k}, v{CB + 2 * k + 1}")
        e(f"v_and_b32 v4, 15, {vL}")
        e(f"v_lshlrev_b32 v4, 4, v4")
        e(f"v_lshl_add_u32 v4, v5, 9, v4")
        e(f"s_mul_i32 {sA}, s101, 28672")
        e(f"s_lshl_b32 {sBt}, {sCG}, 12")
        e(f"s_add_u32 {sA}, {sA}, {sBt}")
        e(f"s_and_b32 {sBt}, {sW}, 1")
        e(f"s_lshl_b32 {sBt}, {sBt}, 8")
        e(f"s_add_u32 {sA}, {sA}, {sBt}")
        e(f"s_add_u32 {sA}, {sA}, {WS_Z}")
        for pp in range(2):
            e(f"buffer_store_dwordx4 {vr(AC + 4 * pp)}, v4, {srd(SRD_WS)}, {sA} offen offset:{pp * 2048}")
        e(f"v_add_f32 v6, v{XR}, v{XR + 1}")
        e(f"v_add_f32 v7, v{XR + 2}, v{XR + 3}")
        for k in range(4, 16, 2):
            e(f"v_add_f32 v6, v6, v{XR + k}")
            e(f"v_add_f32 v7, v7, v{XR + k + 1}")
        e("v_add_f32 v6, v6, v7")
        self.reduce_hi2("v6", "v7")
        e(f"v_mul_f32 v11, {fbits(1.0 / 64)}, v6")
        e("v_mov_b32 v7, 0")
        e("v_mov_b32 v10, 0")
        for k in range(0, 16, 2):
            e(f"v_sub_f32 v{GA}, v{XR + k}, v11")
            e(f"v_sub_f32 v{GA + 1}, v{XR + k + 1}, v11")
            e(f"v_fmac_f32 v7, v{GA}, v{GA}")
            e(f"v_fmac_f32 v10, v{GA + 1}, v{GA + 1}")
        e("v_add_f32 v7, v7, v10")
        self.reduce_hi2("v7", "v10")
        e(f"s_mul_i32 {sA}, {sE}, 7")
        e(f"s_add_u32 {sA}, {sA}, {sCG}")
        e(f"s_lshl_b32 {sA}, {sA}, 9")
        e(f"s_lshl_b32 {sBt}, {sW}, 7")
        e(f"s_add_u32 {sA}, {sA}, {sBt}")
        e(f"s_add_u32 {sA}, {sA}, {WS_STAT}")
        e(f"v_lshlrev_b32 v4, 3, {vL}")
        e("s_mov_b64 exec, 0xffff")
        e(f"buffer_store_dwordx2 v[6:7], v4, {srd(SRD_WS)}, {sA} offen")
        e("s_mov_b64 exec, -1")
        for t in range(4):
            e(f"ds_write_b64 v9, {vr(XR + 16 + 2 * t, 2)} offset:{32 * t}")
        e(f"s_lshl_b32 {sA}, {sE}, 5")
        e(f"s_lshl_b32 {sBt}, {sCG}, 2")
        e(f"s_add_u32 {sA}, {sA}, {sBt}")
        e(f"s_add_u32 {sA}, {sA}, {sW}")
        e(f"s_lshl_b32 {sA}, {sA}, 2")
        e(f"s_add_u32 {sA}, {sA}, {WS_FLZ}")
        self.publish(sA, "v7")
        e("s_waitcnt lgkmcnt(0)")
        e("ds_read_b128 v[16:19], v8")
        e("ds_read_b128 v[20:23], v8 offset:64")
        e("s_waitcnt lgkmcnt(0)")
        self.stamp("zpub")

    def p4(self):
        e = self.e
        AC, BR, AR, WD = 128, 64, 224, 0
        XB, R2 = 112, 120
        e("s_barrier")
        e(f"v_lshrrev_b32 v4, 5, {vL}")
        e(f"v_lshlrev_b32 v4, 2, v4")
        e(f"v_bfe_u32 v5, {vL}, 2, 2")
        e("v_add_u32 v4, v4, v5")
        e("v_lshlrev_b32 v4, 7, v4")
        e(f"v_bfe_u32 v6, {vL}, 4, 1")
        e("v_lshl_add_u32 v4, v6, 5, v4")
        e(f"v_and_b32 v6, 3, {vL}")
        e("v_lshl_add_u32 v4, v6, 3, v4")
        e("v_lshrrev_b32 v5, 1, v5")
        e("v_lshl_add_u32 v8, v5, 6, v4")
        e("v_xor_b32 v9, 64, v8")
        e(f"v_add_u32 v10, {L_WU}, v8")
        e(f"v_add_u32 v11, {L_WU}, v9")
        e(f"s_lshl_b32 {sA}, {sW}, 13")
        e(f"s_add_u32 s99, {sA}, {L_STG}")
        e(f"v_add_u32 v24, s99, v8")
        e(f"v_add_u32 v25, s99, v9")
        e(f"v_add_u32 v8, {L_WG}, v8")
        e(f"v_add_u32 v9, {L_WG}, v9")

        def aoff(ks):
            return (32 * (ks >> 1) + 8 * (ks & 1)) * 128

        e(f"s_and_b32 {sA}, {sW}, 1")
        e(f"s_lshl_b32 {sA}, {sA}, 6")
        e(f"v_xor_b32 v26, {sA}, v8")
        e(f"s_lshr_b32 {sA}, {sW}, 1")
        e(f"s_mul_i32 {sA}, {sA}, {L_WU - L_WG}")
        e(f"v_add_u32 v26, {sA}, v26")
        e(f"v_and_b32 v4, 1, {vL}")
        e(f"v_mul_u32_u24 v4, 896, v4")
        e(f"v_lshrrev_b32 v5, 5, {vL}")
        e(f"v_lshl_add_u32 v27, v5, 4, v4")
        e(f"v_add_u32 v27, {L_CVEC}, v27")

        def rd_b(ks):
            d = AR + 8 * (ks % 4)
            e(f"ds_read_b128 {ar(d)}, v27 offset:{ks * 32}", ("b", ks))
            e(f"ds_read_b64_tr_b16 {ar(d + 4, 2)}, v26 offset:{aoff(ks)}", ("b", ks))
            e(f"ds_read_b64_tr_b16 {ar(d + 6, 2)}, v26 offset:{aoff(ks) + 2048}", ("b", ks))

        for ks in range(3):
            rd_b(ks)
        for ks in range(28):
            if ks + 3 < 28:
                rd_b(ks + 3)
            e.wait(lg=("b", ks))
            d = AR + 8 * (ks % 4)
            c = "0" if ks == 0 else vr(32, 16)
            e(f"v_mfma_f32_32x32x16_bf16 {vr(32, 16)}, {ar(d)}, {ar(d + 4)}, {c}")
        e("v_cvt_pk_bf16_f32 v4, v32, v33")
        e("v_lshlrev_b32 v5, 16, v4")
        e("v_and_b32 v6, 0xffff0000, v4")
        e("v_sub_f32 v5, v32, v5")
        e("v_sub_f32 v6, v33, v6")
        e("v_cvt_pk_bf16_f32 v5, v5, v6")
        e(f"s_mov_b32 {sA}, 0x05040100")
        e(f"s_mov_b32 {sBt}, 0x03020706")
        e(f"v_perm_b32 v48, v5, v4, {sA}")
        e("v_mov_b32 v49, v4")
        e(f"v_perm_b32 v50, v5, v4, {sBt}")
        e("v_mov_b32 v51, 0")
        for k in range(3):
            e(f"v_cndmask_b32 v{48 + k}, v{48 + k}, 0, {sHI}")
        e(f"s_lshl_b32 {sA}, {sW}, 10")
        e(f"s_add_u32 {sA}, {sA}, {L_XA}")
        e(f"v_add_u32 v4, {sA}, {vL16}")
        e("ds_write_b128 v4, v[48:51]")
        e("s_waitcnt lgkmcnt(0)")
        e("s_barrier")
        self.stamp("bias")

        def rd_a(ks):
            d = AR + 16 * (ks % 2)
            if ks == 28:
                e(f"v_add_u32 v4, {L_XA}, {vL16}")
                for t in range(4):
                    e(f"ds_read_b128 {ar(d + 4 * t)}, v4 offset:{t * 1024}", ("a", ks, t))
                return
            for t in range(4):
                e(f"ds_read_b64_tr_b16 {ar(d + 4 * t, 2)}, v{8 + t} offset:{aoff(ks)}", ("a", ks, t))
                e(f"ds_read_b64_tr_b16 {ar(d + 4 * t + 2, 2)}, v{8 + t} offset:{aoff(ks) + 2048}", ("a", ks, t))

        rd_a(0)
        e(f"v_min_u32 v4, 27, {vL}")
        e(f"v_lshlrev_b32 v4, 2, v4")
        e(f"s_lshl_b32 {sE}, {sI}, 2")
        e(f"s_add_u32 {sE}, {sE}, {sW}")
        e(f"s_lshl_b32 {sA}, {sE}, 7")
        e(f"s_add_u32 {sA}, {sA}, {WS_FLZ}")
        self.poll("v4", sA, "v5")
        self.acquire()
        self.stamp("zflag")
        NB = 6
        e(f"s_mul_i32 s88, {sE}, 57344")
        e(f"s_add_u32 s88, s88, {WS_Z}")
        e(f"s_add_u32 s89, s88, 28672")

        def ld_b(ks, tts=(0, 1)):
            for tt in tts:
                if ks and ks % 4 == 0:
                    e(f"s_add_u32 s{88 + tt}, s{88 + tt}, 4096")
                e(f"buffer_load_dwordx4 {vr(BR + 8 * (ks % NB) + 4 * tt)}, {vL16}, {srd(SRD_WS)}, s{88 + tt} offen offset:{(ks % 4) * 1024} sc1", ("z", ks))

        for ks in range(NB - 1):
            ld_b(ks)
        e(f"s_mul_i32 {sA}, {sE}, 3584")
        e(f"s_add_u32 {sA}, {sA}, {WS_STAT}")
        e(f"v_lshlrev_b32 v4, 3, {vL}")
        for cg in range(7):
            e(f"buffer_load_dwordx2 {vr(32 + 2 * cg, 2)}, v4, {srd(SRD_WS)}, {sA} offen offset:{cg * 512} sc1", "stat")
        e(f"s_mul_i32 s90, {sW}, {448 * 896}")
        e(f"s_lshl_b32 {sA}, {sCG}, 7")
        e(f"s_add_u32 s90, s90, {sA}")

        def wd_dma(j):
            for hlf in range(2):
                e(f"s_add_u32 {sA}, s90, {(16 * j + 8 * hlf) * 896}")
                e(f"s_add_u32 {sBt}, s99, {(j % 4) * 2048 + hlf * 1024}")
                self.dma("v13", SRD_WD, sA, sBt, ("wd", j))

        def wd_rd(j):
            for ct in range(2):
                d = WD + 8 * j + 4 * ct
                e(f"ds_read_b64_tr_b16 {ar(d, 2)}, v{24 + ct} offset:{(j % 4) * 2048}", ("wdr", j))
                e(f"ds_read_b64_tr_b16 {ar(d + 2, 2)}, v{24 + ct} offset:{(j % 4) * 2048 + 1024}", ("wdr", j))

        def wd_dma1(j, hlf):
            if hlf == 0:
                if j >= 4:
                    e.wait(lg=("wdr", j - 4))
                e(f"s_add_u32 m0, s99, {(j % 4) * 2048}")
                e(f"s_add_u32 s91, s90, {16 * j * 896}")
                e(f"buffer_load_dwordx4 v13, {srd(SRD_WD)}, s91 offen lds", ("wd", j))
            else:
                e(f"buffer_load_dwordx4 v14, {srd(SRD_WD)}, s91 offen offset:1024 lds", ("wd", j))

        def wd_rd1(j, n):
            if n == 0:
                e.wait(vm=("wd", j))
            ct, hf = n >> 1, n & 1
            e(f"ds_read_b64_tr_b16 {ar(WD + 8 * j + 4 * ct + 2 * hf, 2)}, v{24 + ct} offset:{(j % 4) * 2048 + 1024 * hf}", ("wdr", j))

        def rd_a1(ks, t, hf):
            d = AR + 16 * (ks % 2)
            if ks == 28:
                if hf == 0:
                    e(f"ds_read_b128 {ar(d + 4 * t)}, v28 offset:{t * 1024}", ("a", ks, t))
                return
            e(f"ds_read_b64_tr_b16 {ar(d + 4 * t + 2 * hf, 2)}, v{8 + t} offset:{aoff(ks) + 2048 * hf}", ("a", ks, t))

        e(f"v_add_u32 v28, {L_XA}, {vL16}")
        e(f"v_add_u32 v14, {8 * 896 - 1024}, v13")

        def stats():
            e = self.e
            e("v_add_f32 v4, v32, v34")
            e("v_add_f32 v5, v36, v38")
            e("v_add_f32 v6, v40, v42")
            e("v_add_f32 v4, v4, v5")
            e("v_add_f32 v6, v6, v44")
            e("v_add_f32 v4, v4, v6")
            e(f"v_mul_f32 v4, {fbits(1.0 / 448)}, v4")
            e("v_add_f32 v5, v33, v35")
            e("v_add_f32 v6, v37, v39")
            e("v_add_f32 v7, v41, v43")
            e("v_add_f32 v5, v5, v6")
            e("v_add_f32 v7, v7, v45")
            e("v_add_f32 v5, v5, v7")
            e(f"v_mov_b32 v7, {fbits(1.0 / 64)}")
            e("v_mov_b32 v6, 0")
            for cg in range(7):
                e(f"v_fma_f32 v46, v{32 + 2 * cg}, v7, -v4")
                e("v_fmac_f32 v6, v46, v46")
            e(f"v_mul_f32 v6, {fbits(64.0)}, v6")
            e("v_add_f32 v5, v5, v6")
            e(f"v_mul_f32 v5, {fbits(1.0 / 448)}, v5")
            e(f"v_add_f32 v5, {fbits(1e-5)}, v5")
            e(f"v_rcp_f32 v{R2}, v5")
            e("v_sqrt_f32 v5, v5")
            e("v_sub_f32 v4, 0, v4")
            e("v_cvt_pk_bf16_f32 v6, v4, v5")
            e("v_lshlrev_b32 v7, 16, v6")
            e("v_and_b32 v46, 0xffff0000, v6")
            e("v_sub_f32 v4, v4, v7")
            e("v_sub_f32 v5, v5, v46")
            e("v_cvt_pk_bf16_f32 v7, v4, v5")
            e(f"s_mov_b32 {sA}, 0x01000100")
            e(f"s_mov_b32 {sBt}, 0x03020504")
            e(f"s_mov_b32 {sC}, 0x07060302")
            e(f"v_perm_b32 v{XB}, v7, v6, {sA}")
            e(f"v_perm_b32 v{XB + 1}, v7, v6, {sBt}")
            e(f"v_perm_b32 v{XB + 2}, v7, v6, {sC}")
            e(f"v_mov_b32 v{XB + 3}, 0")
            e(f"v_mov_b32 v{XB + 7}, 0")
            for k in range(3):
                e(f"v_mov_b32 v{XB + 4 + k}, v{XB + k}")
            e(f"v_mov_b32 v{R2 + 1}, v{R2}")
            for k in range(3):
                e(f"v_permlane32_swap_b32 v{XB + k}, v{XB + 4 + k}")
            e(f"v_permlane32_swap_b32 v{R2}, v{R2 + 1}")

        main, fill = [], {}
        for ks in range(29):
            d = AR + 16 * (ks % 2)
            for t in range(4):
                for tt in range(2):
                    def m(ks=ks, t=t, tt=tt, d=d):
                        e.wait(vm=("z", ks) if (t == 0 and tt == 0 and ks < 28) else None, lg=("a", ks, t) if tt == 0 else None)
                        acc = AC + 64 * tt + 16 * t
                        b = vr(BR + 8 * (ks % NB) + 4 * tt) if ks < 28 else vr(XB + 4 * tt)
                        c = "0" if ks == 0 else vr(acc, 16)
                        e(f"v_mfma_f32_32x32x16_bf16 {vr(acc, 16)}, {ar(d + 4 * t)}, {b}, {c}")
                    main.append(m)
            g = 8 * ks
            if ks + 1 <= 28:
                for t in range(4):
                    for hf in range(2):
                        fill.setdefault(g + 2 * t + hf, []).append(lambda ks=ks, t=t, hf=hf: rd_a1(ks + 1, t, hf))
            if ks + NB - 1 < 28:
                for tt in range(2):
                    fill.setdefault(g + 4 * tt, []).append(lambda ks=ks, tt=tt: ld_b(ks + NB - 1, [tt]))
            if ks < 28:
                for hlf in range(2):
                    fill.setdefault(g + 2 + 4 * hlf, []).append(lambda ks=ks, hlf=hlf: wd_dma1(ks, hlf))
            if ks >= 3:
                for n in range(4):
                    fill.setdefault(g + 1 + 2 * n, []).append(lambda ks=ks, n=n: wd_rd1(ks - 3, n))
        st = []
        real = self.e
        rec = Emit()
        self.e = e = rec
        stats()
        self.e = e = real
        lines = [l.strip() for l in rec.lines]
        fill.setdefault(8 * 8, []).append(lambda: e.wait(vm="stat"))
        self.spread(fill, [lambda l=l: e(l) for l in lines], 8 * 8 + 1, 8 * 24)
        self.merge(main, fill)
        for j in (26, 27):
            e.wait(vm=("wd", j))
            wd_rd(j)
        self.stamp("gemm4")
        e(f"s_mul_i32 {sA}, {sE}, {2 * 114688}")
        e(f"s_lshl_b32 {sBt}, {sR}, 12")
        e(f"s_add_u32 {sA}, {sA}, {sBt}")
        e(f"s_add_u32 {sA}, {sA}, {WS_HID}")
        for tt in range(2):
            for ct in range(2):
                g, u = AC + 64 * tt + 16 * ct, AC + 64 * tt + 32 + 16 * ct
                for r in range(16):
                    e(f"v_max_f32 v{g + r}, 0, v{g + r}")
                    e(f"v_mul_f32 v{u + r}, v{R2 + tt}, v{u + r}")
                d = BR + 16 * tt + 8 * ct
                for k in range(8):
                    e(f"v_mul_f32 v{g + 2 * k}, v{g + 2 * k}, v{u + 2 * k}")
                    e(f"v_mul_f32 v{g + 2 * k + 1}, v{g + 2 * k + 1}, v{u + 2 * k + 1}")
                    e(f"v_cvt_pk_bf16_f32 v{d + k}, v{g + 2 * k}, v{g + 2 * k + 1}")
                for s in range(2):
                    e(f"buffer_store_dwordx4 {vr(d + 4 * s)}, {vL16}, {srd(SRD_WS)}, {sA} offen offset:{(2 * ct + s) * 1024}")
            if tt == 0:
                e(f"s_add_u32 {sA}, {sA}, 114688")
        e(f"s_lshl_b32 {sA}, {sE}, 5")
        e(f"s_add_u32 {sA}, {sA}, {sR}")
        e(f"s_lshl_b32 {sA}, {sA}, 2")
        e(f"s_add_u32 {sA}, {sA}, {WS_FLD}")
        self.stamp("epi4")
        self.publish(sA, "v7")
        self.stamp("hidpub")

    def p5(self):
        e = self.e
        AC, WD = 128, 0
        bufs = [vr(64 + 4 * k) for k in range(16)] + [vr(192 + 4 * k) for k in range(16)] + [ar(224 + 4 * k) for k in range(8)]
        NB = len(bufs) // 2
        e(f"s_lshl_b32 {sE}, {sI}, 2")
        e(f"s_add_u32 {sE}, {sE}, {sRB}")
        e(f"v_min_u32 v4, 6, {vL}")
        e(f"v_lshlrev_b32 v4, 2, v4")
        e(f"s_lshl_b32 {sA}, {sE}, 7")
        e(f"s_mul_i32 {sBt}, {sW}, 28")
        e(f"s_add_u32 {sA}, {sA}, {sBt}")
        e(f"s_add_u32 {sA}, {sA}, {WS_FLD}")
        e("s_waitcnt lgkmcnt(0)")
        self.poll("v4", sA, "v5")
        self.acquire()
        self.stamp("hidflag")
        e(f"s_mul_i32 s88, {sE}, {2 * 114688}")
        e(f"s_mul_i32 {sBt}, {sW}, 28672")
        e(f"s_add_u32 s88, s88, {sBt}")
        e(f"s_add_u32 s88, s88, {WS_HID}")
        e(f"s_add_u32 s89, s88, 114688")

        def ld_b(j, tts=(0, 1)):
            for tt in tts:
                if j and j % 4 == 0:
                    e(f"s_add_u32 s{88 + tt}, s{88 + tt}, 4096")
                e(f"buffer_load_dwordx4 {bufs[2 * (j % NB) + tt]}, {vL16}, {srd(SRD_WS)}, s{88 + tt} offen offset:{(j % 4) * 1024} sc1", ("d", j))

        PRE = self.o.get("p5pre", 5)
        for j in range(PRE):
            ld_b(j)
        e(f"v_and_b32 v4, 31, {vL}")
        e(f"v_and_b32 v5, 7, {vL}")
        e(f"v_and_b32 v6, 4, {vL}")
        e("v_lshl_add_u32 v5, v6, 1, v5")
        e(f"v_lshrrev_b32 v6, 5, {vL}")
        e("v_xor_b32 v5, v5, v6")
        e("v_lshlrev_b32 v4, 8, v4")
        e(f"s_lshl_b32 {sA}, {sW}, 14")
        e(f"v_add_u32 v4, {sA}, v4")
        for p in range(8):
            e(f"v_xor_b32 v6, {2 * p}, v5")
            e(f"v_lshl_add_u32 v{32 + p}, v6, 4, v4")
        e(f"v_lshrrev_b32 v4, 2, {vL}")
        e("v_and_b32 v5, 7, v4")
        e("v_and_b32 v6, 4, v4")
        e("v_lshl_add_u32 v5, v6, 1, v5")
        e(f"v_and_b32 v6, 3, {vL}")
        e("v_lshlrev_b32 v7, 1, v6")
        e("v_xor_b32 v5, v5, v7")
        e("v_lshlrev_b32 v4, 8, v4")
        e(f"s_lshl_b32 {sA}, {sW}, 12")
        e(f"v_add_u32 v4, {sA}, v4")
        for n, p in enumerate((0, 1, 8, 9)):
            e(f"v_xor_b32 v7, {p}, v5")
            e(f"v_lshl_add_u32 v{40 + n}, v7, 4, v4")
        e("v_lshlrev_b32 v6, 5, v6")
        for n in range(4):
            e(f"ds_read_b128 {vr(48 + 4 * n)}, v6 offset:{L_GAB + 256 + (n >> 1) * 128 + (n & 1) * 16}")
        nxt = PRE
        for j in range(28):
            e.wait(vm=("d", j))
            for tt in range(2):
                for ct in range(2):
                    acc = AC + 32 * tt + 16 * ct
                    c = "0" if j == 0 else vr(acc, 16)
                    e(f"v_mfma_f32_32x32x16_bf16 {vr(acc, 16)}, {ar(WD + 8 * j + 4 * ct)}, {bufs[2 * (j % NB) + tt]}, {c}")
                    if ct == 0 and nxt < 28:
                        ld_b(nxt, [tt])
            nxt += 1
        self.stamp("gemm5")
        e("s_waitcnt lgkmcnt(0)")
        e("s_barrier")
        for tt in range(2):
            for ct in range(2):
                for q in range(4):
                    e(f"ds_write_b128 v{32 + 4 * ct + q}, {vr(AC + 32 * tt + 16 * ct + 4 * q)} offset:{L_RED + tt * 8192}")
        for k in range(8):
            e(f"v_lshlrev_b32 v{64 + 2 * k}, 16, v{16 + k}")
            e(f"v_and_b32 v{65 + 2 * k}, 0xffff0000, v{16 + k}")
        e("s_waitcnt lgkmcnt(0)")
        e("s_barrier")
        for n in range(4):
            for s in range(4):
                e(f"ds_read_b128 {vr(128 + 16 * n + 4 * s)}, v{40 + n} offset:{L_RED + s * 16384}", ("r", n))
        for n in range(4):
            e.wait(lg=("r", n))
            b = 128 + 16 * n
            for k in range(4):
                e(f"v_add_f32 v{b + k}, v{b + k}, v{b + 4 + k}")
                e(f"v_add_f32 v{b + 8 + k}, v{b + 8 + k}, v{b + 12 + k}")
            for k in range(4):
                e(f"v_add_f32 v{b + k}, v{b + k}, v{b + 8 + k}")
            for k in range(4):
                e(f"v_fmac_f32 v{64 + 4 * n + k}, v{48 + 4 * n + k}, v{b + k}")
            if n == 0 and self.o.get("dbg_one"):
                e(f"s_lshl_b32 {sA}, s2, 2")
                e(f"s_add_u32 {sA}, {sA}, {sW}")
                e(f"v_add_u32 v4, {sA}, {vL}")
                e("v_cmp_eq_u32 vcc, 0, v4")
                e(f"v_mov_b32 v5, {fbits(self.o['dbg_one'] / 1000.0)}")
                e("v_cndmask_b32 v5, 0, v5, vcc")
                e("v_add_f32 v65, v65, v5")
            if self.o.get("dbg_scale"):
                for k in range(4):
                    e(f"v_mul_f32 v{64 + 4 * n + k}, {fbits(1 + self.o['dbg_scale'] / 1000.0)}, v{64 + 4 * n + k}")
            e(f"v_cvt_pk_bf16_f32 v{80 + 2 * n}, v{64 + 4 * n}, v{65 + 4 * n}")
            e(f"v_cvt_pk_bf16_f32 v{81 + 2 * n}, v{66 + 4 * n}, v{67 + 4 * n}")
            if n & 1:
                e(f"buffer_store_dwordx4 {vr(80 + 4 * (n >> 1))}, v15, {srd(SRD_OUT)}, s100 offen offset:{64 * (n >> 1)}")
        self.stamp("end")

    def finish(self):
        e = self.e
        e("L_fin:")
        if self.ts:
            e("s_lshl_b32 s88, s2, 2")
            e(f"s_add_u32 s88, s88, {sW}")
            e("s_lshl_b32 s88, s88, 8")
            e(f"s_add_u32 s88, s88, {WS_TS}")
            e(f"v_lshlrev_b32 v4, 2, {vL}")
            e(f"buffer_store_dword {vTS}, v4, {srd(SRD_WS)}, s88 offen")
            if self.o.get("dbgts"):
                e(f"v_not_b32 v5, {vTS}")
                e(f"v_cmp_eq_u32 vcc, 0, {vL}")
                e(f"v_cndmask_b32 v5, {vTS}, v5, vcc")
                e("v_add_u32 v4, 4, v4")
                e("s_mov_b64 exec, 0x7fff")
                e(f"buffer_atomic_umax v5, v4, {srd(SRD_DBG)}, 0 offen sc1")
        e("L_end:")
        e("s_endpgm")

    def build(self):
        phases = [self.entry, self.front, self.f1, self.p1, self.late_consts, self.p2, self.p3, self.p4, self.p5]
        for ph in phases:
            self.e(f"; ---- {ph.__name__}")
            ph()
            if self.stop_after == ph.__name__:
                break
        self.finish()
        body, nops = self.e.text()
        head = open(f"cdna_kernels/{NAME}.s.ref").read().split("; Override launch")[0]
        txt = head
        txt += f"; @launch grid=(256,1,1) block=(256,1,1) lds={LDS_BYTES}\n"
        txt += '.amdgcn_target "amdgcn-amd-amdhsa--gfx950"\n.text\n'
        txt += f".globl {NAME}_kernel\n.p2align 8\n.type {NAME}_kernel,@function\n{NAME}_kernel:\n"
        txt += body
        txt += '.section .rodata,"a"\n.p2align 6\n'
        txt += f".amdhsa_kernel {NAME}_kernel\n"
        txt += ("  .amdhsa_next_free_vgpr 512\n  .amdhsa_next_free_sgpr 102\n  .amdhsa_accum_offset 256\n"
                "  .amdhsa_group_segment_fixed_size 0\n  .amdhsa_kernarg_size 96\n  .amdhsa_user_sgpr_count 2\n"
                "  .amdhsa_user_sgpr_kernarg_segment_ptr 1\n  .amdhsa_system_sgpr_workgroup_id_x 1\n"
                "  .amdhsa_float_denorm_mode_32 3\n"
                ".end_amdhsa_kernel\n")
        return txt, nops


def parse_opts(args):
    o = {}
    for a in args:
        k, v = a.split("=")
        o[k] = int(v)
    return o


if __name__ == "__main__":
    out = sys.argv[1]
    o = parse_opts(sys.argv[2:])
    g = Gen(ts=bool(o.pop("ts", 0)), opts=o)
    txt, nops = g.build()
    open(out, "w").write(txt)
    if g.ts:
        open(out + ".ts", "w").write("\n".join(g.ts_names))
    print("written", out, "lines", txt.count("\n"), "nop pads", nops)
```

```python
import math
import struct
import sys

sys.path.insert(0, "work")
from emit import Emit

NAME = "adaLN_cond__sliding_block__glu_gated_reglu__prompt"

WS_EPOCH = 0x0
WS_XCC = 0x400
WS_FLH = 0x1000
WS_FLO = 0x2000
WS_FLZ = 0x3000
WS_FLD = 0x4000
WS_FLKV = 0x8000
WS_MODP = 0x10000
WS_STAT = 0x20000
WS_TS = 0x40000
WS_H = 0x100000
WS_O = 0x300000
WS_KV = 0x500000
WS_HID = 0x900000
WS_Z = 0x1000000
WS_SIZE = 0x1200000

L_CVEC = 0
L_GAB = 1792
L_STATX = 2304
L_MODR = 2560
L_WQ, L_WK, L_WV = 3584, 32256, 60928
L_KV = 56832
L_SCR = 89600
L_WO = 105984
L_PAD = 163328
L_WG, L_WU = 3584, 60928
L_STG = 118272
L_XA = 151040
L_X1 = 155136
L_RED = 3584
LDS_BYTES = 163840

SRD_X, SRD_WQKV, SRD_WO, SRD_WG, SRD_WU, SRD_WD = 4, 8, 12, 16, 20, 24
SRD_C, SRD_WM, SRD_OUT, SRD_DBG, SRD_WS = 28, 32, 36, 40, 44
sI, sR, sW, sH, sB, sT, sTAG, sFAST = "s48", "s49", "s50", "s51", "s52", "s53", "s54", "s55"
sA, sBt, sC, sD, sE = "s56", "s57", "s58", "s59", "s60"
sRB, sCG, sSPIN = "s61", "s62", "s63"
SMASK = 64
sHI, sHIp = "s[96:97]", 96
sTSp = 0
sADJ = "s3"

vL, vL16, vTS, vE = "v0", "v1", "v2", "v3"

SPIN_MAX = 1 << 17


def srd(n):
    return f"s[{n}:{n + 3}]"


def vr(n, k=4):
    return f"v[{n}:{n + k - 1}]" if k > 1 else f"v{n}"


def ar(n, k=4):
    return f"a[{n}:{n + k - 1}]" if k > 1 else f"a{n}"


def fbits(x):
    return "0x%08x" % struct.unpack("<I", struct.pack("<f", x))[0]


class Gen:
    def __init__(self, ts=False, stop_after=None, opts=None):
        self.e = Emit()
        self.ts = ts
        self.stop_after = stop_after
        self.o = dict(opts or {})
        self.nts = 0
        self.ts_names = []

    def stamp(self, name):
        if not self.ts:
            return
        if self.o.get("dbgts") and name not in ("start", "tag", "modpub", "ln1", "xcc", "hpub", "kvgemm", "kvgot", "attn", "oflag", "zpub", "zflag", "gemm4", "hidflag", "end"):
            return
        e = self.e
        e(f"s_memrealtime s[{sTSp}:{sTSp + 1}]")
        e("s_waitcnt lgkmcnt(0)")
        e(f"v_writelane_b32 {vTS}, s{sTSp}, {self.nts}")
        if self.o.get("clk"):
            e(f"s_memtime s[{sTSp}:{sTSp + 1}]")
            e("s_waitcnt lgkmcnt(0)")
            e(f"v_writelane_b32 {vTS}, s{sTSp}, {self.nts + 32}")
        self.ts_names.append(name)
        self.nts += 1

    def poll(self, voff, soff, vtmp, imm=0):
        e = self.e
        lp, dn = e.label("poll"), e.label("polled")
        e(f"s_mov_b32 {sSPIN}, 0")
        e(f"{lp}:")
        e(f"buffer_load_dword {vtmp}, {voff}, {srd(SRD_WS)}, {soff} offen offset:{imm} sc1")
        e(f"s_add_u32 {sSPIN}, {sSPIN}, 1")
        e(f"s_cmp_ge_u32 {sSPIN}, {SPIN_MAX}")
        e("s_waitcnt vmcnt(0)")
        e(f"s_cbranch_scc1 {dn}")
        e(f"v_cmp_ne_u32 vcc, {sTAG}, {vtmp}")
        e(f"s_cbranch_vccnz {lp}")
        e(f"{dn}:")

    def acquire(self):
        e = self.e
        sk = e.label("acq")
        e(f"s_cmp_lg_u32 {sFAST}, 0")
        e(f"s_cbranch_scc1 {sk}")
        e("buffer_inv sc1")
        e("s_waitcnt vmcnt(0)")
        e(f"{sk}:")

    def publish(self, soff, vtmp, local=True):
        e = self.e
        e("s_waitcnt vmcnt(0)")
        e(f"v_mov_b32 {vtmp}, {sTAG}")
        if local:
            slow, dn = e.label("slowpub"), e.label("pub")
            e(f"s_cmp_lg_u32 {sFAST}, 0")
            e(f"s_cbranch_scc0 {slow}")
            e("s_mov_b64 exec, 1")
            e(f"buffer_store_dword {vtmp}, off, {srd(SRD_WS)}, {soff}")
            e(f"s_branch {dn}")
            e(f"{slow}:")
            e("buffer_wbl2 sc1")
            e("s_waitcnt vmcnt(0)")
            e("s_mov_b64 exec, 1")
            e(f"buffer_store_dword {vtmp}, off, {srd(SRD_WS)}, {soff} sc1")
            e(f"{dn}:")
        else:
            e("s_mov_b64 exec, 1")
            e(f"buffer_store_dword {vtmp}, off, {srd(SRD_WS)}, {soff} sc1")
        e("s_mov_b64 exec, -1")
        e.vm = ["flag"]

    def round_bf16(self, regs, tmp):
        e = self.e
        for a, b in zip(regs[::2], regs[1::2]):
            e(f"v_cvt_pk_bf16_f32 {tmp}, {a}, {b}")
            e(f"v_lshlrev_b32 {a}, 16, {tmp}")
            e(f"v_and_b32 {b}, 0xffff0000, {tmp}")

    def gather_mod(self, voff, g0, t0):
        e = self.e
        lp, dn = e.label("gath"), e.label("gathd")
        e(f"s_mov_b32 {sSPIN}, 0")
        e(f"s_mov_b32 {sD}, 0x0c0c0400")
        e(f"s_mov_b32 {sE}, 0x04000c0c")
        e(f"{lp}:")
        for q in range(4):
            e(f"s_mov_b32 {sA}, {WS_MODP + q * 10752}")
            e(f"buffer_load_dwordx4 {vr(g0 + 4 * q)}, {voff}, {srd(SRD_WS)}, {sA} offen sc1")
        e(f"s_add_u32 {sSPIN}, {sSPIN}, 1")
        e(f"s_cmp_ge_u32 {sSPIN}, {SPIN_MAX}")
        e("s_waitcnt vmcnt(0)")
        e(f"s_cbranch_scc1 {dn}")
        for q in range(4):
            b = g0 + 4 * q
            e(f"v_perm_b32 v{t0}, v{b + 1}, v{b}, {sD}")
            e(f"v_perm_b32 v{t0 + 1}, v{b + 3}, v{b + 2}, {sE}")
            e(f"v_or_b32 v{t0}, v{t0}, v{t0 + 1}")
            e(f"v_xor_b32 v{t0 + 2 + q}, {sTAG}, v{t0}")
        e(f"v_or3_b32 v{t0}, v{t0 + 2}, v{t0 + 3}, v{t0 + 4}")
        e(f"v_or_b32 v{t0}, v{t0}, v{t0 + 5}")
        e(f"v_cmp_ne_u32 vcc, 0, v{t0}")
        e(f"s_cbranch_vccnz {lp}")
        e(f"{dn}:")
        for k in range(16):
            e(f"v_and_b32 v{g0 + k}, 0xffffff00, v{g0 + k}")
        for k in range(4):
            e(f"v_add_f32 v{g0 + k}, v{g0 + k}, v{g0 + 4 + k}")
            e(f"v_add_f32 v{g0 + 8 + k}, v{g0 + 8 + k}, v{g0 + 12 + k}")
        for k in range(4):
            e(f"v_add_f32 v{g0 + k}, v{g0 + k}, v{g0 + 8 + k}")
        self.round_bf16([f"v{g0 + k}" for k in range(4)], f"v{t0}")

    def dma(self, voff, srdn, soff, lds, tag, mods=""):
        e = self.e
        e(f"s_mov_b32 m0, {lds}")
        e(f"buffer_load_dwordx4 {voff}, {srd(srdn)}, {soff} offen {mods} lds", tag)

    def sm(self, what):
        return {0: "", 1: " sc1", 2: " nt", 3: " sc0 sc1"}[self.o.get("sm_" + what, 0)]

    def merge(self, main, fill):
        for i, m in enumerate(main):
            m()
            for f in fill.get(i, []):
                f()

    @staticmethod
    def spread(fill, items, lo, hi):
        n = len(items)
        for k, it in enumerate(items):
            fill.setdefault(lo + (k * (hi - lo)) // max(n, 1), []).append(it)

    def entry(self):
        e = self.e
        e("s_cmp_ge_u32 s2, 256")
        e("s_cbranch_scc1 L_end")
        e("s_load_dwordx16 s[64:79], s[0:1], 0")
        e("s_load_dwordx8 s[80:87], s[0:1], 64")
        if self.ts:
            e(f"v_mov_b32 {vTS}, 0")
        self.stamp("start")
        e(f"v_lshrrev_b32 v4, 6, v0")
        e(f"v_and_b32 {vL}, 63, v0")
        e(f"v_readfirstlane_b32 {sW}, v4")
        e(f"v_lshlrev_b32 {vL16}, 4, {vL}")
        e(f"s_and_b32 {sI}, s2, 7")
        e(f"s_lshr_b32 {sR}, s2, 3")
        e(f"s_lshr_b32 {sH}, {sR}, 1")
        e(f"s_and_b32 {sB}, {sR}, 1")
        e(f"s_lshl_b32 {sT}, {sI}, 1")
        e(f"s_add_u32 {sT}, {sT}, {sB}")
        e(f"s_lshl_b32 {sT}, {sT}, 2")
        e(f"s_add_u32 {sT}, {sT}, {sW}")
        e(f"s_mul_i32 {sRB}, {sR}, 37")
        e(f"s_lshr_b32 {sRB}, {sRB}, 8")
        e(f"s_mul_i32 {sA}, {sRB}, 7")
        e(f"s_sub_u32 {sCG}, {sR}, {sA}")
        e(f"s_cmp_eq_u32 {sH}, 15")
        e(f"s_cselect_b32 {sADJ}, 8, 0")
        e(f"s_mov_b32 s{sHIp}, 0")
        e(f"s_mov_b32 s{sHIp + 1}, -1")
        sizes = {SRD_X: 1835008, SRD_WQKV: 1204224, SRD_WO: 401408, SRD_WG: 1605632, SRD_WU: 1605632, SRD_WD: 1605632,
                 SRD_C: 896, SRD_WM: 2408448, SRD_OUT: 1835008, SRD_DBG: 256, SRD_WS: WS_SIZE}
        for n, sz in sizes.items():
            e(f"s_mov_b32 s{n + 2}, {sz}")
            e(f"s_mov_b32 s{n + 3}, 0x00020000")
        e("s_waitcnt lgkmcnt(0)")
        src = {SRD_WS: 86, SRD_C: 78, SRD_WM: 80, SRD_X: 64, SRD_WQKV: 66, SRD_WO: 68, SRD_WG: 72, SRD_WU: 74, SRD_WD: 76,
               SRD_OUT: 82, SRD_DBG: 84}
        for n, s in src.items():
            e(f"s_mov_b64 s[{n}:{n + 1}], s[{s}:{s + 1}]")

    def wqkv_dma(self, lo, hi):
        e = self.e
        for n in range(lo, hi):
            mat, kk = divmod(n, 7)
            gcol = (896, 1792, 0)[mat]
            lbase = (L_WK, L_WV, L_WQ)[mat]
            e(f"s_add_u32 {sA}, {sC}, {gcol + kk * 4 * 16 * 2688}")
            e(f"s_add_u32 {sBt}, {sD}, {lbase + kk * 4096}")
            self.dma("v10", SRD_WQKV, sA, sBt, "wqkv")

    def front(self):
        e = self.e
        e(f"buffer_load_dword {vE}, off, {srd(SRD_WS)}, 0 sc1", "E")
        e(f"s_cmp_ge_u32 {sR}, 21")
        e("s_cbranch_scc1 L_nomod1")
        e(f"s_and_b32 {sA}, {sI}, 3")
        e(f"s_mul_i32 {sA}, {sA}, 112")
        e(f"s_mul_i32 {sBt}, {sW}, 28")
        e(f"s_add_u32 {sA}, {sA}, {sBt}")
        e(f"v_lshrrev_b32 v4, 4, {vL}")
        e(f"v_and_b32 v5, 15, {vL}")
        e(f"v_lshl_add_u32 v6, v5, 2, v4")
        e(f"v_add_u32 v6, {sA}, v6")
        e(f"v_lshlrev_b32 v6, 1, v6")
        e(f"buffer_load_ushort v16, v6, {srd(SRD_C)}, 0 offen", "c")
        e(f"v_mul_u32_u24 v7, 5376, v4")
        e(f"v_lshl_add_u32 v7, v5, 3, v7")
        e(f"s_lshr_b32 {sBt}, {sI}, 2")
        e(f"s_lshl_b32 {sC}, {sR}, 1")
        e(f"s_add_u32 {sBt}, {sBt}, {sC}")
        e(f"s_mul_i32 {sA}, {sA}, 5376")
        e(f"s_lshl_b32 {sC}, {sBt}, 7")
        e(f"s_add_u32 {sA}, {sA}, {sC}")
        for j in range(7):
            e(f"buffer_load_dwordx2 {vr(18 + 2 * j, 2)}, v7, {srd(SRD_WM)}, {sA} offen", "wm")
            if j < 6:
                e(f"s_add_u32 {sA}, {sA}, 21504")
        e("L_nomod1:")
        e(f"v_and_b32 v4, 7, {vL}")
        e(f"v_lshrrev_b32 v5, 3, {vL}")
        e(f"v_mul_u32_u24 v8, 896, v4")
        e(f"v_lshl_add_u32 v8, v5, 4, v8")
        e(f"v_cmp_gt_u32 vcc, 6, v5")
        e(f"v_add_u32 v9, 128, v8")
        e(f"v_mov_b32 v11, 0x7ffffff0")
        e(f"v_cndmask_b32 v9, v11, v9, vcc")
        e(f"s_lshl_b32 {sA}, {sI}, 5")
        e(f"s_add_u32 {sA}, {sA}, {sR}")
        e(f"s_mul_i32 {sA}, {sA}, 7168")
        e(f"s_mul_i32 {sBt}, {sW}, 224")
        e(f"s_add_u32 {sA}, {sA}, {sBt}")
        e(f"buffer_load_dwordx4 v[32:35], v8, {srd(SRD_X)}, {sA} offen", "x")
        e(f"buffer_load_dwordx4 v[36:39], v9, {srd(SRD_X)}, {sA} offen", "x")
        if self.o.get("codepf", 1):
            e("s_getpc_b64 s[88:89]")
            e("L_pc:")
            e("s_sub_u32 s88, s88, L_pc-" + NAME + "_kernel")
            e("s_subb_u32 s89, s89, 0")
            e(f"s_lshl_b32 {sA}, {sR}, 2")
            e(f"s_add_u32 {sA}, {sA}, {sW}")
            e(f"v_lshl_add_u32 v12, {vL}, 7, {sA}")
            e(f"v_lshlrev_b32 v12, 7, v12")
            e(f"v_min_u32 v12, L_end-" + NAME + "_kernel, v12")
            e("s_mov_b64 exec, 15")
            e("global_load_dword v13, v12, s[88:89]", "pf")
            e("s_mov_b64 exec, -1")
        e(f"v_lshrrev_b32 v10, 2, {vL}")
        e(f"v_mul_u32_u24 v10, 2688, v10")
        e(f"v_and_b32 v11, 3, {vL}")
        e(f"v_lshl_add_u32 v10, v11, 4, v10")
        e(f"s_mul_i32 {sC}, {sH}, 56")
        e(f"s_sub_u32 {sC}, {sC}, {sADJ}")
        e(f"s_mul_i32 {sA}, {sW}, {16 * 2688}")
        e(f"s_add_u32 {sC}, {sC}, {sA}")
        e(f"s_lshl_b32 {sD}, {sW}, 10")
        n_early = self.o.get("early_w", 7)
        self.wqkv_dma(0, n_early)
        full = list(e.vm)
        e.vm = [t for t in full if t not in ("c", "wm")]
        e.wait(vm="E")
        e.vm = full[1:]
        e(f"v_readfirstlane_b32 {sTAG}, {vE}")
        e(f"s_mul_i32 {sTAG}, {sTAG}, 1664525")
        e(f"s_add_u32 {sTAG}, {sTAG}, 1013904223")
        common = list(e.vm)
        e(f"s_cmp_lg_u32 {sW}, 3")
        e("s_cbranch_scc1 L_noxcc")
        e(f"s_getreg_b32 {sA}, hwreg(HW_REG_XCC_ID, 0, 4)")
        e(f"v_mov_b32 v14, {sTAG}")
        e(f"v_mov_b32 v15, {sA}")
        e(f"s_lshl_b32 {sA}, {sI}, 5")
        e(f"s_add_u32 {sA}, {sA}, {sR}")
        e(f"s_lshl_b32 {sA}, {sA}, 3")
        e(f"v_mov_b32 {vE}, 1")
        e("s_mov_b64 exec, 1")
        e(f"buffer_store_dwordx2 v[14:15], off, {srd(SRD_WS)}, {sA} offset:{WS_XCC} sc1")
        e(f"buffer_atomic_add {vE}, off, {srd(SRD_DBG)}, 0 sc0 sc1")
        e("s_mov_b64 exec, -1")
        e("L_noxcc:")
        e.vm = list(common)
        self.stamp("tag")
        e(f"s_cmp_ge_u32 {sR}, 21")
        e("s_cbranch_scc1 L_nomod2")
        e.wait(vm="c")
        e(f"v_lshlrev_b32 v16, 16, v16")
        e(f"v_mul_f32 v17, {fbits(-math.log2(math.e))}, v16")
        e("v_exp_f32 v17, v17")
        e("v_add_f32 v17, 1.0, v17")
        e("v_rcp_f32 v17, v17")
        e("v_mul_f32 v16, v16, v17")
        e("v_cvt_pk_bf16_f32 v16, v16, v16")
        e("v_lshlrev_b32 v16, 16, v16")
        for k in range(4):
            e(f"v_mov_b32 v{40 + k}, 0")
        e.wait(vm="wm")
        for j in range(7):
            a, b = 18 + 2 * j, 19 + 2 * j
            e(f"v_lshlrev_b32 v44, 16, v{a}")
            e(f"v_and_b32 v45, 0xffff0000, v{a}")
            e(f"v_lshlrev_b32 v46, 16, v{b}")
            e(f"v_and_b32 v47, 0xffff0000, v{b}")
            for k in range(4):
                e(f"v_fmac_f32_dpp v{40 + k}, v16, v{44 + k} row_newbcast:{j} row_mask:0xf bank_mask:0xf")
        e("v_permlane16_swap_b32 v40, v41")
        e("v_permlane16_swap_b32 v42, v43")
        e("v_add_f32 v40, v40, v41")
        e("v_add_f32 v42, v42, v43")
        e("v_permlane32_swap_b32 v40, v42")
        e("v_add_f32 v40, v40, v42")
        e(f"v_lshrrev_b32 v4, 4, {vL}")
        e(f"v_and_b32 v5, 15, {vL}")
        e(f"v_lshl_add_u32 v5, v5, 2, v4")
        e(f"s_lshl_b32 {sA}, {sW}, 8")
        e(f"v_lshl_add_u32 v5, v5, 2, {sA}")
        e(f"ds_write_b32 v5, v40 offset:{L_MODR}")
        e("s_waitcnt lgkmcnt(0)")
        e("s_barrier")
        e(f"s_cmp_lg_u32 {sW}, 0")
        e("s_cbranch_scc1 L_nomod2")
        e("s_mov_b64 exec, 0xffff")
        for k in range(4):
            e(f"ds_read_b128 {vr(40 + 4 * k)}, {vL16} offset:{L_MODR + 256 * k}")
        e(f"s_and_b32 {sA}, {sI}, 3")
        e(f"s_mul_i32 {sA}, {sA}, 10752")
        e(f"s_lshr_b32 {sBt}, {sI}, 2")
        e(f"s_lshl_b32 {sE}, {sR}, 1")
        e(f"s_add_u32 {sBt}, {sBt}, {sE}")
        e(f"s_lshl_b32 {sBt}, {sBt}, 8")
        e(f"s_add_u32 {sA}, {sA}, {sBt}")
        e(f"s_add_u32 {sA}, {sA}, {WS_MODP}")
        e("v_mov_b32 v5, 0xff")
        e("s_waitcnt lgkmcnt(0)")
        for k in range(4):
            e(f"v_add_f32 v{40 + k}, v{40 + k}, v{44 + k}")
            e(f"v_add_f32 v{48 + k}, v{48 + k}, v{52 + k}")
        for k in range(4):
            e(f"v_add_f32 v{40 + k}, v{40 + k}, v{48 + k}")
            e(f"s_lshr_b32 {sBt}, {sTAG}, {8 * k}")
            e(f"v_bfi_b32 v{40 + k}, v5, {sBt}, v{40 + k}")
        e(f"buffer_store_dwordx4 v[40:43], {vL16}, {srd(SRD_WS)}, {sA} offen sc1")
        e("s_mov_b64 exec, -1")
        e("L_nomod2:")
        e.vm = list(common)
        self.stamp("modpub")
        e.wait(vm="x")
        for k in range(8):
            e(f"v_lshlrev_b32 v{48 + 2 * k}, 16, v{32 + k}")
            e(f"v_and_b32 v{49 + 2 * k}, 0xffff0000, v{32 + k}")
        e("v_add_f32 v4, v48, v49")
        e("v_add_f32 v5, v50, v51")
        for k in range(4, 16, 2):
            e(f"v_add_f32 v4, v4, v{48 + k}")
            e(f"v_add_f32 v5, v5, v{49 + k}")
        e("v_add_f32 v4, v4, v5")
        self.reduce_hi3("v4", "v5")
        e(f"v_mul_f32 v6, {fbits(1.0 / 112)}, v4")
        e(f"v_lshrrev_b32 v5, 3, {vL}")
        e(f"v_cmp_gt_u32 s[90:91], 6, v5")
        e("v_mov_b32 v7, 0")
        e("v_mov_b32 v12, 0")
        for k in range(8):
            e(f"v_sub_f32 v5, v{48 + k}, v6")
            e(f"v_sub_f32 v11, v{56 + k}, v6")
            e("v_fmac_f32 v7, v5, v5")
            e("v_fmac_f32 v12, v11, v11")
        e("v_cndmask_b32 v12, 0, v12, s[90:91]")
        e("v_add_f32 v5, v7, v12")
        self.reduce_hi3("v5", "v7")
        e(f"s_lshl_b32 {sA}, {sW}, 6")
        e(f"v_and_b32 v6, 7, {vL}")
        e(f"v_lshlrev_b32 v6, 3, v6")
        e(f"v_add_u32 v7, {sA}, v6")
        e(f"ds_write_b64 v7, v[4:5] offset:{L_STATX}")
        e("v_mov_b32 v14, 0")
        e("v_mov_b32 v15, 0")
        e(f"v_lshlrev_b32 v7, 3, {vL}")
        e(f"v_add_u32 v7, {L_PAD}, v7")
        e(f"ds_write_b64 v7, v[14:15]")
        e("s_waitcnt lgkmcnt(0)")
        e("s_barrier")
        for k in range(4):
            e(f"ds_read_b64 {vr(16 + 2 * k, 2)}, v6 offset:{L_STATX + 64 * k}")
        e(f"s_mul_i32 {sC}, {sH}, 56")
        e(f"s_sub_u32 {sC}, {sC}, {sADJ}")
        e(f"s_mul_i32 {sA}, {sW}, {16 * 2688}")
        e(f"s_add_u32 {sC}, {sC}, {sA}")
        e(f"s_lshl_b32 {sD}, {sW}, 10")
        self.wqkv_dma(n_early, 21)
        e("s_waitcnt lgkmcnt(0)")
        e("v_add_f32 v4, v16, v18")
        e("v_add_f32 v5, v20, v22")
        e("v_add_f32 v4, v4, v5")
        e(f"v_mul_f32 v4, {fbits(1.0 / 448)}, v4")
        e("v_add_f32 v5, v17, v19")
        e("v_add_f32 v7, v21, v23")
        e("v_add_f32 v5, v5, v7")
        e(f"v_mov_b32 v12, {fbits(1.0 / 112)}")
        e("v_mov_b32 v7, 0")
        for k in range(4):
            e(f"v_fma_f32 v11, v{16 + 2 * k}, v12, -v4")
            e("v_fmac_f32 v7, v11, v11")
        e(f"v_mul_f32 v7, {fbits(112.0)}, v7")
        e("v_add_f32 v5, v5, v7")
        e(f"v_mul_f32 v5, {fbits(1.0 / 448)}, v5")
        self.round_bf16(["v4", "v5"], "v7")
        e(f"v_add_f32 v5, {fbits(1e-5)}, v5")
        e("v_cvt_pk_bf16_f32 v5, v5, v5")
        e("v_lshlrev_b32 v5, 16, v5")
        e("v_sqrt_f32 v5, v5")
        e("v_cvt_pk_bf16_f32 v5, v5, v5")
        e("v_lshlrev_b32 v5, 16, v5")
        e("v_rcp_f32 v5, v5")
        xs = [f"v{48 + k}" for k in range(16)]
        for x in xs:
            e(f"v_sub_f32 {x}, {x}, v4")
        self.round_bf16(xs, "v7")
        for x in xs:
            e(f"v_mul_f32 {x}, {x}, v5")
        self.round_bf16(xs, "v7")
        self.stamp("ln1")
        e(f"s_cmp_ge_u32 {sR}, 28")
        e("s_cbranch_scc1 L_nowo")
        e(f"v_lshrrev_b32 v4, 3, {vL}")
        e(f"v_and_b32 v5, 6, v4")
        e(f"v_and_b32 v6, 7, {vL}")
        e("v_xor_b32 v5, v5, v6")
        e("v_mul_u32_u24 v4, 896, v4")
        e("v_lshl_add_u32 v4, v5, 4, v4")
        e(f"s_lshl_b32 {sC}, {sCG}, 7")
        e(f"s_mul_i32 {sA}, {sW}, {14 * 8 * 896}")
        e(f"s_add_u32 {sC}, {sC}, {sA}")
        e(f"s_mul_i32 {sD}, {sW}, 14336")
        for n in range(14):
            e(f"s_add_u32 {sA}, {sC}, {n * 8 * 896}")
            e(f"s_add_u32 {sBt}, {sD}, {L_WO + n * 1024}")
            self.dma("v4", SRD_WO, sA, sBt, "wo")
        e("L_nowo:")
        self.pretouch()
        lp, dn = e.label("xcc"), e.label("xccd")
        e(f"v_and_b32 v4, 31, {vL}")
        e(f"v_lshlrev_b32 v4, 3, v4")
        e(f"s_lshl_b32 {sA}, {sI}, 8")
        e(f"s_mov_b32 {sSPIN}, 0")
        e(f"{lp}:")
        e(f"buffer_load_dwordx2 v[6:7], v4, {srd(SRD_WS)}, {sA} offen offset:{WS_XCC} sc1")
        e(f"s_add_u32 {sSPIN}, {sSPIN}, 1")
        e(f"s_cmp_ge_u32 {sSPIN}, {SPIN_MAX}")
        e("s_waitcnt vmcnt(0)")
        e(f"s_cbranch_scc1 {dn}")
        e(f"v_cmp_ne_u32 vcc, {sTAG}, v6")
        e(f"s_cbranch_vccnz {lp}")
        e(f"{dn}:")
        e(f"s_getreg_b32 {sA}, hwreg(HW_REG_XCC_ID, 0, 4)")
        e(f"v_cmp_ne_u32 vcc, {sA}, v7")
        e("s_cmp_eq_u64 vcc, 0")
        e(f"s_cselect_b32 {sFAST}, {0 if self.o.get('force_slow') else 1}, 0")
        e(f"s_cmp_lg_u32 {sW}, 3")
        e("s_cbranch_scc1 L_nobump")
        e(f"v_readfirstlane_b32 {sA}, {vE}")
        e(f"s_cmp_lg_u32 {sA}, 255")
        e("s_cbranch_scc1 L_nobump")
        e(f"v_mov_b32 v4, {sTAG}")
        e("s_mov_b64 exec, 1")
        e(f"buffer_store_dword v4, off, {srd(SRD_WS)}, 0 sc1")
        e("s_mov_b64 exec, -1")
        e("L_nobump:")
        e.vm = []
        self.stamp("xcc")

    def reduce_hi3(self, a, t):
        e = self.e
        e(f"v_add_f32_dpp {a}, {a}, {a} row_ror:8 row_mask:0xf bank_mask:0xf")
        self.reduce_hi2(a, t)

    def reduce_hi2(self, a, t, op="v_add_f32"):
        e = self.e
        e(f"v_mov_b32 {t}, {a}")
        e(f"v_permlane16_swap_b32 {a}, {t}")
        e(f"{op} {a}, {a}, {t}")
        e(f"v_mov_b32 {t}, {a}")
        e(f"v_permlane32_swap_b32 {a}, {t}")
        e(f"{op} {a}, {a}, {t}")

    def pretouch(self):
        if not self.o.get("pretouch", 1):
            return
        e = self.e
        e(f"s_lshl_b32 {sC}, {sR}, 2")
        e(f"s_add_u32 {sC}, {sC}, {sW}")
        areas = [(WS_H, 229376, "h"), (WS_O, 262144, "o"), (WS_Z, 229376, "z"), (WS_HID, 917504, "d"), (WS_STAT, 14336, "s")]
        areas = [(a, b) for a, b, c in areas if self.o.get("sm_" + c, 0) not in (1, 3)]
        for base, per in areas:
            lines = per // 128
            per_wave = -(-lines // 128)
            e(f"s_mul_i32 {sA}, {sI}, {per}")
            e(f"s_add_u32 {sA}, {sA}, {base}")
            e(f"s_mul_i32 {sBt}, {sC}, {per_wave}")
            e(f"v_add_u32 v4, {sBt}, {vL}")
            e(f"v_min_u32 v4, {lines - 1}, v4")
            e(f"v_lshlrev_b32 v4, 7, v4")
            m = (1 << per_wave) - 1
            e(f"s_mov_b32 exec_lo, {hex(m & 0xffffffff)}")
            e(f"s_mov_b32 exec_hi, {hex(m >> 32)}")
            e(f"buffer_load_dword v13, v4, {srd(SRD_WS)}, {sA} offen sc1", "pt")
            e("s_mov_b64 exec, -1")
        e(f"v_and_b32 v4, 3, {vL}")
        e(f"v_lshlrev_b32 v4, 7, v4")
        e(f"v_lshrrev_b32 v5, 2, {vL}")
        e(f"v_lshl_add_u32 v4, v5, 12, v4")
        e(f"s_lshl_b32 {sA}, {sI}, 9")
        e(f"s_add_u32 {sA}, {sA}, {WS_FLH}")
        e("s_mov_b64 exec, 0xffff")
        e(f"buffer_load_dword v13, v4, {srd(SRD_WS)}, {sA} offen sc1", "pt")
        e("s_mov_b64 exec, -1")

    def f1(self):
        e = self.e
        e(f"v_lshrrev_b32 v5, 3, {vL}")
        e(f"v_bfe_u32 v6, {vL}, 2, 1")
        e(f"v_cmp_gt_u32 vcc, 6, v5")
        e(f"v_cndmask_b32 v6, 0, v6, vcc")
        e(f"v_lshl_add_u32 v6, v6, 3, v5")
        e(f"s_mul_i32 {sA}, {sW}, 14")
        e(f"v_add_u32 v6, {sA}, v6")
        e(f"v_bfe_u32 v7, {vL}, 1, 1")
        e(f"v_lshl_add_u32 v6, v6, 1, v7")
        e(f"v_and_b32 v7, 1, {vL}")
        e(f"v_mul_u32_u24 v7, 112, v7")
        e(f"v_add_u32 v6, v6, v7")
        e(f"v_lshlrev_b32 v8, 4, v6")
        self.gather_mod("v8", 16, 40)
        self.stamp("modgot")
        e(f"v_and_b32 v7, 1, {vL}")
        e(f"v_cvt_f32_u32 v7, v7")
        for k in range(4):
            e(f"v_add_f32 v{16 + k}, v{16 + k}, v7")
        self.round_bf16([f"v{16 + k}" for k in range(4)], "v40")
        e(f"s_lshl_b32 {sA}, {sW}, 12")
        e(f"s_add_u32 {sA}, {sA}, {L_SCR}")
        e(f"v_add_u32 v9, {sA}, {vL16}")
        e("ds_write_b128 v9, v[16:19]")
        e("v_and_b32 v9, 0xffffff80, v9")
        e("s_waitcnt lgkmcnt(0)")
        for it in range(8):
            e(f"ds_read_b128 {vr(64 + 4 * it)}, v9 offset:{16 * it}")
        e(f"v_and_b32 v4, 7, {vL}")
        e(f"v_lshlrev_b32 v4, 4, v4")
        e(f"v_lshl_add_u32 v4, v5, 9, v4")
        e(f"v_cmp_gt_u32 vcc, 6, v5")
        e(f"v_add_u32 v6, 4096, v4")
        e(f"v_mov_b32 v11, 0x7ffffff0")
        e(f"v_cndmask_b32 v6, v11, v6, vcc")
        e(f"s_lshr_b32 {sA}, {sR}, 2")
        e(f"s_lshl_b32 {sBt}, {sI}, 3")
        e(f"s_add_u32 {sBt}, {sBt}, {sA}")
        e(f"s_mul_i32 {sA}, {sBt}, 28672")
        e(f"s_and_b32 {sC}, {sR}, 3")
        e(f"s_lshl_b32 {sD}, {sC}, 7")
        e(f"s_add_u32 {sA}, {sA}, {sD}")
        e(f"s_mul_i32 {sD}, {sW}, 7168")
        e(f"s_add_u32 {sA}, {sA}, {sD}")
        e(f"s_add_u32 {sA}, {sA}, {WS_H}")
        e(f"s_lshl_b32 {sBt}, {sBt}, 6")
        e(f"s_lshl_b32 {sC}, {sC}, 4")
        e(f"s_add_u32 {sBt}, {sBt}, {sC}")
        e(f"s_lshl_b32 {sC}, {sW}, 2")
        e(f"s_add_u32 {sBt}, {sBt}, {sC}")
        e(f"s_add_u32 {sBt}, {sBt}, {WS_FLH}")
        e("s_waitcnt lgkmcnt(0)")
        for gs in range(2):
            xs = [f"v{48 + 8 * gs + k}" for k in range(8)]
            c1 = [f"v{64 + 4 * (4 * gs + 2 * (k >> 2) + 1) + (k & 3)}" for k in range(8)]
            c2 = [f"v{64 + 4 * (4 * gs + 2 * (k >> 2)) + (k & 3)}" for k in range(8)]
            if self.o.get("h_round", 1):
                for x, c in zip(xs, c1):
                    e(f"v_mul_f32 {x}, {x}, {c}")
                self.round_bf16(xs, "v7")
                for x, c in zip(xs, c2):
                    e(f"v_add_f32 {x}, {x}, {c}")
            else:
                for x, c, d in zip(xs, c1, c2):
                    e(f"v_fma_f32 {x}, {x}, {c}, {d}")
            for k in range(4):
                e(f"v_cvt_pk_bf16_f32 v{32 + 4 * gs + k}, {xs[2 * k]}, {xs[2 * k + 1]}")
            e(f"buffer_store_dwordx4 {vr(32 + 4 * gs)}, v{4 + 2 * gs}, {srd(SRD_WS)}, {sA} offen{self.sm('h')}")
        self.publish(sBt, "v7")
        self.stamp("hpub")

    def p1(self):
        e = self.e
        ACK, ACV, ACQ = 16, 32, 48
        HB, WR = 0, 112
        e("s_barrier")
        e(f"v_lshrrev_b32 v4, 5, {vL}")
        e(f"v_lshlrev_b32 v4, 9, v4")
        e(f"v_bfe_u32 v5, {vL}, 2, 2")
        e(f"v_lshl_add_u32 v4, v5, 6, v4")
        e(f"v_bfe_u32 v5, {vL}, 4, 1")
        e(f"v_lshl_add_u32 v4, v5, 5, v4")
        e(f"v_and_b32 v5, 3, {vL}")
        e(f"v_lshl_add_u32 v4, v5, 3, v4")
        e(f"v_add_u32 v4, {sADJ}, v4")
        e(f"v_add_u32 v8, {L_WQ}, v4")
        e(f"v_add_u32 v9, {L_WK}, v4")
        DEPTH = 3

        def rd(addr, off, dst, tag):
            e(f"ds_read_b64_tr_b16 {ar(dst, 2)}, {addr} offset:{off}", tag)
            e(f"ds_read_b64_tr_b16 {ar(dst + 2, 2)}, {addr} offset:{off + 256}", tag)

        def rd_kv(ks):
            b = WR + 8 * (ks % 4)
            rd("v9", ks * 1024, b, ("kv", ks))
            rd("v9", 28672 + ks * 1024, b + 4, ("kv", ks))

        for ks in range(DEPTH):
            rd_kv(ks)
        e(f"v_and_b32 v4, 15, {vL}")
        e(f"v_lshlrev_b32 v4, 2, v4")
        e(f"s_lshl_b32 {sA}, {sT}, 6")
        e(f"s_add_u32 {sA}, {sA}, {WS_FLH}")
        self.poll("v4", sA, "v5")
        self.acquire()
        self.stamp("hflag")
        e(f"s_mul_i32 {sA}, {sT}, 28672")
        e(f"s_add_u32 {sA}, {sA}, {WS_H}")

        def ld_h(ks):
            if ks and ks % 4 == 0:
                e(f"s_add_u32 {sA}, {sA}, 4096")
            e(f"buffer_load_dwordx4 {ar(HB + 4 * ks)}, {vL16}, {srd(SRD_WS)}, {sA} offen offset:{(ks % 4) * 1024} sc1", ("h", ks))

        PRE = self.o.get("p1pre", 8)
        for ks in range(PRE):
            ld_h(ks)
        for ks in range(28):
            e.wait(vm=("h", ks), lg=("kv", ks))
            b = WR + 8 * (ks % 4)
            ck = "0" if ks == 0 else vr(ACK, 16)
            cv = "0" if ks == 0 else vr(ACV, 16)
            e(f"v_mfma_f32_32x32x16_bf16 {vr(ACK, 16)}, {ar(b)}, {ar(HB + 4 * ks)}, {ck}")
            if ks + PRE < 28:
                ld_h(ks + PRE)
            if ks + DEPTH < 28:
                rd("v9", (ks + DEPTH) * 1024, WR + 8 * ((ks + DEPTH) % 4), ("kv", ks + DEPTH))
            e(f"v_mfma_f32_32x32x16_bf16 {vr(ACV, 16)}, {ar(HB + 4 * ks)}, {ar(b + 4)}, {cv}")
            if ks + DEPTH < 28:
                rd("v9", 28672 + (ks + DEPTH) * 1024, WR + 8 * ((ks + DEPTH) % 4) + 4, ("kv", ks + DEPTH))
        self.stamp("kvgemm")
        QR = WR + 32

        def rd_q(ks):
            rd("v8", ks * 1024, QR + 4 * (ks % 8), ("q", ks))

        for ks in range(4):
            rd_q(ks)
        e(f"s_mul_i32 {sA}, {sH}, 64")
        e(f"s_add_u32 {sA}, {sA}, {sT}")
        e(f"s_lshl_b32 {sA}, {sA}, 12")
        e(f"s_add_u32 {sA}, {sA}, {WS_KV}")
        e(f"s_lshl_b32 {sBt}, {sW}, 12")
        e(f"s_add_u32 {sBt}, {sBt}, {L_KV + 8 * 4096}")
        e(f"v_add_u32 v10, {sBt}, {vL16}")
        e(f"v_and_b32 v4, 31, {vL}")
        e(f"v_cmp_eq_u32 s[90:91], 28, v4")
        e("v_mov_b32 v11, 0x3f803f80")
        for k in range(8):
            e(f"v_cvt_pk_bf16_f32 v{64 + k}, v{ACK + 2 * k}, v{ACK + 2 * k + 1}")
        e(f"v_cndmask_b32 v70, v70, 0, {sHI}")
        e(f"v_cndmask_b32 v71, v71, 0, {sHI}")
        for f in range(2):
            e(f"buffer_store_dwordx4 {vr(64 + 4 * f)}, {vL16}, {srd(SRD_WS)}, {sA} offen offset:{f * 1024} sc1", "kvst")
        for k in range(8):
            e(f"v_cvt_pk_bf16_f32 v{72 + k}, v{ACV + 2 * k}, v{ACV + 2 * k + 1}")
            e(f"v_cndmask_b32 v{72 + k}, v{72 + k}, v11, s[90:91]")
        for f in range(2, 4):
            e(f"buffer_store_dwordx4 {vr(64 + 4 * f)}, {vL16}, {srd(SRD_WS)}, {sA} offen offset:{f * 1024} sc1", "kvst")
        for f in range(4):
            e(f"ds_write_b128 v10, {vr(64 + 4 * f)} offset:{f * 1024}", "kvw")
        for ks in range(28):
            e.wait(lg=("q", ks))
            cq = "0" if ks == 0 else vr(ACQ, 16)
            e(f"v_mfma_f32_32x32x16_bf16 {vr(ACQ, 16)}, {ar(QR + 4 * (ks % 8))}, {ar(HB + 4 * ks)}, {cq}")
            if ks + 4 < 28:
                rd_q(ks + 4)
        e(f"s_lshl_b32 {sA}, {sH}, 4")
        e(f"s_lshr_b32 {sBt}, {sT}, 2")
        e(f"s_add_u32 {sA}, {sA}, {sBt}")
        e(f"s_lshl_b32 {sA}, {sA}, 7")
        e(f"s_lshl_b32 {sBt}, {sW}, 2")
        e(f"s_add_u32 {sA}, {sA}, {sBt}")
        e(f"s_add_u32 {sA}, {sA}, {WS_FLKV}")
        self.publish(sA, "v7", local=False)
        self.stamp("kvpub")
        qs = 28 ** -0.5 * math.log2(math.e)
        e(f"s_mov_b32 {sA}, {fbits(qs)}")
        for k in range(16):
            e(f"v_mul_f32 v{ACQ + k}, {sA}, v{ACQ + k}")
        for k in range(8):
            e(f"v_cvt_pk_bf16_f32 v{64 + k}, v{ACQ + 2 * k}, v{ACQ + 2 * k + 1}")
        e("v_mov_b32 v11, 0x00003f80")
        e(f"v_cndmask_b32 v70, v70, v11, {sHI}")
        e(f"v_cndmask_b32 v71, v71, 0, {sHI}")
        e("s_waitcnt lgkmcnt(0)")
        e("s_barrier")

    def late_consts(self):
        e = self.e
        e(f"s_cmp_ge_u32 {sR}, 28")
        e("s_cbranch_scc1 L_nolate")
        e(f"s_lshl_b32 {sA}, {sW}, 6")
        e(f"v_add_u32 v4, {sA}, {vL}")
        e("v_cmp_gt_u32 vcc, 112, v4")
        e(f"s_movk_i32 {sBt}, 224")
        e(f"v_cmp_gt_u32 s[90:91], {sBt}, v4")
        e("v_subrev_u32 v5, 112, v4")
        e("v_cndmask_b32 v5, v5, v4, vcc")
        e("v_mov_b32 v6, 336")
        e("v_mov_b32 v7, 448")
        e("v_cndmask_b32 v6, v6, v7, vcc")
        e("v_add_u32 v6, v6, v5")
        e("v_and_b32 v7, 15, v4")
        e(f"s_lshl_b32 {sA}, {sCG}, 4")
        e(f"v_add_u32 v7, {sA}, v7")
        e("v_bfe_u32 v8, v4, 4, 1")
        e("v_mul_u32_u24 v8, 336, v8")
        e("v_add_u32 v7, v7, v8")
        e("v_add_u32 v7, 224, v7")
        e("v_cndmask_b32 v6, v7, v6, s[90:91]")
        e("v_lshlrev_b32 v8, 4, v6")
        e("s_mov_b64 s[92:93], vcc")
        self.gather_mod("v8", 16, 40)
        e("v_cndmask_b32 v7, 0, 1.0, s[92:93]")
        for k in range(4):
            e(f"v_add_f32 v{20 + k}, v{16 + k}, v7")
        e("v_cvt_pk_bf16_f32 v20, v20, v21")
        e("v_cvt_pk_bf16_f32 v21, v22, v23")
        e("v_lshrrev_b32 v6, 3, v5")
        e("v_lshlrev_b32 v6, 6, v6")
        e("v_and_b32 v7, 3, v5")
        e("v_lshl_add_u32 v6, v7, 4, v6")
        e("v_bfe_u32 v7, v5, 2, 1")
        e("v_lshl_add_u32 v6, v7, 3, v6")
        e("v_mov_b32 v7, 896")
        e("v_cndmask_b32 v7, v7, 0, s[92:93]")
        e("v_add_u32 v6, v6, v7")
        e("v_and_b32 v7, 31, v4")
        e("v_lshlrev_b32 v7, 4, v7")
        e("s_mov_b64 exec, s[90:91]")
        e(f"ds_write_b64 v6, v[20:21] offset:{L_CVEC}")
        e("s_not_b64 exec, exec")
        e(f"ds_write_b128 v7, v[16:19] offset:{L_GAB}")
        e("s_mov_b64 exec, -1")
        e(f"v_lshrrev_b32 v4, 2, {vL}")
        e(f"v_mul_u32_u24 v4, 896, v4")
        e(f"v_and_b32 v5, 3, {vL}")
        e(f"v_lshl_add_u32 v15, v5, 4, v4")
        e(f"s_lshl_b32 {sA}, {sI}, 2")
        e(f"s_add_u32 {sA}, {sA}, {sRB}")
        e(f"s_lshl_b32 {sA}, {sA}, 2")
        e(f"s_add_u32 {sA}, {sA}, {sW}")
        e(f"s_mul_i32 {sA}, {sA}, 14336")
        e(f"s_lshl_b32 {sBt}, {sCG}, 7")
        e(f"s_add_u32 s100, {sA}, {sBt}")
        e(f"buffer_load_dwordx4 v[240:243], v15, {srd(SRD_X)}, s100 offen")
        e(f"buffer_load_dwordx4 v[244:247], v15, {srd(SRD_X)}, s100 offen offset:64")
        e("L_nolate:")
        e.vm = []
        e.lg = []

    def p2(self):
        e = self.e
        QF = 64
        e(f"s_and_b32 {sA}, {sT}, 0xfc")
        e(f"s_lshl_b32 {sBt}, {sW}, 1")
        e(f"s_add_u32 {sA}, {sA}, {sBt}")
        e(f"s_lshl_b32 {sD}, {sW}, 13")
        e(f"s_add_u32 {sD}, {sD}, {L_KV}")
        e(f"s_cmp_lt_u32 {sA}, 8")
        e("s_cbranch_scc1 L_kvfill")
        e(f"s_sub_u32 {sC}, {sA}, 8")
        e(f"s_lshl_b32 {sA}, {sH}, 4")
        e(f"s_lshr_b32 {sBt}, {sC}, 2")
        e(f"s_add_u32 {sA}, {sA}, {sBt}")
        e(f"s_lshl_b32 {sA}, {sA}, 7")
        e(f"s_and_b32 {sBt}, {sC}, 3")
        e(f"s_lshl_b32 {sBt}, {sBt}, 2")
        e(f"s_add_u32 {sA}, {sA}, {sBt}")
        e(f"s_add_u32 {sA}, {sA}, {WS_FLKV}")
        e(f"v_and_b32 v4, 1, {vL}")
        e(f"v_lshlrev_b32 v4, 2, v4")
        self.poll("v4", sA, "v5")
        self.acquire()
        e(f"s_lshl_b32 {sA}, {sH}, 6")
        e(f"s_add_u32 {sA}, {sA}, {sC}")
        e(f"s_lshl_b32 {sA}, {sA}, 12")
        e(f"s_add_u32 {sA}, {sA}, {WS_KV}")
        for t in range(2):
            e(f"s_mov_b32 m0, {sD}")
            for f in range(4):
                e(f"buffer_load_dwordx4 {vL16}, {srd(SRD_WS)}, {sA} offen offset:{f * 1024} sc1 lds")
            if t == 0:
                e(f"s_add_u32 {sA}, {sA}, 4096")
                e(f"s_add_u32 {sD}, {sD}, 4096")
        e("s_branch L_kvdone")
        e("L_kvfill:")
        for k in range(8):
            e(f"v_mov_b32 v{16 + k}, 0")
        e("v_mov_b32 v4, 0x0000f149")
        e(f"v_cndmask_b32 v22, 0, v4, {sHI}")
        e(f"v_add_u32 v4, {sD}, {vL16}")
        for t in range(2):
            for f in range(4):
                e(f"ds_write_b128 v4, {vr(20 if f == 1 else 16)} offset:{t * 4096 + f * 1024}")
        e("L_kvdone:")
        e(f"v_and_b32 v4, 31, {vL}")
        e(f"v_lshrrev_b32 v5, 5, {vL}")
        e(f"v_lshlrev_b32 v5, 2, v5")
        e("v_sub_u32 v4, v4, v5")
        MK = 72
        e("v_mov_b32 v6, 0xffff")
        e("v_mov_b32 v7, 0xffff0000")
        for r in range(16):
            e(f"v_cmp_le_i32 s[{SMASK + 2 * r}:{SMASK + 2 * r + 1}], {(r >> 2) * 8 + (r & 3)}, v4")
        for k in range(8):
            e(f"v_cndmask_b32 v8, 0, v6, s[{SMASK + 4 * k}:{SMASK + 4 * k + 1}]")
            e(f"v_cndmask_b32 v9, 0, v7, s[{SMASK + 4 * k + 2}:{SMASK + 4 * k + 3}]")
            e(f"v_or_b32 v{MK + k}, v8, v9")
        e(f"s_lshl_b32 {sA}, {sW}, 12")
        e(f"s_add_u32 {sA}, {sA}, {L_KV}")
        e(f"v_add_u32 v10, {sA}, {vL16}")
        e("s_waitcnt vmcnt(0) lgkmcnt(0)")
        e("s_barrier")
        self.stamp("kvgot")
        KF, VF = 0, 72
        order = [0, 8, 1, 2, 3, 4, 5, 6, 7]
        for t in order:
            for f in range(2):
                e(f"ds_read_b128 {ar(KF + 8 * t + 4 * f)}, v10 offset:{t * 4096 + f * 1024}", ("k", t))
        S = [80, 96, 112]
        MG, NM, OA, PF = 128, 144, 160, 176
        vM = "v11"

        def s_mfma(t, dst, c):
            e(f"v_mfma_f32_32x32x16_bf16 {vr(dst, 16)}, {ar(KF + 8 * t)}, {vr(QF)}, {c}")
            e(f"v_mfma_f32_32x32x16_bf16 {vr(dst, 16)}, {ar(KF + 8 * t + 4)}, {vr(QF + 4)}, {vr(dst, 16)}")

        def maxred(src, first):
            for k in range(8):
                if first and k == 0:
                    e(f"v_max_f32 {vM}, v{src}, v{src + 1}")
                else:
                    e(f"v_max3_f32 {vM}, {vM}, v{src + 2 * k}, v{src + 2 * k + 1}")

        vq = list(order)
        e.wait(lg=("k", 0))
        s_mfma(0, S[0], "0")
        e.wait(lg=("k", 8))
        s_mfma(8, S[1], "0")
        e.wait(lg=("k", 1))
        s_mfma(1, S[2], "0")
        for r in range(16):
            e(f"v_cndmask_b32 v{MG + r}, v{S[0] + r}, v{S[1] + r}, s[{SMASK + 2 * r}:{SMASK + 2 * r + 1}]")
        for t in range(2, 9):
            if t < 8:
                e.wait(lg=("k", t))
                s_mfma(t, S[(t + 1) % 3], "0")
            for _ in range(2 if t < 5 else 1):
                if vq:
                    tv = vq.pop(0)
                    for f in range(2):
                        e(f"ds_read_b128 {ar(VF + 8 * tv + 4 * f)}, v10 offset:{tv * 4096 + 2048 + f * 1024}", ("v", tv))
            if t == 2:
                maxred(MG, True)
            maxred(S[t % 3], False)
        e(f"v_mov_b32 v4, {vM}")
        e(f"v_permlane32_swap_b32 {vM}, v4")
        e(f"v_max_f32 {vM}, {vM}, v4")
        for r in range(16):
            e(f"v_sub_f32 v{NM + r}, 0, {vM}")
        s_mfma(1, S[0], vr(NM, 16))
        s_mfma(2, S[1], vr(NM, 16))
        for r in range(16):
            e(f"v_sub_f32 v{MG + r}, v{MG + r}, {vM}")
        for r in range(16):
            e(f"v_exp_f32 v{MG + r}, v{MG + r}")
        for k in range(8):
            e(f"v_cvt_pk_bf16_f32 v{PF + k}, v{MG + 2 * k}, v{MG + 2 * k + 1}")
        for k in range(8):
            e(f"v_and_b32 v{PF + 8 + k}, v{PF + k}, v{MK + k}")
            e(f"v_xor_b32 v{PF + k}, v{PF + k}, v{PF + 8 + k}")
        e.wait(lg=("v", 8))
        e(f"v_mfma_f32_32x32x16_bf16 {vr(OA, 16)}, {ar(VF)}, {vr(PF)}, 0")
        e(f"v_mfma_f32_32x32x16_bf16 {vr(OA, 16)}, {ar(VF + 4)}, {vr(PF + 4)}, {vr(OA, 16)}")
        e(f"v_mfma_f32_32x32x16_bf16 {vr(OA, 16)}, {ar(VF + 64)}, {vr(PF + 8)}, {vr(OA, 16)}")
        e(f"v_mfma_f32_32x32x16_bf16 {vr(OA, 16)}, {ar(VF + 68)}, {vr(PF + 12)}, {vr(OA, 16)}")
        e("s_waitcnt lgkmcnt(0)")
        for t in range(1, 8):
            src = S[(t - 1) % 3]
            pf = PF + 16 + 8 * (t & 1)
            for r in range(8):
                e(f"v_exp_f32 v{src + r}, v{src + r}")
            if t + 2 < 8:
                e(f"v_mfma_f32_32x32x16_bf16 {vr(S[(t + 1) % 3], 16)}, {ar(KF + 8 * (t + 2))}, {vr(QF)}, {vr(NM, 16)}")
            for k in range(4):
                e(f"v_cvt_pk_bf16_f32 v{pf + k}, v{src + 2 * k}, v{src + 2 * k + 1}")
            for r in range(8, 12):
                e(f"v_exp_f32 v{src + r}, v{src + r}")
            e(f"v_mfma_f32_32x32x16_bf16 {vr(OA, 16)}, {ar(VF + 8 * t)}, {vr(pf)}, {vr(OA, 16)}")
            for r in range(12, 16):
                e(f"v_exp_f32 v{src + r}, v{src + r}")
            if t + 2 < 8:
                d = S[(t + 1) % 3]
                e(f"v_mfma_f32_32x32x16_bf16 {vr(d, 16)}, {ar(KF + 8 * (t + 2) + 4)}, {vr(QF + 4)}, {vr(d, 16)}")
            for k in range(4, 8):
                e(f"v_cvt_pk_bf16_f32 v{pf + k}, v{src + 2 * k}, v{src + 2 * k + 1}")
            e(f"v_mfma_f32_32x32x16_bf16 {vr(OA, 16)}, {ar(VF + 8 * t + 4)}, {vr(pf + 4)}, {vr(OA, 16)}")
        e(f"v_bfe_u32 v4, {vL}, 4, 1")
        e(f"v_lshlrev_b32 v4, 14, v4")
        e(f"v_lshrrev_b32 v5, 5, {vL}")
        e(f"v_lshl_add_u32 v4, v5, 8, v4")
        e(f"v_and_b32 v5, 15, {vL}")
        e(f"v_lshl_add_u32 v4, v5, 4, v4")
        e(f"s_lshl_b32 {sA}, {sT}, 5")
        e(f"s_add_u32 {sA}, {sA}, {sH}")
        e(f"s_lshl_b32 {sA}, {sA}, 10")
        e(f"s_add_u32 {sA}, {sA}, {WS_O}")
        e(f"s_lshl_b32 {sBt}, {sT}, 4")
        e(f"s_add_u32 {sBt}, {sBt}, {sH}")
        e(f"s_lshl_b32 {sBt}, {sBt}, 2")
        e(f"s_add_u32 {sBt}, {sBt}, {WS_FLO}")
        e(f"v_mov_b32 v5, v{OA + 12}")
        e(f"v_mov_b32 v6, v{OA + 12}")
        e("v_permlane32_swap_b32 v5, v6")
        e("v_rcp_f32 v6, v6")
        for r in range(16):
            e(f"v_mul_f32 v{OA + r}, v6, v{OA + r}")
        for k in range(8):
            e(f"v_cvt_pk_bf16_f32 v{PF + k}, v{OA + 2 * k}, v{OA + 2 * k + 1}")
        e(f"v_cndmask_b32 v{PF + 6}, v{PF + 6}, 0, {sHI}")
        e(f"v_cndmask_b32 v{PF + 7}, v{PF + 7}, 0, {sHI}")
        for f in range(2):
            e(f"buffer_store_dwordx4 {vr(PF + 4 * f)}, v4, {srd(SRD_WS)}, {sA} offen offset:{f * 512}{self.sm('o')}")
        self.stamp("attn")
        self.publish(sBt, "v7")
        self.stamp("opub")
        e(f"s_cmp_ge_u32 {sR}, 28")
        e("s_cbranch_scc1 L_fin")

    def wgu_addr(self):
        e = self.e
        e(f"v_lshrrev_b32 v12, 3, {vL}")
        e(f"v_and_b32 v5, 2, v12")
        e(f"v_lshlrev_b32 v5, 1, v5")
        e(f"v_and_b32 v6, 7, {vL}")
        e("v_xor_b32 v5, v5, v6")
        e("v_mul_u32_u24 v13, 896, v12")
        e("v_lshl_add_u32 v13, v5, 4, v13")
        e("v_mul_u32_u24 v12, 3584, v12")
        e("v_lshl_add_u32 v12, v5, 4, v12")

    def wgu_dma(self, pieces):
        e = self.e
        e(f"s_lshl_b32 {sC}, {sR}, 7")
        e(f"s_mul_i32 {sA}, {sW}, {8 * 3584}")
        e(f"s_add_u32 {sC}, {sC}, {sA}")
        e(f"s_lshl_b32 {sD}, {sW}, 10")
        for mat, n in pieces:
            e(f"s_add_u32 {sA}, {sC}, {n * 32 * 3584}")
            e(f"s_add_u32 {sBt}, {sD}, {(L_WG, L_WU)[mat] + n * 4096}")
            self.dma("v12", (SRD_WG, SRD_WU)[mat], sA, sBt, "wgu")

    def p3(self):
        e = self.e
        OB, WR, AC = 0, 64, 16
        GA, CB, XR = 32, 48, 64
        e("s_barrier")
        self.wgu_addr()
        self.wgu_dma([(0, n) for n in range(14)] + [(1, n) for n in range(11)])
        e(f"v_lshrrev_b32 v4, 5, {vL}")
        e(f"v_lshlrev_b32 v4, 4, v4")
        e(f"v_bfe_u32 v5, {vL}, 4, 1")
        e(f"v_lshl_add_u32 v4, v5, 2, v4")
        e(f"v_bfe_u32 v6, {vL}, 2, 2")
        e("v_add_u32 v4, v4, v6")
        e("v_lshlrev_b32 v4, 7, v4")
        e("v_lshrrev_b32 v6, 1, v6")
        e("v_lshl_add_u32 v5, v5, 1, v6")
        e(f"v_and_b32 v6, 3, {vL}")
        e("v_lshl_add_u32 v4, v6, 3, v4")
        e(f"v_add_u32 v4, {L_WO}, v4")
        for t in range(4):
            e(f"v_xor_b32 v6, {t}, v5")
            e(f"v_lshl_add_u32 v{8 + t}, v6, 5, v4")

        NWO = 12

        def rd_wo(hd, tiles=range(4)):
            for t in tiles:
                a = 8 + (t ^ (2 * (hd & 1)))
                d = WR + 16 * (hd % NWO) + 4 * t
                e(f"ds_read_b64_tr_b16 {ar(d, 2)}, v{a} offset:{hd * 3584}", ("wo", hd))
                e(f"ds_read_b64_tr_b16 {ar(d + 2, 2)}, v{a} offset:{hd * 3584 + 1024}", ("wo", hd))

        for hd in range(NWO - 1):
            rd_wo(hd)
        e(f"v_and_b32 v4, 15, {vL}")
        e(f"v_lshlrev_b32 v4, 2, v4")
        e(f"s_lshl_b32 {sA}, {sI}, 2")
        e(f"s_add_u32 {sE}, {sA}, {sRB}")
        e(f"s_lshl_b32 {sA}, {sE}, 1")
        e(f"s_lshr_b32 {sBt}, {sW}, 1")
        e(f"s_add_u32 {sA}, {sA}, {sBt}")
        e(f"s_mov_b32 s101, {sA}")
        e(f"s_lshl_b32 {sA}, {sA}, 6")
        e(f"s_add_u32 {sA}, {sA}, {WS_FLO}")
        self.poll("v4", sA, "v5")
        self.acquire()
        self.stamp("oflag")
        e(f"s_lshl_b32 {sA}, {sE}, 2")
        e(f"s_add_u32 {sA}, {sA}, {sW}")
        e(f"s_lshl_b32 {sA}, {sA}, 14")
        e(f"s_add_u32 {sA}, {sA}, {WS_O}")
        def ld_o(hd):
            if hd and hd % 4 == 0:
                e(f"s_add_u32 {sA}, {sA}, 4096")
            e(f"buffer_load_dwordx4 {ar(OB + 4 * hd)}, {vL16}, {srd(SRD_WS)}, {sA} offen offset:{(hd % 4) * 1024} sc1", ("o", hd))

        PRE = self.o.get("p3pre", 6)
        for hd in range(PRE):
            ld_o(hd)
        for hd in range(16):
            e.wait(vm=("o", hd), lg=("wo", hd))
            for t in range(4):
                c = "0" if hd == 0 else vr(AC + 4 * t)
                e(f"v_mfma_f32_16x16x32_bf16 {vr(AC + 4 * t)}, {ar(WR + 16 * (hd % NWO) + 4 * t)}, {ar(OB + 4 * hd)}, {c}")
                if t == 0 and hd + PRE < 16:
                    ld_o(hd + PRE)
                if hd + NWO - 1 < 16:
                    rd_wo(hd + NWO - 1, [t])
        self.stamp("oproj")
        e("s_barrier")
        self.wgu_dma([(1, n) for n in range(11, 14)])
        e(f"s_lshl_b32 {sA}, {sW}, 11")
        e(f"s_add_u32 {sA}, {sA}, {L_X1}")
        e(f"v_lshrrev_b32 v4, 2, {vL}")
        e(f"v_lshlrev_b32 v4, 7, v4")
        e(f"v_and_b32 v5, 3, {vL}")
        e(f"v_lshl_add_u32 v4, v5, 4, v4")
        e(f"v_add_u32 v8, {sA}, v4")
        e(f"v_and_b32 v4, 15, {vL}")
        e(f"v_lshlrev_b32 v4, 7, v4")
        e(f"v_lshrrev_b32 v5, 4, {vL}")
        e(f"v_lshl_add_u32 v4, v5, 3, v4")
        e(f"v_add_u32 v9, {sA}, v4")
        e("ds_write_b128 v8, v[240:243]")
        e("ds_write_b128 v8, v[244:247] offset:64")
        e(f"v_lshlrev_b32 v10, 4, v5")
        for t in range(4):
            e(f"ds_read_b128 {vr(GA + 4 * t)}, v10 offset:{L_GAB + 64 * t}")
        e(f"s_lshl_b32 {sA}, {sCG}, 7")
        e(f"v_add_u32 v10, {sA}, v10")
        for pp in range(2):
            e(f"ds_read_b128 {vr(XR + 16 + 4 * pp)}, v10 offset:{L_CVEC + 64 * pp}")
        for t in range(4):
            e(f"ds_read_b64 {vr(XR + 24 + 2 * t, 2)}, v9 offset:{32 * t}")
        e("s_waitcnt lgkmcnt(0)")
        for k in range(8):
            e(f"v_lshlrev_b32 v{XR + 2 * k}, 16, v{XR + 24 + k}")
            e(f"v_and_b32 v{XR + 2 * k + 1}, 0xffff0000, v{XR + 24 + k}")
            e(f"v_lshlrev_b32 v{CB + 2 * k}, 16, v{XR + 16 + k}")
            e(f"v_and_b32 v{CB + 2 * k + 1}, 0xffff0000, v{XR + 16 + k}")
        for k in range(16):
            e(f"v_fmac_f32 v{XR + k}, v{GA + k}, v{AC + k}")
        for k in range(8):
            e(f"v_cvt_pk_bf16_f32 v{XR + 16 + k}, v{XR + 2 * k}, v{XR + 2 * k + 1}")
        for k in range(8):
            e(f"v_lshlrev_b32 v{XR + 2 * k}, 16, v{XR + 16 + k}")
            e(f"v_and_b32 v{XR + 2 * k + 1}, 0xffff0000, v{XR + 16 + k}")
        for k in range(16):
            e(f"v_mul_f32 v{CB + k}, v{CB + k}, v{XR + k}")
        for k in range(8):
            e(f"v_cvt_pk_bf16_f32 v{AC + k}, v{CB + 2 * k}, v{CB + 2 * k + 1}")
        e(f"v_and_b32 v4, 15, {vL}")
        e(f"v_lshlrev_b32 v4, 4, v4")
        e(f"v_lshl_add_u32 v4, v5, 9, v4")
        e(f"s_mul_i32 {sA}, s101, 28672")
        e(f"s_lshl_b32 {sBt}, {sCG}, 12")
        e(f"s_add_u32 {sA}, {sA}, {sBt}")
        e(f"s_and_b32 {sBt}, {sW}, 1")
        e(f"s_lshl_b32 {sBt}, {sBt}, 8")
        e(f"s_add_u32 {sA}, {sA}, {sBt}")
        e(f"s_add_u32 {sA}, {sA}, {WS_Z}")
        for pp in range(2):
            e(f"buffer_store_dwordx4 {vr(AC + 4 * pp)}, v4, {srd(SRD_WS)}, {sA} offen offset:{pp * 2048}{self.sm('z')}")
        e(f"v_add_f32 v6, v{XR}, v{XR + 1}")
        e(f"v_add_f32 v7, v{XR + 2}, v{XR + 3}")
        for k in range(4, 16, 2):
            e(f"v_add_f32 v6, v6, v{XR + k}")
            e(f"v_add_f32 v7, v7, v{XR + k + 1}")
        e("v_add_f32 v6, v6, v7")
        self.reduce_hi2("v6", "v7")
        e(f"v_mul_f32 v11, {fbits(1.0 / 64)}, v6")
        e("v_mov_b32 v7, 0")
        e("v_mov_b32 v10, 0")
        for k in range(0, 16, 2):
            e(f"v_sub_f32 v{GA}, v{XR + k}, v11")
            e(f"v_sub_f32 v{GA + 1}, v{XR + k + 1}, v11")
            e(f"v_fmac_f32 v7, v{GA}, v{GA}")
            e(f"v_fmac_f32 v10, v{GA + 1}, v{GA + 1}")
        e("v_add_f32 v7, v7, v10")
        self.reduce_hi2("v7", "v10")
        e(f"s_mul_i32 {sA}, {sE}, 7")
        e(f"s_add_u32 {sA}, {sA}, {sCG}")
        e(f"s_lshl_b32 {sA}, {sA}, 9")
        e(f"s_lshl_b32 {sBt}, {sW}, 7")
        e(f"s_add_u32 {sA}, {sA}, {sBt}")
        e(f"s_add_u32 {sA}, {sA}, {WS_STAT}")
        e(f"v_lshlrev_b32 v4, 3, {vL}")
        e("s_mov_b64 exec, 0xffff")
        e(f"buffer_store_dwordx2 v[6:7], v4, {srd(SRD_WS)}, {sA} offen")
        e("s_mov_b64 exec, -1")
        for t in range(4):
            e(f"ds_write_b64 v9, {vr(XR + 16 + 2 * t, 2)} offset:{32 * t}")
        e(f"s_lshl_b32 {sA}, {sE}, 5")
        e(f"s_lshl_b32 {sBt}, {sCG}, 2")
        e(f"s_add_u32 {sA}, {sA}, {sBt}")
        e(f"s_add_u32 {sA}, {sA}, {sW}")
        e(f"s_lshl_b32 {sA}, {sA}, 2")
        e(f"s_add_u32 {sA}, {sA}, {WS_FLZ}")
        self.publish(sA, "v7")
        e("s_waitcnt lgkmcnt(0)")
        e("ds_read_b128 v[16:19], v8")
        e("ds_read_b128 v[20:23], v8 offset:64")
        e("s_waitcnt lgkmcnt(0)")
        self.stamp("zpub")

    def p4(self):
        e = self.e
        AC, BR, AR, WD = 128, 64, 224, 0
        XB, R2 = 112, 120
        e("s_barrier")
        e(f"v_lshrrev_b32 v4, 5, {vL}")
        e(f"v_lshlrev_b32 v4, 2, v4")
        e(f"v_bfe_u32 v5, {vL}, 2, 2")
        e("v_add_u32 v4, v4, v5")
        e("v_lshlrev_b32 v4, 7, v4")
        e(f"v_bfe_u32 v6, {vL}, 4, 1")
        e("v_lshl_add_u32 v4, v6, 5, v4")
        e(f"v_and_b32 v6, 3, {vL}")
        e("v_lshl_add_u32 v4, v6, 3, v4")
        e("v_lshrrev_b32 v5, 1, v5")
        e("v_lshl_add_u32 v8, v5, 6, v4")
        e("v_xor_b32 v9, 64, v8")
        e(f"v_add_u32 v10, {L_WU}, v8")
        e(f"v_add_u32 v11, {L_WU}, v9")
        e(f"s_lshl_b32 {sA}, {sW}, 13")
        e(f"s_add_u32 s99, {sA}, {L_STG}")
        e(f"v_add_u32 v24, s99, v8")
        e(f"v_add_u32 v25, s99, v9")
        e(f"v_add_u32 v8, {L_WG}, v8")
        e(f"v_add_u32 v9, {L_WG}, v9")

        def aoff(ks):
            return (32 * (ks >> 1) + 8 * (ks & 1)) * 128

        e(f"s_and_b32 {sA}, {sW}, 1")
        e(f"s_lshl_b32 {sA}, {sA}, 6")
        e(f"v_xor_b32 v26, {sA}, v8")
        e(f"s_lshr_b32 {sA}, {sW}, 1")
        e(f"s_mul_i32 {sA}, {sA}, {L_WU - L_WG}")
        e(f"v_add_u32 v26, {sA}, v26")
        e(f"v_and_b32 v4, 1, {vL}")
        e(f"v_mul_u32_u24 v4, 896, v4")
        e(f"v_lshrrev_b32 v5, 5, {vL}")
        e(f"v_lshl_add_u32 v27, v5, 4, v4")
        e(f"v_add_u32 v27, {L_CVEC}, v27")

        def rd_b(ks):
            d = AR + 8 * (ks % 4)
            e(f"ds_read_b128 {ar(d)}, v27 offset:{ks * 32}", ("b", ks))
            e(f"ds_read_b64_tr_b16 {ar(d + 4, 2)}, v26 offset:{aoff(ks)}", ("b", ks))
            e(f"ds_read_b64_tr_b16 {ar(d + 6, 2)}, v26 offset:{aoff(ks) + 2048}", ("b", ks))

        for ks in range(3):
            rd_b(ks)
        for ks in range(28):
            if ks + 3 < 28:
                rd_b(ks + 3)
            e.wait(lg=("b", ks))
            d = AR + 8 * (ks % 4)
            c = "0" if ks == 0 else vr(32, 16)
            e(f"v_mfma_f32_32x32x16_bf16 {vr(32, 16)}, {ar(d)}, {ar(d + 4)}, {c}")
        e("v_cvt_pk_bf16_f32 v4, v32, v33")
        e("v_lshlrev_b32 v5, 16, v4")
        e("v_and_b32 v6, 0xffff0000, v4")
        e("v_sub_f32 v5, v32, v5")
        e("v_sub_f32 v6, v33, v6")
        e("v_cvt_pk_bf16_f32 v5, v5, v6")
        e(f"s_mov_b32 {sA}, 0x05040100")
        e(f"s_mov_b32 {sBt}, 0x03020706")
        e(f"v_perm_b32 v48, v5, v4, {sA}")
        e("v_mov_b32 v49, v4")
        e(f"v_perm_b32 v50, v5, v4, {sBt}")
        e("v_mov_b32 v51, 0")
        for k in range(3):
            e(f"v_cndmask_b32 v{48 + k}, v{48 + k}, 0, {sHI}")
        e(f"s_lshl_b32 {sA}, {sW}, 10")
        e(f"s_add_u32 {sA}, {sA}, {L_XA}")
        e(f"v_add_u32 v4, {sA}, {vL16}")
        e("ds_write_b128 v4, v[48:51]")
        e("s_waitcnt lgkmcnt(0)")
        e("s_barrier")
        self.stamp("bias")

        def rd_a(ks):
            d = AR + 16 * (ks % 2)
            if ks == 28:
                e(f"v_add_u32 v4, {L_XA}, {vL16}")
                for t in range(4):
                    e(f"ds_read_b128 {ar(d + 4 * t)}, v4 offset:{t * 1024}", ("a", ks, t))
                return
            for t in range(4):
                e(f"ds_read_b64_tr_b16 {ar(d + 4 * t, 2)}, v{8 + t} offset:{aoff(ks)}", ("a", ks, t))
                e(f"ds_read_b64_tr_b16 {ar(d + 4 * t + 2, 2)}, v{8 + t} offset:{aoff(ks) + 2048}", ("a", ks, t))

        rd_a(0)
        e(f"v_min_u32 v4, 27, {vL}")
        e(f"v_lshlrev_b32 v4, 2, v4")
        e(f"s_lshl_b32 {sE}, {sI}, 2")
        e(f"s_add_u32 {sE}, {sE}, {sW}")
        e(f"s_lshl_b32 {sA}, {sE}, 7")
        e(f"s_add_u32 {sA}, {sA}, {WS_FLZ}")
        self.poll("v4", sA, "v5")
        self.acquire()
        self.stamp("zflag")
        NB = 6
        e(f"s_mul_i32 s88, {sE}, 57344")
        e(f"s_add_u32 s88, s88, {WS_Z}")
        e(f"s_add_u32 s89, s88, 28672")

        def ld_b(ks, tts=(0, 1)):
            for tt in tts:
                if ks and ks % 4 == 0:
                    e(f"s_add_u32 s{88 + tt}, s{88 + tt}, 4096")
                e(f"buffer_load_dwordx4 {vr(BR + 8 * (ks % NB) + 4 * tt)}, {vL16}, {srd(SRD_WS)}, s{88 + tt} offen offset:{(ks % 4) * 1024} sc1", ("z", ks))

        for ks in range(NB - 1):
            ld_b(ks)
        e(f"s_mul_i32 {sA}, {sE}, 3584")
        e(f"s_add_u32 {sA}, {sA}, {WS_STAT}")
        e(f"v_lshlrev_b32 v4, 3, {vL}")
        for cg in range(7):
            e(f"buffer_load_dwordx2 {vr(32 + 2 * cg, 2)}, v4, {srd(SRD_WS)}, {sA} offen offset:{cg * 512} sc1", "stat")
        e(f"s_mul_i32 s90, {sW}, {448 * 896}")
        e(f"s_lshl_b32 {sA}, {sCG}, 7")
        e(f"s_add_u32 s90, s90, {sA}")

        def wd_dma(j):
            for hlf in range(2):
                e(f"s_add_u32 {sA}, s90, {(16 * j + 8 * hlf) * 896}")
                e(f"s_add_u32 {sBt}, s99, {(j % 4) * 2048 + hlf * 1024}")
                self.dma("v13", SRD_WD, sA, sBt, ("wd", j))

        def wd_rd(j):
            for ct in range(2):
                d = WD + 8 * j + 4 * ct
                e(f"ds_read_b64_tr_b16 {ar(d, 2)}, v{24 + ct} offset:{(j % 4) * 2048}", ("wdr", j))
                e(f"ds_read_b64_tr_b16 {ar(d + 2, 2)}, v{24 + ct} offset:{(j % 4) * 2048 + 1024}", ("wdr", j))

        def wd_dma1(j, hlf):
            if hlf == 0:
                if j >= 4:
                    e.wait(lg=("wdr", j - 4))
                e(f"s_add_u32 m0, s99, {(j % 4) * 2048}")
                e(f"s_add_u32 s91, s90, {16 * j * 896}")
                e(f"buffer_load_dwordx4 v13, {srd(SRD_WD)}, s91 offen lds", ("wd", j))
            else:
                e(f"buffer_load_dwordx4 v14, {srd(SRD_WD)}, s91 offen offset:1024 lds", ("wd", j))

        def wd_rd1(j, n):
            if n == 0:
                e.wait(vm=("wd", j))
            ct, hf = n >> 1, n & 1
            e(f"ds_read_b64_tr_b16 {ar(WD + 8 * j + 4 * ct + 2 * hf, 2)}, v{24 + ct} offset:{(j % 4) * 2048 + 1024 * hf}", ("wdr", j))

        def rd_a1(ks, t, hf):
            d = AR + 16 * (ks % 2)
            if ks == 28:
                if hf == 0:
                    e(f"ds_read_b128 {ar(d + 4 * t)}, v28 offset:{t * 1024}", ("a", ks, t))
                return
            e(f"ds_read_b64_tr_b16 {ar(d + 4 * t + 2 * hf, 2)}, v{8 + t} offset:{aoff(ks) + 2048 * hf}", ("a", ks, t))

        e(f"v_add_u32 v28, {L_XA}, {vL16}")
        e(f"v_add_u32 v14, {8 * 896 - 1024}, v13")

        def stats():
            e = self.e
            e("v_add_f32 v4, v32, v34")
            e("v_add_f32 v5, v36, v38")
            e("v_add_f32 v6, v40, v42")
            e("v_add_f32 v4, v4, v5")
            e("v_add_f32 v6, v6, v44")
            e("v_add_f32 v4, v4, v6")
            e(f"v_mul_f32 v4, {fbits(1.0 / 448)}, v4")
            e("v_add_f32 v5, v33, v35")
            e("v_add_f32 v6, v37, v39")
            e("v_add_f32 v7, v41, v43")
            e("v_add_f32 v5, v5, v6")
            e("v_add_f32 v7, v7, v45")
            e("v_add_f32 v5, v5, v7")
            e(f"v_mov_b32 v7, {fbits(1.0 / 64)}")
            e("v_mov_b32 v6, 0")
            for cg in range(7):
                e(f"v_fma_f32 v46, v{32 + 2 * cg}, v7, -v4")
                e("v_fmac_f32 v6, v46, v46")
            e(f"v_mul_f32 v6, {fbits(64.0)}, v6")
            e("v_add_f32 v5, v5, v6")
            e(f"v_mul_f32 v5, {fbits(1.0 / 448)}, v5")
            e(f"v_add_f32 v5, {fbits(1e-5)}, v5")
            e(f"v_rcp_f32 v{R2}, v5")
            e("v_sqrt_f32 v5, v5")
            e("v_sub_f32 v4, 0, v4")
            e("v_cvt_pk_bf16_f32 v6, v4, v5")
            e("v_lshlrev_b32 v7, 16, v6")
            e("v_and_b32 v46, 0xffff0000, v6")
            e("v_sub_f32 v4, v4, v7")
            e("v_sub_f32 v5, v5, v46")
            e("v_cvt_pk_bf16_f32 v7, v4, v5")
            e(f"s_mov_b32 {sA}, 0x01000100")
            e(f"s_mov_b32 {sBt}, 0x03020504")
            e(f"s_mov_b32 {sC}, 0x07060302")
            e(f"v_perm_b32 v{XB}, v7, v6, {sA}")
            e(f"v_perm_b32 v{XB + 1}, v7, v6, {sBt}")
            e(f"v_perm_b32 v{XB + 2}, v7, v6, {sC}")
            e(f"v_mov_b32 v{XB + 3}, 0")
            e(f"v_mov_b32 v{XB + 7}, 0")
            for k in range(3):
                e(f"v_mov_b32 v{XB + 4 + k}, v{XB + k}")
            e(f"v_mov_b32 v{R2 + 1}, v{R2}")
            for k in range(3):
                e(f"v_permlane32_swap_b32 v{XB + k}, v{XB + 4 + k}")
            e(f"v_permlane32_swap_b32 v{R2}, v{R2 + 1}")

        main, fill = [], {}
        for ks in range(29):
            d = AR + 16 * (ks % 2)
            for t in range(4):
                for tt in range(2):
                    def m(ks=ks, t=t, tt=tt, d=d):
                        e.wait(vm=("z", ks) if (t == 0 and tt == 0 and ks < 28) else None, lg=("a", ks, t) if tt == 0 else None)
                        acc = AC + 64 * tt + 16 * t
                        b = vr(BR + 8 * (ks % NB) + 4 * tt) if ks < 28 else vr(XB + 4 * tt)
                        c = "0" if ks == 0 else vr(acc, 16)
                        e(f"v_mfma_f32_32x32x16_bf16 {vr(acc, 16)}, {ar(d + 4 * t)}, {b}, {c}")
                    main.append(m)
            g = 8 * ks
            if ks + 1 <= 28:
                for t in range(4):
                    for hf in range(2):
                        fill.setdefault(g + 2 * t + hf, []).append(lambda ks=ks, t=t, hf=hf: rd_a1(ks + 1, t, hf))
            if ks + NB - 1 < 28:
                for tt in range(2):
                    fill.setdefault(g + 4 * tt, []).append(lambda ks=ks, tt=tt: ld_b(ks + NB - 1, [tt]))
            if ks < 28:
                for hlf in range(2):
                    fill.setdefault(g + 2 + 4 * hlf, []).append(lambda ks=ks, hlf=hlf: wd_dma1(ks, hlf))
            if ks >= 3:
                for n in range(4):
                    fill.setdefault(g + 1 + 2 * n, []).append(lambda ks=ks, n=n: wd_rd1(ks - 3, n))
        st = []
        real = self.e
        rec = Emit()
        self.e = e = rec
        stats()
        self.e = e = real
        lines = [l.strip() for l in rec.lines]
        fill.setdefault(8 * 8, []).append(lambda: e.wait(vm="stat"))
        self.spread(fill, [lambda l=l: e(l) for l in lines], 8 * 8 + 1, 8 * 24)
        self.merge(main, fill)
        for j in (26, 27):
            e.wait(vm=("wd", j))
            wd_rd(j)
        self.stamp("gemm4")
        e(f"s_mul_i32 {sA}, {sE}, {2 * 114688}")
        e(f"s_lshl_b32 {sBt}, {sR}, 12")
        e(f"s_add_u32 {sA}, {sA}, {sBt}")
        e(f"s_add_u32 {sA}, {sA}, {WS_HID}")
        for tt in range(2):
            for ct in range(2):
                g, u = AC + 64 * tt + 16 * ct, AC + 64 * tt + 32 + 16 * ct
                for r in range(16):
                    e(f"v_max_f32 v{g + r}, 0, v{g + r}")
                    e(f"v_mul_f32 v{u + r}, v{R2 + tt}, v{u + r}")
                d = BR + 16 * tt + 8 * ct
                for k in range(8):
                    e(f"v_mul_f32 v{g + 2 * k}, v{g + 2 * k}, v{u + 2 * k}")
                    e(f"v_mul_f32 v{g + 2 * k + 1}, v{g + 2 * k + 1}, v{u + 2 * k + 1}")
                    e(f"v_cvt_pk_bf16_f32 v{d + k}, v{g + 2 * k}, v{g + 2 * k + 1}")
                for s in range(2):
                    e(f"buffer_store_dwordx4 {vr(d + 4 * s)}, {vL16}, {srd(SRD_WS)}, {sA} offen offset:{(2 * ct + s) * 1024}{self.sm('d')}")
            if tt == 0:
                e(f"s_add_u32 {sA}, {sA}, 114688")
        e(f"s_lshl_b32 {sA}, {sE}, 5")
        e(f"s_add_u32 {sA}, {sA}, {sR}")
        e(f"s_lshl_b32 {sA}, {sA}, 2")
        e(f"s_add_u32 {sA}, {sA}, {WS_FLD}")
        self.stamp("epi4")
        self.publish(sA, "v7")
        self.stamp("hidpub")

    def p5(self):
        e = self.e
        AC, WD = 128, 0
        bufs = [vr(64 + 4 * k) for k in range(16)] + [vr(192 + 4 * k) for k in range(16)] + [ar(224 + 4 * k) for k in range(8)]
        NB = len(bufs) // 2
        e(f"s_lshl_b32 {sE}, {sI}, 2")
        e(f"s_add_u32 {sE}, {sE}, {sRB}")
        e(f"v_min_u32 v4, 6, {vL}")
        e(f"v_lshlrev_b32 v4, 2, v4")
        e(f"s_lshl_b32 {sA}, {sE}, 7")
        e(f"s_mul_i32 {sBt}, {sW}, 28")
        e(f"s_add_u32 {sA}, {sA}, {sBt}")
        e(f"s_add_u32 {sA}, {sA}, {WS_FLD}")
        e("s_waitcnt lgkmcnt(0)")
        self.poll("v4", sA, "v5")
        self.acquire()
        self.stamp("hidflag")
        e(f"s_mul_i32 s88, {sE}, {2 * 114688}")
        e(f"s_mul_i32 {sBt}, {sW}, 28672")
        e(f"s_add_u32 s88, s88, {sBt}")
        e(f"s_add_u32 s88, s88, {WS_HID}")
        e(f"s_add_u32 s89, s88, 114688")

        def ld_b(j, tts=(0, 1)):
            for tt in tts:
                if j and j % 4 == 0:
                    e(f"s_add_u32 s{88 + tt}, s{88 + tt}, 4096")
                e(f"buffer_load_dwordx4 {bufs[2 * (j % NB) + tt]}, {vL16}, {srd(SRD_WS)}, s{88 + tt} offen offset:{(j % 4) * 1024} sc1", ("d", j))

        PRE = self.o.get("p5pre", 5)
        for j in range(PRE):
            ld_b(j)
        e(f"v_and_b32 v4, 31, {vL}")
        e(f"v_and_b32 v5, 7, {vL}")
        e(f"v_and_b32 v6, 4, {vL}")
        e("v_lshl_add_u32 v5, v6, 1, v5")
        e(f"v_lshrrev_b32 v6, 5, {vL}")
        e("v_xor_b32 v5, v5, v6")
        e("v_lshlrev_b32 v4, 8, v4")
        e(f"s_lshl_b32 {sA}, {sW}, 14")
        e(f"v_add_u32 v4, {sA}, v4")
        for p in range(8):
            e(f"v_xor_b32 v6, {2 * p}, v5")
            e(f"v_lshl_add_u32 v{32 + p}, v6, 4, v4")
        e(f"v_lshrrev_b32 v4, 2, {vL}")
        e("v_and_b32 v5, 7, v4")
        e("v_and_b32 v6, 4, v4")
        e("v_lshl_add_u32 v5, v6, 1, v5")
        e(f"v_and_b32 v6, 3, {vL}")
        e("v_lshlrev_b32 v7, 1, v6")
        e("v_xor_b32 v5, v5, v7")
        e("v_lshlrev_b32 v4, 8, v4")
        e(f"s_lshl_b32 {sA}, {sW}, 12")
        e(f"v_add_u32 v4, {sA}, v4")
        for n, p in enumerate((0, 1, 8, 9)):
            e(f"v_xor_b32 v7, {p}, v5")
            e(f"v_lshl_add_u32 v{40 + n}, v7, 4, v4")
        e("v_lshlrev_b32 v6, 5, v6")
        for n in range(4):
            e(f"ds_read_b128 {vr(48 + 4 * n)}, v6 offset:{L_GAB + 256 + (n >> 1) * 128 + (n & 1) * 16}")
        nxt = PRE
        for j in range(28):
            e.wait(vm=("d", j))
            for tt in range(2):
                for ct in range(2):
                    acc = AC + 32 * tt + 16 * ct
                    c = "0" if j == 0 else vr(acc, 16)
                    e(f"v_mfma_f32_32x32x16_bf16 {vr(acc, 16)}, {ar(WD + 8 * j + 4 * ct)}, {bufs[2 * (j % NB) + tt]}, {c}")
                    if ct == 0 and nxt < 28:
                        ld_b(nxt, [tt])
            nxt += 1
        self.stamp("gemm5")
        e("s_waitcnt lgkmcnt(0)")
        e("s_barrier")
        for tt in range(2):
            for ct in range(2):
                for q in range(4):
                    e(f"ds_write_b128 v{32 + 4 * ct + q}, {vr(AC + 32 * tt + 16 * ct + 4 * q)} offset:{L_RED + tt * 8192}")
        for k in range(8):
            e(f"v_lshlrev_b32 v{64 + 2 * k}, 16, v{16 + k}")
            e(f"v_and_b32 v{65 + 2 * k}, 0xffff0000, v{16 + k}")
        e("s_waitcnt lgkmcnt(0)")
        e("s_barrier")
        for n in range(4):
            for s in range(4):
                e(f"ds_read_b128 {vr(128 + 16 * n + 4 * s)}, v{40 + n} offset:{L_RED + s * 16384}", ("r", n))
        for n in range(4):
            e.wait(lg=("r", n))
            b = 128 + 16 * n
            for k in range(4):
                e(f"v_add_f32 v{b + k}, v{b + k}, v{b + 4 + k}")
                e(f"v_add_f32 v{b + 8 + k}, v{b + 8 + k}, v{b + 12 + k}")
            for k in range(4):
                e(f"v_add_f32 v{b + k}, v{b + k}, v{b + 8 + k}")
            for k in range(4):
                e(f"v_fmac_f32 v{64 + 4 * n + k}, v{48 + 4 * n + k}, v{b + k}")
            if n == 0 and self.o.get("dbg_one"):
                e(f"s_lshl_b32 {sA}, s2, 2")
                e(f"s_add_u32 {sA}, {sA}, {sW}")
                e(f"v_add_u32 v4, {sA}, {vL}")
                e("v_cmp_eq_u32 vcc, 0, v4")
                e(f"v_mov_b32 v5, {fbits(self.o['dbg_one'] / 1000.0)}")
                e("v_cndmask_b32 v5, 0, v5, vcc")
                e("v_add_f32 v65, v65, v5")
            if self.o.get("dbg_scale"):
                for k in range(4):
                    e(f"v_mul_f32 v{64 + 4 * n + k}, {fbits(1 + self.o['dbg_scale'] / 1000.0)}, v{64 + 4 * n + k}")
            e(f"v_cvt_pk_bf16_f32 v{80 + 2 * n}, v{64 + 4 * n}, v{65 + 4 * n}")
            e(f"v_cvt_pk_bf16_f32 v{81 + 2 * n}, v{66 + 4 * n}, v{67 + 4 * n}")
            if n & 1:
                e(f"buffer_store_dwordx4 {vr(80 + 4 * (n >> 1))}, v15, {srd(SRD_OUT)}, s100 offen offset:{64 * (n >> 1)}{self.sm('out')}")
        self.stamp("end")

    def finish(self):
        e = self.e
        e("L_fin:")
        if self.ts:
            e("s_lshl_b32 s88, s2, 2")
            e(f"s_add_u32 s88, s88, {sW}")
            e("s_lshl_b32 s88, s88, 8")
            e(f"s_add_u32 s88, s88, {WS_TS}")
            e(f"v_lshlrev_b32 v4, 2, {vL}")
            e(f"buffer_store_dword {vTS}, v4, {srd(SRD_WS)}, s88 offen")
            if self.o.get("dbgts"):
                e(f"v_not_b32 v5, {vTS}")
                e(f"v_cmp_eq_u32 vcc, 0, {vL}")
                e(f"v_cndmask_b32 v5, {vTS}, v5, vcc")
                e("v_add_u32 v4, 4, v4")
                e("s_mov_b64 exec, 0x7fff")
                e(f"buffer_atomic_umax v5, v4, {srd(SRD_DBG)}, 0 offen sc1")
        e("L_end:")
        e("s_endpgm")

    def build(self):
        phases = [self.entry, self.front, self.f1, self.p1, self.late_consts, self.p2, self.p3, self.p4, self.p5]
        for ph in phases:
            self.e(f"; ---- {ph.__name__}")
            ph()
            if self.stop_after == ph.__name__:
                break
        self.finish()
        body, nops = self.e.text()
        head = open(f"cdna_kernels/{NAME}.s.ref").read().split("; Override launch")[0]
        txt = head
        txt += f"; @launch grid=(256,1,1) block=(256,1,1) lds={LDS_BYTES}\n"
        txt += '.amdgcn_target "amdgcn-amd-amdhsa--gfx950"\n.text\n'
        txt += f".globl {NAME}_kernel\n.p2align 8\n.type {NAME}_kernel,@function\n{NAME}_kernel:\n"
        txt += body
        txt += '.section .rodata,"a"\n.p2align 6\n'
        txt += f".amdhsa_kernel {NAME}_kernel\n"
        txt += ("  .amdhsa_next_free_vgpr 512\n  .amdhsa_next_free_sgpr 102\n  .amdhsa_accum_offset 256\n"
                "  .amdhsa_group_segment_fixed_size 0\n  .amdhsa_kernarg_size 96\n  .amdhsa_user_sgpr_count 2\n"
                "  .amdhsa_user_sgpr_kernarg_segment_ptr 1\n  .amdhsa_system_sgpr_workgroup_id_x 1\n"
                "  .amdhsa_float_denorm_mode_32 3\n"
                ".end_amdhsa_kernel\n")
        return txt, nops


def parse_opts(args):
    o = {}
    for a in args:
        k, v = a.split("=")
        o[k] = int(v)
    return o


if __name__ == "__main__":
    out = sys.argv[1]
    o = parse_opts(sys.argv[2:])
    g = Gen(ts=bool(o.pop("ts", 0)), opts=o)
    txt, nops = g.build()
    open(out, "w").write(txt)
    if g.ts:
        open(out + ".ts", "w").write("\n".join(g.ts_names))
    print("written", out, "lines", txt.count("\n"), "nop pads", nops)
```

```python
import math
import struct
import sys

sys.path.insert(0, "work")
from emit import Emit

NAME = "adaLN_cond__sliding_block__glu_gated_reglu__prompt"

WS_EPOCH = 0x0
WS_XCC = 0x400
WS_FLH = 0x1000
WS_FLO = 0x2000
WS_FLZ = 0x3000
WS_FLD = 0x4000
WS_FLXA = 0x6000
WS_FLW = 0x7000
WS_FLKV = 0x9000
WS_MODP = 0x10000
WS_STAT = 0x20000
WS_TS = 0x40000
WS_XA = 0x80000
WS_H = 0x100000
WS_Z = WS_H
WS_O = 0x300000
WS_KV = 0x500000
WS_HID = 0x900000
WS_WD = 0x1000000
WS_SIZE = 0x1200000

L_CVEC = 0
L_MODR = 0
L_GAB = 1792
L_WKV, L_WQ = 3584, 60928
L_KV = 3584
L_XS = 52736
L_WO = 3584
L_PAD = 60928
L_SCR = 155648
L_HX = 90112
L_HS = 147456
L_X1 = 19968
L_RA = 28160
L_RB = 65536
LDS_BYTES = 163840


def w4_base(p):
    if p <= 8:
        return 65536 + (p + 3) * 8192
    if p <= 11:
        return 65536 + (p - 9) * 8192
    return 3584 + (p - 12) * 8192


SRD_X, SRD_WQKV, SRD_WO, SRD_WG, SRD_WU, SRD_WD = 4, 8, 12, 16, 20, 24
SRD_C, SRD_WM, SRD_OUT, SRD_DBG, SRD_WS = 28, 32, 36, 40, 44
sI, sR, sW, sH, sB, sT, sTAG, sFAST = "s48", "s49", "s50", "s51", "s52", "s53", "s54", "s55"
sA, sBt, sC, sD, sE = "s56", "s57", "s58", "s59", "s60"
sRB, sCG, sSPIN = "s61", "s62", "s63"
SMASK = 64
sHI, sHIp = "s[96:97]", 96
sTSp = 0
sADJ = "s3"
sFG = "s98"

vL, vL16, vTS, vE = "v0", "v1", "v2", "v3"

SPIN_MAX = 1 << 17


def srd(n):
    return f"s[{n}:{n + 3}]"


def vr(n, k=4):
    return f"v[{n}:{n + k - 1}]" if k > 1 else f"v{n}"


def ar(n, k=4):
    return f"a[{n}:{n + k - 1}]" if k > 1 else f"a{n}"


def fbits(x):
    return "0x%08x" % struct.unpack("<I", struct.pack("<f", x))[0]


class Gen:
    def __init__(self, ts=False, stop_after=None, opts=None):
        self.e = Emit()
        self.ts = ts
        self.stop_after = stop_after
        self.o = dict(opts or {})
        self.nts = 0
        self.ts_names = []

    def stamp(self, name, again=False):
        if not self.ts:
            return
        if self.o.get("dbgts") and name not in ("start", "tag", "modpub", "ln1", "xcc", "hpub", "kvgemm", "kvgot", "attn", "oflag", "zpub", "zflag", "gemm4", "hidflag", "end"):
            return
        e = self.e
        if again:
            self.nts_keep, self.nts = self.nts, self.ts_names.index(name)
        e(f"s_memrealtime s[{sTSp}:{sTSp + 1}]")
        e("s_waitcnt lgkmcnt(0)")
        e(f"v_writelane_b32 {vTS}, s{sTSp}, {self.nts}")
        if self.o.get("clk"):
            e(f"s_memtime s[{sTSp}:{sTSp + 1}]")
            e("s_waitcnt lgkmcnt(0)")
            e(f"v_writelane_b32 {vTS}, s{sTSp}, {self.nts + 32}")
        if again:
            self.nts = self.nts_keep
            return
        self.ts_names.append(name)
        self.nts += 1

    def poll(self, voff, soff, vtmp, imm=0):
        e = self.e
        lp, dn = e.label("poll"), e.label("polled")
        e(f"s_mov_b32 {sSPIN}, 0")
        e(f"{lp}:")
        e(f"buffer_load_dword {vtmp}, {voff}, {srd(SRD_WS)}, {soff} offen offset:{imm} sc1")
        e(f"s_add_u32 {sSPIN}, {sSPIN}, 1")
        e(f"s_cmp_ge_u32 {sSPIN}, {SPIN_MAX}")
        e("s_waitcnt vmcnt(0)")
        e(f"s_cbranch_scc1 {dn}")
        e(f"v_cmp_ne_u32 vcc, {sTAG}, {vtmp}")
        e(f"s_cbranch_vccnz {lp}")
        e(f"{dn}:")

    def acquire(self):
        e = self.e
        sk = e.label("acq")
        e(f"s_cmp_lg_u32 {sFAST}, 0")
        e(f"s_cbranch_scc1 {sk}")
        e("buffer_inv sc1")
        e("s_waitcnt vmcnt(0)")
        e(f"{sk}:")

    def publish(self, soff, vtmp, local=True, second=None):
        e = self.e
        e("s_waitcnt vmcnt(0)")
        e(f"v_mov_b32 {vtmp}, {sTAG}")
        if local:
            slow, dn = e.label("slowpub"), e.label("pub")
            e(f"s_cmp_lg_u32 {sFAST}, 0")
            e(f"s_cbranch_scc0 {slow}")
            e("s_mov_b64 exec, 1")
            e(f"buffer_store_dword {vtmp}, off, {srd(SRD_WS)}, {soff}")
            if second:
                e(f"buffer_store_dword {vtmp}, off, {srd(SRD_WS)}, {soff} offset:{second}")
            e(f"s_branch {dn}")
            e(f"{slow}:")
            e("buffer_wbl2 sc1")
            e("s_waitcnt vmcnt(0)")
            e("s_mov_b64 exec, 1")
            e(f"buffer_store_dword {vtmp}, off, {srd(SRD_WS)}, {soff} sc1")
            if second:
                e(f"buffer_store_dword {vtmp}, off, {srd(SRD_WS)}, {soff} offset:{second} sc1")
            e(f"{dn}:")
        else:
            e("s_mov_b64 exec, 1")
            e(f"buffer_store_dword {vtmp}, off, {srd(SRD_WS)}, {soff} sc1")
        e("s_mov_b64 exec, -1")
        e.vm = ["flag"]

    def round_bf16(self, regs, tmp):
        e = self.e
        for a, b in zip(regs[::2], regs[1::2]):
            e(f"v_cvt_pk_bf16_f32 {tmp}, {a}, {b}")
            e(f"v_lshlrev_b32 {a}, 16, {tmp}")
            e(f"v_and_b32 {b}, 0xffff0000, {tmp}")

    def dma(self, voff, srdn, soff, lds, tag, mods=""):
        e = self.e
        e(f"s_mov_b32 m0, {lds}")
        e(f"buffer_load_dwordx4 {voff}, {srd(srdn)}, {soff} offen {mods} lds", tag)

    def sm(self, what):
        return {0: "", 1: " sc1", 2: " nt", 3: " sc0 sc1"}[self.o.get("sm_" + what, 1 if what == "h" else 0)]

    def merge(self, main, fill):
        for i, m in enumerate(main):
            m()
            for f in fill.get(i, []):
                f()

    @staticmethod
    def spread(fill, items, lo, hi):
        n = len(items)
        for k, it in enumerate(items):
            fill.setdefault(lo + (k * (hi - lo)) // max(n, 1), []).append(it)

    def entry(self):
        e = self.e
        e("s_cmp_ge_u32 s2, 256")
        e("s_cbranch_scc1 L_end")
        e("s_load_dwordx16 s[64:79], s[0:1], 0")
        e("s_load_dwordx8 s[80:87], s[0:1], 64")
        K = NAME + "_kernel"
        e("s_getpc_b64 s[88:89]")
        e("L_pc:")
        e(f"s_lshr_b32 {sR}, s2, 3")
        e(f"s_add_u32 {sR}, {sR}, 28")
        e(f"s_and_b32 {sR}, {sR}, 31")
        e(f"s_mul_i32 {sA}, {sR}, 12")
        e(f"s_cmp_ge_u32 {sR}, 28")
        e(f"s_cselect_b32 {sBt}, (L_helper-L_pc)/128, 0")
        e("v_min_u32 v4, 11, v0")
        e(f"v_add_u32 v4, {sA}, v4")
        e("v_and_b32 v5, 63, v0")
        e(f"v_add_u32 v5, {sBt}, v5")
        e("v_cmp_gt_u32 vcc, 64, v0")
        e("v_cndmask_b32 v4, v5, v4, vcc")
        e("v_lshlrev_b32 v4, 7, v4")
        e("v_min_u32 v4, L_end-L_pc, v4")
        e("v_cmp_gt_u32 vcc, 128, v0")
        e("s_and_saveexec_b64 s[90:91], vcc")
        e("s_cbranch_execz L_nopf")
        e("global_load_dword v127, v4, s[88:89]")
        e("L_nopf:")
        e("s_mov_b64 exec, -1")
        e.vm = []
        if self.ts:
            e(f"v_mov_b32 {vTS}, 0")
        self.stamp("start")
        e(f"v_lshrrev_b32 v4, 6, v0")
        e(f"v_and_b32 {vL}, 63, v0")
        e(f"v_readfirstlane_b32 {sW}, v4")
        e(f"v_lshlrev_b32 {vL16}, 4, {vL}")
        e(f"s_and_b32 {sI}, s2, 7")
        e(f"s_lshr_b32 {sH}, {sR}, 1")
        e(f"s_sub_u32 {sA}, {sR}, 28")
        e(f"s_lshl_b32 {sA}, {sA}, 3")
        e(f"s_add_u32 {sA}, {sA}, {sI}")
        e(f"s_min_u32 {sA}, {sA}, 27")
        e(f"s_cmp_lt_u32 {sR}, 28")
        e(f"s_cselect_b32 {sFG}, {sR}, {sA}")
        e(f"s_and_b32 {sB}, {sR}, 1")
        e(f"s_lshl_b32 {sT}, {sI}, 1")
        e(f"s_add_u32 {sT}, {sT}, {sB}")
        e(f"s_lshl_b32 {sT}, {sT}, 2")
        e(f"s_add_u32 {sT}, {sT}, {sW}")
        e(f"s_mul_i32 {sRB}, {sR}, 37")
        e(f"s_lshr_b32 {sRB}, {sRB}, 8")
        e(f"s_mul_i32 {sA}, {sRB}, 7")
        e(f"s_sub_u32 {sCG}, {sR}, {sA}")
        e(f"s_cmp_eq_u32 {sH}, 15")
        e(f"s_cselect_b32 {sADJ}, 8, 0")
        e(f"s_mov_b32 s{sHIp}, 0")
        e(f"s_mov_b32 s{sHIp + 1}, -1")
        sizes = {SRD_X: 1835008, SRD_WQKV: 1204224, SRD_WO: 401408, SRD_WG: 1605632, SRD_WU: 1605632, SRD_WD: 1605632,
                 SRD_C: 896, SRD_WM: 2408448, SRD_OUT: 1835008, SRD_DBG: 256, SRD_WS: WS_SIZE}
        for n, sz in sizes.items():
            e(f"s_mov_b32 s{n + 2}, {sz}")
            e(f"s_mov_b32 s{n + 3}, 0x00020000")
        e("s_waitcnt lgkmcnt(0)")
        src = {SRD_WS: 86, SRD_C: 78, SRD_WM: 80, SRD_X: 64, SRD_WQKV: 66, SRD_WO: 68, SRD_WG: 72, SRD_WU: 74, SRD_WD: 76,
               SRD_OUT: 82, SRD_DBG: 84}
        for n, s in src.items():
            e(f"s_mov_b64 s[{n}:{n + 1}], s[{s}:{s + 1}]")

    def reduce_hi3(self, a, t):
        e = self.e
        e(f"v_add_f32_dpp {a}, {a}, {a} row_ror:8 row_mask:0xf bank_mask:0xf")
        self.reduce_hi2(a, t)

    def reduce_hi2(self, a, t, op="v_add_f32"):
        e = self.e
        e(f"v_mov_b32 {t}, {a}")
        e(f"v_permlane16_swap_b32 {a}, {t}")
        e(f"{op} {a}, {a}, {t}")
        e(f"v_mov_b32 {t}, {a}")
        e(f"v_permlane32_swap_b32 {a}, {t}")
        e(f"{op} {a}, {a}, {t}")

    def gather_issue(self, voff, g0):
        e = self.e
        for q in range(4):
            e(f"s_mov_b32 {sA}, {WS_MODP + q * 10752}")
            e(f"buffer_load_dwordx4 {vr(g0 + 4 * q)}, {voff}, {srd(SRD_WS)}, {sA} offen sc1", "gath")

    def gather_finish(self, voff, g0, t0):
        e = self.e
        lp, dn = e.label("gath"), e.label("gathd")
        e(f"s_mov_b32 {sSPIN}, 0")
        e(f"s_mov_b32 {sD}, 0x0c0c0400")
        e(f"s_mov_b32 {sE}, 0x04000c0c")
        e.wait(vm="gath")
        keep = list(e.vm)
        e(f"{lp}:")
        for q in range(4):
            b = g0 + 4 * q
            e(f"v_perm_b32 v{t0}, v{b + 1}, v{b}, {sD}")
            e(f"v_perm_b32 v{t0 + 1}, v{b + 3}, v{b + 2}, {sE}")
            e(f"v_or_b32 v{t0}, v{t0}, v{t0 + 1}")
            e(f"v_xor_b32 v{t0 + 2 + q}, {sTAG}, v{t0}")
        e(f"v_or3_b32 v{t0}, v{t0 + 2}, v{t0 + 3}, v{t0 + 4}")
        e(f"v_or_b32 v{t0}, v{t0}, v{t0 + 5}")
        e(f"v_cmp_ne_u32 vcc, 0, v{t0}")
        e(f"s_cbranch_vccz {dn}")
        self.gather_issue(voff, g0)
        e(f"s_add_u32 {sSPIN}, {sSPIN}, 1")
        e(f"s_cmp_ge_u32 {sSPIN}, {SPIN_MAX}")
        e("s_waitcnt vmcnt(0)")
        e(f"s_cbranch_scc0 {lp}")
        e(f"{dn}:")
        e.vm = keep
        for k in range(16):
            e(f"v_and_b32 v{g0 + k}, 0xffffff00, v{g0 + k}")
        for k in range(4):
            e(f"v_add_f32 v{g0 + k}, v{g0 + k}, v{g0 + 4 + k}")
            e(f"v_add_f32 v{g0 + 8 + k}, v{g0 + 8 + k}, v{g0 + 12 + k}")
        for k in range(4):
            e(f"v_add_f32 v{g0 + k}, v{g0 + k}, v{g0 + 8 + k}")
        self.round_bf16([f"v{g0 + k}" for k in range(4)], f"v{t0}")

    def record(self, fn):
        real, rec = self.e, Emit()
        self.e = rec
        fn(rec)
        self.e = real
        return [lambda l=l.strip(): real(l) for l in rec.lines]

    def tag_and_register(self):
        e = self.e
        lab = e.label("noxcc")
        keep = list(e.vm)
        e(f"v_readfirstlane_b32 {sTAG}, {vE}")
        e(f"s_mul_i32 {sTAG}, {sTAG}, 1664525")
        e(f"s_add_u32 {sTAG}, {sTAG}, 1013904223")
        e(f"s_cmp_lg_u32 {sW}, 3")
        e(f"s_cbranch_scc1 {lab}")
        e(f"s_getreg_b32 {sA}, hwreg(HW_REG_XCC_ID, 0, 4)")
        e(f"v_mov_b32 v60, {sTAG}")
        e(f"v_mov_b32 v61, {sA}")
        e(f"s_lshl_b32 {sA}, {sI}, 5")
        e(f"s_add_u32 {sA}, {sA}, {sR}")
        e(f"s_lshl_b32 {sA}, {sA}, 3")
        e("s_mov_b64 exec, 1")
        e(f"buffer_store_dwordx2 v[60:61], off, {srd(SRD_WS)}, {sA} offset:{WS_XCC} sc1")
        e("s_mov_b64 exec, -1")
        e(f"{lab}:")
        e.vm = keep

    def xcc_issue(self):
        e = self.e
        e(f"v_and_b32 v62, 31, {vL}")
        e(f"v_lshlrev_b32 v62, 3, v62")
        e(f"s_lshl_b32 s95, {sI}, 8")
        e(f"buffer_load_dwordx2 v[60:61], v62, {srd(SRD_WS)}, s95 offen offset:{WS_XCC} sc1", "xcc")

    def xcc_check(self):
        e = self.e
        lp, dn = e.label("xcc"), e.label("xccd")
        keep = list(e.vm)
        e(f"s_mov_b32 {sSPIN}, 0")
        e(f"{lp}:")
        e(f"v_cmp_ne_u32 vcc, {sTAG}, v60")
        e(f"s_cbranch_vccz {dn}")
        e(f"buffer_load_dwordx2 v[60:61], v62, {srd(SRD_WS)}, s95 offen offset:{WS_XCC} sc1")
        e(f"s_add_u32 {sSPIN}, {sSPIN}, 1")
        e(f"s_cmp_ge_u32 {sSPIN}, {SPIN_MAX}")
        e("s_waitcnt vmcnt(0)")
        e(f"s_cbranch_scc0 {lp}")
        e(f"{dn}:")
        e.vm = keep
        e(f"s_getreg_b32 {sA}, hwreg(HW_REG_XCC_ID, 0, 4)")
        e(f"v_cmp_ne_u32 vcc, {sA}, v61")
        e("s_cmp_eq_u64 vcc, 0")
        e(f"s_cselect_b32 {sFAST}, {0 if self.o.get('force_slow') else 1}, 0")

    def bump_epoch(self):
        e = self.e
        lp, dn = e.label("bump"), e.label("bumpd")
        e(f"v_lshlrev_b32 v4, 3, {vL}")
        e(f"s_mov_b32 {sSPIN}, 0")
        e(f"{lp}:")
        for k in range(4):
            e(f"buffer_load_dword v{8 + k}, v4, {srd(SRD_WS)}, 0 offen offset:{WS_XCC + 512 * k} sc1")
        e(f"s_add_u32 {sSPIN}, {sSPIN}, 1")
        e(f"s_cmp_ge_u32 {sSPIN}, {SPIN_MAX}")
        e("s_waitcnt vmcnt(0)")
        e(f"s_cbranch_scc1 {dn}")
        for k in range(4):
            e(f"v_xor_b32 v{8 + k}, {sTAG}, v{8 + k}")
        e("v_or3_b32 v8, v8, v9, v10")
        e("v_or_b32 v8, v8, v11")
        e("v_cmp_ne_u32 vcc, 0, v8")
        e(f"s_cbranch_vccnz {lp}")
        e(f"{dn}:")
        e(f"v_mov_b32 v4, {sTAG}")
        e("s_mov_b64 exec, 1")
        e(f"buffer_store_dword v4, off, {srd(SRD_WS)}, 0 sc1")
        e("s_mov_b64 exec, -1")

    def mod_loads(self):
        e = self.e
        e(f"v_lshrrev_b32 v4, 4, {vL}")
        e(f"v_and_b32 v5, 15, {vL}")
        e(f"s_and_b32 {sA}, {sI}, 3")
        e(f"s_mul_i32 {sA}, {sA}, 112")
        e(f"s_mul_i32 {sBt}, {sW}, 28")
        e(f"s_add_u32 {sA}, {sA}, {sBt}")
        e(f"v_lshl_add_u32 v6, v5, 2, v4")
        e(f"v_add_u32 v6, {sA}, v6")
        e(f"v_lshlrev_b32 v6, 1, v6")
        e(f"v_mul_u32_u24 v7, 5376, v4")
        e(f"v_lshl_add_u32 v7, v5, 3, v7")
        e(f"s_lshr_b32 {sBt}, {sI}, 2")
        e(f"s_lshl_b32 {sC}, {sR}, 1")
        e(f"s_add_u32 {sBt}, {sBt}, {sC}")
        e(f"s_mul_i32 {sA}, {sA}, 5376")
        e(f"s_lshl_b32 {sC}, {sBt}, 7")
        e(f"s_add_u32 {sA}, {sA}, {sC}")
        for j in range(7):
            e(f"buffer_load_dwordx2 {vr(18 + 2 * j, 2)}, v7, {srd(SRD_WM)}, {sA} offen", "wm")
            if j < 6:
                e(f"s_add_u32 {sA}, {sA}, 21504")
        e(f"buffer_load_ushort v16, v6, {srd(SRD_C)}, 0 offen", "wm")

    def mod_compute(self, done):
        e = self.e
        e(f"v_lshlrev_b32 v16, 16, v16")
        e(f"v_mul_f32 v17, {fbits(-math.log2(math.e))}, v16")
        e("v_exp_f32 v17, v17")
        e("v_add_f32 v17, 1.0, v17")
        e("v_rcp_f32 v17, v17")
        e("v_mul_f32 v16, v16, v17")
        e("v_cvt_pk_bf16_f32 v16, v16, v16")
        e("v_lshlrev_b32 v16, 16, v16")
        for k in range(4):
            e(f"v_mov_b32 v{80 + k}, 0")
        for j in range(7):
            a, b = 18 + 2 * j, 19 + 2 * j
            e(f"v_lshlrev_b32 v84, 16, v{a}")
            e(f"v_and_b32 v85, 0xffff0000, v{a}")
            e(f"v_lshlrev_b32 v86, 16, v{b}")
            e(f"v_and_b32 v87, 0xffff0000, v{b}")
            for k in range(4):
                e(f"v_fmac_f32_dpp v{80 + k}, v16, v{84 + k} row_newbcast:{j} row_mask:0xf bank_mask:0xf")
        e("v_permlane16_swap_b32 v80, v81")
        e("v_permlane16_swap_b32 v82, v83")
        e("v_add_f32 v80, v80, v81")
        e("v_add_f32 v82, v82, v83")
        e("v_permlane32_swap_b32 v80, v82")
        e("v_add_f32 v80, v80, v82")
        e(f"v_lshrrev_b32 v4, 4, {vL}")
        e(f"v_and_b32 v5, 15, {vL}")
        e(f"v_lshl_add_u32 v6, v5, 2, v4")
        e(f"s_lshl_b32 {sA}, {sW}, 8")
        e(f"v_lshl_add_u32 v6, v6, 2, {sA}")
        e(f"ds_write_b32 v6, v80 offset:{L_MODR}")
        e("s_waitcnt lgkmcnt(0)")
        e("s_barrier")
        e(f"s_cmp_lg_u32 {sW}, 0")
        e(f"s_cbranch_scc1 {done}")
        e("s_mov_b64 exec, 0xffff")
        for k in range(4):
            e(f"ds_read_b128 {vr(80 + 4 * k)}, {vL16} offset:{L_MODR + 256 * k}")
        e(f"s_and_b32 {sA}, {sI}, 3")
        e(f"s_mul_i32 {sA}, {sA}, 10752")
        e(f"s_lshr_b32 {sBt}, {sI}, 2")
        e(f"s_lshl_b32 {sE}, {sR}, 1")
        e(f"s_add_u32 {sBt}, {sBt}, {sE}")
        e(f"s_lshl_b32 {sBt}, {sBt}, 8")
        e(f"s_add_u32 {sA}, {sA}, {sBt}")
        e(f"s_add_u32 {sA}, {sA}, {WS_MODP}")
        e("v_mov_b32 v6, 0xff")
        e("s_waitcnt lgkmcnt(0)")
        for k in range(4):
            e(f"v_add_f32 v{80 + k}, v{80 + k}, v{84 + k}")
            e(f"v_add_f32 v{88 + k}, v{88 + k}, v{92 + k}")
        for k in range(4):
            e(f"v_add_f32 v{80 + k}, v{80 + k}, v{88 + k}")
            e(f"s_lshr_b32 {sBt}, {sTAG}, {8 * k}")
            e(f"v_bfi_b32 v{80 + k}, v6, {sBt}, v{80 + k}")
        e(f"buffer_store_dwordx4 v[80:83], {vL16}, {srd(SRD_WS)}, {sA} offen sc1")
        e("s_mov_b64 exec, -1")

    def src_addrs(self):
        e = self.e
        e(f"v_lshrrev_b32 v10, 2, {vL}")
        e(f"v_mul_u32_u24 v10, 2688, v10")
        e(f"v_and_b32 v6, 3, {vL}")
        e(f"v_lshl_add_u32 v10, v6, 4, v10")
        e(f"v_lshrrev_b32 v6, 3, {vL}")
        e(f"v_and_b32 v7, 7, {vL}")
        e(f"v_and_b32 v8, 2, v6")
        e(f"v_lshlrev_b32 v8, 1, v8")
        e("v_xor_b32 v8, v8, v7")
        e("v_lshlrev_b32 v8, 4, v8")
        e("v_mul_u32_u24 v11, 2688, v6")
        e("v_add_u32 v11, v11, v8")
        e("v_mul_u32_u24 v12, 3584, v6")
        e("v_add_u32 v12, v12, v8")
        e("v_mul_u32_u24 v13, 896, v6")
        e("v_add_u32 v14, v13, v8")
        e("v_and_b32 v8, 6, v6")
        e("v_xor_b32 v8, v8, v7")
        e("v_lshl_add_u32 v13, v8, 4, v13")
        e(f"s_lshl_b32 s99, {sFG}, 7")
        e(f"s_mul_i32 {sA}, {sW}, {8 * 3584}")
        e(f"s_add_u32 s99, s99, {sA}")
        e(f"s_lshl_b32 s101, {sW}, 10")

    def wgu_piece(self, p, mat):
        e = self.e
        e(f"s_add_u32 {sD}, s99, {p * 32 * 3584}")
        e(f"s_add_u32 m0, s101, {w4_base(p) + mat * 4096}")
        e(f"buffer_load_dwordx4 v12, {srd((SRD_WG, SRD_WU)[mat])}, {sD} offen lds", "wgu")

    def wq_setup(self):
        e = self.e
        e(f"s_mul_i32 s92, {sH}, 56")
        e(f"s_sub_u32 s92, s92, {sADJ}")
        e(f"s_mul_i32 {sA}, {sW}, {16 * 2688}")
        e(f"s_add_u32 s92, s92, {sA}")
        e(f"s_mul_i32 {sA}, {sR}, 37")
        e(f"s_lshr_b32 {sA}, {sA}, 8")
        e(f"s_mul_i32 {sA}, {sA}, 7")
        e(f"s_sub_u32 s94, {sR}, {sA}")

    def wq_dma(self, thr=True):
        e = self.e
        for n in range(7):
            e(f"s_mul_i32 {sA}, s94, {64 * 2688}")
            e(f"s_add_u32 {sA}, {sA}, s92")
            e(f"s_lshl_b32 {sBt}, s94, 12")
            e(f"s_add_u32 {sBt}, {sBt}, s101")
            e(f"s_add_u32 m0, {sBt}, {L_WQ}")
            e(f"s_add_u32 s94, s94, 1")
            e(f"buffer_load_dwordx4 v10, {srd(SRD_WQKV)}, {sA} offen lds", "wq")
            e(f"s_cmp_eq_u32 s94, 7")
            e(f"s_cselect_b32 s94, 0, s94")
            if thr:
                self.throttle("thr_q", 0)

    def code_prefetch(self):
        e = self.e
        lab = e.label("pc")
        e("s_getpc_b64 s[88:89]")
        e(f"{lab}:")
        e(f"s_sub_u32 s88, s88, {lab}-" + NAME + "_kernel")
        e("s_subb_u32 s89, s89, 0")
        e(f"s_lshl_b32 {sA}, {sR}, 2")
        e(f"s_add_u32 {sA}, {sA}, {sW}")
        e(f"v_lshl_add_u32 v62, {vL}, 7, {sA}")
        e(f"v_lshlrev_b32 v62, 7, v62")
        e(f"v_min_u32 v62, L_end-" + NAME + "_kernel, v62")
        e("s_mov_b64 exec, 7")
        e("global_load_dword v15, v62, s[88:89]", "pf")
        e("s_mov_b64 exec, -1")

    def touch(self, srdn, base, per_island, lines, mods="", island=True):
        e = self.e
        n = -(-lines // 112)
        e(f"s_lshl_b32 {sA}, {sR}, 2")
        e(f"s_add_u32 {sA}, {sA}, {sW}")
        e(f"s_mul_i32 {sA}, {sA}, {n}")
        e(f"v_add_u32 v6, {sA}, {vL}")
        e(f"v_min_u32 v6, {lines - 1}, v6")
        e(f"v_lshlrev_b32 v6, 7, v6")
        if island:
            e(f"s_mul_i32 {sA}, {sI}, {per_island}")
            e(f"s_add_u32 {sA}, {sA}, {base}")
        else:
            e(f"s_mov_b32 {sA}, {base}")
        e(f"s_mov_b64 exec, {hex((1 << n) - 1)}")
        e(f"buffer_load_dword v127, v6, {srd(srdn)}, {sA} offen{mods}", "pt")
        e("s_mov_b64 exec, -1")

    def throttle(self, key, default):
        n = self.o.get(key, default)
        if n and len(self.e.vm) > n:
            self.e(f"s_waitcnt vmcnt({n})")

    def front(self):
        e = self.e
        n_early, n_e0, n_e1 = self.o.get("early_w", 2), self.o.get("e0", 1), self.o.get("e1", 3)
        pb = self.o.get("probe", 0)
        if pb:
            e("s_lshl_b32 s88, s2, 2")
            e(f"s_add_u32 s88, s88, {sW}")
            e(f"v_lshlrev_b32 v4, 7, {vL}")
            if pb == 1:
                e("s_mov_b64 s[92:93], s[70:71]")
                e("s_mov_b32 s94, 1835008")
                e("s_mov_b32 s95, 0x00020000")
                e("s_mul_i32 s88, s88, 1792")
                e("s_mov_b64 exec, 0x3fff")
                e("buffer_load_dword v5, v4, s[92:95], s88 offen")
                e("s_mov_b64 exec, -1")
            else:
                e("s_mov_b64 s[92:93], s[86:87]")
                e("s_mov_b32 s94, 0x10000000")
                e("s_mov_b32 s95, 0x00020000")
                e("s_lshl_b32 s88, s88, 14")
                e(f"s_add_u32 s88, s88, {(pb - 1) << 20}")
                e("buffer_load_dword v5, v4, s[92:95], s88 offen")
                e("s_add_u32 s88, s88, 8192")
                e("buffer_load_dword v5, v4, s[92:95], s88 offen")
            e("s_waitcnt vmcnt(0)")
        e(f"buffer_load_dword {vE}, off, {srd(SRD_WS)}, 0 sc1", "E")
        e(f"s_cmp_ge_u32 {sR}, 28")
        e("s_cbranch_scc1 L_helper")
        e(f"s_cmp_ge_u32 {sR}, 7")
        e("s_cbranch_scc1 L_nomod1")
        self.mod_loads()
        e("L_nomod1:")
        e.vm = ["E"]
        if self.o.get("touch_x", 1):
            self.touch(SRD_X, 0, 229376, 1792)
        if self.o.get("sm_h", 1) == 0:
            self.touch(SRD_WS, WS_H, 229376, 1792, " sc1")
        npt = len(e.vm) - 1
        self.src_addrs()
        self.wq_setup()
        e(f"s_lshl_b32 s90, {sH}, 7")
        e(f"s_add_u32 s90, s90, 896")
        e(f"s_mul_i32 {sA}, {sW}, {8 * 2688}")
        e(f"s_add_u32 s90, s90, {sA}")
        e(f"s_mul_i32 s91, {sB}, 7")

        def wkv(lo, hi):
            for n in range(lo, hi):
                e(f"s_mul_i32 {sA}, s91, {32 * 2688}")
                e(f"s_add_u32 {sA}, {sA}, s90")
                e(f"s_lshl_b32 {sBt}, s91, 12")
                e(f"s_add_u32 {sBt}, {sBt}, s101")
                e(f"s_add_u32 m0, {sBt}, {L_WKV}")
                e(f"s_add_u32 s91, s91, 1")
                e(f"buffer_load_dwordx4 v11, {srd(SRD_WQKV)}, {sA} offen lds", "wkv")
                e(f"s_cmp_eq_u32 s91, 14")
                e(f"s_cselect_b32 s91, 0, s91")
                if n >= n_early:
                    self.throttle("thr_w", 0)

        e(f"s_cmp_ge_u32 {sR}, 7")
        e("s_cbranch_scc1 L_plainw")
        wkv(0, n_early)
        e.wait(vm="E")
        self.tag_and_register()
        self.stamp("tag")
        self.mod_compute("L_nomod2")
        e("L_nomod2:")
        self.stamp("modpub")
        wkv(n_early, 14)
        self.wq_dma()
        e("s_branch L_wissued")
        e("L_plainw:")
        e.vm = ["E"] + ["pt"] * npt
        wkv(0, 4)
        e.wait(vm="E")
        self.tag_and_register()
        wkv(4, 14)
        self.wq_dma()
        e("L_wissued:")
        if self.o.get("no_w") or self.o.get("w_only"):
            e("s_waitcnt vmcnt(0)")
            self.stamp("wq")
            e("s_branch L_fin")
            self.nts -= 1
            self.ts_names.pop()
        self.stamp("wq")
        e(f"s_sub_u32 {sA}, {sR}, 7")
        e(f"s_cmp_ge_u32 {sA}, 14")
        e("s_cbranch_scc1 L_nomod3")
        keep = list(e.vm)
        self.mod_loads()
        e("L_nomod3:")
        e.vm = keep
        e(f"s_lshl_b32 {sA}, {sR}, 3")
        e(f"s_add_u32 {sA}, {sA}, {sI}")
        e(f"s_lshl_b32 {sA}, {sA}, 2")
        e(f"s_add_u32 {sA}, {sA}, {sW}")
        e(f"s_min_u32 s88, {sA}, 784")
        e(f"s_mul_i32 {sBt}, s88, 9363")
        e(f"s_lshr_b32 {sBt}, {sBt}, 16")
        e(f"s_mul_i32 {sC}, {sBt}, 7")
        e(f"s_sub_u32 {sC}, s88, {sC}")
        e(f"s_mul_i32 s89, {sC}, 112")
        e(f"s_add_u32 s89, s89, {sBt}")
        e(f"s_mul_i32 {sBt}, {sBt}, {16 * 896}")
        e(f"s_lshl_b32 {sC}, {sC}, 7")
        e(f"s_add_u32 {sBt}, {sBt}, {sC}")
        e(f"v_add_u32 v9, {8 * 896 - 1024}, v14")
        e(f"s_lshl_b32 {sC}, {sW}, 11")
        e(f"s_add_u32 m0, {sC}, {L_SCR}")
        e(f"buffer_load_dwordx4 v14, {srd(SRD_WD)}, {sBt} offen lds", "rp")
        e(f"buffer_load_dwordx4 v9, {srd(SRD_WD)}, {sBt} offen offset:1024 lds", "rp")
        self.touch(SRD_WO, 0, 0, 3136, island=False)
        if self.o.get("sm_o", 0) == 0:
            self.touch(SRD_WS, WS_O, 262144, 2048, " sc1")
        self.touch(SRD_WS, WS_STAT, 14336, 112, " sc1")
        for p in range(n_e0):
            for mat in range(2):
                self.wgu_piece(p, mat)
        self.kv_store_addrs()
        self.tr_addr("v6", 4)
        e(f"s_lshl_b32 {sA}, {sW}, 11")
        e(f"s_add_u32 {sA}, {sA}, {L_SCR}")
        e(f"v_add_u32 v8, {sA}, v6")
        e("v_xor_b32 v9, 64, v8")
        e.wait(vm="rp")
        self.stamp("rp")
        keep = list(e.vm)
        for ct in range(2):
            for hf in range(2):
                e(f"ds_read_b64_tr_b16 {vr(112 + 4 * ct + 2 * hf, 2)}, v{8 + ct} offset:{1024 * hf}")
        e(f"s_lshl_b32 {sA}, s89, 11")
        e(f"s_add_u32 {sA}, {sA}, {WS_WD}")
        e("s_cmp_ge_u32 s88, 784")
        e("s_waitcnt lgkmcnt(0)")
        e("s_cbranch_scc1 L_norp")
        for ct in range(2):
            e(f"buffer_store_dwordx4 {vr(112 + 4 * ct)}, {vL16}, {srd(SRD_WS)}, {sA} offen offset:{1024 * ct} sc1")
        e("L_norp:")
        e(f"s_sub_u32 {sA}, {sR}, 7")
        e(f"s_cmp_ge_u32 {sA}, 14")
        e("s_cbranch_scc1 L_nomod4")
        self.mod_compute("L_nomod4")
        e("L_nomod4:")
        e.vm = keep
        for p in range(n_e0, n_e1):
            for mat in range(2):
                self.wgu_piece(p, mat)
                self.throttle("thr_e", 0)
        self.xcc_issue()
        e("s_waitcnt vmcnt(0)")
        self.xcc_check()
        e("s_cmp_ge_u32 s88, 784")
        e("s_cbranch_scc1 L_norp2")
        e(f"s_lshl_b32 {sA}, s89, 2")
        e(f"s_add_u32 {sA}, {sA}, {WS_FLW}")
        e(f"v_mov_b32 v4, {sTAG}")
        e("s_mov_b64 exec, 1")
        e(f"buffer_store_dword v4, off, {srd(SRD_WS)}, {sA} sc1")
        e("s_mov_b64 exec, -1")
        e("L_norp2:")
        e.vm = []
        self.stamp("wdone")

    def tr_addr(self, dst, rowmul):
        e = self.e
        e(f"v_lshrrev_b32 {dst}, 5, {vL}")
        e(f"v_mul_u32_u24 {dst}, {rowmul}, {dst}")
        e(f"v_bfe_u32 v5, {vL}, 2, 2")
        e(f"v_add_u32 {dst}, {dst}, v5")
        e(f"v_lshlrev_b32 {dst}, 7, {dst}")
        e(f"v_bfe_u32 v4, {vL}, 4, 1")
        e(f"v_lshl_add_u32 {dst}, v4, 5, {dst}")
        e(f"v_and_b32 v4, 3, {vL}")
        e(f"v_lshl_add_u32 {dst}, v4, 3, {dst}")
        e("v_lshrrev_b32 v5, 1, v5")
        e(f"v_lshl_add_u32 {dst}, v5, 6, {dst}")

    def kv_store_addrs(self):
        e = self.e
        e(f"v_lshrrev_b32 v4, 5, {vL}")
        e(f"v_and_b32 v5, 31, {vL}")
        e(f"s_cmp_ge_u32 {sH}, 7")
        e("s_cbranch_scc1 L_vaddr")
        e(f"s_lshl_b32 {sA}, {sH}, 4")
        e(f"v_add_u32 v4, {sA}, v4")
        e(f"v_lshlrev_b32 v5, 3, v5")
        for n in range(8):
            e(f"v_add_u32 v6, {2 * n}, v4")
            e("v_mul_u32_u24 v7, 147, v6")
            e("v_lshrrev_b32 v7, 10, v7")
            e("v_mul_u32_u24 v8, 7, v7")
            e("v_sub_u32 v6, v6, v8")
            e("v_lshl_add_u32 v6, v6, 8, v5")
            e(f"v_lshl_add_u32 v{96 + n}, v7, 18, v6")
        e("s_branch L_addrdone")
        e("L_vaddr:")
        e(f"s_sub_u32 {sA}, {sH}, 7")
        e(f"s_lshl_b32 {sA}, {sA}, 6")
        e(f"v_add_u32 v5, {sA}, v5")
        e("v_lshlrev_b32 v4, 9, v4")
        e("v_add_u32 v4, 2048, v4")
        for ct in range(2):
            e(f"v_add_u32 v6, {32 * ct}, v5")
            e("v_mul_u32_u24 v7, 2341, v6")
            e("v_lshrrev_b32 v7, 16, v7")
            e("v_mul_u32_u24 v8, 28, v7")
            e("v_sub_u32 v6, v6, v8")
            e("v_lshl_add_u32 v6, v6, 4, v4")
            e(f"v_lshl_add_u32 v{96 + ct}, v7, 18, v6")
        for n in range(2, 8):
            e(f"v_mov_b32 v{96 + n}, v96")
        e("L_addrdone:")

    def helper(self):
        e = self.e
        e.vm, e.lg = ["E"], []
        XF, XP, CR = 128, 64, 64
        e("L_helper:")
        e(f"v_lshrrev_b32 v6, 3, {vL}")
        e(f"v_and_b32 v7, 7, {vL}")
        e("v_lshrrev_b32 v8, 1, v6")
        e("v_xor_b32 v8, v8, v7")
        e("v_mul_u32_u24 v6, 896, v6")
        e("v_lshl_add_u32 v9, v8, 4, v6")
        e("v_xor_b32 v8, 4, v8")
        e("v_lshl_add_u32 v8, v8, 4, v6")
        e(f"v_add_u32 v8, {8 * 896}, v8")
        e(f"s_sub_u32 s91, {sR}, 28")
        e(f"s_lshl_b32 {sA}, {sI}, 2")
        e(f"s_add_u32 s91, s91, {sA}")
        e(f"s_lshl_b32 {sA}, s91, 2")
        e(f"s_add_u32 {sA}, {sA}, {sW}")
        e(f"s_mul_i32 {sA}, {sA}, 14336")
        e(f"s_mul_i32 {sBt}, {sW}, 14336")
        for ln in range(7):
            for rg in range(2):
                e(f"s_add_u32 m0, {sBt}, {L_HX + rg * 7168 + ln * 1024}")
                e(f"buffer_load_dwordx4 v{9 - rg}, {srd(SRD_X)}, {sA} offen lds", "x")
            if ln < 6:
                e(f"s_add_u32 {sA}, {sA}, 128")
        e(f"s_mul_i32 s90, s91, 57344")
        e(f"s_mul_i32 {sA}, {sW}, 7168")
        e(f"s_add_u32 s90, s90, {sA}")
        e(f"s_add_u32 s90, s90, {WS_H}")
        self.src_addrs()
        self.wq_setup()
        self.wq_dma(thr=False)
        e(f"v_lshrrev_b32 v4, 4, {vL}")
        e(f"v_and_b32 v5, 15, {vL}")
        e("v_lshrrev_b32 v6, 3, v5")
        e("v_mul_u32_u24 v6, 7168, v6")
        e("v_and_b32 v7, 7, v5")
        e("v_lshl_add_u32 v6, v7, 7, v6")
        e(f"v_add_u32 v6, {L_HX}, v6")
        e("v_lshrrev_b32 v7, 1, v5")
        e(f"s_mul_i32 {sA}, {sW}, 14")
        e(f"v_add_u32 v8, {sA}, v4")
        for n in range(4):
            e(f"v_add_u32 v9, {4 * n}, v8")
            e("v_min_u32 v9, 55, v9")
            e("v_lshrrev_b32 v16, 3, v9")
            e("v_and_b32 v9, 7, v9")
            e("v_xor_b32 v9, v9, v7")
            e("v_lshl_add_u32 v16, v16, 10, v6")
            e(f"v_lshl_add_u32 v{20 + n}, v9, 4, v16")
        e.wait(vm="E")
        self.tag_and_register()
        e.wait(vm="x")
        e("s_barrier")
        self.stamp("hx")
        for G in range(4):
            for n in range(4):
                e(f"ds_read_b128 {vr(XP + 16 * G + 4 * n)}, v{20 + n} offset:{G * 14336}", ("x", G))
        pair = lambda r: f"v[{r}:{r + 1}]"
        e("s_mov_b32 s88, 0x3f803f80")
        for G in range(4):
            e.wait(lg=("x", G))
            for k in range(4):
                e(f"v_cndmask_b32 v{XP + 16 * G + 12 + k}, v{XP + 16 * G + 12 + k}, 0, {sHI}")
        for k in range(16):
            for G in range(4):
                x = f"v{XP + 16 * G + k}"
                e(f"v_dot2_f32_bf16 v{24 + G}, {x}, s88, {'0' if k == 0 else f'v{24 + G}'}")
            for G in range(4):
                x = f"v{XP + 16 * G + k}"
                e(f"v_dot2_f32_bf16 v{28 + G}, {x}, {x}, {'0' if k == 0 else f'v{28 + G}'}")
        e("s_nop 2")
        for b0 in (24, 28):
            e(f"v_permlane16_swap_b32 v{b0}, v{b0 + 1}")
            e(f"v_permlane16_swap_b32 v{b0 + 2}, v{b0 + 3}")
        for b0 in (24, 28):
            e(f"v_add_f32 v{b0}, v{b0}, v{b0 + 1}")
            e(f"v_add_f32 v{b0 + 2}, v{b0 + 2}, v{b0 + 3}")
        for b0 in (24, 28):
            e(f"v_permlane32_swap_b32 v{b0}, v{b0 + 2}")
        e("v_add_f32 v24, v24, v26")
        e("v_add_f32 v25, v28, v30")
        e(f"s_lshl_b32 {sA}, {sW}, 9")
        e(f"s_add_u32 {sA}, {sA}, {L_HS}")
        e(f"v_lshlrev_b32 v16, 3, {vL}")
        e(f"v_add_u32 v17, {sA}, v16")
        e(f"v_add_u32 v16, {L_HS}, v16")
        e("ds_write_b64 v17, v[24:25]")
        e(f"v_lshrrev_b32 v8, 2, {vL}")
        e(f"v_min_u32 v8, 13, v8")
        e(f"s_mul_i32 {sA}, {sW}, 14")
        e(f"v_add_u32 v8, {sA}, v8")
        e(f"v_bfe_u32 v9, {vL}, 1, 1")
        e(f"v_lshl_add_u32 v8, v8, 1, v9")
        e(f"v_and_b32 v9, 1, {vL}")
        e(f"v_mul_u32_u24 v6, 112, v9")
        e(f"v_add_u32 v8, v8, v6")
        e(f"v_lshlrev_b32 v8, 4, v8")
        self.xcc_issue()
        self.gather_issue("v8", 40)
        e("s_waitcnt lgkmcnt(0)")
        e("s_barrier")
        for k in range(4):
            e(f"ds_read_b64 {pair(24 + 2 * k)}, v16 offset:{k * 512}", "s")

        def unpack(G):
            b = XF + 32 * G
            for k in range(16):
                e(f"v_lshlrev_b32 v{b + 2 * k}, 16, v{XP + 16 * G + k}")
                e(f"v_and_b32 v{b + 2 * k + 1}, 0xffff0000, v{XP + 16 * G + k}")

        unpack(0)
        e.wait(lg="s")
        e("v_pk_add_f32 v[24:25], v[24:25], v[26:27]")
        e("v_pk_add_f32 v[28:29], v[28:29], v[30:31]")
        e("v_pk_add_f32 v[24:25], v[24:25], v[28:29]")
        e(f"v_mul_f32 v24, {fbits(1.0 / 448)}, v24")
        e(f"v_mul_f32 v25, {fbits(1.0 / 448)}, v25")
        e("v_fma_f32 v25, -v24, v24, v25")
        e("v_max_f32 v25, 0, v25")
        self.round_bf16(["v24", "v25"], "v26")
        e(f"v_add_f32 v25, {fbits(1e-5)}, v25")
        e("v_cvt_pk_bf16_f32 v25, v25, v25")
        e("v_lshlrev_b32 v25, 16, v25")
        e("v_sqrt_f32 v25, v25")
        e("v_cvt_pk_bf16_f32 v25, v25, v25")
        e("v_lshlrev_b32 v25, 16, v25")
        e("v_rcp_f32 v26, v25")
        e("v_mul_f32 v27, -v24, v26")
        e(f"v_add_u32 v17, 2048, v17")
        e("ds_write_b64 v17, v[26:27]")
        e(f"s_lshl_b32 {sA}, {sW}, 9")
        e(f"s_add_u32 {sA}, {sA}, {L_HS + 2048}")
        e(f"v_lshl_add_u32 v16, v5, 3, {sA}")
        for G in range(4):
            e(f"ds_read_b64 {pair(32 + 2 * G)}, v16 offset:{G * 128}", "ab")
        for G in range(1, 4):
            unpack(G)
        e.wait(lg="ab")
        for G in range(4):
            b = XF + 32 * G
            for k in range(0, 32, 2):
                e(f"v_pk_fma_f32 {pair(b + k)}, {pair(b + k)}, {pair(32 + 2 * G)}, {pair(32 + 2 * G)} op_sel:[0,0,1] op_sel_hi:[1,0,1]")
        e(f"v_cvt_f32_u32 v9, v9")
        e(f"s_lshl_b32 {sA}, {sW}, 11")
        e(f"s_add_u32 {sA}, {sA}, {L_SCR}")
        e(f"v_add_u32 v6, {sA}, {vL16}")
        e(f"v_lshl_add_u32 v7, v4, 6, {sA}")
        self.stamp("ln1")
        self.gather_finish("v8", 40, 16)
        self.stamp("modgot")
        for k in range(4):
            e(f"v_add_f32 v{40 + k}, v{40 + k}, v9")
        self.round_bf16([f"v{40 + k}" for k in range(4)], "v16")
        e("ds_write_b128 v6, v[40:43]")
        for n in range(4):
            for it in range(4):
                e(f"ds_read_b128 {vr(CR + 16 * n + 4 * it)}, v7 offset:{n * 256 + 16 * it}", ("c", n))
        e(f"v_lshlrev_b32 v8, 4, v5")
        e(f"v_lshl_add_u32 v8, v4, 9, v8")
        e(f"v_add_u32 v9, 4096, v8")
        e(f"v_mov_b32 v16, 0x7ffffff0")
        e(f"v_cndmask_b32 v6, v9, v16, {sHI}")
        self.xcc_check()
        e(f"s_lshl_b32 s93, s91, 7")
        e(f"s_lshl_b32 {sC}, {sW}, 2")
        e(f"s_add_u32 s93, s93, {sC}")
        e(f"s_add_u32 s93, s93, {WS_FLH}")
        for G in range(4):
            b = XF + 32 * G
            if G:
                e(f"s_add_u32 s90, s90, {256 if G & 1 else 28672 - 256}")
            for n in range(4):
                if G == 0:
                    e.wait(lg=("c", n))
                for k in range(0, 8, 2):
                    c1 = CR + 16 * n + 4 * (2 * (k >> 2) + 1) + (k & 3)
                    c2 = CR + 16 * n + 4 * (2 * (k >> 2)) + (k & 3)
                    e(f"v_pk_fma_f32 {pair(b + 8 * n + k)}, {pair(b + 8 * n + k)}, {pair(c1)}, {pair(c2)}")
                d = 24 + 4 * ((4 * G + n) % 8)
                for k in range(4):
                    e(f"v_cvt_pk_bf16_f32 v{d + k}, v{b + 8 * n + 2 * k}, v{b + 8 * n + 2 * k + 1}")
                e(f"buffer_store_dwordx4 {vr(d)}, v{(8, 8, 9, 6)[n]}, {srd(SRD_WS)}, s90 offen offset:{(n & 1) * 2048}{self.sm('h')}")
        self.publish("s93", "v7", second=64)
        self.stamp("hpub")
        e("s_waitcnt vmcnt(0)")
        e("s_branch L_p1")

    def p1(self):
        e = self.e
        e("L_p1:")
        e.vm, e.lg = [], []
        if self.o.get("front_only"):
            e("s_branch L_fin")
        e("s_waitcnt lgkmcnt(0)")
        e("s_barrier")
        e(f"v_lshrrev_b32 v4, 5, {vL}")
        e(f"v_lshlrev_b32 v4, 9, v4")
        e(f"v_bfe_u32 v5, {vL}, 2, 2")
        e(f"v_lshl_add_u32 v4, v5, 6, v4")
        e(f"v_bfe_u32 v5, {vL}, 4, 1")
        e(f"v_lshl_add_u32 v4, v5, 5, v4")
        e(f"v_and_b32 v5, 3, {vL}")
        e(f"v_lshl_add_u32 v4, v5, 3, v4")
        e(f"v_add_u32 v4, {sADJ}, v4")
        e(f"v_add_u32 v10, {L_WQ}, v4")
        self.tr_addr("v8", 8)
        e(f"v_add_u32 v8, {L_WKV}, v8")
        e("v_xor_b32 v9, 64, v8")
        e(f"v_and_b32 v4, 3, {vL}")
        e(f"v_lshlrev_b32 v4, 2, v4")
        e(f"s_lshl_b32 s88, {sT}, 6")
        e(f"s_add_u32 s88, s88, {WS_FLH}")
        e(f"s_mul_i32 {sC}, {sT}, 28672")
        e(f"s_add_u32 {sC}, {sC}, {WS_H}")
        e(f"s_lshl_b32 s90, {sT}, 12")
        e(f"s_add_u32 s90, s90, {WS_KV}")
        e(f"s_cmp_ge_u32 {sR}, 28")
        e("s_cbranch_scc1 L_p1_h")
        e(f"s_cmp_ge_u32 {sH}, 7")
        e("s_cbranch_scc1 L_p1_v")
        for mode in ("k", "v", "h"):
            e(f"L_p1_{mode}:")
            e.vm, e.lg = [], []
            self.p1_body(mode)
            if mode != "h":
                e("s_branch L_p1_done")
        e("L_p1_done:")
        e.vm, e.lg = [], []
        self.stamp("kvpub")
        self.slotq_issue()
        ACQ = 48
        qs = 28 ** -0.5 * math.log2(math.e)
        e(f"s_mov_b32 {sA}, {fbits(qs)}")
        for k in range(16):
            e(f"v_mul_f32 v{ACQ + k}, {sA}, v{ACQ + k}")
        for k in range(8):
            e(f"v_cvt_pk_bf16_f32 v{64 + k}, v{ACQ + 2 * k}, v{ACQ + 2 * k + 1}")
        e("v_mov_b32 v11, 0x00003f80")
        e(f"v_cndmask_b32 v70, v70, v11, {sHI}")
        e(f"v_cndmask_b32 v71, v71, 0, {sHI}")

    def p1_body(self, mode):
        e = self.e
        AC, ACQ = 16, 48
        HB, WR = 0, 112
        QR = WR + 32
        DEPTH = 3
        first = mode == "k"

        def rd_w(ks, ct):
            d = WR + 8 * (ks % 4) + 4 * ct
            e(f"ds_read_b64_tr_b16 {ar(d, 2)}, v{8 + ct} offset:{ks * 2048}", ("kv", ks))
            e(f"ds_read_b64_tr_b16 {ar(d + 2, 2)}, v{8 + ct} offset:{ks * 2048 + 512}", ("kv", ks))

        def rd_q(ks):
            d = QR + 4 * (ks % 8)
            e(f"ds_read_b64_tr_b16 {ar(d, 2)}, v10 offset:{ks * 1024}", ("q", ks))
            e(f"ds_read_b64_tr_b16 {ar(d + 2, 2)}, v10 offset:{ks * 1024 + 256}", ("q", ks))

        def ld_h(ks):
            if ks and ks % 4 == 0:
                e(f"s_add_u32 {sC}, {sC}, 4096")
            e(f"buffer_load_dwordx4 {ar(HB + 4 * ks)}, {vL16}, {srd(SRD_WS)}, {sC} offen offset:{(ks % 4) * 1024} sc1", ("h", ks))

        if mode != "h":
            for ks in range(DEPTH):
                rd_w(ks, 0)
                rd_w(ks, 1)
        self.poll("v4", "s88", "v5")
        self.acquire()
        self.stamp("hflag", again=not first)
        PRE = self.o.get("p1pre", 8)
        if mode == "h":
            for ks in range(28):
                ld_h(ks)
            for ks in range(6):
                rd_q(ks)
            self.helper_side()
        else:
            for ks in range(PRE):
                ld_h(ks)
            for ks in range(28):
                e.wait(vm=("h", ks), lg=("kv", ks))
                for ct in range(2):
                    w, hb = ar(WR + 8 * (ks % 4) + 4 * ct), ar(HB + 4 * ks)
                    acc = vr(AC + 16 * ct, 16)
                    a, b = (w, hb) if mode == "k" else (hb, w)
                    e(f"v_mfma_f32_32x32x16_bf16 {acc}, {a}, {b}, {'0' if ks == 0 else acc}")
                    if ct == 0 and ks + PRE < 28:
                        ld_h(ks + PRE)
                    if ks + DEPTH < 28:
                        rd_w(ks + DEPTH, ct)
                    else:
                        rd_q(2 * (ks + DEPTH - 28) + ct)
        self.stamp("kvgemm", again=not first)

        def kv_epi(r):
            for ct in range(2):
                for k in range(8):
                    r(f"v_cvt_pk_bf16_f32 v{64 + 8 * ct + k}, v{AC + 16 * ct + 2 * k}, v{AC + 16 * ct + 2 * k + 1}")
                    if mode == "k" and k & 1:
                        r(f"buffer_store_dwordx2 {vr(64 + 8 * ct + k - 1, 2)}, v{96 + 4 * ct + (k >> 1)}, {srd(SRD_WS)}, s90 offen sc1")
                    if mode == "v" and k % 4 == 3:
                        r(f"buffer_store_dwordx4 {vr(64 + 8 * ct + k - 3)}, v{96 + ct}, {srd(SRD_WS)}, s90 offen offset:{(k >> 2) * 1024} sc1")

        main, fill = [], {}
        for ks in range(28):
            def m(ks=ks):
                e.wait(vm=("h", ks), lg=("q", ks))
                cq = "0" if ks == 0 else vr(ACQ, 16)
                e(f"v_mfma_f32_32x32x16_bf16 {vr(ACQ, 16)}, {ar(QR + 4 * (ks % 8))}, {ar(HB + 4 * ks)}, {cq}")
            main.append(m)
            if ks + 6 < 28:
                fill.setdefault(ks, []).append(lambda ks=ks: rd_q(ks + 6))
        if mode != "h":
            self.spread(fill, self.record(kv_epi), 1, 7)
        self.spread(fill, self.record(self.slotq_addr), 8, 27)
        self.merge(main, fill)
        if mode == "h":
            e("s_barrier")
            return
        lab = e.label("nokvfl")
        e(f"s_lshr_b32 {sA}, {sT}, 2")
        e(f"s_mul_i32 {sA}, {sA}, 14")
        e(f"s_add_u32 {sA}, {sA}, {sH}")
        e(f"s_lshl_b32 {sA}, {sA}, 7")
        e(f"s_add_u32 {sA}, {sA}, {WS_FLKV}")
        e(f"v_mov_b32 v7, {sTAG}")
        e(f"s_cmp_lg_u32 {sW}, 0")
        e("s_waitcnt vmcnt(0)")
        e("s_barrier")
        e(f"s_cbranch_scc1 {lab}")
        e("s_mov_b64 exec, 1")
        e(f"buffer_store_dword v7, off, {srd(SRD_WS)}, {sA} sc1")
        e("s_mov_b64 exec, -1")
        e(f"{lab}:")

    def helper_side(self):
        e = self.e
        e(f"s_sub_u32 {sE}, {sR}, 28")
        e(f"s_lshl_b32 {sE}, {sE}, 2")
        e(f"s_add_u32 {sE}, {sE}, {sW}")
        e(f"v_lshlrev_b32 v6, 7, {vL}")
        e(f"s_lshl_b32 {sA}, {sI}, 9")
        e(f"s_add_u32 {sA}, {sA}, {WS_FLO}")
        e("s_mov_b64 exec, 15")
        e(f"buffer_load_dword v127, v6, {srd(SRD_WS)}, {sA} offen sc1")
        e(f"s_add_u32 {sA}, {sA}, {WS_FLZ - WS_FLO}")
        e(f"buffer_load_dword v127, v6, {srd(SRD_WS)}, {sA} offen sc1")
        e(f"s_lshl_b32 {sA}, {sI}, 10")
        e(f"s_add_u32 {sA}, {sA}, {WS_FLD}")
        e("s_mov_b64 exec, 0xff")
        e(f"buffer_load_dword v127, v6, {srd(SRD_WS)}, {sA} offen sc1")
        e("s_mov_b64 exec, -1")

    def slotq_addr(self, e):
        e(f"s_lshl_b32 {sA}, {sW}, 6")
        e(f"v_add_u32 v4, {sA}, {vL}")
        e(f"s_movk_i32 {sBt}, 112")
        e(f"v_cmp_gt_u32 s[88:89], {sBt}, v4")
        e(f"s_movk_i32 {sBt}, 224")
        e(f"v_cmp_gt_u32 s[94:95], {sBt}, v4")
        e("v_subrev_u32 v5, 112, v4")
        e("v_cndmask_b32 v5, v5, v4, s[88:89]")
        e("v_mov_b32 v6, 336")
        e("v_mov_b32 v7, 448")
        e("v_cndmask_b32 v6, v6, v7, s[88:89]")
        e("v_add_u32 v6, v6, v5")
        e("v_and_b32 v7, 15, v4")
        e(f"s_lshl_b32 {sA}, {sCG}, 4")
        e(f"v_add_u32 v7, {sA}, v7")
        e("v_bfe_u32 v208, v4, 4, 1")
        e("v_mul_u32_u24 v208, 336, v208")
        e("v_add_u32 v7, v7, v208")
        e("v_add_u32 v7, 224, v7")
        e("v_cndmask_b32 v6, v7, v6, s[94:95]")
        e("v_lshlrev_b32 v208, 4, v6")
        e("v_lshrrev_b32 v6, 3, v5")
        e("v_lshlrev_b32 v6, 6, v6")
        e("v_and_b32 v7, 3, v5")
        e("v_lshl_add_u32 v6, v7, 4, v6")
        e("v_bfe_u32 v7, v5, 2, 1")
        e("v_lshl_add_u32 v6, v7, 3, v6")
        e("v_mov_b32 v7, 896")
        e("v_cndmask_b32 v7, v7, 0, s[88:89]")
        e("v_add_u32 v209, v6, v7")
        e("v_and_b32 v7, 31, v4")
        e("v_lshlrev_b32 v210, 4, v7")
        e("v_cndmask_b32 v212, 0, 1.0, s[88:89]")
        e("v_cndmask_b32 v213, 0, 1, s[94:95]")
        e(f"v_lshrrev_b32 v4, 2, {vL}")
        e(f"v_mul_u32_u24 v4, 896, v4")
        e(f"v_and_b32 v5, 3, {vL}")
        e(f"v_lshl_add_u32 v214, v5, 4, v4")
        e(f"s_lshl_b32 {sA}, {sI}, 2")
        e(f"s_add_u32 {sA}, {sA}, {sRB}")
        e(f"s_lshl_b32 {sA}, {sA}, 2")
        e(f"s_add_u32 {sA}, {sA}, {sW}")
        e(f"s_mul_i32 {sA}, {sA}, 14336")
        e(f"s_lshl_b32 {sBt}, {sCG}, 7")
        e(f"s_add_u32 s100, {sA}, {sBt}")

    def wo_dma(self):
        e = self.e
        e(f"s_lshl_b32 {sC}, {sCG}, 7")
        e(f"s_mul_i32 {sA}, {sW}, {8 * 896}")
        e(f"s_add_u32 {sC}, {sC}, {sA}")
        for n in range(14):
            e(f"s_add_u32 {sA}, {sC}, {n * 32 * 896}")
            e(f"s_add_u32 m0, s101, {L_WO + n * 4096}")
            e(f"buffer_load_dwordx4 v13, {srd(SRD_WO)}, {sA} offen lds")

    def slotq_issue(self):
        e = self.e
        self.gather_issue("v208", 216)
        e(f"buffer_load_dwordx4 v[240:243], v214, {srd(SRD_X)}, s100 offen")
        e(f"buffer_load_dwordx4 v[244:247], v214, {srd(SRD_X)}, s100 offen offset:64")
        e(f"s_mul_i32 {sA}, {sCG}, 112")
        e(f"s_mul_i32 {sBt}, {sW}, 28")
        e(f"s_add_u32 {sA}, {sA}, {sBt}")
        e(f"s_lshl_b32 {sA}, {sA}, 2")
        e(f"s_add_u32 s100, {sA}, {WS_FLW}")
        e(f"v_min_u32 v4, 27, {vL}")
        e(f"v_lshlrev_b32 v215, 2, v4")
        e(f"buffer_load_dword v238, v215, {srd(SRD_WS)}, s100 offen sc1")

    def late_consts(self):
        e = self.e
        self.gather_finish("v208", 216, 232)
        for k in range(4):
            e(f"v_add_f32 v{220 + k}, v{216 + k}, v212")
        e("v_cvt_pk_bf16_f32 v220, v220, v221")
        e("v_cvt_pk_bf16_f32 v221, v222, v223")
        e("v_cmp_ne_u32 vcc, 0, v213")
        e("s_mov_b64 exec, vcc")
        e(f"ds_write_b64 v209, v[220:221] offset:{L_CVEC}")
        e("s_not_b64 exec, exec")
        e(f"ds_write_b128 v210, v[216:219] offset:{L_GAB}")
        e("s_mov_b64 exec, -1")
        e(f"s_lshl_b32 {sA}, {sW}, 11")
        e(f"s_add_u32 {sA}, {sA}, {L_XS}")
        e(f"v_lshrrev_b32 v4, 2, {vL}")
        e(f"v_lshlrev_b32 v4, 7, v4")
        e(f"v_and_b32 v5, 3, {vL}")
        e(f"v_lshl_add_u32 v4, v5, 4, v4")
        e(f"v_add_u32 v6, {sA}, v4")
        e(f"v_and_b32 v4, 15, {vL}")
        e(f"v_lshlrev_b32 v4, 7, v4")
        e(f"v_lshrrev_b32 v5, 4, {vL}")
        e(f"v_lshl_add_u32 v4, v5, 3, v4")
        e(f"v_add_u32 v7, {sA}, v4")
        e("ds_write_b128 v6, v[240:243]")
        e("ds_write_b128 v6, v[244:247] offset:64")
        for t in range(4):
            e(f"ds_read_b64 {vr(248 + 2 * t, 2)}, v7 offset:{32 * t}")
        lp, dn = e.label("wfl"), e.label("wfld")
        keep = list(e.vm)
        e(f"s_mov_b32 {sSPIN}, 0")
        e(f"{lp}:")
        e(f"v_cmp_ne_u32 vcc, {sTAG}, v238")
        e(f"s_cbranch_vccz {dn}")
        e(f"buffer_load_dword v238, v215, {srd(SRD_WS)}, s100 offen sc1")
        e(f"s_add_u32 {sSPIN}, {sSPIN}, 1")
        e(f"s_cmp_ge_u32 {sSPIN}, {SPIN_MAX}")
        e("s_waitcnt vmcnt(0)")
        e(f"s_cbranch_scc0 {lp}")
        e(f"{dn}:")
        e.vm = keep

    def p2(self):
        e = self.e
        QF, MK = 64, 72
        e(f"v_and_b32 v4, 31, {vL}")
        e(f"v_lshrrev_b32 v7, 5, {vL}")
        e(f"v_lshlrev_b32 v7, 2, v7")
        e("v_sub_u32 v4, v4, v7")
        e("v_mov_b32 v6, 0xffff")
        e("v_mov_b32 v7, 0xffff0000")
        for r in range(16):
            e(f"v_cmp_le_i32 s[{SMASK + 2 * r}:{SMASK + 2 * r + 1}], {(r >> 2) * 8 + (r & 3)}, v4")
        for k in range(8):
            e(f"v_cndmask_b32 v8, 0, v6, s[{SMASK + 4 * k}:{SMASK + 4 * k + 1}]")
            e(f"v_cndmask_b32 v9, 0, v7, s[{SMASK + 4 * k + 2}:{SMASK + 4 * k + 3}]")
            e(f"v_or_b32 v{MK + k}, v8, v9")
        e(f"s_lshl_b32 {sA}, {sW}, 12")
        e(f"s_add_u32 {sA}, {sA}, {L_KV}")
        e(f"v_add_u32 v10, {sA}, {vL16}")
        e(f"v_lshl_add_u32 v15, {vL}, 3, {sA}")
        e(f"s_mul_i32 {sD}, {sW}, 12288")
        e(f"s_add_u32 {sD}, {sD}, {L_KV}")
        e(f"v_add_u32 v4, 1792, {vL16}")
        e(f"v_subrev_u32 v5, 16, {vL}")
        e(f"v_lshlrev_b32 v5, 9, v5")
        e(f"v_add_u32 v5, {2048 + 448}, v5")
        e(f"v_cmp_gt_u32 vcc, 16, {vL}")
        e("v_mov_b32 v6, 0x3f803f80")
        e("v_cndmask_b32 v4, v5, v4, vcc")
        e("v_cndmask_b32 v16, v6, 0, vcc")
        e(f"v_add_u32 v4, {sD}, v4")
        for k in range(1, 4):
            e(f"v_mov_b32 v{16 + k}, v16")
        e("s_mov_b64 exec, 0xfffff")
        for t in range(3):
            e(f"ds_write_b128 v4, v[16:19] offset:{t * 4096}")
        e("s_mov_b64 exec, -1")
        e(f"s_and_b32 {sC}, {sT}, 0xfc")
        e(f"s_mul_i32 {sBt}, {sW}, 3")
        e(f"s_add_u32 {sC}, {sC}, {sBt}")
        e(f"s_sub_u32 {sC}, {sC}, 8")
        e(f"v_bfe_u32 v4, {vL}, 2, 1")
        e(f"v_lshl_add_u32 v4, v4, 1, {sC}")
        e("v_ashrrev_i32 v4, 2, v4")
        e("v_max_i32 v4, 0, v4")
        e("v_mul_u32_u24 v4, 14, v4")
        e(f"s_mul_i32 {sA}, {sH}, 28")
        e(f"v_and_b32 v5, 1, {vL}")
        e("v_mul_u32_u24 v5, 27, v5")
        e(f"v_add_u32 v5, {sA}, v5")
        e("v_lshrrev_b32 v5, 6, v5")
        e("v_add_u32 v4, v4, v5")
        e(f"v_bfe_u32 v5, {vL}, 1, 1")
        e("v_mul_u32_u24 v5, 7, v5")
        e("v_add_u32 v4, v4, v5")
        e("v_lshlrev_b32 v4, 7, v4")
        e(f"s_mov_b32 {sA}, {WS_FLKV}")
        e(f"s_lshl_b32 {sE}, {sH}, 6")
        e(f"s_add_u32 {sE}, {sE}, {sC}")
        e(f"s_lshl_b32 {sE}, {sE}, 12")
        e(f"s_add_u32 {sE}, {sE}, {WS_KV}")
        for k in range(8):
            e(f"v_mov_b32 v{20 + k}, 0")
        e("v_mov_b32 v5, 0x0000f149")
        e(f"v_cmp_le_u32 vcc, 48, {vL}")
        e(f"v_add_u32 v9, {sD}, {vL16}")
        e("v_cndmask_b32 v24, 0, v5, vcc")
        e("v_cndmask_b32 v26, 0, v5, vcc")
        self.poll("v4", sA, "v8")
        self.acquire()
        self.stamp("kvflag")
        for t in range(3):
            fl, dn = e.label("kvfill"), e.label("kvdone")
            e(f"s_cmp_lt_i32 {sC}, {-t}")
            e(f"s_cbranch_scc1 {fl}")
            e(f"s_add_u32 m0, {sD}, {t * 4096}")
            e(f"s_add_u32 {sA}, {sE}, {t * 4096}")
            e(f"buffer_load_dwordx4 {vL16}, {srd(SRD_WS)}, {sA} offen sc1 lds")
            e("s_mov_b32 exec_hi, 0xffff")
            e(f"buffer_load_dwordx4 {vL16}, {srd(SRD_WS)}, {sA} offen offset:1024 sc1 lds")
            e("s_mov_b32 exec_lo, 0x0fffffff")
            e("s_mov_b32 exec_hi, 0x0fffffff")
            e(f"buffer_load_dwordx4 {vL16}, {srd(SRD_WS)}, {sA} offen offset:2048 sc1 lds")
            e(f"buffer_load_dwordx4 {vL16}, {srd(SRD_WS)}, {sA} offen offset:3072 sc1 lds")
            e("s_mov_b64 exec, -1")
            e(f"s_branch {dn}")
            e(f"{fl}:")
            for f in range(4):
                e(f"ds_write_b128 v9, {vr(24 if f == 1 else 20)} offset:{t * 4096 + f * 1024}")
            e(f"{dn}:")
        e.vm = []
        self.late_consts()
        e("s_waitcnt vmcnt(0) lgkmcnt(0)")
        e("s_barrier")
        self.stamp("kvgot")
        KF, VF = 0, 72
        order = [0, 8, 1, 2, 3, 4, 5, 6, 7]
        S = [80, 96, 112]
        MG, NM, OA, PF = 128, 144, 160, 176
        vM = "v11"

        def rdk(t):
            for f in range(2):
                e(f"ds_read2st64_b64 {ar(KF + 8 * t + 4 * f)}, v15 offset0:{8 * t + 2 * f} offset1:{8 * t + 2 * f + 1}", ("k", t))

        def rdv(t, f):
            e(f"ds_read_b128 {ar(VF + 8 * t + 4 * f)}, v10 offset:{t * 4096 + 2048 + f * 1024}", ("v", t))

        def smf(t, half, dst, c):
            e(f"v_mfma_f32_32x32x16_bf16 {vr(dst, 16)}, {ar(KF + 8 * t + 4 * half)}, {vr(QF + 4 * half)}, {c if half == 0 else vr(dst, 16)}")

        def mx(src, k, first=False):
            if first:
                e(f"v_max_f32 {vM}, v{src}, v{src + 1}")
            else:
                e(f"v_max3_f32 {vM}, {vM}, v{src + 2 * k}, v{src + 2 * k + 1}")

        for t in order[:5]:
            rdk(t)
        pf = [lambda p=p, mat=mat: self.wgu_piece(p, mat) for p in range(self.o.get("e1", 3), self.o.get("e2", 8)) for mat in range(2)]
        nwd = self.o.get("wd_early", 0)
        e(f"s_mul_i32 {sE}, {sCG}, 112")
        e(f"s_mul_i32 {sBt}, {sW}, 28")
        e(f"s_add_u32 {sE}, {sE}, {sBt}")
        e(f"s_lshl_b32 {sE}, {sE}, 11")
        e(f"s_add_u32 {sE}, {sE}, {WS_WD}")
        e(f"s_mul_i32 {sC}, {sRB}, 7")
        e(f"s_add_u32 {sC}, {sC}, {28 - nwd}")

        def wd_early(j, half):
            if half == 0:
                e(f"s_cmp_ge_u32 {sC}, 28")
                e(f"s_cselect_b32 {sA}, 28, 0")
                e(f"s_sub_u32 {sA}, {sC}, {sA}")
                e(f"s_lshl_b32 {sA}, {sA}, 11")
                e(f"s_add_u32 {sA}, {sA}, {sE}")
                e(f"s_add_u32 {sC}, {sC}, 1")
            e(f"buffer_load_dwordx4 {ar(8 * j + 4 * half)}, {vL16}, {srd(SRD_WS)}, {sA} offen offset:{1024 * half} sc1")

        wdl = [lambda j=j, half=half: wd_early(j, half) for j in range(28 - nwd, 28) for half in range(2)]
        main, fill = [], {}
        dsts = {0: S[0], 8: S[1]}
        for n, t in enumerate(order[2:]):
            dsts[t] = S[(n + 2) % 3]
        for n, t in enumerate(order):
            for half in range(2):
                def m(t=t, half=half):
                    if half == 0:
                        e.wait(lg=("k", t))
                    smf(t, half, dsts[t], "0")
                main.append(m)
        for n, t in enumerate(order[5:]):
            fill.setdefault(n, []).append(lambda t=t: rdk(t))
        mrg = [lambda r=r: e(f"v_cndmask_b32 v{MG + r}, v{S[0] + r}, v{S[1] + r}, s[{SMASK + 2 * r}:{SMASK + 2 * r + 1}]") for r in range(16)]
        fill.setdefault(5, []).extend(mrg)
        fill.setdefault(6, []).extend([lambda k=k: mx(MG, k, k == 0) for k in range(8)])
        for n, t in enumerate(order[2:]):
            g = 2 * (n + 2) + 3
            ops = [lambda k=k, t=t: mx(dsts[t], k) for k in range(8)]
            if g + 1 < 18:
                fill.setdefault(g, []).extend(ops[:4])
                fill.setdefault(g + 1, []).extend(ops[4:])
            else:
                fill.setdefault(17, []).extend(ops)
        vreads = [lambda t=t, f=f: rdv(t, f) for t in order for f in range(2)]
        self.spread(fill, vreads, 6, 16)
        npf1 = self.o.get("pf1", 4)
        self.spread(fill, pf[:npf1], 0, 17)
        wdl = pf[npf1:] + wdl
        self.merge(main, fill)
        e(f"v_mov_b32 v4, {vM}")
        e(f"v_permlane32_swap_b32 {vM}, v4")
        e(f"v_max_f32 {vM}, {vM}, v4")
        for r in range(16):
            e(f"v_sub_f32 v{NM + r}, 0, {vM}")
        nm = vr(NM, 16)
        smf(1, 0, S[0], nm)
        for r in range(8):
            e(f"v_sub_f32 v{MG + r}, v{MG + r}, {vM}")
        smf(1, 1, S[0], nm)
        for r in range(8, 16):
            e(f"v_sub_f32 v{MG + r}, v{MG + r}, {vM}")
        smf(2, 0, S[1], nm)
        for r in range(8):
            e(f"v_exp_f32 v{MG + r}, v{MG + r}")
        smf(2, 1, S[1], nm)
        for r in range(8, 16):
            e(f"v_exp_f32 v{MG + r}, v{MG + r}")
        for k in range(8):
            e(f"v_cvt_pk_bf16_f32 v{PF + k}, v{MG + 2 * k}, v{MG + 2 * k + 1}")
        for k in range(8):
            e(f"v_and_b32 v{PF + 8 + k}, v{PF + k}, v{MK + k}")
            e(f"v_xor_b32 v{PF + k}, v{PF + k}, v{PF + 8 + k}")
        e("s_waitcnt lgkmcnt(0)")
        oa = vr(OA, 16)
        pend = [f"v_mfma_f32_32x32x16_bf16 {oa}, {ar(VF)}, {vr(PF)}, 0",
                f"v_mfma_f32_32x32x16_bf16 {oa}, {ar(VF + 4)}, {vr(PF + 4)}, {oa}",
                f"v_mfma_f32_32x32x16_bf16 {oa}, {ar(VF + 64)}, {vr(PF + 8)}, {oa}",
                f"v_mfma_f32_32x32x16_bf16 {oa}, {ar(VF + 68)}, {vr(PF + 12)}, {oa}"]
        for t in range(1, 8):
            src = S[(t - 1) % 3]
            pfr = PF + 16 + 8 * (t & 1)
            mf = list(pend)
            if t + 2 < 8:
                d = S[(t + 1) % 3]
                mf += [f"v_mfma_f32_32x32x16_bf16 {vr(d, 16)}, {ar(KF + 8 * (t + 2))}, {vr(QF)}, {nm}",
                       f"v_mfma_f32_32x32x16_bf16 {vr(d, 16)}, {ar(KF + 8 * (t + 2) + 4)}, {vr(QF + 4)}, {vr(d, 16)}"]
            ops = [f"v_exp_f32 v{src + r}, v{src + r}" for r in range(16)]
            ops += [f"v_cvt_pk_bf16_f32 v{pfr + k}, v{src + 2 * k}, v{src + 2 * k + 1}" for k in range(8)]
            cost = [2] * 16 + [1] * 8
            tot, acc, mi = sum(cost), 0, 0
            for oi, (op, c) in enumerate(zip(ops, cost)):
                if oi % self.o.get("pf2", 12) == 2 and wdl:
                    wdl.pop(0)()
                while mi < len(mf) and acc >= mi * tot / len(mf):
                    e(mf[mi])
                    mi += 1
                e(op)
                acc += c
            for x in mf[mi:]:
                e(x)
            pend = [f"v_mfma_f32_32x32x16_bf16 {oa}, {ar(VF + 8 * t)}, {vr(pfr)}, {oa}",
                    f"v_mfma_f32_32x32x16_bf16 {oa}, {ar(VF + 8 * t + 4)}, {vr(pfr + 4)}, {oa}"]
        for x in wdl:
            x()
        e(pend[0])
        e(f"v_bfe_u32 v4, {vL}, 4, 1")
        e(f"v_lshlrev_b32 v4, 14, v4")
        e(f"v_lshrrev_b32 v5, 5, {vL}")
        e(f"v_lshl_add_u32 v4, v5, 8, v4")
        e(pend[1])
        e(f"v_and_b32 v5, 15, {vL}")
        e(f"v_lshl_add_u32 v4, v5, 4, v4")
        e(f"s_lshl_b32 {sA}, {sT}, 5")
        e(f"s_add_u32 {sA}, {sA}, {sH}")
        e(f"s_lshl_b32 {sA}, {sA}, 10")
        e(f"s_add_u32 {sA}, {sA}, {WS_O}")
        e(f"s_lshl_b32 {sBt}, {sT}, 4")
        e(f"s_add_u32 {sBt}, {sBt}, {sH}")
        e(f"s_lshl_b32 {sBt}, {sBt}, 2")
        e(f"s_add_u32 {sBt}, {sBt}, {WS_FLO}")
        e(f"v_mov_b32 v5, v{OA + 12}")
        e(f"v_mov_b32 v6, v{OA + 12}")
        e("v_permlane32_swap_b32 v5, v6")
        e("v_rcp_f32 v6, v6")
        for f in range(2):
            for r in range(8 * f, 8 * f + 8):
                e(f"v_mul_f32 v{OA + r}, v6, v{OA + r}")
            for k in range(4 * f, 4 * f + 4):
                e(f"v_cvt_pk_bf16_f32 v{PF + k}, v{OA + 2 * k}, v{OA + 2 * k + 1}")
            if f == 1:
                e(f"v_cndmask_b32 v{PF + 6}, v{PF + 6}, 0, {sHI}")
                e(f"v_cndmask_b32 v{PF + 7}, v{PF + 7}, 0, {sHI}")
            e(f"buffer_store_dwordx4 {vr(PF + 4 * f)}, v4, {srd(SRD_WS)}, {sA} offen offset:{f * 512}{self.sm('o')}")
        self.stamp("attn")
        self.publish(sBt, "v7")
        self.stamp("opub")
        e("s_barrier")
        e(f"s_cmp_ge_u32 {sR}, 28")
        e("s_cbranch_scc1 L_spare")

    def p3(self):
        e = self.e
        OB, WR, AC = 128, 0, 16
        GA, CB, XR = 32, 48, 64
        NWO = 9
        self.wo_dma()
        e(f"v_lshrrev_b32 v4, 5, {vL}")
        e(f"v_lshlrev_b32 v4, 4, v4")
        e(f"v_bfe_u32 v5, {vL}, 4, 1")
        e(f"v_lshl_add_u32 v4, v5, 2, v4")
        e(f"v_bfe_u32 v6, {vL}, 2, 2")
        e("v_add_u32 v4, v4, v6")
        e("v_lshlrev_b32 v4, 7, v4")
        e("v_lshrrev_b32 v6, 1, v6")
        e("v_lshl_add_u32 v5, v5, 1, v6")
        e(f"v_and_b32 v6, 3, {vL}")
        e("v_lshl_add_u32 v4, v6, 3, v4")
        e(f"v_add_u32 v4, {L_WO}, v4")
        for t in range(4):
            e(f"v_xor_b32 v6, {t}, v5")
            e(f"v_lshl_add_u32 v{8 + t}, v6, 5, v4")

        def rd_wo(hd, tiles=range(4)):
            for t in tiles:
                a = 8 + (t ^ (2 * (hd & 1)))
                d = WR + 16 * (hd % NWO) + 4 * t
                e(f"ds_read_b64_tr_b16 {ar(d, 2)}, v{a} offset:{hd * 3584}", ("wo", hd))
                e(f"ds_read_b64_tr_b16 {ar(d + 2, 2)}, v{a} offset:{hd * 3584 + 1024}", ("wo", hd))

        e("v_mov_b32 v6, 0")
        e("v_mov_b32 v7, 0")
        e(f"v_lshlrev_b32 v4, 3, {vL}")
        e(f"ds_write_b64 v4, v[6:7] offset:{L_PAD}")
        e(f"s_lshl_b32 {sA}, {sW}, 11")
        e(f"v_and_b32 v4, 15, {vL}")
        e(f"v_lshlrev_b32 v4, 7, v4")
        e(f"v_lshrrev_b32 v5, 4, {vL}")
        e(f"v_lshl_add_u32 v4, v5, 3, v4")
        e(f"s_add_u32 {sA}, {sA}, {L_X1}")
        e(f"v_add_u32 v100, {sA}, v4")
        e(f"v_lshlrev_b32 v6, 4, v5")
        for t in range(4):
            e(f"ds_read_b128 {vr(GA + 4 * t)}, v6 offset:{L_GAB + 64 * t}")
        e(f"s_lshl_b32 {sA}, {sCG}, 7")
        e(f"v_add_u32 v6, {sA}, v6")
        for pp in range(2):
            e(f"ds_read_b128 {vr(XR + 16 + 4 * pp)}, v6 offset:{L_CVEC + 64 * pp}", "xr")
        e(f"v_and_b32 v4, 15, {vL}")
        e(f"v_lshlrev_b32 v101, 4, v4")
        e(f"v_lshl_add_u32 v101, v5, 9, v101")
        e(f"v_lshlrev_b32 v4, 2, v4")
        e(f"s_lshl_b32 {sA}, {sI}, 2")
        e(f"s_add_u32 {sE}, {sA}, {sRB}")
        e(f"s_lshl_b32 {sA}, {sE}, 1")
        e(f"s_lshr_b32 {sBt}, {sW}, 1")
        e(f"s_add_u32 {sA}, {sA}, {sBt}")
        e(f"s_mul_i32 s64, {sA}, 28672")
        e(f"s_lshl_b32 {sBt}, {sCG}, 12")
        e(f"s_add_u32 s64, s64, {sBt}")
        e(f"s_and_b32 {sBt}, {sW}, 1")
        e(f"s_lshl_b32 {sBt}, {sBt}, 8")
        e(f"s_add_u32 s64, s64, {sBt}")
        e(f"s_add_u32 s64, s64, {WS_Z}")
        e(f"s_lshl_b32 s67, {sA}, 6")
        e(f"s_add_u32 s67, s67, {WS_FLO}")
        e(f"s_mul_i32 s65, {sE}, 7")
        e(f"s_add_u32 s65, s65, {sCG}")
        e(f"s_lshl_b32 s65, s65, 9")
        e(f"s_lshl_b32 {sBt}, {sW}, 7")
        e(f"s_add_u32 s65, s65, {sBt}")
        e(f"s_add_u32 s65, s65, {WS_STAT}")
        e(f"s_lshl_b32 s66, {sE}, 5")
        e(f"s_lshl_b32 {sBt}, {sCG}, 2")
        e(f"s_add_u32 s66, s66, {sBt}")
        e(f"s_add_u32 s66, s66, {sW}")
        e(f"s_lshl_b32 s66, s66, 2")
        e(f"s_add_u32 s66, s66, {WS_FLZ}")
        e(f"s_lshl_b32 {sC}, {sE}, 2")
        e(f"s_add_u32 {sC}, {sC}, {sW}")
        e(f"s_lshl_b32 {sC}, {sC}, 14")
        e(f"s_add_u32 {sC}, {sC}, {WS_O}")
        e.wait(lg="xr")
        for k in range(8):
            e(f"v_lshlrev_b32 v{XR + 2 * k}, 16, v{248 + k}")
            e(f"v_and_b32 v{XR + 2 * k + 1}, 0xffff0000, v{248 + k}")
            e(f"v_lshlrev_b32 v{CB + 2 * k}, 16, v{XR + 16 + k}")
            e(f"v_and_b32 v{CB + 2 * k + 1}, 0xffff0000, v{XR + 16 + k}")
        npre = 0
        self.poll("v4", "s67", "v5")
        self.acquire()
        self.stamp("oflag")

        def ld_o(hd):
            if hd and hd % 4 == 0:
                e(f"s_add_u32 {sC}, {sC}, 4096")
            e(f"buffer_load_dwordx4 {vr(OB + 4 * hd)}, {vL16}, {srd(SRD_WS)}, {sC} offen offset:{(hd % 4) * 1024} sc1", ("o", hd))

        PRE = self.o.get("p3pre", 6)
        for hd in range(PRE):
            ld_o(hd)
        e("s_barrier")
        for hd in range(npre, 3):
            rd_wo(hd)
        for hd in range(16):
            e.wait(vm=("o", hd), lg=("wo", hd))
            for t in range(4):
                c = "0" if hd == 0 else vr(AC + 4 * t)
                e(f"v_mfma_f32_16x16x32_bf16 {vr(AC + 4 * t)}, {ar(WR + 16 * (hd % NWO) + 4 * t)}, {vr(OB + 4 * hd)}, {c}")
                if t == 0 and hd + PRE < 16:
                    ld_o(hd + PRE)
                if hd + 3 < 16:
                    rd_wo(hd + 3, [t])
        self.stamp("oproj")
        for pp in range(2):
            ks = range(8 * pp, 8 * pp + 8)
            for k in ks:
                e(f"v_fmac_f32 v{XR + k}, v{GA + k}, v{AC + k}")
            for k in range(4 * pp, 4 * pp + 4):
                e(f"v_cvt_pk_bf16_f32 v{XR + 16 + k}, v{XR + 2 * k}, v{XR + 2 * k + 1}")
            for k in range(4 * pp, 4 * pp + 4):
                e(f"v_lshlrev_b32 v{XR + 2 * k}, 16, v{XR + 16 + k}")
                e(f"v_and_b32 v{XR + 2 * k + 1}, 0xffff0000, v{XR + 16 + k}")
            for k in ks:
                e(f"v_mul_f32 v{CB + k}, v{CB + k}, v{XR + k}")
            for k in range(4 * pp, 4 * pp + 4):
                e(f"v_cvt_pk_bf16_f32 v{XR + 24 + k}, v{CB + 2 * k}, v{CB + 2 * k + 1}")
            e(f"buffer_store_dwordx4 {vr(XR + 24 + 4 * pp)}, v101, {srd(SRD_WS)}, s64 offen offset:{pp * 2048}{self.sm('z')}")
        e(f"v_add_f32 v6, v{XR}, v{XR + 1}")
        e(f"v_add_f32 v7, v{XR + 2}, v{XR + 3}")
        for k in range(4, 16, 2):
            e(f"v_add_f32 v6, v6, v{XR + k}")
            e(f"v_add_f32 v7, v7, v{XR + k + 1}")
        e("v_add_f32 v6, v6, v7")
        self.reduce_hi2("v6", "v7")
        e(f"v_mul_f32 v11, {fbits(1.0 / 64)}, v6")
        e("v_mov_b32 v7, 0")
        e("v_mov_b32 v10, 0")
        for k in range(0, 16, 2):
            e(f"v_sub_f32 v{GA}, v{XR + k}, v11")
            e(f"v_sub_f32 v{GA + 1}, v{XR + k + 1}, v11")
            e(f"v_fmac_f32 v7, v{GA}, v{GA}")
            e(f"v_fmac_f32 v10, v{GA + 1}, v{GA + 1}")
        e("v_add_f32 v7, v7, v10")
        self.reduce_hi2("v7", "v10")
        e(f"v_lshlrev_b32 v4, 3, {vL}")
        e("s_mov_b64 exec, 0xffff")
        e(f"buffer_store_dwordx2 v[6:7], v4, {srd(SRD_WS)}, s65 offen")
        e("s_mov_b64 exec, -1")
        self.publish("s66", "v8")
        self.stamp("zpub")
        e("s_barrier")
        for t in range(4):
            e(f"ds_write_b64 v100, {vr(XR + 16 + 2 * t, 2)} offset:{32 * t}")

    def w4_addr(self):
        e = self.e
        self.tr_addr("v24", 4)
        e("v_xor_b32 v25, 64, v24")
        for k in range(1, 3):
            e(f"v_add_u32 v{24 + 2 * k}, {65536 * k}, v24")
            e(f"v_add_u32 v{25 + 2 * k}, {65536 * k}, v25")

    @staticmethod
    def w4_off(ks, mat):
        a = w4_base(ks >> 1) + mat * 4096 + (ks & 1) * 1024
        return a % 65536, 2 * (a // 65536)

    def p45(self):
        e = self.e
        AC, BR, AR, WD = 128, 64, 224, 0
        XA, XB, R2 = 48, 112, 120
        KS = self.o.get("ks_split", 12)
        NB, DB = 12, self.o.get("zdist", 10)
        self.w4_addr()
        e(f"s_lshl_b32 {sA}, {sW}, 13")
        e(f"s_add_u32 s92, {sA}, {L_RA}")
        steps = [(ks, (0, 1)) for ks in range(KS)] + [(ks, (0,)) for ks in range(KS, 29)] + [(ks, (1,)) for ks in range(KS, 29)]
        seq = [(ks, tt) for ks, tts in steps for tt in tts if ks < 28]
        slot = {x: n % NB for n, x in enumerate(seq)}

        def rd_a1(si, t, hf):
            ks = steps[si][0]
            if ks == 28:
                return
            off, hi = self.w4_off(ks, t >> 1)
            d = AR + 16 * (si % 2) + 4 * t + 2 * hf
            e(f"ds_read_b64_tr_b16 {ar(d, 2)}, v{24 + hi + (t & 1)} offset:{off + 2048 * hf}", ("a", si, t))

        for t in range(4):
            for hf in range(2):
                rd_a1(0, t, hf)
        e(f"v_min_u32 v4, 27, {vL}")
        e(f"v_lshlrev_b32 v4, 2, v4")
        e(f"s_lshl_b32 {sE}, {sI}, 2")
        e(f"s_add_u32 {sE}, {sE}, {sW}")
        e(f"s_lshl_b32 {sA}, {sE}, 7")
        e(f"s_add_u32 {sA}, {sA}, {WS_FLZ}")
        e(f"s_mul_i32 s88, {sE}, 57344")
        e(f"s_add_u32 s88, s88, {WS_Z}")
        e(f"s_add_u32 s89, s88, 28672")
        e(f"s_mul_i32 s64, {sE}, 3584")
        e(f"s_add_u32 s64, s64, {WS_STAT}")
        e(f"s_mul_i32 s65, {sE}, {2 * 114688}")
        e(f"s_lshl_b32 {sBt}, {sR}, 12")
        e(f"s_add_u32 s65, s65, {sBt}")
        e(f"s_add_u32 s65, s65, {WS_HID}")
        e(f"s_add_u32 s66, s65, 114688")
        e(f"s_lshl_b32 s67, {sE}, 6")
        e(f"s_add_u32 s67, s67, {sR}")
        e(f"s_lshl_b32 s67, s67, 2")
        e(f"s_add_u32 s67, s67, {WS_FLD}")
        e(f"s_add_u32 s68, s67, 128")
        e(f"s_lshl_b32 s69, {sI}, 2")
        e(f"s_add_u32 s69, s69, {sRB}")
        e(f"s_lshl_b32 s70, s69, 8")
        e(f"s_mul_i32 {sBt}, {sW}, 28")
        e(f"s_add_u32 s70, s70, {sBt}")
        e(f"s_add_u32 s70, s70, {WS_FLD}")
        e(f"s_mul_i32 s71, s69, {2 * 114688}")
        e(f"s_mul_i32 {sBt}, {sW}, 28672")
        e(f"s_add_u32 s71, s71, {sBt}")
        e(f"s_add_u32 s71, s71, {WS_HID}")
        e(f"s_mul_i32 s72, {sCG}, 112")
        e(f"s_mul_i32 {sBt}, {sW}, 28")
        e(f"s_add_u32 s72, s72, {sBt}")
        e(f"s_lshl_b32 s81, s72, 2")
        e(f"s_add_u32 s81, s81, {WS_FLW}")
        e(f"s_lshl_b32 s72, s72, 11")
        e(f"s_add_u32 s72, s72, {WS_WD}")
        e(f"s_mul_i32 s73, {sRB}, 7")
        e(f"s_mul_i32 s74, {sRB}, 7")
        e(f"s_lshl_b32 s75, {sR}, 7")
        e(f"s_add_u32 s75, s75, {WS_FLXA}")
        e(f"s_lshl_b32 s76, {sR}, 12")
        e(f"s_add_u32 s76, s76, {WS_XA}")
        e(f"s_lshl_b32 s77, s69, 3")
        e(f"s_add_u32 s77, s77, {sW}")
        e(f"s_mul_i32 s77, s77, 7168")
        e(f"s_lshl_b32 {sBt}, {sCG}, 7")
        e(f"s_add_u32 s77, s77, {sBt}")
        e(f"s_add_u32 s78, s77, {32 * 896}")
        self.poll("v4", sA, "v5")
        self.acquire()
        self.stamp("zflag")

        def ld_z(n):
            ks, tt = seq[n]
            if ks and ks % 4 == 0:
                e(f"s_add_u32 s{88 + tt}, s{88 + tt}, 4096")
            e(f"buffer_load_dwordx4 {vr(BR + 4 * slot[seq[n]])}, {vL16}, {srd(SRD_WS)}, s{88 + tt} offen offset:{(ks % 4) * 1024} sc1", ("z", n))

        first = self.o.get("zfirst", 6)
        for n in range(first):
            ld_z(n)

        def ld_stat(cg):
            if cg == 0:
                e(f"v_lshlrev_b32 v4, 3, {vL}")
            e(f"buffer_load_dwordx2 {vr(32 + 2 * cg, 2)}, v4, {srd(SRD_WS)}, s64 offen offset:{cg * 512} sc1", "stat")

        def ld_wd(j):
            e("s_lshl_b32 s79, s73, 11")
            e("s_add_u32 s79, s79, s72")
            e(f"buffer_load_dwordx4 {ar(WD + 8 * j)}, {vL16}, {srd(SRD_WS)}, s79 offen sc1", ("wd", j))
            e("s_add_u32 s73, s73, 1")
            e("s_cmp_eq_u32 s73, 28")
            e("s_cselect_b32 s73, 0, s73")

        def ld_wd2(j):
            e(f"buffer_load_dwordx4 {ar(WD + 8 * j + 4)}, {vL16}, {srd(SRD_WS)}, s79 offen offset:1024 sc1", ("wd", j))

        def stats(e):
            e("v_add_f32 v4, v32, v34")
            e("v_add_f32 v5, v36, v38")
            e("v_add_f32 v6, v40, v42")
            e("v_add_f32 v4, v4, v5")
            e("v_add_f32 v6, v6, v44")
            e("v_add_f32 v4, v4, v6")
            e(f"v_mul_f32 v4, {fbits(1.0 / 448)}, v4")
            e("v_add_f32 v5, v33, v35")
            e("v_add_f32 v6, v37, v39")
            e("v_add_f32 v7, v41, v43")
            e("v_add_f32 v5, v5, v6")
            e("v_add_f32 v7, v7, v45")
            e("v_add_f32 v5, v5, v7")
            e(f"v_mov_b32 v7, {fbits(1.0 / 64)}")
            e("v_mov_b32 v6, 0")
            for cg in range(7):
                e(f"v_fma_f32 v46, v{32 + 2 * cg}, v7, -v4")
                e("v_fmac_f32 v6, v46, v46")
            e(f"v_mul_f32 v6, {fbits(64.0)}, v6")
            e("v_add_f32 v5, v5, v6")
            e(f"v_mul_f32 v5, {fbits(1.0 / 448)}, v5")
            e(f"v_add_f32 v5, {fbits(1e-5)}, v5")
            e(f"v_rcp_f32 v{R2}, v5")
            e("v_sqrt_f32 v5, v5")
            e("v_sub_f32 v4, 0, v4")
            e("v_cvt_pk_bf16_f32 v6, v4, v5")
            e("v_lshlrev_b32 v7, 16, v6")
            e("v_and_b32 v46, 0xffff0000, v6")
            e("v_sub_f32 v4, v4, v7")
            e("v_sub_f32 v5, v5, v46")
            e("v_cvt_pk_bf16_f32 v7, v4, v5")
            e(f"s_mov_b32 {sA}, 0x01000100")
            e(f"s_mov_b32 {sBt}, 0x03020504")
            e(f"s_mov_b32 {sC}, 0x07060302")
            e(f"v_perm_b32 v{XB}, v7, v6, {sA}")
            e(f"v_perm_b32 v{XB + 1}, v7, v6, {sBt}")
            e(f"v_perm_b32 v{XB + 2}, v7, v6, {sC}")
            e(f"v_mov_b32 v{XB + 3}, 0")
            e(f"v_mov_b32 v{XB + 7}, 0")
            for k in range(3):
                e(f"v_mov_b32 v{XB + 4 + k}, v{XB + k}")
            e(f"v_mov_b32 v{R2 + 1}, v{R2}")
            for k in range(3):
                e(f"v_permlane32_swap_b32 v{XB + k}, v{XB + 4 + k}")
            e(f"v_permlane32_swap_b32 v{R2}, v{R2 + 1}")

        def epi4(tt):
            out = []
            for ct in range(2):
                g, u = AC + 64 * tt + 16 * ct, AC + 64 * tt + 32 + 16 * ct
                for k in range(8):
                    for r in (2 * k, 2 * k + 1):
                        out.append(f"v_max_f32 v{g + r}, 0, v{g + r}")
                        out.append(f"v_mul_f32 v{u + r}, v{R2 + tt}, v{u + r}")
                    for r in (2 * k, 2 * k + 1):
                        out.append(f"v_mul_f32 v{g + r}, v{g + r}, v{u + r}")
                    out.append(f"v_cvt_pk_bf16_f32 v{g + k}, v{g + 2 * k}, v{g + 2 * k + 1}")
                    if k % 4 == 3:
                        s = k // 4
                        out.append((f"buffer_store_dwordx4 {vr(g + 4 * s)}, {vL16}, {srd(SRD_WS)}, s{65 + tt} offen offset:{(2 * ct + s) * 1024} sc1", ("hs", tt)))
            return [(lambda x=x: e(x)) if isinstance(x, str) else (lambda x=x: e(x[0], x[1])) for x in out]

        def flag_hid(tt):
            e.wait(vm=("hs", tt))
            e(f"v_mov_b32 v7, {sTAG}")
            slow, dn = e.label("slowfl"), e.label("fl")
            e("s_mov_b64 exec, 1")
            e(f"s_cmp_lg_u32 {sFAST}, 0")
            e(f"s_cbranch_scc0 {slow}")
            e(f"buffer_store_dword v7, off, {srd(SRD_WS)}, s{67 + tt}")
            e(f"s_branch {dn}")
            e(f"{slow}:")
            e(f"buffer_store_dword v7, off, {srd(SRD_WS)}, s{67 + tt} sc1")
            e(f"{dn}:")
            e.vm.pop()
            e("s_mov_b64 exec, -1")

        def poll_xa():
            e(f"v_and_b32 v4, 3, {vL}")
            e(f"v_lshlrev_b32 v4, 2, v4")
            self.poll("v4", "s75", "v5")
            for t in range(4):
                e(f"buffer_load_dwordx4 {vr(XA + 4 * t)}, {vL16}, {srd(SRD_WS)}, s76 offen offset:{t * 1024} sc1", "xa")

        ring5 = [128 + 4 * k for k in range(8)] + [32 + 4 * k for k in range(4)] + [16, 20]
        N5, D5 = len(ring5), self.o.get("hdist", 10)

        def poll_hid(tt):
            e(f"v_min_u32 v4, 6, {vL}")
            e(f"v_lshlrev_b32 v4, 2, v4")
            self.poll("v4", "s70", "v5", imm=128 * tt)
            if tt == 0:
                self.stamp("hid0")
            else:
                self.stamp("hid1")

        def ld_hid(n):
            if n == 28:
                e("s_add_u32 s71, s71, 114688")
            e("s_lshl_b32 s80, s74, 10")
            e("s_add_u32 s80, s80, s71")
            e(f"buffer_load_dwordx4 {vr(ring5[n % N5])}, {vL16}, {srd(SRD_WS)}, s80 offen sc1", ("d", n))
            e("s_add_u32 s74, s74, 1")
            e("s_cmp_eq_u32 s74, 28")
            e("s_cselect_b32 s74, 0, s74")

        main, fill = [], {}
        gap0 = []
        nseq = 0
        for si, (ks, tts) in enumerate(steps):
            gap0.append(len(main))
            d = AR + 16 * (si % 2)
            for t in range(4):
                for tt in tts:
                    def m(si=si, ks=ks, t=t, tt=tt, d=d, n=nseq + tts.index(tt), lead=(tt == tts[0])):
                        if ks < 28:
                            e.wait(vm=("z", n) if t == 0 else None, lg=("a", si, t) if lead else None)
                            a, b = ar(d + 4 * t), vr(BR + 4 * slot[(ks, tt)])
                        else:
                            e.wait(vm="xa")
                            a, b = vr(XA + 4 * t), vr(XB + 4 * tt)
                        acc = AC + 64 * tt + 16 * t
                        c = "0" if ks == 0 else vr(acc, 16)
                        e(f"v_mfma_f32_32x32x16_bf16 {vr(acc, 16)}, {a}, {b}, {c}")
                    main.append(m)
            g, ng = gap0[si], 4 * len(tts)
            if si + 1 < len(steps):
                self.spread(fill, [lambda si=si, t=t, hf=hf: rd_a1(si + 1, t, hf) for t in range(4) for hf in range(2)], g, g + ng)
            if ks < 28:
                nseq += len(tts)
        n4 = len(main)
        use = {}
        n = 0
        for si, (ks, tts) in enumerate(steps):
            for k, tt in enumerate(tts):
                if ks < 28:
                    use[n] = gap0[si] + 4 * k
                    n += 1
        prev = -1
        for n in range(first, len(seq)):
            gpos = max(use[n - DB] if n >= DB else 0, prev + 1)
            prev = gpos
            fill.setdefault(gpos, []).append(lambda n=n: ld_z(n))
        npf = self.o.get("e2", 8)
        self.spread(fill, [lambda p=p, mat=mat: self.wgu_piece(p, mat) for p in range(npf, 14) for mat in range(2)], 6, self.o.get("wg1", 60))
        self.spread(fill, [lambda cg=cg: ld_stat(cg) for cg in range(7)], 40, 54)
        gb = gap0[2 * npf - 1] - 1

        def bar():
            e.wait(vm="wgu")
            e("s_barrier")
        fill.setdefault(gb, []).append(bar)
        for gs, nm in ((40, "g40"), (96, "g96"), (gap0[29], "tail1"), (200, "g200")):
            fill.setdefault(gs, []).append(lambda nm=nm: self.stamp(nm))
        fill.setdefault(80, []).append(lambda: e.wait(vm="stat"))
        self.spread(fill, self.record(stats), 81, 120)
        end0 = gap0[KS + 29 - KS]
        fill.setdefault(end0 - 24, []).append(poll_xa)
        w0, w1 = self.o.get("wd0", 62), min(self.o.get("wd1", 200), n4 - 12)
        nlate = 28 - self.o.get("wd_early", 0)
        per = (w1 - w0) / float(nlate)
        for j in range(nlate):
            g = int(w0 + j * per)
            fill.setdefault(g, []).append(lambda j=j: ld_wd(j))
            fill.setdefault(g + max(1, int(per / 2)), []).append(lambda j=j: ld_wd2(j))
        self.spread(fill, epi4(0), end0 + 1, end0 + 33)
        fill.setdefault(min(end0 + 33 + self.o.get("fl0", 20), n4 - 10), []).append(lambda: flag_hid(0))
        pre5 = self.o.get("p5pre", 6)
        fill.setdefault(n4 - 8, []).append(lambda: poll_hid(0))
        self.spread(fill, [lambda n=n: ld_hid(n) for n in range(pre5)], n4 - 7, n4)
        acc5 = [160, 224]
        for n in range(56):
            tt, j = divmod(n, 28)
            for ct in range(2):
                def m(n=n, tt=tt, j=j, ct=ct):
                    if n == 0 and ct == 0:
                        self.stamp("gemm4")
                    if ct == 0:
                        e.wait(vm=("d", n))
                    acc = acc5[tt] + 16 * ct
                    c = "0" if j == 0 else vr(acc, 16)
                    e(f"v_mfma_f32_32x32x16_bf16 {vr(acc, 16)}, {ar(WD + 8 * j + 4 * ct)}, {vr(ring5[n % N5])}, {c}")
                main.append(m)
        gp1 = n4 + self.o.get("poll1", 46)
        fill.setdefault(gp1, []).append(lambda: poll_hid(1))
        prev = n4 - 1
        for n in range(pre5, 56):
            gpos = max(n4 + 2 * (n - D5), prev + 1)
            if n >= 28:
                gpos = max(gpos, gp1)
            prev = gpos
            fill.setdefault(gpos, []).append(lambda n=n: ld_hid(n))
        self.spread(fill, epi4(1), n4 + 1, n4 + 22)
        fill.setdefault(n4 + self.o.get("fl1", 33), []).append(lambda: flag_hid(1))

        def red_addr(e):
            e(f"v_and_b32 v4, 31, {vL}")
            e(f"v_and_b32 v5, 7, {vL}")
            e(f"v_lshrrev_b32 v6, 5, {vL}")
            e("v_xor_b32 v5, v5, v6")
            e("v_lshlrev_b32 v4, 8, v4")
            e("v_add_u32 v4, s92, v4")
            for p in range(8):
                e(f"v_xor_b32 v6, {2 * p}, v5")
                e(f"v_lshl_add_u32 v{64 + p}, v6, 4, v4")
            e(f"v_lshrrev_b32 v4, 3, {vL}")
            e(f"v_and_b32 v6, 7, {vL}")
            e("v_lshlrev_b32 v5, 1, v6")
            e("v_xor_b32 v5, v5, v4")
            e(f"s_lshl_b32 {sA}, {sW}, 11")
            e(f"s_add_u32 {sA}, {sA}, {L_RA}")
            e(f"v_lshl_add_u32 v7, v4, 8, {sA}")
            e("v_lshl_add_u32 v72, v5, 4, v7")
            e("v_xor_b32 v73, 16, v72")
            e("v_mul_u32_u24 v4, 896, v4")
            e("v_lshl_add_u32 v74, v6, 4, v4")
            e("v_lshlrev_b32 v6, 5, v6")
            e(f"ds_read_b128 v[76:79], v6 offset:{L_GAB + 256}")
            e(f"ds_read_b128 v[80:83], v6 offset:{L_GAB + 272}")
            e(f"s_lshl_b32 {sA}, {sW}, 10")
            e(f"s_add_u32 {sA}, {sA}, {L_X1}")
            e(f"v_add_u32 v75, {sA}, {vL16}")

        self.spread(fill, self.record(red_addr), n4 + 22, n4 + 32)

        def red_write(tt):
            out = []
            for ct in range(2):
                for q in range(4):
                    out.append(f"ds_write_b128 v{64 + 4 * ct + q}, {vr(acc5[tt] + 16 * ct + 4 * q)}")
            return out

        def red_final(tt):
            out = [f"ds_read_b128 v[84:87], v75 offset:{tt * 4096}"]
            for n in range(2):
                for s in range(4):
                    out.append(f"ds_read_b128 {vr(88 + 16 * n + 4 * s)}, v{72 + n} offset:{s * 8192}")
            out.append("s_waitcnt lgkmcnt(4)")
            for k in range(4):
                out.append(f"v_lshlrev_b32 v{120 + 2 * k}, 16, v{84 + k}")
                out.append(f"v_and_b32 v{121 + 2 * k}, 0xffff0000, v{84 + k}")
            for n in range(2):
                b = 88 + 16 * n
                if n == 1:
                    out.append("s_waitcnt lgkmcnt(0)")
                for k in range(4):
                    out.append(f"v_add_f32 v{b + k}, v{b + k}, v{b + 4 + k}")
                    out.append(f"v_add_f32 v{b + 8 + k}, v{b + 8 + k}, v{b + 12 + k}")
                for k in range(4):
                    out.append(f"v_add_f32 v{b + k}, v{b + k}, v{b + 8 + k}")
                for k in range(4):
                    out.append(f"v_fmac_f32 v{120 + 4 * n + k}, v{76 + 4 * n + k}, v{b + k}")
                out.append(f"v_cvt_pk_bf16_f32 v{84 + 2 * n}, v{120 + 4 * n}, v{121 + 4 * n}")
                out.append(f"v_cvt_pk_bf16_f32 v{85 + 2 * n}, v{122 + 4 * n}, v{123 + 4 * n}")
            out.append(f"buffer_store_dwordx4 v[84:87], v74, {srd(SRD_OUT)}, s{77 + tt} offen{self.sm('out')}")
            return out

        g5 = n4 + 56
        self.spread(fill, [lambda x=x: e(x) for x in red_write(0)], g5 + 2, g5 + 10)
        shift = L_RB - L_RA

        def bar5():
            e("s_waitcnt lgkmcnt(0)")
            e("s_barrier")
        fill.setdefault(g5 + 14, []).append(bar5)
        fin = red_final(0)
        fin += [f"v_add_u32 v{64 + p}, {shift}, v{64 + p}" for p in range(10)]
        self.spread(fill, [lambda x=x: e(x) for x in fin], g5 + 15, g5 + 50)
        self.merge(main, fill)
        self.stamp("gemm5")
        for x in red_write(1):
            e(x)
        bar5()
        for x in red_final(1):
            e(x)
        self.stamp("end")
        e("s_branch L_fin")

    def spare(self):
        e = self.e
        e.vm, e.lg = [], []
        AR = 224
        e("L_spare:")
        e(f"s_sub_u32 {sA}, {sR}, 28")
        e(f"s_lshl_b32 {sA}, {sA}, 3")
        e(f"s_add_u32 {sA}, {sA}, {sI}")
        e(f"s_cmp_lt_u32 {sA}, 28")
        e("s_cbranch_scc1 L_bias")
        e(f"s_cmp_lg_u32 {sA}, 31")
        e("s_cbranch_scc1 L_fin")
        e(f"s_cmp_lg_u32 {sW}, 0")
        e("s_cbranch_scc1 L_fin")
        self.bump_epoch()
        e("s_branch L_fin")
        e("L_bias:")
        for p in list(range(self.o.get("e1", 3))) + list(range(self.o.get("e2", 8), 14)):
            for mat in range(2):
                self.wgu_piece(p, mat)
        self.w4_addr()
        e(f"s_and_b32 {sA}, {sW}, 1")
        e(f"s_lshl_b32 {sA}, {sA}, 6")
        e(f"v_xor_b32 v26, {sA}, v24")
        e(f"s_lshr_b32 {sA}, {sW}, 1")
        e(f"s_lshl_b32 {sA}, {sA}, 12")
        e(f"v_add_u32 v26, {sA}, v26")
        e(f"v_add_u32 v28, 65536, v26")
        e(f"v_add_u32 v30, 131072, v26")
        e(f"v_and_b32 v4, 1, {vL}")
        e(f"v_mul_u32_u24 v4, 896, v4")
        e(f"v_lshrrev_b32 v5, 5, {vL}")
        e(f"v_lshl_add_u32 v27, v5, 4, v4")
        e("s_waitcnt vmcnt(0)")
        e("s_barrier")

        def rd_b(ks):
            d = AR + 8 * (ks % 4)
            off, hi = self.w4_off(ks, 0)
            e(f"ds_read_b128 {ar(d)}, v27 offset:{L_CVEC + ks * 32}", ("b", ks))
            e(f"ds_read_b64_tr_b16 {ar(d + 4, 2)}, v{26 + hi} offset:{off}", ("b", ks))
            e(f"ds_read_b64_tr_b16 {ar(d + 6, 2)}, v{26 + hi} offset:{off + 2048}", ("b", ks))

        for ks in range(3):
            rd_b(ks)
        for ks in range(28):
            e.wait(lg=("b", ks))
            d = AR + 8 * (ks % 4)
            c = "0" if ks == 0 else vr(32, 16)
            e(f"v_mfma_f32_32x32x16_bf16 {vr(32, 16)}, {ar(d)}, {ar(d + 4)}, {c}")
            if ks + 3 < 28:
                rd_b(ks + 3)
        e("v_cvt_pk_bf16_f32 v4, v32, v33")
        e("v_lshlrev_b32 v5, 16, v4")
        e("v_and_b32 v6, 0xffff0000, v4")
        e("v_sub_f32 v5, v32, v5")
        e("v_sub_f32 v6, v33, v6")
        e("v_cvt_pk_bf16_f32 v5, v5, v6")
        e(f"s_mov_b32 {sA}, 0x05040100")
        e(f"s_mov_b32 {sBt}, 0x03020706")
        e(f"v_perm_b32 v48, v5, v4, {sA}")
        e("v_mov_b32 v49, v4")
        e(f"v_perm_b32 v50, v5, v4, {sBt}")
        e("v_mov_b32 v51, 0")
        for k in range(3):
            e(f"v_cndmask_b32 v{48 + k}, v{48 + k}, 0, {sHI}")
        e(f"s_lshl_b32 {sA}, {sFG}, 2")
        e(f"s_add_u32 {sA}, {sA}, {sW}")
        e(f"s_lshl_b32 {sA}, {sA}, 10")
        e(f"s_add_u32 {sA}, {sA}, {WS_XA}")
        e(f"buffer_store_dwordx4 v[48:51], {vL16}, {srd(SRD_WS)}, {sA} offen sc1")
        e(f"s_lshl_b32 {sA}, {sFG}, 5")
        e(f"s_add_u32 {sA}, {sA}, {sW}")
        e(f"s_lshl_b32 {sA}, {sA}, 2")
        e(f"s_add_u32 {sA}, {sA}, {WS_FLXA}")
        self.publish(sA, "v7", local=False)
        e("s_branch L_fin")

    def finish(self):
        e = self.e
        e("L_fin:")
        if self.ts:
            e("s_lshl_b32 s88, s2, 2")
            e(f"s_add_u32 s88, s88, {sW}")
            e("s_lshl_b32 s88, s88, 8")
            e(f"s_add_u32 s88, s88, {WS_TS}")
            e(f"v_lshlrev_b32 v4, 2, {vL}")
            e(f"buffer_store_dword {vTS}, v4, {srd(SRD_WS)}, s88 offen")
            if self.o.get("dbgts"):
                e(f"v_not_b32 v5, {vTS}")
                e(f"v_cmp_eq_u32 vcc, 0, {vL}")
                e(f"v_cndmask_b32 v5, {vTS}, v5, vcc")
                e("v_add_u32 v4, 4, v4")
                e("s_mov_b64 exec, 0x7fff")
                e(f"buffer_atomic_umax v5, v4, {srd(SRD_DBG)}, 0 offen sc1")
        e("L_end:")
        e("s_endpgm")

    def build(self):
        phases = [self.entry, self.front, self.p1, self.p2, self.p3, self.p45, self.spare, self.helper]
        for ph in phases:
            self.e(f"; ---- {ph.__name__}")
            ph()
            if self.stop_after == ph.__name__:
                break
        self.finish()
        body, nops = self.e.text()
        head = open(f"cdna_kernels/{NAME}.s.ref").read().split("; Override launch")[0]
        txt = head
        txt += f"; @launch grid=(256,1,1) block=(256,1,1) lds={LDS_BYTES}\n"
        txt += '.amdgcn_target "amdgcn-amd-amdhsa--gfx950"\n.text\n'
        txt += f".globl {NAME}_kernel\n.p2align 8\n.type {NAME}_kernel,@function\n{NAME}_kernel:\n"
        txt += body
        txt += '.section .rodata,"a"\n.p2align 6\n'
        txt += f".amdhsa_kernel {NAME}_kernel\n"
        txt += ("  .amdhsa_next_free_vgpr 512\n  .amdhsa_next_free_sgpr 102\n  .amdhsa_accum_offset 256\n"
                "  .amdhsa_group_segment_fixed_size 0\n  .amdhsa_kernarg_size 96\n  .amdhsa_user_sgpr_count 2\n"
                "  .amdhsa_user_sgpr_kernarg_segment_ptr 1\n  .amdhsa_system_sgpr_workgroup_id_x 1\n"
                "  .amdhsa_float_denorm_mode_32 3\n"
                ".end_amdhsa_kernel\n")
        return txt, nops


def parse_opts(args):
    o = {}
    for a in args:
        k, v = a.split("=")
        o[k] = int(v)
    return o


if __name__ == "__main__":
    out = sys.argv[1]
    o = parse_opts(sys.argv[2:])
    g = Gen(ts=bool(o.pop("ts", 0)), opts=o)
    txt, nops = g.build()
    open(out, "w").write(txt)
    if g.ts:
        open(out + ".ts", "w").write("\n".join(g.ts_names))
    print("written", out, "lines", txt.count("\n"), "nop pads", nops)
```

```python
import math
import struct
import sys

sys.path.insert(0, "work")
from emit import Emit

NAME = "adaLN_cond__sliding_block__glu_gated_reglu__prompt"

WS_EPOCH = 0x0
WS_XCC = 0x400
WS_FLH = 0x1000
WS_FLO = 0x2000
WS_FLZ = 0x3000
WS_FLD = 0x4000
WS_FLXA = 0x6000
WS_FLW = 0x7000
WS_FLKV = 0x9000
WS_MODP = 0x10000
WS_STAT = 0x20000
WS_TS = 0x40000
WS_XA = 0x80000
WS_H = 0x100000
WS_Z = WS_H
WS_O = 0x300000
WS_KV = 0x500000
WS_HID = 0x900000
WS_WD = 0x1000000
WS_SIZE = 0x1200000

L_CVEC = 0
L_MODR = 0
L_GAB = 1792
L_WKV, L_WQ = 3584, 60928
L_KV = 3584
L_XS = 52736
L_WO = 3584
L_PAD = 60928
L_SCR = 155648
L_HX = 90112
L_HS = 147456
L_X1 = 19968
L_RA = 28160
L_RB = 65536
LDS_BYTES = 163840


def w4_base(p):
    if p <= 8:
        return 65536 + (p + 3) * 8192
    if p <= 11:
        return 65536 + (p - 9) * 8192
    return 3584 + (p - 12) * 8192


SRD_X, SRD_WQKV, SRD_WO, SRD_WG, SRD_WU, SRD_WD = 4, 8, 12, 16, 20, 24
SRD_C, SRD_WM, SRD_OUT, SRD_DBG, SRD_WS = 28, 32, 36, 40, 44
sI, sR, sW, sH, sB, sT, sTAG, sFAST = "s48", "s49", "s50", "s51", "s52", "s53", "s54", "s55"
sA, sBt, sC, sD, sE = "s56", "s57", "s58", "s59", "s60"
sRB, sCG, sSPIN = "s61", "s62", "s63"
SMASK = 64
sHI, sHIp = "s[96:97]", 96
sTSp = 0
sADJ = "s3"
sFG = "s98"

vL, vL16, vTS, vE = "v0", "v1", "v2", "v3"

SPIN_MAX = 1 << 17


def srd(n):
    return f"s[{n}:{n + 3}]"


def vr(n, k=4):
    return f"v[{n}:{n + k - 1}]" if k > 1 else f"v{n}"


def ar(n, k=4):
    return f"a[{n}:{n + k - 1}]" if k > 1 else f"a{n}"


def fbits(x):
    return "0x%08x" % struct.unpack("<I", struct.pack("<f", x))[0]


class Gen:
    def __init__(self, ts=False, stop_after=None, opts=None):
        self.e = Emit()
        self.ts = ts
        self.stop_after = stop_after
        self.o = dict(opts or {})
        self.nts = 0
        self.ts_names = []

    def stamp(self, name, again=False):
        if not self.ts:
            return
        if self.o.get("dbgts") and name not in ("start", "tag", "modpub", "ln1", "xcc", "hpub", "kvgemm", "kvgot", "attn", "oflag", "zpub", "zflag", "gemm4", "hidflag", "end"):
            return
        e = self.e
        if again:
            self.nts_keep, self.nts = self.nts, self.ts_names.index(name)
        e(f"s_memrealtime s[{sTSp}:{sTSp + 1}]")
        e("s_waitcnt lgkmcnt(0)")
        e(f"v_writelane_b32 {vTS}, s{sTSp}, {self.nts}")
        if self.o.get("clk"):
            e(f"s_memtime s[{sTSp}:{sTSp + 1}]")
            e("s_waitcnt lgkmcnt(0)")
            e(f"v_writelane_b32 {vTS}, s{sTSp}, {self.nts + 32}")
        if again:
            self.nts = self.nts_keep
            return
        self.ts_names.append(name)
        self.nts += 1

    def poll(self, voff, soff, vtmp, imm=0):
        e = self.e
        lp, dn = e.label("poll"), e.label("polled")
        e(f"s_mov_b32 {sSPIN}, 0")
        e(f"{lp}:")
        e(f"buffer_load_dword {vtmp}, {voff}, {srd(SRD_WS)}, {soff} offen offset:{imm} sc1")
        e(f"s_add_u32 {sSPIN}, {sSPIN}, 1")
        e(f"s_cmp_ge_u32 {sSPIN}, {SPIN_MAX}")
        e("s_waitcnt vmcnt(0)")
        e(f"s_cbranch_scc1 {dn}")
        e(f"v_cmp_ne_u32 vcc, {sTAG}, {vtmp}")
        e(f"s_cbranch_vccnz {lp}")
        e(f"{dn}:")

    def acquire(self):
        e = self.e
        sk = e.label("acq")
        e(f"s_cmp_lg_u32 {sFAST}, 0")
        e(f"s_cbranch_scc1 {sk}")
        e("buffer_inv sc1")
        e("s_waitcnt vmcnt(0)")
        e(f"{sk}:")

    def publish(self, soff, vtmp, local=True, second=None):
        e = self.e
        e("s_waitcnt vmcnt(0)")
        e(f"v_mov_b32 {vtmp}, {sTAG}")
        if local:
            slow, dn = e.label("slowpub"), e.label("pub")
            e(f"s_cmp_lg_u32 {sFAST}, 0")
            e(f"s_cbranch_scc0 {slow}")
            e("s_mov_b64 exec, 1")
            e(f"buffer_store_dword {vtmp}, off, {srd(SRD_WS)}, {soff}")
            if second:
                e(f"buffer_store_dword {vtmp}, off, {srd(SRD_WS)}, {soff} offset:{second}")
            e(f"s_branch {dn}")
            e(f"{slow}:")
            e("buffer_wbl2 sc1")
            e("s_waitcnt vmcnt(0)")
            e("s_mov_b64 exec, 1")
            e(f"buffer_store_dword {vtmp}, off, {srd(SRD_WS)}, {soff} sc1")
            if second:
                e(f"buffer_store_dword {vtmp}, off, {srd(SRD_WS)}, {soff} offset:{second} sc1")
            e(f"{dn}:")
        else:
            e("s_mov_b64 exec, 1")
            e(f"buffer_store_dword {vtmp}, off, {srd(SRD_WS)}, {soff} sc1")
        e("s_mov_b64 exec, -1")
        e.vm = ["flag"]

    def round_bf16(self, regs, tmp):
        e = self.e
        for a, b in zip(regs[::2], regs[1::2]):
            e(f"v_cvt_pk_bf16_f32 {tmp}, {a}, {b}")
            e(f"v_lshlrev_b32 {a}, 16, {tmp}")
            e(f"v_and_b32 {b}, 0xffff0000, {tmp}")

    def dma(self, voff, srdn, soff, lds, tag, mods=""):
        e = self.e
        e(f"s_mov_b32 m0, {lds}")
        e(f"buffer_load_dwordx4 {voff}, {srd(srdn)}, {soff} offen {mods} lds", tag)

    def sm(self, what):
        return {0: "", 1: " sc1", 2: " nt", 3: " sc0 sc1"}[self.o.get("sm_" + what, 1 if what == "h" else 0)]

    def merge(self, main, fill):
        for i, m in enumerate(main):
            m()
            for f in fill.get(i, []):
                f()

    @staticmethod
    def spread(fill, items, lo, hi):
        n = len(items)
        for k, it in enumerate(items):
            fill.setdefault(lo + (k * (hi - lo)) // max(n, 1), []).append(it)

    def entry(self):
        e = self.e
        e("s_cmp_ge_u32 s2, 256")
        e("s_cbranch_scc1 L_end")
        e("s_load_dwordx16 s[64:79], s[0:1], 0")
        e("s_load_dwordx8 s[80:87], s[0:1], 64")
        K = NAME + "_kernel"
        e("s_getpc_b64 s[88:89]")
        e("L_pc:")
        e(f"s_lshr_b32 {sR}, s2, 3")
        e(f"s_add_u32 {sR}, {sR}, 28")
        e(f"s_and_b32 {sR}, {sR}, 31")
        e(f"s_mul_i32 {sA}, {sR}, 12")
        e(f"s_cmp_ge_u32 {sR}, 28")
        e(f"s_cselect_b32 {sBt}, (L_helper-L_pc)/128, 0")
        e("v_min_u32 v4, 11, v0")
        e(f"v_add_u32 v4, {sA}, v4")
        e("v_and_b32 v5, 63, v0")
        e(f"v_add_u32 v5, {sBt}, v5")
        e("v_cmp_gt_u32 vcc, 64, v0")
        e("v_cndmask_b32 v4, v5, v4, vcc")
        e("v_lshlrev_b32 v4, 7, v4")
        e("v_min_u32 v4, L_end-L_pc, v4")
        e("v_cmp_gt_u32 vcc, 128, v0")
        e("s_and_saveexec_b64 s[90:91], vcc")
        e("s_cbranch_execz L_nopf")
        e("global_load_dword v127, v4, s[88:89]")
        e("L_nopf:")
        e("s_mov_b64 exec, -1")
        e.vm = []
        if self.ts:
            e(f"v_mov_b32 {vTS}, 0")
        self.stamp("start")
        e(f"v_lshrrev_b32 v4, 6, v0")
        e(f"v_and_b32 {vL}, 63, v0")
        e(f"v_readfirstlane_b32 {sW}, v4")
        e(f"v_lshlrev_b32 {vL16}, 4, {vL}")
        e(f"s_and_b32 {sI}, s2, 7")
        e(f"s_lshr_b32 {sH}, {sR}, 1")
        e(f"s_sub_u32 {sA}, {sR}, 28")
        e(f"s_lshl_b32 {sA}, {sA}, 3")
        e(f"s_add_u32 {sA}, {sA}, {sI}")
        e(f"s_min_u32 {sA}, {sA}, 27")
        e(f"s_cmp_lt_u32 {sR}, 28")
        e(f"s_cselect_b32 {sFG}, {sR}, {sA}")
        e(f"s_and_b32 {sB}, {sR}, 1")
        e(f"s_lshl_b32 {sT}, {sI}, 1")
        e(f"s_add_u32 {sT}, {sT}, {sB}")
        e(f"s_lshl_b32 {sT}, {sT}, 2")
        e(f"s_add_u32 {sT}, {sT}, {sW}")
        e(f"s_mul_i32 {sRB}, {sR}, 37")
        e(f"s_lshr_b32 {sRB}, {sRB}, 8")
        e(f"s_mul_i32 {sA}, {sRB}, 7")
        e(f"s_sub_u32 {sCG}, {sR}, {sA}")
        e(f"s_cmp_eq_u32 {sH}, 15")
        e(f"s_cselect_b32 {sADJ}, 8, 0")
        e(f"s_mov_b32 s{sHIp}, 0")
        e(f"s_mov_b32 s{sHIp + 1}, -1")
        sizes = {SRD_X: 1835008, SRD_WQKV: 1204224, SRD_WO: 401408, SRD_WG: 1605632, SRD_WU: 1605632, SRD_WD: 1605632,
                 SRD_C: 896, SRD_WM: 2408448, SRD_OUT: 1835008, SRD_DBG: 256, SRD_WS: WS_SIZE}
        for n, sz in sizes.items():
            e(f"s_mov_b32 s{n + 2}, {sz}")
            e(f"s_mov_b32 s{n + 3}, 0x00020000")
        e("s_waitcnt lgkmcnt(0)")
        src = {SRD_WS: 86, SRD_C: 78, SRD_WM: 80, SRD_X: 64, SRD_WQKV: 66, SRD_WO: 68, SRD_WG: 72, SRD_WU: 74, SRD_WD: 76,
               SRD_OUT: 82, SRD_DBG: 84}
        for n, s in src.items():
            e(f"s_mov_b64 s[{n}:{n + 1}], s[{s}:{s + 1}]")

    def reduce_hi3(self, a, t):
        e = self.e
        e(f"v_add_f32_dpp {a}, {a}, {a} row_ror:8 row_mask:0xf bank_mask:0xf")
        self.reduce_hi2(a, t)

    def reduce_hi2(self, a, t, op="v_add_f32"):
        e = self.e
        e(f"v_mov_b32 {t}, {a}")
        e(f"v_permlane16_swap_b32 {a}, {t}")
        e(f"{op} {a}, {a}, {t}")
        e(f"v_mov_b32 {t}, {a}")
        e(f"v_permlane32_swap_b32 {a}, {t}")
        e(f"{op} {a}, {a}, {t}")

    def gather_issue(self, voff, g0):
        e = self.e
        for q in range(4):
            e(f"s_mov_b32 {sA}, {WS_MODP + q * 10752}")
            e(f"buffer_load_dwordx4 {vr(g0 + 4 * q)}, {voff}, {srd(SRD_WS)}, {sA} offen sc1", "gath")

    def gather_finish(self, voff, g0, t0):
        e = self.e
        lp, dn = e.label("gath"), e.label("gathd")
        e(f"s_mov_b32 {sSPIN}, 0")
        e(f"s_mov_b32 {sD}, 0x0c0c0400")
        e(f"s_mov_b32 {sE}, 0x04000c0c")
        e.wait(vm="gath")
        keep = list(e.vm)
        e(f"{lp}:")
        for q in range(4):
            b = g0 + 4 * q
            e(f"v_perm_b32 v{t0}, v{b + 1}, v{b}, {sD}")
            e(f"v_perm_b32 v{t0 + 1}, v{b + 3}, v{b + 2}, {sE}")
            e(f"v_or_b32 v{t0}, v{t0}, v{t0 + 1}")
            e(f"v_xor_b32 v{t0 + 2 + q}, {sTAG}, v{t0}")
        e(f"v_or3_b32 v{t0}, v{t0 + 2}, v{t0 + 3}, v{t0 + 4}")
        e(f"v_or_b32 v{t0}, v{t0}, v{t0 + 5}")
        e(f"v_cmp_ne_u32 vcc, 0, v{t0}")
        e(f"s_cbranch_vccz {dn}")
        self.gather_issue(voff, g0)
        e(f"s_add_u32 {sSPIN}, {sSPIN}, 1")
        e(f"s_cmp_ge_u32 {sSPIN}, {SPIN_MAX}")
        e("s_waitcnt vmcnt(0)")
        e(f"s_cbranch_scc0 {lp}")
        e(f"{dn}:")
        e.vm = keep
        for k in range(16):
            e(f"v_and_b32 v{g0 + k}, 0xffffff00, v{g0 + k}")
        for k in range(4):
            e(f"v_add_f32 v{g0 + k}, v{g0 + k}, v{g0 + 4 + k}")
            e(f"v_add_f32 v{g0 + 8 + k}, v{g0 + 8 + k}, v{g0 + 12 + k}")
        for k in range(4):
            e(f"v_add_f32 v{g0 + k}, v{g0 + k}, v{g0 + 8 + k}")
        self.round_bf16([f"v{g0 + k}" for k in range(4)], f"v{t0}")

    def record(self, fn):
        real, rec = self.e, Emit()
        self.e = rec
        fn(rec)
        self.e = real
        return [lambda l=l.strip(): real(l) for l in rec.lines]

    def tag_and_register(self):
        e = self.e
        lab = e.label("noxcc")
        keep = list(e.vm)
        e(f"v_readfirstlane_b32 {sTAG}, {vE}")
        e(f"s_mul_i32 {sTAG}, {sTAG}, 1664525")
        e(f"s_add_u32 {sTAG}, {sTAG}, 1013904223")
        e(f"s_cmp_lg_u32 {sW}, 3")
        e(f"s_cbranch_scc1 {lab}")
        e(f"s_getreg_b32 {sA}, hwreg(HW_REG_XCC_ID, 0, 4)")
        e(f"v_mov_b32 v60, {sTAG}")
        e(f"v_mov_b32 v61, {sA}")
        e(f"s_lshl_b32 {sA}, {sI}, 5")
        e(f"s_add_u32 {sA}, {sA}, {sR}")
        e(f"s_lshl_b32 {sA}, {sA}, 3")
        e("s_mov_b64 exec, 1")
        e(f"buffer_store_dwordx2 v[60:61], off, {srd(SRD_WS)}, {sA} offset:{WS_XCC} sc1")
        e("s_mov_b64 exec, -1")
        e(f"{lab}:")
        e.vm = keep

    def xcc_issue(self):
        e = self.e
        e(f"v_and_b32 v62, 31, {vL}")
        e(f"v_lshlrev_b32 v62, 3, v62")
        e(f"s_lshl_b32 s95, {sI}, 8")
        e(f"buffer_load_dwordx2 v[60:61], v62, {srd(SRD_WS)}, s95 offen offset:{WS_XCC} sc1", "xcc")

    def xcc_check(self):
        e = self.e
        lp, dn = e.label("xcc"), e.label("xccd")
        keep = list(e.vm)
        e(f"s_mov_b32 {sSPIN}, 0")
        e(f"{lp}:")
        e(f"v_cmp_ne_u32 vcc, {sTAG}, v60")
        e(f"s_cbranch_vccz {dn}")
        e(f"buffer_load_dwordx2 v[60:61], v62, {srd(SRD_WS)}, s95 offen offset:{WS_XCC} sc1")
        e(f"s_add_u32 {sSPIN}, {sSPIN}, 1")
        e(f"s_cmp_ge_u32 {sSPIN}, {SPIN_MAX}")
        e("s_waitcnt vmcnt(0)")
        e(f"s_cbranch_scc0 {lp}")
        e(f"{dn}:")
        e.vm = keep
        e(f"s_getreg_b32 {sA}, hwreg(HW_REG_XCC_ID, 0, 4)")
        e(f"v_cmp_ne_u32 vcc, {sA}, v61")
        e("s_cmp_eq_u64 vcc, 0")
        e(f"s_cselect_b32 {sFAST}, {0 if self.o.get('force_slow') else 1}, 0")

    def bump_epoch(self):
        e = self.e
        lp, dn = e.label("bump"), e.label("bumpd")
        e(f"v_lshlrev_b32 v4, 3, {vL}")
        e(f"s_mov_b32 {sSPIN}, 0")
        e(f"{lp}:")
        for k in range(4):
            e(f"buffer_load_dword v{8 + k}, v4, {srd(SRD_WS)}, 0 offen offset:{WS_XCC + 512 * k} sc1")
        e(f"s_add_u32 {sSPIN}, {sSPIN}, 1")
        e(f"s_cmp_ge_u32 {sSPIN}, {SPIN_MAX}")
        e("s_waitcnt vmcnt(0)")
        e(f"s_cbranch_scc1 {dn}")
        for k in range(4):
            e(f"v_xor_b32 v{8 + k}, {sTAG}, v{8 + k}")
        e("v_or3_b32 v8, v8, v9, v10")
        e("v_or_b32 v8, v8, v11")
        e("v_cmp_ne_u32 vcc, 0, v8")
        e(f"s_cbranch_vccnz {lp}")
        e(f"{dn}:")
        e(f"v_mov_b32 v4, {sTAG}")
        e("s_mov_b64 exec, 1")
        e(f"buffer_store_dword v4, off, {srd(SRD_WS)}, 0 sc1")
        e("s_mov_b64 exec, -1")

    def mod_loads(self):
        e = self.e
        e(f"v_lshrrev_b32 v4, 4, {vL}")
        e(f"v_and_b32 v5, 15, {vL}")
        e(f"s_and_b32 {sA}, {sI}, 3")
        e(f"s_mul_i32 {sA}, {sA}, 112")
        e(f"s_mul_i32 {sBt}, {sW}, 28")
        e(f"s_add_u32 {sA}, {sA}, {sBt}")
        e(f"v_lshl_add_u32 v6, v5, 2, v4")
        e(f"v_add_u32 v6, {sA}, v6")
        e(f"v_lshlrev_b32 v6, 1, v6")
        e(f"v_mul_u32_u24 v7, 5376, v4")
        e(f"v_lshl_add_u32 v7, v5, 3, v7")
        e(f"s_lshr_b32 {sBt}, {sI}, 2")
        e(f"s_lshl_b32 {sC}, {sR}, 1")
        e(f"s_add_u32 {sBt}, {sBt}, {sC}")
        e(f"s_mul_i32 {sA}, {sA}, 5376")
        e(f"s_lshl_b32 {sC}, {sBt}, 7")
        e(f"s_add_u32 {sA}, {sA}, {sC}")
        for j in range(7):
            e(f"buffer_load_dwordx2 {vr(18 + 2 * j, 2)}, v7, {srd(SRD_WM)}, {sA} offen", "wm")
            if j < 6:
                e(f"s_add_u32 {sA}, {sA}, 21504")
        e(f"buffer_load_ushort v16, v6, {srd(SRD_C)}, 0 offen", "wm")

    def mod_compute(self, done):
        e = self.e
        e(f"v_lshlrev_b32 v16, 16, v16")
        e(f"v_mul_f32 v17, {fbits(-math.log2(math.e))}, v16")
        e("v_exp_f32 v17, v17")
        e("v_add_f32 v17, 1.0, v17")
        e("v_rcp_f32 v17, v17")
        e("v_mul_f32 v16, v16, v17")
        e("v_cvt_pk_bf16_f32 v16, v16, v16")
        e("v_lshlrev_b32 v16, 16, v16")
        for k in range(4):
            e(f"v_mov_b32 v{80 + k}, 0")
        for j in range(7):
            a, b = 18 + 2 * j, 19 + 2 * j
            e(f"v_lshlrev_b32 v84, 16, v{a}")
            e(f"v_and_b32 v85, 0xffff0000, v{a}")
            e(f"v_lshlrev_b32 v86, 16, v{b}")
            e(f"v_and_b32 v87, 0xffff0000, v{b}")
            for k in range(4):
                e(f"v_fmac_f32_dpp v{80 + k}, v16, v{84 + k} row_newbcast:{j} row_mask:0xf bank_mask:0xf")
        e("v_permlane16_swap_b32 v80, v81")
        e("v_permlane16_swap_b32 v82, v83")
        e("v_add_f32 v80, v80, v81")
        e("v_add_f32 v82, v82, v83")
        e("v_permlane32_swap_b32 v80, v82")
        e("v_add_f32 v80, v80, v82")
        e(f"v_lshrrev_b32 v4, 4, {vL}")
        e(f"v_and_b32 v5, 15, {vL}")
        e(f"v_lshl_add_u32 v6, v5, 2, v4")
        e(f"s_lshl_b32 {sA}, {sW}, 8")
        e(f"v_lshl_add_u32 v6, v6, 2, {sA}")
        e(f"ds_write_b32 v6, v80 offset:{L_MODR}")
        e("s_waitcnt lgkmcnt(0)")
        e("s_barrier")
        e(f"s_cmp_lg_u32 {sW}, 0")
        e(f"s_cbranch_scc1 {done}")
        e("s_mov_b64 exec, 0xffff")
        for k in range(4):
            e(f"ds_read_b128 {vr(80 + 4 * k)}, {vL16} offset:{L_MODR + 256 * k}")
        e(f"s_and_b32 {sA}, {sI}, 3")
        e(f"s_mul_i32 {sA}, {sA}, 10752")
        e(f"s_lshr_b32 {sBt}, {sI}, 2")
        e(f"s_lshl_b32 {sE}, {sR}, 1")
        e(f"s_add_u32 {sBt}, {sBt}, {sE}")
        e(f"s_lshl_b32 {sBt}, {sBt}, 8")
        e(f"s_add_u32 {sA}, {sA}, {sBt}")
        e(f"s_add_u32 {sA}, {sA}, {WS_MODP}")
        e("v_mov_b32 v6, 0xff")
        e("s_waitcnt lgkmcnt(0)")
        for k in range(4):
            e(f"v_add_f32 v{80 + k}, v{80 + k}, v{84 + k}")
            e(f"v_add_f32 v{88 + k}, v{88 + k}, v{92 + k}")
        for k in range(4):
            e(f"v_add_f32 v{80 + k}, v{80 + k}, v{88 + k}")
            e(f"s_lshr_b32 {sBt}, {sTAG}, {8 * k}")
            e(f"v_bfi_b32 v{80 + k}, v6, {sBt}, v{80 + k}")
        e(f"buffer_store_dwordx4 v[80:83], {vL16}, {srd(SRD_WS)}, {sA} offen sc1")
        e("s_mov_b64 exec, -1")

    def src_addrs(self):
        e = self.e
        e(f"v_lshrrev_b32 v10, 2, {vL}")
        e(f"v_mul_u32_u24 v10, 2688, v10")
        e(f"v_and_b32 v6, 3, {vL}")
        e(f"v_lshl_add_u32 v10, v6, 4, v10")
        e(f"v_lshrrev_b32 v6, 3, {vL}")
        e(f"v_and_b32 v7, 7, {vL}")
        e(f"v_and_b32 v8, 2, v6")
        e(f"v_lshlrev_b32 v8, 1, v8")
        e("v_xor_b32 v8, v8, v7")
        e("v_lshlrev_b32 v8, 4, v8")
        e("v_mul_u32_u24 v11, 2688, v6")
        e("v_add_u32 v11, v11, v8")
        e("v_mul_u32_u24 v12, 3584, v6")
        e("v_add_u32 v12, v12, v8")
        e("v_mul_u32_u24 v13, 896, v6")
        e("v_add_u32 v14, v13, v8")
        e("v_and_b32 v8, 6, v6")
        e("v_xor_b32 v8, v8, v7")
        e("v_lshl_add_u32 v13, v8, 4, v13")
        e(f"s_lshl_b32 s99, {sFG}, 7")
        e(f"s_mul_i32 {sA}, {sW}, {8 * 3584}")
        e(f"s_add_u32 s99, s99, {sA}")
        e(f"s_lshl_b32 s101, {sW}, 10")

    def wgu_piece(self, p, mat):
        e = self.e
        e(f"s_add_u32 {sD}, s99, {p * 32 * 3584}")
        e(f"s_add_u32 m0, s101, {w4_base(p) + mat * 4096}")
        e(f"buffer_load_dwordx4 v12, {srd((SRD_WG, SRD_WU)[mat])}, {sD} offen lds", "wgu")

    def wq_setup(self):
        e = self.e
        e(f"s_mul_i32 s92, {sH}, 56")
        e(f"s_sub_u32 s92, s92, {sADJ}")
        e(f"s_mul_i32 {sA}, {sW}, {16 * 2688}")
        e(f"s_add_u32 s92, s92, {sA}")
        e(f"s_mul_i32 {sA}, {sR}, 37")
        e(f"s_lshr_b32 {sA}, {sA}, 8")
        e(f"s_mul_i32 {sA}, {sA}, 7")
        e(f"s_sub_u32 s94, {sR}, {sA}")

    def wq_dma(self, thr=True):
        e = self.e
        for n in range(7):
            e(f"s_mul_i32 {sA}, s94, {64 * 2688}")
            e(f"s_add_u32 {sA}, {sA}, s92")
            e(f"s_lshl_b32 {sBt}, s94, 12")
            e(f"s_add_u32 {sBt}, {sBt}, s101")
            e(f"s_add_u32 m0, {sBt}, {L_WQ}")
            e(f"s_add_u32 s94, s94, 1")
            e(f"buffer_load_dwordx4 v10, {srd(SRD_WQKV)}, {sA} offen lds", "wq")
            e(f"s_cmp_eq_u32 s94, 7")
            e(f"s_cselect_b32 s94, 0, s94")
            if thr:
                self.throttle("thr_q", 0)

    def code_prefetch(self):
        e = self.e
        lab = e.label("pc")
        e("s_getpc_b64 s[88:89]")
        e(f"{lab}:")
        e(f"s_sub_u32 s88, s88, {lab}-" + NAME + "_kernel")
        e("s_subb_u32 s89, s89, 0")
        e(f"s_lshl_b32 {sA}, {sR}, 2")
        e(f"s_add_u32 {sA}, {sA}, {sW}")
        e(f"v_lshl_add_u32 v62, {vL}, 7, {sA}")
        e(f"v_lshlrev_b32 v62, 7, v62")
        e(f"v_min_u32 v62, L_end-" + NAME + "_kernel, v62")
        e("s_mov_b64 exec, 7")
        e("global_load_dword v15, v62, s[88:89]", "pf")
        e("s_mov_b64 exec, -1")

    def touch(self, srdn, base, per_island, lines, mods="", island=True):
        e = self.e
        n = -(-lines // 112)
        e(f"s_lshl_b32 {sA}, {sR}, 2")
        e(f"s_add_u32 {sA}, {sA}, {sW}")
        e(f"s_mul_i32 {sA}, {sA}, {n}")
        e(f"v_add_u32 v6, {sA}, {vL}")
        e(f"v_min_u32 v6, {lines - 1}, v6")
        e(f"v_lshlrev_b32 v6, 7, v6")
        if island:
            e(f"s_mul_i32 {sA}, {sI}, {per_island}")
            e(f"s_add_u32 {sA}, {sA}, {base}")
        else:
            e(f"s_mov_b32 {sA}, {base}")
        e(f"s_mov_b64 exec, {hex((1 << n) - 1)}")
        e(f"buffer_load_dword v127, v6, {srd(srdn)}, {sA} offen{mods}", "pt")
        e("s_mov_b64 exec, -1")

    def throttle(self, key, default):
        n = self.o.get(key, default)
        if n and len(self.e.vm) > n:
            self.e(f"s_waitcnt vmcnt({n})")

    def front(self):
        e = self.e
        n_early, n_e0, n_e1 = self.o.get("early_w", 2), self.o.get("e0", 1), self.o.get("e1", 3)
        pb = self.o.get("probe", 0)
        if pb:
            e("s_lshl_b32 s88, s2, 2")
            e(f"s_add_u32 s88, s88, {sW}")
            e(f"v_lshlrev_b32 v4, 7, {vL}")
            if pb == 1:
                e("s_mov_b64 s[92:93], s[70:71]")
                e("s_mov_b32 s94, 1835008")
                e("s_mov_b32 s95, 0x00020000")
                e("s_mul_i32 s88, s88, 1792")
                e("s_mov_b64 exec, 0x3fff")
                e("buffer_load_dword v5, v4, s[92:95], s88 offen")
                e("s_mov_b64 exec, -1")
            else:
                e("s_mov_b64 s[92:93], s[86:87]")
                e("s_mov_b32 s94, 0x10000000")
                e("s_mov_b32 s95, 0x00020000")
                e("s_lshl_b32 s88, s88, 14")
                e(f"s_add_u32 s88, s88, {(pb - 1) << 20}")
                e("buffer_load_dword v5, v4, s[92:95], s88 offen")
                e("s_add_u32 s88, s88, 8192")
                e("buffer_load_dword v5, v4, s[92:95], s88 offen")
            e("s_waitcnt vmcnt(0)")
        e(f"buffer_load_dword {vE}, off, {srd(SRD_WS)}, 0 sc1", "E")
        tw = self.o.get("tlb", 0)
        if tw:
            sh = self.o.get("tlbsh", 18)
            e(f"s_cmp_lg_u32 {sW}, 2")
            e("s_cbranch_scc1 L_notlb")
            e(f"v_lshlrev_b32 v4, {sh}, {vL}")
            e(f"s_lshl_b32 s88, s2, 7")
            e(f"buffer_load_dword v126, v4, {srd(SRD_WS)}, s88 offen")
            if (64 << sh) < WS_SIZE:
                e(f"s_add_u32 s88, s88, {64 << sh}")
                e(f"buffer_load_dword v126, v4, {srd(SRD_WS)}, s88 offen")
            e(f"s_lshl_b32 s88, s2, 7")
            e(f"buffer_load_dword v126, v4, {srd(SRD_OUT)}, s88 offen")
            if tw > 1:
                for n in (SRD_X, SRD_WQKV, SRD_WO, SRD_WG, SRD_WU, SRD_WD, SRD_WM):
                    e(f"buffer_load_dword v126, v4, {srd(n)}, s88 offen")
            e("L_notlb:")
            e.vm = ["E"]
        e(f"s_cmp_ge_u32 {sR}, 28")
        e("s_cbranch_scc1 L_helper")
        e(f"s_cmp_ge_u32 {sR}, 7")
        e("s_cbranch_scc1 L_nomod1")
        self.mod_loads()
        e("L_nomod1:")
        e.vm = ["E"]
        if self.o.get("touch_x", 1):
            self.touch(SRD_X, 0, 229376, 1792)
        if self.o.get("sm_h", 1) == 0:
            self.touch(SRD_WS, WS_H, 229376, 1792, " sc1")
        npt = len(e.vm) - 1
        self.src_addrs()
        self.wq_setup()
        e(f"s_lshl_b32 s90, {sH}, 7")
        e(f"s_add_u32 s90, s90, 896")
        e(f"s_mul_i32 {sA}, {sW}, {8 * 2688}")
        e(f"s_add_u32 s90, s90, {sA}")
        e(f"s_mul_i32 s91, {sB}, 7")

        def wkv(lo, hi):
            for n in range(lo, hi):
                e(f"s_mul_i32 {sA}, s91, {32 * 2688}")
                e(f"s_add_u32 {sA}, {sA}, s90")
                e(f"s_lshl_b32 {sBt}, s91, 12")
                e(f"s_add_u32 {sBt}, {sBt}, s101")
                e(f"s_add_u32 m0, {sBt}, {L_WKV}")
                e(f"s_add_u32 s91, s91, 1")
                e(f"buffer_load_dwordx4 v11, {srd(SRD_WQKV)}, {sA} offen lds", "wkv")
                e(f"s_cmp_eq_u32 s91, 14")
                e(f"s_cselect_b32 s91, 0, s91")
                if n >= n_early:
                    self.throttle("thr_w", 0)

        e(f"s_cmp_ge_u32 {sR}, 7")
        e("s_cbranch_scc1 L_plainw")
        wkv(0, n_early)
        e.wait(vm="E")
        self.tag_and_register()
        self.stamp("tag")
        self.mod_compute("L_nomod2")
        e("L_nomod2:")
        self.stamp("modpub")
        wkv(n_early, 14)
        self.wq_dma()
        e("s_branch L_wissued")
        e("L_plainw:")
        e.vm = ["E"] + ["pt"] * npt
        wkv(0, 4)
        e.wait(vm="E")
        self.tag_and_register()
        wkv(4, 14)
        self.wq_dma()
        e("L_wissued:")
        if self.o.get("no_w") or self.o.get("w_only"):
            e("s_waitcnt vmcnt(0)")
            self.stamp("wq")
            e("s_branch L_fin")
            self.nts -= 1
            self.ts_names.pop()
        self.stamp("wq")
        e(f"s_sub_u32 {sA}, {sR}, 7")
        e(f"s_cmp_ge_u32 {sA}, 14")
        e("s_cbranch_scc1 L_nomod3")
        keep = list(e.vm)
        self.mod_loads()
        e("L_nomod3:")
        e.vm = keep
        e(f"s_lshl_b32 {sA}, {sR}, 3")
        e(f"s_add_u32 {sA}, {sA}, {sI}")
        e(f"s_lshl_b32 {sA}, {sA}, 2")
        e(f"s_add_u32 {sA}, {sA}, {sW}")
        e(f"s_min_u32 s88, {sA}, 784")
        e(f"s_mul_i32 {sBt}, s88, 9363")
        e(f"s_lshr_b32 {sBt}, {sBt}, 16")
        e(f"s_mul_i32 {sC}, {sBt}, 7")
        e(f"s_sub_u32 {sC}, s88, {sC}")
        e(f"s_mul_i32 s89, {sC}, 112")
        e(f"s_add_u32 s89, s89, {sBt}")
        e(f"s_mul_i32 {sBt}, {sBt}, {16 * 896}")
        e(f"s_lshl_b32 {sC}, {sC}, 7")
        e(f"s_add_u32 {sBt}, {sBt}, {sC}")
        e(f"v_add_u32 v9, {8 * 896 - 1024}, v14")
        e(f"s_lshl_b32 {sC}, {sW}, 11")
        e(f"s_add_u32 m0, {sC}, {L_SCR}")
        e(f"buffer_load_dwordx4 v14, {srd(SRD_WD)}, {sBt} offen lds", "rp")
        e(f"buffer_load_dwordx4 v9, {srd(SRD_WD)}, {sBt} offen offset:1024 lds", "rp")
        self.touch(SRD_WO, 0, 0, 3136, island=False)
        if self.o.get("sm_o", 0) == 0:
            self.touch(SRD_WS, WS_O, 262144, 2048, " sc1")
        self.touch(SRD_WS, WS_STAT, 14336, 112, " sc1")
        for p in range(n_e0):
            for mat in range(2):
                self.wgu_piece(p, mat)
        self.kv_store_addrs()
        self.tr_addr("v6", 4)
        e(f"s_lshl_b32 {sA}, {sW}, 11")
        e(f"s_add_u32 {sA}, {sA}, {L_SCR}")
        e(f"v_add_u32 v8, {sA}, v6")
        e("v_xor_b32 v9, 64, v8")
        e.wait(vm="rp")
        self.stamp("rp")
        keep = list(e.vm)
        for ct in range(2):
            for hf in range(2):
                e(f"ds_read_b64_tr_b16 {vr(112 + 4 * ct + 2 * hf, 2)}, v{8 + ct} offset:{1024 * hf}")
        e(f"s_lshl_b32 {sA}, s89, 11")
        e(f"s_add_u32 {sA}, {sA}, {WS_WD}")
        e("s_cmp_ge_u32 s88, 784")
        e("s_waitcnt lgkmcnt(0)")
        e("s_cbranch_scc1 L_norp")
        for ct in range(2):
            e(f"buffer_store_dwordx4 {vr(112 + 4 * ct)}, {vL16}, {srd(SRD_WS)}, {sA} offen offset:{1024 * ct} sc1")
        e("L_norp:")
        e(f"s_sub_u32 {sA}, {sR}, 7")
        e(f"s_cmp_ge_u32 {sA}, 14")
        e("s_cbranch_scc1 L_nomod4")
        self.mod_compute("L_nomod4")
        e("L_nomod4:")
        e.vm = keep
        for p in range(n_e0, n_e1):
            for mat in range(2):
                self.wgu_piece(p, mat)
                self.throttle("thr_e", 0)
        self.xcc_issue()
        e("s_waitcnt vmcnt(0)")
        self.xcc_check()
        e("s_cmp_ge_u32 s88, 784")
        e("s_cbranch_scc1 L_norp2")
        e(f"s_lshl_b32 {sA}, s89, 2")
        e(f"s_add_u32 {sA}, {sA}, {WS_FLW}")
        e(f"v_mov_b32 v4, {sTAG}")
        e("s_mov_b64 exec, 1")
        e(f"buffer_store_dword v4, off, {srd(SRD_WS)}, {sA} sc1")
        e("s_mov_b64 exec, -1")
        e("L_norp2:")
        e.vm = []
        self.stamp("wdone")

    def tr_addr(self, dst, rowmul):
        e = self.e
        e(f"v_lshrrev_b32 {dst}, 5, {vL}")
        e(f"v_mul_u32_u24 {dst}, {rowmul}, {dst}")
        e(f"v_bfe_u32 v5, {vL}, 2, 2")
        e(f"v_add_u32 {dst}, {dst}, v5")
        e(f"v_lshlrev_b32 {dst}, 7, {dst}")
        e(f"v_bfe_u32 v4, {vL}, 4, 1")
        e(f"v_lshl_add_u32 {dst}, v4, 5, {dst}")
        e(f"v_and_b32 v4, 3, {vL}")
        e(f"v_lshl_add_u32 {dst}, v4, 3, {dst}")
        e("v_lshrrev_b32 v5, 1, v5")
        e(f"v_lshl_add_u32 {dst}, v5, 6, {dst}")

    def kv_store_addrs(self):
        e = self.e
        e(f"v_lshrrev_b32 v4, 5, {vL}")
        e(f"v_and_b32 v5, 31, {vL}")
        e(f"s_cmp_ge_u32 {sH}, 7")
        e("s_cbranch_scc1 L_vaddr")
        e(f"s_lshl_b32 {sA}, {sH}, 4")
        e(f"v_add_u32 v4, {sA}, v4")
        e(f"v_lshlrev_b32 v5, 3, v5")
        for n in range(8):
            e(f"v_add_u32 v6, {2 * n}, v4")
            e("v_mul_u32_u24 v7, 147, v6")
            e("v_lshrrev_b32 v7, 10, v7")
            e("v_mul_u32_u24 v8, 7, v7")
            e("v_sub_u32 v6, v6, v8")
            e("v_lshl_add_u32 v6, v6, 8, v5")
            e(f"v_lshl_add_u32 v{96 + n}, v7, 18, v6")
        e("s_branch L_addrdone")
        e("L_vaddr:")
        e(f"s_sub_u32 {sA}, {sH}, 7")
        e(f"s_lshl_b32 {sA}, {sA}, 6")
        e(f"v_add_u32 v5, {sA}, v5")
        e("v_lshlrev_b32 v4, 9, v4")
        e("v_add_u32 v4, 2048, v4")
        for ct in range(2):
            e(f"v_add_u32 v6, {32 * ct}, v5")
            e("v_mul_u32_u24 v7, 2341, v6")
            e("v_lshrrev_b32 v7, 16, v7")
            e("v_mul_u32_u24 v8, 28, v7")
            e("v_sub_u32 v6, v6, v8")
            e("v_lshl_add_u32 v6, v6, 4, v4")
            e(f"v_lshl_add_u32 v{96 + ct}, v7, 18, v6")
        for n in range(2, 8):
            e(f"v_mov_b32 v{96 + n}, v96")
        e("L_addrdone:")

    def helper(self):
        e = self.e
        e.vm, e.lg = ["E"], []
        XF, XP, CR = 128, 64, 64
        e("L_helper:")
        e(f"v_lshrrev_b32 v6, 3, {vL}")
        e(f"v_and_b32 v7, 7, {vL}")
        e("v_lshrrev_b32 v8, 1, v6")
        e("v_xor_b32 v8, v8, v7")
        e("v_mul_u32_u24 v6, 896, v6")
        e("v_lshl_add_u32 v9, v8, 4, v6")
        e("v_xor_b32 v8, 4, v8")
        e("v_lshl_add_u32 v8, v8, 4, v6")
        e(f"v_add_u32 v8, {8 * 896}, v8")
        e(f"s_sub_u32 s91, {sR}, 28")
        e(f"s_lshl_b32 {sA}, {sI}, 2")
        e(f"s_add_u32 s91, s91, {sA}")
        e(f"s_lshl_b32 {sA}, s91, 2")
        e(f"s_add_u32 {sA}, {sA}, {sW}")
        e(f"s_mul_i32 {sA}, {sA}, 14336")
        e(f"s_mul_i32 {sBt}, {sW}, 14336")
        for ln in range(7):
            for rg in range(2):
                e(f"s_add_u32 m0, {sBt}, {L_HX + rg * 7168 + ln * 1024}")
                e(f"buffer_load_dwordx4 v{9 - rg}, {srd(SRD_X)}, {sA} offen lds", "x")
            if ln < 6:
                e(f"s_add_u32 {sA}, {sA}, 128")
        e(f"s_mul_i32 s90, s91, 57344")
        e(f"s_mul_i32 {sA}, {sW}, 7168")
        e(f"s_add_u32 s90, s90, {sA}")
        e(f"s_add_u32 s90, s90, {WS_H}")
        self.src_addrs()
        self.wq_setup()
        self.wq_dma(thr=False)
        e(f"v_lshrrev_b32 v4, 4, {vL}")
        e(f"v_and_b32 v5, 15, {vL}")
        e("v_lshrrev_b32 v6, 3, v5")
        e("v_mul_u32_u24 v6, 7168, v6")
        e("v_and_b32 v7, 7, v5")
        e("v_lshl_add_u32 v6, v7, 7, v6")
        e(f"v_add_u32 v6, {L_HX}, v6")
        e("v_lshrrev_b32 v7, 1, v5")
        e(f"s_mul_i32 {sA}, {sW}, 14")
        e(f"v_add_u32 v8, {sA}, v4")
        for n in range(4):
            e(f"v_add_u32 v9, {4 * n}, v8")
            e("v_min_u32 v9, 55, v9")
            e("v_lshrrev_b32 v16, 3, v9")
            e("v_and_b32 v9, 7, v9")
            e("v_xor_b32 v9, v9, v7")
            e("v_lshl_add_u32 v16, v16, 10, v6")
            e(f"v_lshl_add_u32 v{20 + n}, v9, 4, v16")
        e.wait(vm="E")
        self.tag_and_register()
        e.wait(vm="x")
        e("s_barrier")
        self.stamp("hx")
        for G in range(4):
            for n in range(4):
                e(f"ds_read_b128 {vr(XP + 16 * G + 4 * n)}, v{20 + n} offset:{G * 14336}", ("x", G))
        pair = lambda r: f"v[{r}:{r + 1}]"
        e("s_mov_b32 s88, 0x3f803f80")
        for G in range(4):
            e.wait(lg=("x", G))
            for k in range(4):
                e(f"v_cndmask_b32 v{XP + 16 * G + 12 + k}, v{XP + 16 * G + 12 + k}, 0, {sHI}")
        for k in range(16):
            for G in range(4):
                x = f"v{XP + 16 * G + k}"
                e(f"v_dot2_f32_bf16 v{24 + G}, {x}, s88, {'0' if k == 0 else f'v{24 + G}'}")
            for G in range(4):
                x = f"v{XP + 16 * G + k}"
                e(f"v_dot2_f32_bf16 v{28 + G}, {x}, {x}, {'0' if k == 0 else f'v{28 + G}'}")
        e("s_nop 2")
        for b0 in (24, 28):
            e(f"v_permlane16_swap_b32 v{b0}, v{b0 + 1}")
            e(f"v_permlane16_swap_b32 v{b0 + 2}, v{b0 + 3}")
        for b0 in (24, 28):
            e(f"v_add_f32 v{b0}, v{b0}, v{b0 + 1}")
            e(f"v_add_f32 v{b0 + 2}, v{b0 + 2}, v{b0 + 3}")
        for b0 in (24, 28):
            e(f"v_permlane32_swap_b32 v{b0}, v{b0 + 2}")
        e("v_add_f32 v24, v24, v26")
        e("v_add_f32 v25, v28, v30")
        e(f"s_lshl_b32 {sA}, {sW}, 9")
        e(f"s_add_u32 {sA}, {sA}, {L_HS}")
        e(f"v_lshlrev_b32 v16, 3, {vL}")
        e(f"v_add_u32 v17, {sA}, v16")
        e(f"v_add_u32 v16, {L_HS}, v16")
        e("ds_write_b64 v17, v[24:25]")
        e(f"v_lshrrev_b32 v8, 2, {vL}")
        e(f"v_min_u32 v8, 13, v8")
        e(f"s_mul_i32 {sA}, {sW}, 14")
        e(f"v_add_u32 v8, {sA}, v8")
        e(f"v_bfe_u32 v9, {vL}, 1, 1")
        e(f"v_lshl_add_u32 v8, v8, 1, v9")
        e(f"v_and_b32 v9, 1, {vL}")
        e(f"v_mul_u32_u24 v6, 112, v9")
        e(f"v_add_u32 v8, v8, v6")
        e(f"v_lshlrev_b32 v8, 4, v8")
        self.xcc_issue()
        self.gather_issue("v8", 40)
        e("s_waitcnt lgkmcnt(0)")
        e("s_barrier")
        for k in range(4):
            e(f"ds_read_b64 {pair(24 + 2 * k)}, v16 offset:{k * 512}", "s")

        def unpack(G):
            b = XF + 32 * G
            for k in range(16):
                e(f"v_lshlrev_b32 v{b + 2 * k}, 16, v{XP + 16 * G + k}")
                e(f"v_and_b32 v{b + 2 * k + 1}, 0xffff0000, v{XP + 16 * G + k}")

        unpack(0)
        e.wait(lg="s")
        e("v_pk_add_f32 v[24:25], v[24:25], v[26:27]")
        e("v_pk_add_f32 v[28:29], v[28:29], v[30:31]")
        e("v_pk_add_f32 v[24:25], v[24:25], v[28:29]")
        e(f"v_mul_f32 v24, {fbits(1.0 / 448)}, v24")
        e(f"v_mul_f32 v25, {fbits(1.0 / 448)}, v25")
        e("v_fma_f32 v25, -v24, v24, v25")
        e("v_max_f32 v25, 0, v25")
        self.round_bf16(["v24", "v25"], "v26")
        e(f"v_add_f32 v25, {fbits(1e-5)}, v25")
        e("v_cvt_pk_bf16_f32 v25, v25, v25")
        e("v_lshlrev_b32 v25, 16, v25")
        e("v_sqrt_f32 v25, v25")
        e("v_cvt_pk_bf16_f32 v25, v25, v25")
        e("v_lshlrev_b32 v25, 16, v25")
        e("v_rcp_f32 v26, v25")
        e("v_mul_f32 v27, -v24, v26")
        e(f"v_add_u32 v17, 2048, v17")
        e("ds_write_b64 v17, v[26:27]")
        e(f"s_lshl_b32 {sA}, {sW}, 9")
        e(f"s_add_u32 {sA}, {sA}, {L_HS + 2048}")
        e(f"v_lshl_add_u32 v16, v5, 3, {sA}")
        for G in range(4):
            e(f"ds_read_b64 {pair(32 + 2 * G)}, v16 offset:{G * 128}", "ab")
        for G in range(1, 4):
            unpack(G)
        e.wait(lg="ab")
        for G in range(4):
            b = XF + 32 * G
            for k in range(0, 32, 2):
                e(f"v_pk_fma_f32 {pair(b + k)}, {pair(b + k)}, {pair(32 + 2 * G)}, {pair(32 + 2 * G)} op_sel:[0,0,1] op_sel_hi:[1,0,1]")
        e(f"v_cvt_f32_u32 v9, v9")
        e(f"s_lshl_b32 {sA}, {sW}, 11")
        e(f"s_add_u32 {sA}, {sA}, {L_SCR}")
        e(f"v_add_u32 v6, {sA}, {vL16}")
        e(f"v_lshl_add_u32 v7, v4, 6, {sA}")
        self.stamp("ln1")
        self.gather_finish("v8", 40, 16)
        self.stamp("modgot")
        for k in range(4):
            e(f"v_add_f32 v{40 + k}, v{40 + k}, v9")
        self.round_bf16([f"v{40 + k}" for k in range(4)], "v16")
        e("ds_write_b128 v6, v[40:43]")
        for n in range(4):
            for it in range(4):
                e(f"ds_read_b128 {vr(CR + 16 * n + 4 * it)}, v7 offset:{n * 256 + 16 * it}", ("c", n))
        e(f"v_lshlrev_b32 v8, 4, v5")
        e(f"v_lshl_add_u32 v8, v4, 9, v8")
        e(f"v_add_u32 v9, 4096, v8")
        e(f"v_mov_b32 v16, 0x7ffffff0")
        e(f"v_cndmask_b32 v6, v9, v16, {sHI}")
        self.xcc_check()
        e(f"s_lshl_b32 s93, s91, 7")
        e(f"s_lshl_b32 {sC}, {sW}, 2")
        e(f"s_add_u32 s93, s93, {sC}")
        e(f"s_add_u32 s93, s93, {WS_FLH}")
        for G in range(4):
            b = XF + 32 * G
            if G:
                e(f"s_add_u32 s90, s90, {256 if G & 1 else 28672 - 256}")
            for n in range(4):
                if G == 0:
                    e.wait(lg=("c", n))
                for k in range(0, 8, 2):
                    c1 = CR + 16 * n + 4 * (2 * (k >> 2) + 1) + (k & 3)
                    c2 = CR + 16 * n + 4 * (2 * (k >> 2)) + (k & 3)
                    e(f"v_pk_fma_f32 {pair(b + 8 * n + k)}, {pair(b + 8 * n + k)}, {pair(c1)}, {pair(c2)}")
                d = 24 + 4 * ((4 * G + n) % 8)
                for k in range(4):
                    e(f"v_cvt_pk_bf16_f32 v{d + k}, v{b + 8 * n + 2 * k}, v{b + 8 * n + 2 * k + 1}")
                e(f"buffer_store_dwordx4 {vr(d)}, v{(8, 8, 9, 6)[n]}, {srd(SRD_WS)}, s90 offen offset:{(n & 1) * 2048}{self.sm('h')}")
        self.publish("s93", "v7", second=64)
        self.stamp("hpub")
        e("s_waitcnt vmcnt(0)")
        e("s_branch L_p1")

    def p1(self):
        e = self.e
        e("L_p1:")
        e.vm, e.lg = [], []
        if self.o.get("front_only"):
            e("s_branch L_fin")
        e("s_waitcnt lgkmcnt(0)")
        e("s_barrier")
        e(f"v_lshrrev_b32 v4, 5, {vL}")
        e(f"v_lshlrev_b32 v4, 9, v4")
        e(f"v_bfe_u32 v5, {vL}, 2, 2")
        e(f"v_lshl_add_u32 v4, v5, 6, v4")
        e(f"v_bfe_u32 v5, {vL}, 4, 1")
        e(f"v_lshl_add_u32 v4, v5, 5, v4")
        e(f"v_and_b32 v5, 3, {vL}")
        e(f"v_lshl_add_u32 v4, v5, 3, v4")
        e(f"v_add_u32 v4, {sADJ}, v4")
        e(f"v_add_u32 v10, {L_WQ}, v4")
        self.tr_addr("v8", 8)
        e(f"v_add_u32 v8, {L_WKV}, v8")
        e("v_xor_b32 v9, 64, v8")
        e(f"v_and_b32 v4, 3, {vL}")
        e(f"v_lshlrev_b32 v4, 2, v4")
        e(f"s_lshl_b32 s88, {sT}, 6")
        e(f"s_add_u32 s88, s88, {WS_FLH}")
        e(f"s_mul_i32 {sC}, {sT}, 28672")
        e(f"s_add_u32 {sC}, {sC}, {WS_H}")
        e(f"s_lshl_b32 s90, {sT}, 12")
        e(f"s_add_u32 s90, s90, {WS_KV}")
        e(f"s_cmp_ge_u32 {sR}, 28")
        e("s_cbranch_scc1 L_p1_h")
        e(f"s_cmp_ge_u32 {sH}, 7")
        e("s_cbranch_scc1 L_p1_v")
        for mode in ("k", "v", "h"):
            e(f"L_p1_{mode}:")
            e.vm, e.lg = [], []
            self.p1_body(mode)
            if mode != "h":
                e("s_branch L_p1_done")
        e("L_p1_done:")
        e.vm, e.lg = [], []
        self.stamp("kvpub")
        self.slotq_issue()
        ACQ = 48
        qs = 28 ** -0.5 * math.log2(math.e)
        e(f"s_mov_b32 {sA}, {fbits(qs)}")
        for k in range(16):
            e(f"v_mul_f32 v{ACQ + k}, {sA}, v{ACQ + k}")
        for k in range(8):
            e(f"v_cvt_pk_bf16_f32 v{64 + k}, v{ACQ + 2 * k}, v{ACQ + 2 * k + 1}")
        e("v_mov_b32 v11, 0x00003f80")
        e(f"v_cndmask_b32 v70, v70, v11, {sHI}")
        e(f"v_cndmask_b32 v71, v71, 0, {sHI}")

    def p1_body(self, mode):
        e = self.e
        AC, ACQ = 16, 48
        HB, WR = 0, 112
        QR = WR + 32
        DEPTH = 3
        first = mode == "k"

        def rd_w(ks, ct):
            d = WR + 8 * (ks % 4) + 4 * ct
            e(f"ds_read_b64_tr_b16 {ar(d, 2)}, v{8 + ct} offset:{ks * 2048}", ("kv", ks))
            e(f"ds_read_b64_tr_b16 {ar(d + 2, 2)}, v{8 + ct} offset:{ks * 2048 + 512}", ("kv", ks))

        def rd_q(ks):
            d = QR + 4 * (ks % 8)
            e(f"ds_read_b64_tr_b16 {ar(d, 2)}, v10 offset:{ks * 1024}", ("q", ks))
            e(f"ds_read_b64_tr_b16 {ar(d + 2, 2)}, v10 offset:{ks * 1024 + 256}", ("q", ks))

        def ld_h(ks):
            if ks and ks % 4 == 0:
                e(f"s_add_u32 {sC}, {sC}, 4096")
            e(f"buffer_load_dwordx4 {ar(HB + 4 * ks)}, {vL16}, {srd(SRD_WS)}, {sC} offen offset:{(ks % 4) * 1024} sc1", ("h", ks))

        if mode != "h":
            for ks in range(DEPTH):
                rd_w(ks, 0)
                rd_w(ks, 1)
        self.poll("v4", "s88", "v5")
        self.acquire()
        self.stamp("hflag", again=not first)
        PRE = self.o.get("p1pre", 8)
        if mode == "h":
            for ks in range(28):
                ld_h(ks)
            for ks in range(6):
                rd_q(ks)
            self.helper_side()
        else:
            for ks in range(PRE):
                ld_h(ks)
            for ks in range(28):
                e.wait(vm=("h", ks), lg=("kv", ks))
                for ct in range(2):
                    w, hb = ar(WR + 8 * (ks % 4) + 4 * ct), ar(HB + 4 * ks)
                    acc = vr(AC + 16 * ct, 16)
                    a, b = (w, hb) if mode == "k" else (hb, w)
                    e(f"v_mfma_f32_32x32x16_bf16 {acc}, {a}, {b}, {'0' if ks == 0 else acc}")
                    if ct == 0 and ks + PRE < 28:
                        ld_h(ks + PRE)
                    if ks + DEPTH < 28:
                        rd_w(ks + DEPTH, ct)
                    else:
                        rd_q(2 * (ks + DEPTH - 28) + ct)
        self.stamp("kvgemm", again=not first)

        def kv_epi(r):
            for ct in range(2):
                for k in range(8):
                    r(f"v_cvt_pk_bf16_f32 v{64 + 8 * ct + k}, v{AC + 16 * ct + 2 * k}, v{AC + 16 * ct + 2 * k + 1}")
                    if mode == "k" and k & 1:
                        r(f"buffer_store_dwordx2 {vr(64 + 8 * ct + k - 1, 2)}, v{96 + 4 * ct + (k >> 1)}, {srd(SRD_WS)}, s90 offen sc1")
                    if mode == "v" and k % 4 == 3:
                        r(f"buffer_store_dwordx4 {vr(64 + 8 * ct + k - 3)}, v{96 + ct}, {srd(SRD_WS)}, s90 offen offset:{(k >> 2) * 1024} sc1")

        main, fill = [], {}
        for ks in range(28):
            def m(ks=ks):
                e.wait(vm=("h", ks), lg=("q", ks))
                cq = "0" if ks == 0 else vr(ACQ, 16)
                e(f"v_mfma_f32_32x32x16_bf16 {vr(ACQ, 16)}, {ar(QR + 4 * (ks % 8))}, {ar(HB + 4 * ks)}, {cq}")
            main.append(m)
            if ks + 6 < 28:
                fill.setdefault(ks, []).append(lambda ks=ks: rd_q(ks + 6))
        if mode != "h":
            self.spread(fill, self.record(kv_epi), 1, 7)
        self.spread(fill, self.record(self.slotq_addr), 8, 27)
        self.merge(main, fill)
        if mode == "h":
            e("s_barrier")
            return
        lab = e.label("nokvfl")
        e(f"s_lshr_b32 {sA}, {sT}, 2")
        e(f"s_mul_i32 {sA}, {sA}, 14")
        e(f"s_add_u32 {sA}, {sA}, {sH}")
        e(f"s_lshl_b32 {sA}, {sA}, 7")
        e(f"s_add_u32 {sA}, {sA}, {WS_FLKV}")
        e(f"v_mov_b32 v7, {sTAG}")
        e(f"s_cmp_lg_u32 {sW}, 0")
        e("s_waitcnt vmcnt(0)")
        e("s_barrier")
        e(f"s_cbranch_scc1 {lab}")
        e("s_mov_b64 exec, 1")
        e(f"buffer_store_dword v7, off, {srd(SRD_WS)}, {sA} sc1")
        e("s_mov_b64 exec, -1")
        e(f"{lab}:")

    def helper_side(self):
        e = self.e
        e(f"s_sub_u32 {sE}, {sR}, 28")
        e(f"s_lshl_b32 {sE}, {sE}, 2")
        e(f"s_add_u32 {sE}, {sE}, {sW}")
        e(f"v_lshlrev_b32 v6, 7, {vL}")
        e(f"s_lshl_b32 {sA}, {sI}, 9")
        e(f"s_add_u32 {sA}, {sA}, {WS_FLO}")
        e("s_mov_b64 exec, 15")
        e(f"buffer_load_dword v127, v6, {srd(SRD_WS)}, {sA} offen sc1")
        e(f"s_add_u32 {sA}, {sA}, {WS_FLZ - WS_FLO}")
        e(f"buffer_load_dword v127, v6, {srd(SRD_WS)}, {sA} offen sc1")
        e(f"s_lshl_b32 {sA}, {sI}, 10")
        e(f"s_add_u32 {sA}, {sA}, {WS_FLD}")
        e("s_mov_b64 exec, 0xff")
        e(f"buffer_load_dword v127, v6, {srd(SRD_WS)}, {sA} offen sc1")
        e("s_mov_b64 exec, -1")

    def slotq_addr(self, e):
        e(f"s_lshl_b32 {sA}, {sW}, 6")
        e(f"v_add_u32 v4, {sA}, {vL}")
        e(f"s_movk_i32 {sBt}, 112")
        e(f"v_cmp_gt_u32 s[88:89], {sBt}, v4")
        e(f"s_movk_i32 {sBt}, 224")
        e(f"v_cmp_gt_u32 s[94:95], {sBt}, v4")
        e("v_subrev_u32 v5, 112, v4")
        e("v_cndmask_b32 v5, v5, v4, s[88:89]")
        e("v_mov_b32 v6, 336")
        e("v_mov_b32 v7, 448")
        e("v_cndmask_b32 v6, v6, v7, s[88:89]")
        e("v_add_u32 v6, v6, v5")
        e("v_and_b32 v7, 15, v4")
        e(f"s_lshl_b32 {sA}, {sCG}, 4")
        e(f"v_add_u32 v7, {sA}, v7")
        e("v_bfe_u32 v208, v4, 4, 1")
        e("v_mul_u32_u24 v208, 336, v208")
        e("v_add_u32 v7, v7, v208")
        e("v_add_u32 v7, 224, v7")
        e("v_cndmask_b32 v6, v7, v6, s[94:95]")
        e("v_lshlrev_b32 v208, 4, v6")
        e("v_lshrrev_b32 v6, 3, v5")
        e("v_lshlrev_b32 v6, 6, v6")
        e("v_and_b32 v7, 3, v5")
        e("v_lshl_add_u32 v6, v7, 4, v6")
        e("v_bfe_u32 v7, v5, 2, 1")
        e("v_lshl_add_u32 v6, v7, 3, v6")
        e("v_mov_b32 v7, 896")
        e("v_cndmask_b32 v7, v7, 0, s[88:89]")
        e("v_add_u32 v209, v6, v7")
        e("v_and_b32 v7, 31, v4")
        e("v_lshlrev_b32 v210, 4, v7")
        e("v_cndmask_b32 v212, 0, 1.0, s[88:89]")
        e("v_cndmask_b32 v213, 0, 1, s[94:95]")
        e(f"v_lshrrev_b32 v4, 2, {vL}")
        e(f"v_mul_u32_u24 v4, 896, v4")
        e(f"v_and_b32 v5, 3, {vL}")
        e(f"v_lshl_add_u32 v214, v5, 4, v4")
        e(f"s_lshl_b32 {sA}, {sI}, 2")
        e(f"s_add_u32 {sA}, {sA}, {sRB}")
        e(f"s_lshl_b32 {sA}, {sA}, 2")
        e(f"s_add_u32 {sA}, {sA}, {sW}")
        e(f"s_mul_i32 {sA}, {sA}, 14336")
        e(f"s_lshl_b32 {sBt}, {sCG}, 7")
        e(f"s_add_u32 s100, {sA}, {sBt}")

    def wo_dma(self):
        e = self.e
        e(f"s_lshl_b32 {sC}, {sCG}, 7")
        e(f"s_mul_i32 {sA}, {sW}, {8 * 896}")
        e(f"s_add_u32 {sC}, {sC}, {sA}")
        for n in range(14):
            e(f"s_add_u32 {sA}, {sC}, {n * 32 * 896}")
            e(f"s_add_u32 m0, s101, {L_WO + n * 4096}")
            e(f"buffer_load_dwordx4 v13, {srd(SRD_WO)}, {sA} offen lds")

    def slotq_issue(self):
        e = self.e
        self.gather_issue("v208", 216)
        e(f"buffer_load_dwordx4 v[240:243], v214, {srd(SRD_X)}, s100 offen")
        e(f"buffer_load_dwordx4 v[244:247], v214, {srd(SRD_X)}, s100 offen offset:64")
        e(f"s_mul_i32 {sA}, {sCG}, 112")
        e(f"s_mul_i32 {sBt}, {sW}, 28")
        e(f"s_add_u32 {sA}, {sA}, {sBt}")
        e(f"s_lshl_b32 {sA}, {sA}, 2")
        e(f"s_add_u32 s100, {sA}, {WS_FLW}")
        e(f"v_min_u32 v4, 27, {vL}")
        e(f"v_lshlrev_b32 v215, 2, v4")
        e(f"buffer_load_dword v238, v215, {srd(SRD_WS)}, s100 offen sc1")

    def late_consts(self):
        e = self.e
        self.gather_finish("v208", 216, 232)
        for k in range(4):
            e(f"v_add_f32 v{220 + k}, v{216 + k}, v212")
        e("v_cvt_pk_bf16_f32 v220, v220, v221")
        e("v_cvt_pk_bf16_f32 v221, v222, v223")
        e("v_cmp_ne_u32 vcc, 0, v213")
        e("s_mov_b64 exec, vcc")
        e(f"ds_write_b64 v209, v[220:221] offset:{L_CVEC}")
        e("s_not_b64 exec, exec")
        e(f"ds_write_b128 v210, v[216:219] offset:{L_GAB}")
        e("s_mov_b64 exec, -1")
        e(f"s_lshl_b32 {sA}, {sW}, 11")
        e(f"s_add_u32 {sA}, {sA}, {L_XS}")
        e(f"v_lshrrev_b32 v4, 2, {vL}")
        e(f"v_lshlrev_b32 v4, 7, v4")
        e(f"v_and_b32 v5, 3, {vL}")
        e(f"v_lshl_add_u32 v4, v5, 4, v4")
        e(f"v_add_u32 v6, {sA}, v4")
        e(f"v_and_b32 v4, 15, {vL}")
        e(f"v_lshlrev_b32 v4, 7, v4")
        e(f"v_lshrrev_b32 v5, 4, {vL}")
        e(f"v_lshl_add_u32 v4, v5, 3, v4")
        e(f"v_add_u32 v7, {sA}, v4")
        e("ds_write_b128 v6, v[240:243]")
        e("ds_write_b128 v6, v[244:247] offset:64")
        for t in range(4):
            e(f"ds_read_b64 {vr(248 + 2 * t, 2)}, v7 offset:{32 * t}")
        lp, dn = e.label("wfl"), e.label("wfld")
        keep = list(e.vm)
        e(f"s_mov_b32 {sSPIN}, 0")
        e(f"{lp}:")
        e(f"v_cmp_ne_u32 vcc, {sTAG}, v238")
        e(f"s_cbranch_vccz {dn}")
        e(f"buffer_load_dword v238, v215, {srd(SRD_WS)}, s100 offen sc1")
        e(f"s_add_u32 {sSPIN}, {sSPIN}, 1")
        e(f"s_cmp_ge_u32 {sSPIN}, {SPIN_MAX}")
        e("s_waitcnt vmcnt(0)")
        e(f"s_cbranch_scc0 {lp}")
        e(f"{dn}:")
        e.vm = keep

    def p2(self):
        e = self.e
        QF, MK = 64, 72
        e(f"v_and_b32 v4, 31, {vL}")
        e(f"v_lshrrev_b32 v7, 5, {vL}")
        e(f"v_lshlrev_b32 v7, 2, v7")
        e("v_sub_u32 v4, v4, v7")
        e("v_mov_b32 v6, 0xffff")
        e("v_mov_b32 v7, 0xffff0000")
        for r in range(16):
            e(f"v_cmp_le_i32 s[{SMASK + 2 * r}:{SMASK + 2 * r + 1}], {(r >> 2) * 8 + (r & 3)}, v4")
        for k in range(8):
            e(f"v_cndmask_b32 v8, 0, v6, s[{SMASK + 4 * k}:{SMASK + 4 * k + 1}]")
            e(f"v_cndmask_b32 v9, 0, v7, s[{SMASK + 4 * k + 2}:{SMASK + 4 * k + 3}]")
            e(f"v_or_b32 v{MK + k}, v8, v9")
        e(f"s_lshl_b32 {sA}, {sW}, 12")
        e(f"s_add_u32 {sA}, {sA}, {L_KV}")
        e(f"v_add_u32 v10, {sA}, {vL16}")
        e(f"v_lshl_add_u32 v15, {vL}, 3, {sA}")
        e(f"s_mul_i32 {sD}, {sW}, 12288")
        e(f"s_add_u32 {sD}, {sD}, {L_KV}")
        e(f"v_add_u32 v4, 1792, {vL16}")
        e(f"v_subrev_u32 v5, 16, {vL}")
        e(f"v_lshlrev_b32 v5, 9, v5")
        e(f"v_add_u32 v5, {2048 + 448}, v5")
        e(f"v_cmp_gt_u32 vcc, 16, {vL}")
        e("v_mov_b32 v6, 0x3f803f80")
        e("v_cndmask_b32 v4, v5, v4, vcc")
        e("v_cndmask_b32 v16, v6, 0, vcc")
        e(f"v_add_u32 v4, {sD}, v4")
        for k in range(1, 4):
            e(f"v_mov_b32 v{16 + k}, v16")
        e("s_mov_b64 exec, 0xfffff")
        for t in range(3):
            e(f"ds_write_b128 v4, v[16:19] offset:{t * 4096}")
        e("s_mov_b64 exec, -1")
        e(f"s_and_b32 {sC}, {sT}, 0xfc")
        e(f"s_mul_i32 {sBt}, {sW}, 3")
        e(f"s_add_u32 {sC}, {sC}, {sBt}")
        e(f"s_sub_u32 {sC}, {sC}, 8")
        e(f"v_bfe_u32 v4, {vL}, 2, 1")
        e(f"v_lshl_add_u32 v4, v4, 1, {sC}")
        e("v_ashrrev_i32 v4, 2, v4")
        e("v_max_i32 v4, 0, v4")
        e("v_mul_u32_u24 v4, 14, v4")
        e(f"s_mul_i32 {sA}, {sH}, 28")
        e(f"v_and_b32 v5, 1, {vL}")
        e("v_mul_u32_u24 v5, 27, v5")
        e(f"v_add_u32 v5, {sA}, v5")
        e("v_lshrrev_b32 v5, 6, v5")
        e("v_add_u32 v4, v4, v5")
        e(f"v_bfe_u32 v5, {vL}, 1, 1")
        e("v_mul_u32_u24 v5, 7, v5")
        e("v_add_u32 v4, v4, v5")
        e("v_lshlrev_b32 v4, 7, v4")
        e(f"s_mov_b32 {sA}, {WS_FLKV}")
        e(f"s_lshl_b32 {sE}, {sH}, 6")
        e(f"s_add_u32 {sE}, {sE}, {sC}")
        e(f"s_lshl_b32 {sE}, {sE}, 12")
        e(f"s_add_u32 {sE}, {sE}, {WS_KV}")
        for k in range(8):
            e(f"v_mov_b32 v{20 + k}, 0")
        e("v_mov_b32 v5, 0x0000f149")
        e(f"v_cmp_le_u32 vcc, 48, {vL}")
        e(f"v_add_u32 v9, {sD}, {vL16}")
        e("v_cndmask_b32 v24, 0, v5, vcc")
        e("v_cndmask_b32 v26, 0, v5, vcc")
        self.poll("v4", sA, "v8")
        self.acquire()
        self.stamp("kvflag")
        for t in range(3):
            fl, dn = e.label("kvfill"), e.label("kvdone")
            e(f"s_cmp_lt_i32 {sC}, {-t}")
            e(f"s_cbranch_scc1 {fl}")
            e(f"s_add_u32 m0, {sD}, {t * 4096}")
            e(f"s_add_u32 {sA}, {sE}, {t * 4096}")
            e(f"buffer_load_dwordx4 {vL16}, {srd(SRD_WS)}, {sA} offen sc1 lds")
            e("s_mov_b32 exec_hi, 0xffff")
            e(f"buffer_load_dwordx4 {vL16}, {srd(SRD_WS)}, {sA} offen offset:1024 sc1 lds")
            e("s_mov_b32 exec_lo, 0x0fffffff")
            e("s_mov_b32 exec_hi, 0x0fffffff")
            e(f"buffer_load_dwordx4 {vL16}, {srd(SRD_WS)}, {sA} offen offset:2048 sc1 lds")
            e(f"buffer_load_dwordx4 {vL16}, {srd(SRD_WS)}, {sA} offen offset:3072 sc1 lds")
            e("s_mov_b64 exec, -1")
            e(f"s_branch {dn}")
            e(f"{fl}:")
            for f in range(4):
                e(f"ds_write_b128 v9, {vr(24 if f == 1 else 20)} offset:{t * 4096 + f * 1024}")
            e(f"{dn}:")
        e.vm = []
        self.late_consts()
        e("s_waitcnt vmcnt(0) lgkmcnt(0)")
        e("s_barrier")
        self.stamp("kvgot")
        KF, VF = 0, 72
        order = [0, 8, 1, 2, 3, 4, 5, 6, 7]
        S = [80, 96, 112]
        MG, NM, OA, PF = 128, 144, 160, 176
        vM = "v11"

        def rdk(t):
            for f in range(2):
                e(f"ds_read2st64_b64 {ar(KF + 8 * t + 4 * f)}, v15 offset0:{8 * t + 2 * f} offset1:{8 * t + 2 * f + 1}", ("k", t))

        def rdv(t, f):
            e(f"ds_read_b128 {ar(VF + 8 * t + 4 * f)}, v10 offset:{t * 4096 + 2048 + f * 1024}", ("v", t))

        def smf(t, half, dst, c):
            e(f"v_mfma_f32_32x32x16_bf16 {vr(dst, 16)}, {ar(KF + 8 * t + 4 * half)}, {vr(QF + 4 * half)}, {c if half == 0 else vr(dst, 16)}")

        def mx(src, k, first=False):
            if first:
                e(f"v_max_f32 {vM}, v{src}, v{src + 1}")
            else:
                e(f"v_max3_f32 {vM}, {vM}, v{src + 2 * k}, v{src + 2 * k + 1}")

        for t in order[:5]:
            rdk(t)
        pf = [lambda p=p, mat=mat: self.wgu_piece(p, mat) for p in range(self.o.get("e1", 3), self.o.get("e2", 8)) for mat in range(2)]
        nwd = self.o.get("wd_early", 0)
        e(f"s_mul_i32 {sE}, {sCG}, 112")
        e(f"s_mul_i32 {sBt}, {sW}, 28")
        e(f"s_add_u32 {sE}, {sE}, {sBt}")
        e(f"s_lshl_b32 {sE}, {sE}, 11")
        e(f"s_add_u32 {sE}, {sE}, {WS_WD}")
        e(f"s_mul_i32 {sC}, {sRB}, 7")
        e(f"s_add_u32 {sC}, {sC}, {28 - nwd}")

        def wd_early(j, half):
            if half == 0:
                e(f"s_cmp_ge_u32 {sC}, 28")
                e(f"s_cselect_b32 {sA}, 28, 0")
                e(f"s_sub_u32 {sA}, {sC}, {sA}")
                e(f"s_lshl_b32 {sA}, {sA}, 11")
                e(f"s_add_u32 {sA}, {sA}, {sE}")
                e(f"s_add_u32 {sC}, {sC}, 1")
            e(f"buffer_load_dwordx4 {ar(8 * j + 4 * half)}, {vL16}, {srd(SRD_WS)}, {sA} offen offset:{1024 * half} sc1")

        wdl = [lambda j=j, half=half: wd_early(j, half) for j in range(28 - nwd, 28) for half in range(2)]
        main, fill = [], {}
        dsts = {0: S[0], 8: S[1]}
        for n, t in enumerate(order[2:]):
            dsts[t] = S[(n + 2) % 3]
        for n, t in enumerate(order):
            for half in range(2):
                def m(t=t, half=half):
                    if half == 0:
                        e.wait(lg=("k", t))
                    smf(t, half, dsts[t], "0")
                main.append(m)
        for n, t in enumerate(order[5:]):
            fill.setdefault(n, []).append(lambda t=t: rdk(t))
        mrg = [lambda r=r: e(f"v_cndmask_b32 v{MG + r}, v{S[0] + r}, v{S[1] + r}, s[{SMASK + 2 * r}:{SMASK + 2 * r + 1}]") for r in range(16)]
        fill.setdefault(5, []).extend(mrg)
        fill.setdefault(6, []).extend([lambda k=k: mx(MG, k, k == 0) for k in range(8)])
        for n, t in enumerate(order[2:]):
            g = 2 * (n + 2) + 3
            ops = [lambda k=k, t=t: mx(dsts[t], k) for k in range(8)]
            if g + 1 < 18:
                fill.setdefault(g, []).extend(ops[:4])
                fill.setdefault(g + 1, []).extend(ops[4:])
            else:
                fill.setdefault(17, []).extend(ops)
        vreads = [lambda t=t, f=f: rdv(t, f) for t in order for f in range(2)]
        self.spread(fill, vreads, 6, 16)
        npf1 = self.o.get("pf1", 4)
        self.spread(fill, pf[:npf1], 0, 17)
        wdl = pf[npf1:] + wdl
        self.merge(main, fill)
        e(f"v_mov_b32 v4, {vM}")
        e(f"v_permlane32_swap_b32 {vM}, v4")
        e(f"v_max_f32 {vM}, {vM}, v4")
        for r in range(16):
            e(f"v_sub_f32 v{NM + r}, 0, {vM}")
        nm = vr(NM, 16)
        smf(1, 0, S[0], nm)
        for r in range(8):
            e(f"v_sub_f32 v{MG + r}, v{MG + r}, {vM}")
        smf(1, 1, S[0], nm)
        for r in range(8, 16):
            e(f"v_sub_f32 v{MG + r}, v{MG + r}, {vM}")
        smf(2, 0, S[1], nm)
        for r in range(8):
            e(f"v_exp_f32 v{MG + r}, v{MG + r}")
        smf(2, 1, S[1], nm)
        for r in range(8, 16):
            e(f"v_exp_f32 v{MG + r}, v{MG + r}")
        for k in range(8):
            e(f"v_cvt_pk_bf16_f32 v{PF + k}, v{MG + 2 * k}, v{MG + 2 * k + 1}")
        for k in range(8):
            e(f"v_and_b32 v{PF + 8 + k}, v{PF + k}, v{MK + k}")
            e(f"v_xor_b32 v{PF + k}, v{PF + k}, v{PF + 8 + k}")
        e("s_waitcnt lgkmcnt(0)")
        oa = vr(OA, 16)
        pend = [f"v_mfma_f32_32x32x16_bf16 {oa}, {ar(VF)}, {vr(PF)}, 0",
                f"v_mfma_f32_32x32x16_bf16 {oa}, {ar(VF + 4)}, {vr(PF + 4)}, {oa}",
                f"v_mfma_f32_32x32x16_bf16 {oa}, {ar(VF + 64)}, {vr(PF + 8)}, {oa}",
                f"v_mfma_f32_32x32x16_bf16 {oa}, {ar(VF + 68)}, {vr(PF + 12)}, {oa}"]
        for t in range(1, 8):
            src = S[(t - 1) % 3]
            pfr = PF + 16 + 8 * (t & 1)
            mf = list(pend)
            if t + 2 < 8:
                d = S[(t + 1) % 3]
                mf += [f"v_mfma_f32_32x32x16_bf16 {vr(d, 16)}, {ar(KF + 8 * (t + 2))}, {vr(QF)}, {nm}",
                       f"v_mfma_f32_32x32x16_bf16 {vr(d, 16)}, {ar(KF + 8 * (t + 2) + 4)}, {vr(QF + 4)}, {vr(d, 16)}"]
            ops = [f"v_exp_f32 v{src + r}, v{src + r}" for r in range(16)]
            ops += [f"v_cvt_pk_bf16_f32 v{pfr + k}, v{src + 2 * k}, v{src + 2 * k + 1}" for k in range(8)]
            cost = [2] * 16 + [1] * 8
            tot, acc, mi = sum(cost), 0, 0
            for oi, (op, c) in enumerate(zip(ops, cost)):
                if oi % self.o.get("pf2", 12) == 2 and wdl:
                    wdl.pop(0)()
                while mi < len(mf) and acc >= mi * tot / len(mf):
                    e(mf[mi])
                    mi += 1
                e(op)
                acc += c
            for x in mf[mi:]:
                e(x)
            pend = [f"v_mfma_f32_32x32x16_bf16 {oa}, {ar(VF + 8 * t)}, {vr(pfr)}, {oa}",
                    f"v_mfma_f32_32x32x16_bf16 {oa}, {ar(VF + 8 * t + 4)}, {vr(pfr + 4)}, {oa}"]
        for x in wdl:
            x()
        e(pend[0])
        e(f"v_bfe_u32 v4, {vL}, 4, 1")
        e(f"v_lshlrev_b32 v4, 14, v4")
        e(f"v_lshrrev_b32 v5, 5, {vL}")
        e(f"v_lshl_add_u32 v4, v5, 8, v4")
        e(pend[1])
        e(f"v_and_b32 v5, 15, {vL}")
        e(f"v_lshl_add_u32 v4, v5, 4, v4")
        e(f"s_lshl_b32 {sA}, {sT}, 5")
        e(f"s_add_u32 {sA}, {sA}, {sH}")
        e(f"s_lshl_b32 {sA}, {sA}, 10")
        e(f"s_add_u32 {sA}, {sA}, {WS_O}")
        e(f"s_lshl_b32 {sBt}, {sT}, 4")
        e(f"s_add_u32 {sBt}, {sBt}, {sH}")
        e(f"s_lshl_b32 {sBt}, {sBt}, 2")
        e(f"s_add_u32 {sBt}, {sBt}, {WS_FLO}")
        e(f"v_mov_b32 v5, v{OA + 12}")
        e(f"v_mov_b32 v6, v{OA + 12}")
        e("v_permlane32_swap_b32 v5, v6")
        e("v_rcp_f32 v6, v6")
        for f in range(2):
            for r in range(8 * f, 8 * f + 8):
                e(f"v_mul_f32 v{OA + r}, v6, v{OA + r}")
            for k in range(4 * f, 4 * f + 4):
                e(f"v_cvt_pk_bf16_f32 v{PF + k}, v{OA + 2 * k}, v{OA + 2 * k + 1}")
            if f == 1:
                e(f"v_cndmask_b32 v{PF + 6}, v{PF + 6}, 0, {sHI}")
                e(f"v_cndmask_b32 v{PF + 7}, v{PF + 7}, 0, {sHI}")
            e(f"buffer_store_dwordx4 {vr(PF + 4 * f)}, v4, {srd(SRD_WS)}, {sA} offen offset:{f * 512}{self.sm('o')}")
        self.stamp("attn")
        self.publish(sBt, "v7")
        self.stamp("opub")
        e("s_barrier")
        e(f"s_cmp_ge_u32 {sR}, 28")
        e("s_cbranch_scc1 L_spare")

    def p3(self):
        e = self.e
        OB, WR, AC = 128, 0, 16
        GA, CB, XR = 32, 48, 64
        NWO = 9
        self.wo_dma()
        e(f"v_lshrrev_b32 v4, 5, {vL}")
        e(f"v_lshlrev_b32 v4, 4, v4")
        e(f"v_bfe_u32 v5, {vL}, 4, 1")
        e(f"v_lshl_add_u32 v4, v5, 2, v4")
        e(f"v_bfe_u32 v6, {vL}, 2, 2")
        e("v_add_u32 v4, v4, v6")
        e("v_lshlrev_b32 v4, 7, v4")
        e("v_lshrrev_b32 v6, 1, v6")
        e("v_lshl_add_u32 v5, v5, 1, v6")
        e(f"v_and_b32 v6, 3, {vL}")
        e("v_lshl_add_u32 v4, v6, 3, v4")
        e(f"v_add_u32 v4, {L_WO}, v4")
        for t in range(4):
            e(f"v_xor_b32 v6, {t}, v5")
            e(f"v_lshl_add_u32 v{8 + t}, v6, 5, v4")

        def rd_wo(hd, tiles=range(4)):
            for t in tiles:
                a = 8 + (t ^ (2 * (hd & 1)))
                d = WR + 16 * (hd % NWO) + 4 * t
                e(f"ds_read_b64_tr_b16 {ar(d, 2)}, v{a} offset:{hd * 3584}", ("wo", hd))
                e(f"ds_read_b64_tr_b16 {ar(d + 2, 2)}, v{a} offset:{hd * 3584 + 1024}", ("wo", hd))

        e("v_mov_b32 v6, 0")
        e("v_mov_b32 v7, 0")
        e(f"v_lshlrev_b32 v4, 3, {vL}")
        e(f"ds_write_b64 v4, v[6:7] offset:{L_PAD}")
        e(f"s_lshl_b32 {sA}, {sW}, 11")
        e(f"v_and_b32 v4, 15, {vL}")
        e(f"v_lshlrev_b32 v4, 7, v4")
        e(f"v_lshrrev_b32 v5, 4, {vL}")
        e(f"v_lshl_add_u32 v4, v5, 3, v4")
        e(f"s_add_u32 {sA}, {sA}, {L_X1}")
        e(f"v_add_u32 v100, {sA}, v4")
        e(f"v_lshlrev_b32 v6, 4, v5")
        for t in range(4):
            e(f"ds_read_b128 {vr(GA + 4 * t)}, v6 offset:{L_GAB + 64 * t}")
        e(f"s_lshl_b32 {sA}, {sCG}, 7")
        e(f"v_add_u32 v6, {sA}, v6")
        for pp in range(2):
            e(f"ds_read_b128 {vr(XR + 16 + 4 * pp)}, v6 offset:{L_CVEC + 64 * pp}", "xr")
        e(f"v_and_b32 v4, 15, {vL}")
        e(f"v_lshlrev_b32 v101, 4, v4")
        e(f"v_lshl_add_u32 v101, v5, 9, v101")
        e(f"v_lshlrev_b32 v4, 2, v4")
        e(f"s_lshl_b32 {sA}, {sI}, 2")
        e(f"s_add_u32 {sE}, {sA}, {sRB}")
        e(f"s_lshl_b32 {sA}, {sE}, 1")
        e(f"s_lshr_b32 {sBt}, {sW}, 1")
        e(f"s_add_u32 {sA}, {sA}, {sBt}")
        e(f"s_mul_i32 s64, {sA}, 28672")
        e(f"s_lshl_b32 {sBt}, {sCG}, 12")
        e(f"s_add_u32 s64, s64, {sBt}")
        e(f"s_and_b32 {sBt}, {sW}, 1")
        e(f"s_lshl_b32 {sBt}, {sBt}, 8")
        e(f"s_add_u32 s64, s64, {sBt}")
        e(f"s_add_u32 s64, s64, {WS_Z}")
        e(f"s_lshl_b32 s67, {sA}, 6")
        e(f"s_add_u32 s67, s67, {WS_FLO}")
        e(f"s_mul_i32 s65, {sE}, 7")
        e(f"s_add_u32 s65, s65, {sCG}")
        e(f"s_lshl_b32 s65, s65, 9")
        e(f"s_lshl_b32 {sBt}, {sW}, 7")
        e(f"s_add_u32 s65, s65, {sBt}")
        e(f"s_add_u32 s65, s65, {WS_STAT}")
        e(f"s_lshl_b32 s66, {sE}, 5")
        e(f"s_lshl_b32 {sBt}, {sCG}, 2")
        e(f"s_add_u32 s66, s66, {sBt}")
        e(f"s_add_u32 s66, s66, {sW}")
        e(f"s_lshl_b32 s66, s66, 2")
        e(f"s_add_u32 s66, s66, {WS_FLZ}")
        e(f"s_lshl_b32 {sC}, {sE}, 2")
        e(f"s_add_u32 {sC}, {sC}, {sW}")
        e(f"s_lshl_b32 {sC}, {sC}, 14")
        e(f"s_add_u32 {sC}, {sC}, {WS_O}")
        e.wait(lg="xr")
        for k in range(8):
            e(f"v_lshlrev_b32 v{XR + 2 * k}, 16, v{248 + k}")
            e(f"v_and_b32 v{XR + 2 * k + 1}, 0xffff0000, v{248 + k}")
            e(f"v_lshlrev_b32 v{CB + 2 * k}, 16, v{XR + 16 + k}")
            e(f"v_and_b32 v{CB + 2 * k + 1}, 0xffff0000, v{XR + 16 + k}")
        npre = 0
        self.poll("v4", "s67", "v5")
        self.acquire()
        self.stamp("oflag")

        def ld_o(hd):
            if hd and hd % 4 == 0:
                e(f"s_add_u32 {sC}, {sC}, 4096")
            e(f"buffer_load_dwordx4 {vr(OB + 4 * hd)}, {vL16}, {srd(SRD_WS)}, {sC} offen offset:{(hd % 4) * 1024} sc1", ("o", hd))

        PRE = self.o.get("p3pre", 6)
        for hd in range(PRE):
            ld_o(hd)
        e("s_barrier")
        for hd in range(npre, 3):
            rd_wo(hd)
        for hd in range(16):
            e.wait(vm=("o", hd), lg=("wo", hd))
            for t in range(4):
                c = "0" if hd == 0 else vr(AC + 4 * t)
                e(f"v_mfma_f32_16x16x32_bf16 {vr(AC + 4 * t)}, {ar(WR + 16 * (hd % NWO) + 4 * t)}, {vr(OB + 4 * hd)}, {c}")
                if t == 0 and hd + PRE < 16:
                    ld_o(hd + PRE)
                if hd + 3 < 16:
                    rd_wo(hd + 3, [t])
        self.stamp("oproj")
        for pp in range(2):
            ks = range(8 * pp, 8 * pp + 8)
            for k in ks:
                e(f"v_fmac_f32 v{XR + k}, v{GA + k}, v{AC + k}")
            for k in range(4 * pp, 4 * pp + 4):
                e(f"v_cvt_pk_bf16_f32 v{XR + 16 + k}, v{XR + 2 * k}, v{XR + 2 * k + 1}")
            for k in range(4 * pp, 4 * pp + 4):
                e(f"v_lshlrev_b32 v{XR + 2 * k}, 16, v{XR + 16 + k}")
                e(f"v_and_b32 v{XR + 2 * k + 1}, 0xffff0000, v{XR + 16 + k}")
            for k in ks:
                e(f"v_mul_f32 v{CB + k}, v{CB + k}, v{XR + k}")
            for k in range(4 * pp, 4 * pp + 4):
                e(f"v_cvt_pk_bf16_f32 v{XR + 24 + k}, v{CB + 2 * k}, v{CB + 2 * k + 1}")
            e(f"buffer_store_dwordx4 {vr(XR + 24 + 4 * pp)}, v101, {srd(SRD_WS)}, s64 offen offset:{pp * 2048}{self.sm('z')}")
        e(f"v_add_f32 v6, v{XR}, v{XR + 1}")
        e(f"v_add_f32 v7, v{XR + 2}, v{XR + 3}")
        for k in range(4, 16, 2):
            e(f"v_add_f32 v6, v6, v{XR + k}")
            e(f"v_add_f32 v7, v7, v{XR + k + 1}")
        e("v_add_f32 v6, v6, v7")
        self.reduce_hi2("v6", "v7")
        e(f"v_mul_f32 v11, {fbits(1.0 / 64)}, v6")
        e("v_mov_b32 v7, 0")
        e("v_mov_b32 v10, 0")
        for k in range(0, 16, 2):
            e(f"v_sub_f32 v{GA}, v{XR + k}, v11")
            e(f"v_sub_f32 v{GA + 1}, v{XR + k + 1}, v11")
            e(f"v_fmac_f32 v7, v{GA}, v{GA}")
            e(f"v_fmac_f32 v10, v{GA + 1}, v{GA + 1}")
        e("v_add_f32 v7, v7, v10")
        self.reduce_hi2("v7", "v10")
        e(f"v_lshlrev_b32 v4, 3, {vL}")
        e("s_mov_b64 exec, 0xffff")
        e(f"buffer_store_dwordx2 v[6:7], v4, {srd(SRD_WS)}, s65 offen")
        e("s_mov_b64 exec, -1")
        self.publish("s66", "v8")
        self.stamp("zpub")
        e("s_barrier")
        for t in range(4):
            e(f"ds_write_b64 v100, {vr(XR + 16 + 2 * t, 2)} offset:{32 * t}")

    def w4_addr(self):
        e = self.e
        self.tr_addr("v24", 4)
        e("v_xor_b32 v25, 64, v24")
        for k in range(1, 3):
            e(f"v_add_u32 v{24 + 2 * k}, {65536 * k}, v24")
            e(f"v_add_u32 v{25 + 2 * k}, {65536 * k}, v25")

    @staticmethod
    def w4_off(ks, mat):
        a = w4_base(ks >> 1) + mat * 4096 + (ks & 1) * 1024
        return a % 65536, 2 * (a // 65536)

    def p45(self):
        e = self.e
        AC, BR, AR, WD = 128, 64, 224, 0
        XA, XB, R2 = 48, 112, 120
        KS = self.o.get("ks_split", 12)
        NB, DB = 12, self.o.get("zdist", 10)
        self.w4_addr()
        e(f"s_lshl_b32 {sA}, {sW}, 13")
        e(f"s_add_u32 s92, {sA}, {L_RA}")
        steps = [(ks, (0, 1)) for ks in range(KS)] + [(ks, (0,)) for ks in range(KS, 29)] + [(ks, (1,)) for ks in range(KS, 29)]
        seq = [(ks, tt) for ks, tts in steps for tt in tts if ks < 28]
        slot = {x: n % NB for n, x in enumerate(seq)}

        def rd_a1(si, t, hf):
            ks = steps[si][0]
            if ks == 28:
                return
            off, hi = self.w4_off(ks, t >> 1)
            d = AR + 16 * (si % 2) + 4 * t + 2 * hf
            e(f"ds_read_b64_tr_b16 {ar(d, 2)}, v{24 + hi + (t & 1)} offset:{off + 2048 * hf}", ("a", si, t))

        for t in range(4):
            for hf in range(2):
                rd_a1(0, t, hf)
        e(f"v_min_u32 v4, 27, {vL}")
        e(f"v_lshlrev_b32 v4, 2, v4")
        e(f"s_lshl_b32 {sE}, {sI}, 2")
        e(f"s_add_u32 {sE}, {sE}, {sW}")
        e(f"s_lshl_b32 {sA}, {sE}, 7")
        e(f"s_add_u32 {sA}, {sA}, {WS_FLZ}")
        e(f"s_mul_i32 s88, {sE}, 57344")
        e(f"s_add_u32 s88, s88, {WS_Z}")
        e(f"s_add_u32 s89, s88, 28672")
        e(f"s_mul_i32 s64, {sE}, 3584")
        e(f"s_add_u32 s64, s64, {WS_STAT}")
        e(f"s_mul_i32 s65, {sE}, {2 * 114688}")
        e(f"s_lshl_b32 {sBt}, {sR}, 12")
        e(f"s_add_u32 s65, s65, {sBt}")
        e(f"s_add_u32 s65, s65, {WS_HID}")
        e(f"s_add_u32 s66, s65, 114688")
        e(f"s_lshl_b32 s67, {sE}, 6")
        e(f"s_add_u32 s67, s67, {sR}")
        e(f"s_lshl_b32 s67, s67, 2")
        e(f"s_add_u32 s67, s67, {WS_FLD}")
        e(f"s_add_u32 s68, s67, 128")
        e(f"s_lshl_b32 s69, {sI}, 2")
        e(f"s_add_u32 s69, s69, {sRB}")
        e(f"s_lshl_b32 s70, s69, 8")
        e(f"s_mul_i32 {sBt}, {sW}, 28")
        e(f"s_add_u32 s70, s70, {sBt}")
        e(f"s_add_u32 s70, s70, {WS_FLD}")
        e(f"s_mul_i32 s71, s69, {2 * 114688}")
        e(f"s_mul_i32 {sBt}, {sW}, 28672")
        e(f"s_add_u32 s71, s71, {sBt}")
        e(f"s_add_u32 s71, s71, {WS_HID}")
        e(f"s_mul_i32 s72, {sCG}, 112")
        e(f"s_mul_i32 {sBt}, {sW}, 28")
        e(f"s_add_u32 s72, s72, {sBt}")
        e(f"s_lshl_b32 s81, s72, 2")
        e(f"s_add_u32 s81, s81, {WS_FLW}")
        e(f"s_lshl_b32 s72, s72, 11")
        e(f"s_add_u32 s72, s72, {WS_WD}")
        e(f"s_mul_i32 s73, {sRB}, 7")
        e(f"s_mul_i32 s74, {sRB}, 7")
        e(f"s_lshl_b32 s75, {sR}, 7")
        e(f"s_add_u32 s75, s75, {WS_FLXA}")
        e(f"s_lshl_b32 s76, {sR}, 12")
        e(f"s_add_u32 s76, s76, {WS_XA}")
        e(f"s_lshl_b32 s77, s69, 3")
        e(f"s_add_u32 s77, s77, {sW}")
        e(f"s_mul_i32 s77, s77, 7168")
        e(f"s_lshl_b32 {sBt}, {sCG}, 7")
        e(f"s_add_u32 s77, s77, {sBt}")
        e(f"s_add_u32 s78, s77, {32 * 896}")
        self.poll("v4", sA, "v5")
        self.acquire()
        self.stamp("zflag")

        def ld_z(n):
            ks, tt = seq[n]
            if ks and ks % 4 == 0:
                e(f"s_add_u32 s{88 + tt}, s{88 + tt}, 4096")
            e(f"buffer_load_dwordx4 {vr(BR + 4 * slot[seq[n]])}, {vL16}, {srd(SRD_WS)}, s{88 + tt} offen offset:{(ks % 4) * 1024} sc1", ("z", n))

        first = self.o.get("zfirst", 6)
        for n in range(first):
            ld_z(n)

        def ld_stat(cg):
            if cg == 0:
                e(f"v_lshlrev_b32 v4, 3, {vL}")
            e(f"buffer_load_dwordx2 {vr(32 + 2 * cg, 2)}, v4, {srd(SRD_WS)}, s64 offen offset:{cg * 512} sc1", "stat")

        def ld_wd(j):
            e("s_lshl_b32 s79, s73, 11")
            e("s_add_u32 s79, s79, s72")
            e(f"buffer_load_dwordx4 {ar(WD + 8 * j)}, {vL16}, {srd(SRD_WS)}, s79 offen sc1", ("wd", j))
            e("s_add_u32 s73, s73, 1")
            e("s_cmp_eq_u32 s73, 28")
            e("s_cselect_b32 s73, 0, s73")

        def ld_wd2(j):
            e(f"buffer_load_dwordx4 {ar(WD + 8 * j + 4)}, {vL16}, {srd(SRD_WS)}, s79 offen offset:1024 sc1", ("wd", j))

        def stats(e):
            e("v_add_f32 v4, v32, v34")
            e("v_add_f32 v5, v36, v38")
            e("v_add_f32 v6, v40, v42")
            e("v_add_f32 v4, v4, v5")
            e("v_add_f32 v6, v6, v44")
            e("v_add_f32 v4, v4, v6")
            e(f"v_mul_f32 v4, {fbits(1.0 / 448)}, v4")
            e("v_add_f32 v5, v33, v35")
            e("v_add_f32 v6, v37, v39")
            e("v_add_f32 v7, v41, v43")
            e("v_add_f32 v5, v5, v6")
            e("v_add_f32 v7, v7, v45")
            e("v_add_f32 v5, v5, v7")
            e(f"v_mov_b32 v7, {fbits(1.0 / 64)}")
            e("v_mov_b32 v6, 0")
            for cg in range(7):
                e(f"v_fma_f32 v46, v{32 + 2 * cg}, v7, -v4")
                e("v_fmac_f32 v6, v46, v46")
            e(f"v_mul_f32 v6, {fbits(64.0)}, v6")
            e("v_add_f32 v5, v5, v6")
            e(f"v_mul_f32 v5, {fbits(1.0 / 448)}, v5")
            e(f"v_add_f32 v5, {fbits(1e-5)}, v5")
            e(f"v_rcp_f32 v{R2}, v5")
            e("v_sqrt_f32 v5, v5")
            e("v_sub_f32 v4, 0, v4")
            e("v_cvt_pk_bf16_f32 v6, v4, v5")
            e("v_lshlrev_b32 v7, 16, v6")
            e("v_and_b32 v46, 0xffff0000, v6")
            e("v_sub_f32 v4, v4, v7")
            e("v_sub_f32 v5, v5, v46")
            e("v_cvt_pk_bf16_f32 v7, v4, v5")
            e(f"s_mov_b32 {sA}, 0x01000100")
            e(f"s_mov_b32 {sBt}, 0x03020504")
            e(f"s_mov_b32 {sC}, 0x07060302")
            e(f"v_perm_b32 v{XB}, v7, v6, {sA}")
            e(f"v_perm_b32 v{XB + 1}, v7, v6, {sBt}")
            e(f"v_perm_b32 v{XB + 2}, v7, v6, {sC}")
            e(f"v_mov_b32 v{XB + 3}, 0")
            e(f"v_mov_b32 v{XB + 7}, 0")
            for k in range(3):
                e(f"v_mov_b32 v{XB + 4 + k}, v{XB + k}")
            e(f"v_mov_b32 v{R2 + 1}, v{R2}")
            for k in range(3):
                e(f"v_permlane32_swap_b32 v{XB + k}, v{XB + 4 + k}")
            e(f"v_permlane32_swap_b32 v{R2}, v{R2 + 1}")

        def epi4(tt):
            out = []
            for ct in range(2):
                g, u = AC + 64 * tt + 16 * ct, AC + 64 * tt + 32 + 16 * ct
                for k in range(8):
                    for r in (2 * k, 2 * k + 1):
                        out.append(f"v_max_f32 v{g + r}, 0, v{g + r}")
                        out.append(f"v_mul_f32 v{u + r}, v{R2 + tt}, v{u + r}")
                    for r in (2 * k, 2 * k + 1):
                        out.append(f"v_mul_f32 v{g + r}, v{g + r}, v{u + r}")
                    out.append(f"v_cvt_pk_bf16_f32 v{g + k}, v{g + 2 * k}, v{g + 2 * k + 1}")
                    if k % 4 == 3:
                        s = k // 4
                        out.append((f"buffer_store_dwordx4 {vr(g + 4 * s)}, {vL16}, {srd(SRD_WS)}, s{65 + tt} offen offset:{(2 * ct + s) * 1024} sc1", ("hs", tt)))
            return [(lambda x=x: e(x)) if isinstance(x, str) else (lambda x=x: e(x[0], x[1])) for x in out]

        def flag_hid(tt):
            e.wait(vm=("hs", tt))
            e(f"v_mov_b32 v7, {sTAG}")
            slow, dn = e.label("slowfl"), e.label("fl")
            e("s_mov_b64 exec, 1")
            e(f"s_cmp_lg_u32 {sFAST}, 0")
            e(f"s_cbranch_scc0 {slow}")
            e(f"buffer_store_dword v7, off, {srd(SRD_WS)}, s{67 + tt}")
            e(f"s_branch {dn}")
            e(f"{slow}:")
            e(f"buffer_store_dword v7, off, {srd(SRD_WS)}, s{67 + tt} sc1")
            e(f"{dn}:")
            e.vm.pop()
            e("s_mov_b64 exec, -1")

        def poll_xa():
            e(f"v_and_b32 v4, 3, {vL}")
            e(f"v_lshlrev_b32 v4, 2, v4")
            self.poll("v4", "s75", "v5")
            for t in range(4):
                e(f"buffer_load_dwordx4 {vr(XA + 4 * t)}, {vL16}, {srd(SRD_WS)}, s76 offen offset:{t * 1024} sc1", "xa")

        ring5 = [128 + 4 * k for k in range(8)] + [32 + 4 * k for k in range(4)] + [16, 20]
        N5, D5 = len(ring5), self.o.get("hdist", 10)

        def poll_hid(tt):
            e(f"v_min_u32 v4, 6, {vL}")
            e(f"v_lshlrev_b32 v4, 2, v4")
            self.poll("v4", "s70", "v5", imm=128 * tt)
            if tt == 0:
                self.stamp("hid0")
            else:
                self.stamp("hid1")

        def ld_hid(n):
            if n == 28:
                e("s_add_u32 s71, s71, 114688")
            e("s_lshl_b32 s80, s74, 10")
            e("s_add_u32 s80, s80, s71")
            e(f"buffer_load_dwordx4 {vr(ring5[n % N5])}, {vL16}, {srd(SRD_WS)}, s80 offen sc1", ("d", n))
            e("s_add_u32 s74, s74, 1")
            e("s_cmp_eq_u32 s74, 28")
            e("s_cselect_b32 s74, 0, s74")

        main, fill = [], {}
        gap0 = []
        nseq = 0
        for si, (ks, tts) in enumerate(steps):
            gap0.append(len(main))
            d = AR + 16 * (si % 2)
            for t in range(4):
                for tt in tts:
                    def m(si=si, ks=ks, t=t, tt=tt, d=d, n=nseq + tts.index(tt), lead=(tt == tts[0])):
                        if ks < 28:
                            e.wait(vm=("z", n) if t == 0 else None, lg=("a", si, t) if lead else None)
                            a, b = ar(d + 4 * t), vr(BR + 4 * slot[(ks, tt)])
                        else:
                            e.wait(vm="xa")
                            a, b = vr(XA + 4 * t), vr(XB + 4 * tt)
                        acc = AC + 64 * tt + 16 * t
                        c = "0" if ks == 0 else vr(acc, 16)
                        e(f"v_mfma_f32_32x32x16_bf16 {vr(acc, 16)}, {a}, {b}, {c}")
                    main.append(m)
            g, ng = gap0[si], 4 * len(tts)
            if si + 1 < len(steps):
                self.spread(fill, [lambda si=si, t=t, hf=hf: rd_a1(si + 1, t, hf) for t in range(4) for hf in range(2)], g, g + ng)
            if ks < 28:
                nseq += len(tts)
        n4 = len(main)
        use = {}
        n = 0
        for si, (ks, tts) in enumerate(steps):
            for k, tt in enumerate(tts):
                if ks < 28:
                    use[n] = gap0[si] + 4 * k
                    n += 1
        prev = -1
        for n in range(first, len(seq)):
            gpos = max(use[n - DB] if n >= DB else 0, prev + 1)
            prev = gpos
            fill.setdefault(gpos, []).append(lambda n=n: ld_z(n))
        npf = self.o.get("e2", 8)
        self.spread(fill, [lambda p=p, mat=mat: self.wgu_piece(p, mat) for p in range(npf, 14) for mat in range(2)], 6, self.o.get("wg1", 60))
        self.spread(fill, [lambda cg=cg: ld_stat(cg) for cg in range(7)], 40, 54)
        gb = gap0[2 * npf - 1] - 1

        def bar():
            e.wait(vm="wgu")
            e("s_barrier")
        fill.setdefault(gb, []).append(bar)
        for gs, nm in ((40, "g40"), (96, "g96"), (gap0[29], "tail1"), (200, "g200")):
            fill.setdefault(gs, []).append(lambda nm=nm: self.stamp(nm))
        fill.setdefault(80, []).append(lambda: e.wait(vm="stat"))
        self.spread(fill, self.record(stats), 81, 120)
        end0 = gap0[KS + 29 - KS]
        fill.setdefault(end0 - 24, []).append(poll_xa)
        w0, w1 = self.o.get("wd0", 62), min(self.o.get("wd1", 200), n4 - 12)
        nlate = 28 - self.o.get("wd_early", 0)
        per = (w1 - w0) / float(nlate)
        for j in range(nlate):
            g = int(w0 + j * per)
            fill.setdefault(g, []).append(lambda j=j: ld_wd(j))
            fill.setdefault(g + max(1, int(per / 2)), []).append(lambda j=j: ld_wd2(j))
        self.spread(fill, epi4(0), end0 + 1, end0 + 33)
        fill.setdefault(min(end0 + 33 + self.o.get("fl0", 20), n4 - 10), []).append(lambda: flag_hid(0))
        pre5 = self.o.get("p5pre", 6)
        fill.setdefault(n4 - 8, []).append(lambda: poll_hid(0))
        self.spread(fill, [lambda n=n: ld_hid(n) for n in range(pre5)], n4 - 7, n4)
        acc5 = [160, 224]
        for n in range(56):
            tt, j = divmod(n, 28)
            for ct in range(2):
                def m(n=n, tt=tt, j=j, ct=ct):
                    if n == 0 and ct == 0:
                        self.stamp("gemm4")
                    if ct == 0:
                        e.wait(vm=("d", n))
                    acc = acc5[tt] + 16 * ct
                    c = "0" if j == 0 else vr(acc, 16)
                    e(f"v_mfma_f32_32x32x16_bf16 {vr(acc, 16)}, {ar(WD + 8 * j + 4 * ct)}, {vr(ring5[n % N5])}, {c}")
                main.append(m)
        gp1 = n4 + self.o.get("poll1", 46)
        fill.setdefault(gp1, []).append(lambda: poll_hid(1))
        prev = n4 - 1
        for n in range(pre5, 56):
            gpos = max(n4 + 2 * (n - D5), prev + 1)
            if n >= 28:
                gpos = max(gpos, gp1)
            prev = gpos
            fill.setdefault(gpos, []).append(lambda n=n: ld_hid(n))
        self.spread(fill, epi4(1), n4 + 1, n4 + 22)
        fill.setdefault(n4 + self.o.get("fl1", 33), []).append(lambda: flag_hid(1))

        def red_addr(e):
            e(f"v_and_b32 v4, 31, {vL}")
            e(f"v_and_b32 v5, 7, {vL}")
            e(f"v_lshrrev_b32 v6, 5, {vL}")
            e("v_xor_b32 v5, v5, v6")
            e("v_lshlrev_b32 v4, 8, v4")
            e("v_add_u32 v4, s92, v4")
            for p in range(8):
                e(f"v_xor_b32 v6, {2 * p}, v5")
                e(f"v_lshl_add_u32 v{64 + p}, v6, 4, v4")
            e(f"v_lshrrev_b32 v4, 3, {vL}")
            e(f"v_and_b32 v6, 7, {vL}")
            e("v_lshlrev_b32 v5, 1, v6")
            e("v_xor_b32 v5, v5, v4")
            e(f"s_lshl_b32 {sA}, {sW}, 11")
            e(f"s_add_u32 {sA}, {sA}, {L_RA}")
            e(f"v_lshl_add_u32 v7, v4, 8, {sA}")
            e("v_lshl_add_u32 v72, v5, 4, v7")
            e("v_xor_b32 v73, 16, v72")
            e("v_mul_u32_u24 v4, 896, v4")
            e("v_lshl_add_u32 v74, v6, 4, v4")
            e("v_lshlrev_b32 v6, 5, v6")
            e(f"ds_read_b128 v[76:79], v6 offset:{L_GAB + 256}")
            e(f"ds_read_b128 v[80:83], v6 offset:{L_GAB + 272}")
            e(f"s_lshl_b32 {sA}, {sW}, 10")
            e(f"s_add_u32 {sA}, {sA}, {L_X1}")
            e(f"v_add_u32 v75, {sA}, {vL16}")

        self.spread(fill, self.record(red_addr), n4 + 22, n4 + 32)

        def red_write(tt):
            out = []
            for ct in range(2):
                for q in range(4):
                    out.append(f"ds_write_b128 v{64 + 4 * ct + q}, {vr(acc5[tt] + 16 * ct + 4 * q)}")
            return out

        def red_final(tt):
            out = [f"ds_read_b128 v[84:87], v75 offset:{tt * 4096}"]
            for n in range(2):
                for s in range(4):
                    out.append(f"ds_read_b128 {vr(88 + 16 * n + 4 * s)}, v{72 + n} offset:{s * 8192}")
            out.append("s_waitcnt lgkmcnt(4)")
            for k in range(4):
                out.append(f"v_lshlrev_b32 v{120 + 2 * k}, 16, v{84 + k}")
                out.append(f"v_and_b32 v{121 + 2 * k}, 0xffff0000, v{84 + k}")
            for n in range(2):
                b = 88 + 16 * n
                if n == 1:
                    out.append("s_waitcnt lgkmcnt(0)")
                for k in range(4):
                    out.append(f"v_add_f32 v{b + k}, v{b + k}, v{b + 4 + k}")
                    out.append(f"v_add_f32 v{b + 8 + k}, v{b + 8 + k}, v{b + 12 + k}")
                for k in range(4):
                    out.append(f"v_add_f32 v{b + k}, v{b + k}, v{b + 8 + k}")
                for k in range(4):
                    out.append(f"v_fmac_f32 v{120 + 4 * n + k}, v{76 + 4 * n + k}, v{b + k}")
                out.append(f"v_cvt_pk_bf16_f32 v{84 + 2 * n}, v{120 + 4 * n}, v{121 + 4 * n}")
                out.append(f"v_cvt_pk_bf16_f32 v{85 + 2 * n}, v{122 + 4 * n}, v{123 + 4 * n}")
            out.append(f"buffer_store_dwordx4 v[84:87], v74, {srd(SRD_OUT)}, s{77 + tt} offen{self.sm('out')}")
            return out

        g5 = n4 + 56
        self.spread(fill, [lambda x=x: e(x) for x in red_write(0)], g5 + 2, g5 + 10)
        shift = L_RB - L_RA

        def bar5():
            e("s_waitcnt lgkmcnt(0)")
            e("s_barrier")
        fill.setdefault(g5 + 14, []).append(bar5)
        fin = red_final(0)
        fin += [f"v_add_u32 v{64 + p}, {shift}, v{64 + p}" for p in range(10)]
        self.spread(fill, [lambda x=x: e(x) for x in fin], g5 + 15, g5 + 50)
        self.merge(main, fill)
        self.stamp("gemm5")
        for x in red_write(1):
            e(x)
        bar5()
        for x in red_final(1):
            e(x)
        self.stamp("end")
        e("s_branch L_fin")

    def spare(self):
        e = self.e
        e.vm, e.lg = [], []
        AR = 224
        e("L_spare:")
        e(f"s_sub_u32 {sA}, {sR}, 28")
        e(f"s_lshl_b32 {sA}, {sA}, 3")
        e(f"s_add_u32 {sA}, {sA}, {sI}")
        e(f"s_cmp_lt_u32 {sA}, 28")
        e("s_cbranch_scc1 L_bias")
        e(f"s_cmp_lg_u32 {sA}, 31")
        e("s_cbranch_scc1 L_fin")
        e(f"s_cmp_lg_u32 {sW}, 0")
        e("s_cbranch_scc1 L_fin")
        self.bump_epoch()
        e("s_branch L_fin")
        e("L_bias:")
        for p in list(range(self.o.get("e1", 3))) + list(range(self.o.get("e2", 8), 14)):
            for mat in range(2):
                self.wgu_piece(p, mat)
        self.w4_addr()
        e(f"s_and_b32 {sA}, {sW}, 1")
        e(f"s_lshl_b32 {sA}, {sA}, 6")
        e(f"v_xor_b32 v26, {sA}, v24")
        e(f"s_lshr_b32 {sA}, {sW}, 1")
        e(f"s_lshl_b32 {sA}, {sA}, 12")
        e(f"v_add_u32 v26, {sA}, v26")
        e(f"v_add_u32 v28, 65536, v26")
        e(f"v_add_u32 v30, 131072, v26")
        e(f"v_and_b32 v4, 1, {vL}")
        e(f"v_mul_u32_u24 v4, 896, v4")
        e(f"v_lshrrev_b32 v5, 5, {vL}")
        e(f"v_lshl_add_u32 v27, v5, 4, v4")
        e("s_waitcnt vmcnt(0)")
        e("s_barrier")

        def rd_b(ks):
            d = AR + 8 * (ks % 4)
            off, hi = self.w4_off(ks, 0)
            e(f"ds_read_b128 {ar(d)}, v27 offset:{L_CVEC + ks * 32}", ("b", ks))
            e(f"ds_read_b64_tr_b16 {ar(d + 4, 2)}, v{26 + hi} offset:{off}", ("b", ks))
            e(f"ds_read_b64_tr_b16 {ar(d + 6, 2)}, v{26 + hi} offset:{off + 2048}", ("b", ks))

        for ks in range(3):
            rd_b(ks)
        for ks in range(28):
            e.wait(lg=("b", ks))
            d = AR + 8 * (ks % 4)
            c = "0" if ks == 0 else vr(32, 16)
            e(f"v_mfma_f32_32x32x16_bf16 {vr(32, 16)}, {ar(d)}, {ar(d + 4)}, {c}")
            if ks + 3 < 28:
                rd_b(ks + 3)
        e("v_cvt_pk_bf16_f32 v4, v32, v33")
        e("v_lshlrev_b32 v5, 16, v4")
        e("v_and_b32 v6, 0xffff0000, v4")
        e("v_sub_f32 v5, v32, v5")
        e("v_sub_f32 v6, v33, v6")
        e("v_cvt_pk_bf16_f32 v5, v5, v6")
        e(f"s_mov_b32 {sA}, 0x05040100")
        e(f"s_mov_b32 {sBt}, 0x03020706")
        e(f"v_perm_b32 v48, v5, v4, {sA}")
        e("v_mov_b32 v49, v4")
        e(f"v_perm_b32 v50, v5, v4, {sBt}")
        e("v_mov_b32 v51, 0")
        for k in range(3):
            e(f"v_cndmask_b32 v{48 + k}, v{48 + k}, 0, {sHI}")
        e(f"s_lshl_b32 {sA}, {sFG}, 2")
        e(f"s_add_u32 {sA}, {sA}, {sW}")
        e(f"s_lshl_b32 {sA}, {sA}, 10")
        e(f"s_add_u32 {sA}, {sA}, {WS_XA}")
        e(f"buffer_store_dwordx4 v[48:51], {vL16}, {srd(SRD_WS)}, {sA} offen sc1")
        e(f"s_lshl_b32 {sA}, {sFG}, 5")
        e(f"s_add_u32 {sA}, {sA}, {sW}")
        e(f"s_lshl_b32 {sA}, {sA}, 2")
        e(f"s_add_u32 {sA}, {sA}, {WS_FLXA}")
        self.publish(sA, "v7", local=False)
        e("s_branch L_fin")

    def finish(self):
        e = self.e
        e("L_fin:")
        if self.ts:
            e("s_lshl_b32 s88, s2, 2")
            e(f"s_add_u32 s88, s88, {sW}")
            e("s_lshl_b32 s88, s88, 8")
            e(f"s_add_u32 s88, s88, {WS_TS}")
            e(f"v_lshlrev_b32 v4, 2, {vL}")
            e(f"buffer_store_dword {vTS}, v4, {srd(SRD_WS)}, s88 offen")
            if self.o.get("dbgts"):
                e(f"v_not_b32 v5, {vTS}")
                e(f"v_cmp_eq_u32 vcc, 0, {vL}")
                e(f"v_cndmask_b32 v5, {vTS}, v5, vcc")
                e("v_add_u32 v4, 4, v4")
                e("s_mov_b64 exec, 0x7fff")
                e(f"buffer_atomic_umax v5, v4, {srd(SRD_DBG)}, 0 offen sc1")
        e("L_end:")
        e("s_endpgm")

    def build(self):
        phases = [self.entry, self.front, self.p1, self.p2, self.p3, self.p45, self.spare, self.helper]
        for ph in phases:
            self.e(f"; ---- {ph.__name__}")
            ph()
            if self.stop_after == ph.__name__:
                break
        self.finish()
        body, nops = self.e.text()
        head = open(f"cdna_kernels/{NAME}.s.ref").read().split("; Override launch")[0]
        txt = head
        txt += f"; @launch grid=(256,1,1) block=(256,1,1) lds={LDS_BYTES}\n"
        txt += '.amdgcn_target "amdgcn-amd-amdhsa--gfx950"\n.text\n'
        txt += f".globl {NAME}_kernel\n.p2align 8\n.type {NAME}_kernel,@function\n{NAME}_kernel:\n"
        txt += body
        txt += '.section .rodata,"a"\n.p2align 6\n'
        txt += f".amdhsa_kernel {NAME}_kernel\n"
        txt += ("  .amdhsa_next_free_vgpr 512\n  .amdhsa_next_free_sgpr 102\n  .amdhsa_accum_offset 256\n"
                "  .amdhsa_group_segment_fixed_size 0\n  .amdhsa_kernarg_size 96\n  .amdhsa_user_sgpr_count 2\n"
                "  .amdhsa_user_sgpr_kernarg_segment_ptr 1\n  .amdhsa_system_sgpr_workgroup_id_x 1\n"
                "  .amdhsa_float_denorm_mode_32 3\n"
                ".end_amdhsa_kernel\n")
        return txt, nops


def parse_opts(args):
    o = {}
    for a in args:
        k, v = a.split("=")
        o[k] = int(v)
    return o


if __name__ == "__main__":
    out = sys.argv[1]
    o = parse_opts(sys.argv[2:])
    g = Gen(ts=bool(o.pop("ts", 0)), opts=o)
    txt, nops = g.build()
    open(out, "w").write(txt)
    if g.ts:
        open(out + ".ts", "w").write("\n".join(g.ts_names))
    print("written", out, "lines", txt.count("\n"), "nop pads", nops)
```

```python
import math
import struct
import sys

sys.path.insert(0, "work")
from emit import Emit

NAME = "adaLN_cond__sliding_block__glu_gated_reglu__prompt"

WS_EPOCH = 0x0
WS_XCC = 0xa0000
WS_FLH = 0x1000
WS_FLO = 0x2000
WS_FLZ = 0x3000
WS_FLD = 0x4000
WS_FLXA = 0x6000
WS_FLW = 0xb0000
WS_FLKV = 0x9000
WS_MODP = 0x10000
WS_STAT = 0x20000
WS_TS = 0x40000
WS_XA = 0x80000
WS_H = 0x100000
WS_Z = WS_H
WS_O = 0x300000
WS_KV = 0x500000
WS_HID = 0x900000
WS_WD = 0x1000000
WS_SIZE = 0x1200000

L_CVEC = 0
L_MODR = 2304
L_GAB = 1792
L_WKV, L_WQ = 3584, 60928
L_KV = 3584
L_XS = 52736
L_WO = 105984
L_PAD = 163328
L_SCR = 97792
L_HX = 105984
L_HS = 89600
L_X1 = 122368
L_RA = 130560
L_RB = 3584
LDS_BYTES = 163840


def w4_base(p):
    if p <= 1:
        return 89600 + p * 8192
    if p <= 4:
        return 61440 + (p - 2) * 8192
    if p <= 11:
        return 3584 + (p - 5) * 8192
    return 105984 + (p - 12) * 8192


SRD_X, SRD_WQKV, SRD_WO, SRD_WG, SRD_WU, SRD_WD = 4, 8, 12, 16, 20, 24
SRD_C, SRD_WM, SRD_OUT, SRD_DBG, SRD_WS = 28, 32, 36, 40, 44
sI, sR, sW, sH, sB, sT, sTAG, sFAST = "s48", "s49", "s50", "s51", "s52", "s53", "s54", "s55"
sA, sBt, sC, sD, sE = "s56", "s57", "s58", "s59", "s60"
sRB, sCG, sSPIN = "s61", "s62", "s63"
SMASK = 64
sHI, sHIp = "s[96:97]", 96
sTSp = 0
sADJ = "s3"
sFG = "s98"
sWD = "s52"
sJ, sU = "s40", "s41"

vL, vL16, vTS, vE = "v0", "v1", "v2", "v3"

SPIN_MAX = 1 << 17


def srd(n):
    return f"s[{n}:{n + 3}]"


def vr(n, k=4):
    return f"v[{n}:{n + k - 1}]" if k > 1 else f"v{n}"


def ar(n, k=4):
    return f"a[{n}:{n + k - 1}]" if k > 1 else f"a{n}"


def fbits(x):
    return "0x%08x" % struct.unpack("<I", struct.pack("<f", x))[0]


class Gen:
    def __init__(self, ts=False, stop_after=None, opts=None):
        self.e = Emit()
        self.ts = ts
        self.stop_after = stop_after
        self.o = dict(opts or {})
        self.nts = 0
        self.ts_names = []

    def stamp(self, name, again=False):
        if not self.ts:
            return
        if self.o.get("dbgts") and name not in ("start", "tag", "modpub", "ln1", "xcc", "hpub", "kvgemm", "kvgot", "attn", "oflag", "zpub", "zflag", "gemm4", "hidflag", "end"):
            return
        e = self.e
        if again:
            self.nts_keep, self.nts = self.nts, self.ts_names.index(name)
        e(f"s_memrealtime s[{sTSp}:{sTSp + 1}]")
        e("s_waitcnt lgkmcnt(0)")
        e(f"v_writelane_b32 {vTS}, s{sTSp}, {self.nts}")
        if self.o.get("clk"):
            e(f"s_memtime s[{sTSp}:{sTSp + 1}]")
            e("s_waitcnt lgkmcnt(0)")
            e(f"v_writelane_b32 {vTS}, s{sTSp}, {self.nts + 32}")
        if again:
            self.nts = self.nts_keep
            return
        self.ts_names.append(name)
        self.nts += 1

    def poll(self, voff, soff, vtmp, imm=0):
        e = self.e
        lp, dn = e.label("poll"), e.label("polled")
        e(f"s_mov_b32 {sSPIN}, 0")
        e(f"{lp}:")
        e(f"buffer_load_dword {vtmp}, {voff}, {srd(SRD_WS)}, {soff} offen offset:{imm} sc1")
        e(f"s_add_u32 {sSPIN}, {sSPIN}, 1")
        e(f"s_cmp_ge_u32 {sSPIN}, {SPIN_MAX}")
        e("s_waitcnt vmcnt(0)")
        e(f"s_cbranch_scc1 {dn}")
        e(f"v_cmp_ne_u32 vcc, {sTAG}, {vtmp}")
        e(f"s_cbranch_vccnz {lp}")
        e(f"{dn}:")

    def poll_issue(self, voff, soff, vtmp, tag, imm=0):
        self.e(f"buffer_load_dword {vtmp}, {voff}, {srd(SRD_WS)}, {soff} offen offset:{imm} sc1", tag)

    def poll_check(self, voff, soff, vtmp, tag, imm=0):
        e = self.e
        lp, dn = e.label("chk"), e.label("chkd")
        e.wait(vm=tag)
        keep = list(e.vm)
        e(f"v_cmp_ne_u32 vcc, {sTAG}, {vtmp}")
        e(f"s_cbranch_vccz {dn}")
        e(f"s_mov_b32 {sSPIN}, 0")
        e(f"{lp}:")
        e(f"buffer_load_dword {vtmp}, {voff}, {srd(SRD_WS)}, {soff} offen offset:{imm} sc1")
        e(f"s_add_u32 {sSPIN}, {sSPIN}, 1")
        e(f"s_cmp_ge_u32 {sSPIN}, {SPIN_MAX}")
        e("s_waitcnt vmcnt(0)")
        e(f"s_cbranch_scc1 {dn}")
        e(f"v_cmp_ne_u32 vcc, {sTAG}, {vtmp}")
        e(f"s_cbranch_vccnz {lp}")
        e(f"{dn}:")
        e.vm = keep

    def acquire(self):
        e = self.e
        sk = e.label("acq")
        e(f"s_cmp_lg_u32 {sFAST}, 0")
        e(f"s_cbranch_scc1 {sk}")
        e("buffer_inv sc1")
        e("s_waitcnt vmcnt(0)")
        e(f"{sk}:")

    def publish(self, soff, vtmp, local=True, second=None, younger=0):
        e = self.e
        e(f"s_waitcnt vmcnt({younger})")
        keep = list(e.vm)
        e(f"v_mov_b32 {vtmp}, {sTAG}")
        if local:
            slow, dn = e.label("slowpub"), e.label("pub")
            e(f"s_cmp_lg_u32 {sFAST}, 0")
            e(f"s_cbranch_scc0 {slow}")
            e("s_mov_b64 exec, 1")
            e(f"buffer_store_dword {vtmp}, off, {srd(SRD_WS)}, {soff}")
            if second:
                e(f"buffer_store_dword {vtmp}, off, {srd(SRD_WS)}, {soff} offset:{second}")
            e(f"s_branch {dn}")
            e(f"{slow}:")
            e("buffer_wbl2 sc1")
            e("s_waitcnt vmcnt(0)")
            e("s_mov_b64 exec, 1")
            e(f"buffer_store_dword {vtmp}, off, {srd(SRD_WS)}, {soff} sc1")
            if second:
                e(f"buffer_store_dword {vtmp}, off, {srd(SRD_WS)}, {soff} offset:{second} sc1")
            e(f"{dn}:")
        else:
            e("s_mov_b64 exec, 1")
            e(f"buffer_store_dword {vtmp}, off, {srd(SRD_WS)}, {soff} sc1")
        e("s_mov_b64 exec, -1")
        e.vm = keep + ["flag"]

    def round_bf16(self, regs, tmp):
        e = self.e
        for a, b in zip(regs[::2], regs[1::2]):
            e(f"v_cvt_pk_bf16_f32 {tmp}, {a}, {b}")
            e(f"v_lshlrev_b32 {a}, 16, {tmp}")
            e(f"v_and_b32 {b}, 0xffff0000, {tmp}")

    def dma(self, voff, srdn, soff, lds, tag, mods=""):
        e = self.e
        e(f"s_mov_b32 m0, {lds}")
        e(f"buffer_load_dwordx4 {voff}, {srd(srdn)}, {soff} offen {mods} lds", tag)

    def sm(self, what):
        return {0: "", 1: " sc1", 2: " nt", 3: " sc0 sc1"}[self.o.get("sm_" + what, 1 if what == "h" else 0)]

    def merge(self, main, fill):
        for i, m in enumerate(main):
            m()
            for f in fill.get(i, []):
                f()

    @staticmethod
    def spread(fill, items, lo, hi):
        n = len(items)
        for k, it in enumerate(items):
            fill.setdefault(lo + (k * (hi - lo)) // max(n, 1), []).append(it)

    def entry(self):
        e = self.e
        e("s_cmp_ge_u32 s2, 256")
        e("s_cbranch_scc1 L_end")
        e("s_load_dwordx16 s[64:79], s[0:1], 0")
        e("s_load_dwordx8 s[80:87], s[0:1], 64")
        K = NAME + "_kernel"
        e("s_getpc_b64 s[88:89]")
        e("L_pc:")
        e(f"s_lshr_b32 {sR}, s2, 3")
        e(f"s_add_u32 {sR}, {sR}, 28")
        e(f"s_and_b32 {sR}, {sR}, 31")
        e(f"s_mul_i32 {sA}, {sR}, 12")
        e(f"s_cmp_ge_u32 {sR}, 28")
        e(f"s_cselect_b32 {sBt}, (L_helper-L_pc)/128, 0")
        e("v_min_u32 v4, 11, v0")
        e(f"v_add_u32 v4, {sA}, v4")
        e("v_and_b32 v5, 63, v0")
        e(f"v_add_u32 v5, {sBt}, v5")
        e("v_cmp_gt_u32 vcc, 64, v0")
        e("v_cndmask_b32 v4, v5, v4, vcc")
        e("v_lshlrev_b32 v4, 7, v4")
        e("v_min_u32 v4, L_end-L_pc, v4")
        e("v_cmp_gt_u32 vcc, 128, v0")
        e("s_and_saveexec_b64 s[90:91], vcc")
        e("s_cbranch_execz L_nopf")
        e("global_load_dword v127, v4, s[88:89]")
        e("L_nopf:")
        e("s_mov_b64 exec, -1")
        e.vm = []
        if self.ts:
            e(f"v_mov_b32 {vTS}, 0")
        self.stamp("start")
        e(f"v_lshrrev_b32 v4, 6, v0")
        e(f"v_and_b32 {vL}, 63, v0")
        e(f"v_readfirstlane_b32 {sW}, v4")
        e(f"v_lshlrev_b32 {vL16}, 4, {vL}")
        e(f"s_and_b32 {sI}, s2, 7")
        e(f"s_lshr_b32 {sH}, {sR}, 1")
        e(f"s_sub_u32 {sA}, {sR}, 28")
        e(f"s_lshl_b32 {sA}, {sA}, 3")
        e(f"s_add_u32 {sA}, {sA}, {sI}")
        e(f"s_min_u32 {sA}, {sA}, 27")
        e(f"s_cmp_lt_u32 {sR}, 28")
        e(f"s_cselect_b32 {sFG}, {sR}, {sA}")
        e(f"s_and_b32 {sB}, {sR}, 1")
        e(f"s_lshl_b32 {sT}, {sI}, 1")
        e(f"s_add_u32 {sT}, {sT}, {sB}")
        e(f"s_lshl_b32 {sT}, {sT}, 2")
        e(f"s_add_u32 {sT}, {sT}, {sW}")
        e(f"s_mul_i32 {sRB}, {sR}, 37")
        e(f"s_lshr_b32 {sRB}, {sRB}, 8")
        e(f"s_mul_i32 {sA}, {sRB}, 7")
        e(f"s_sub_u32 {sCG}, {sR}, {sA}")
        e(f"s_cmp_eq_u32 {sH}, 15")
        e(f"s_cselect_b32 {sADJ}, 8, 0")
        e(f"s_mov_b32 s{sHIp}, 0")
        e(f"s_mov_b32 s{sHIp + 1}, -1")
        sizes = {SRD_X: 1835008, SRD_WQKV: 1204224, SRD_WO: 401408, SRD_WG: 1605632, SRD_WU: 1605632, SRD_WD: 1605632,
                 SRD_C: 896, SRD_WM: 2408448, SRD_OUT: 1835008, SRD_WS: WS_SIZE}
        for n, sz in sizes.items():
            e(f"s_mov_b32 s{n + 2}, {sz}")
            e(f"s_mov_b32 s{n + 3}, 0x00020000")
        e("s_waitcnt lgkmcnt(0)")
        src = {SRD_WS: 86, SRD_C: 78, SRD_WM: 80, SRD_X: 64, SRD_WQKV: 66, SRD_WO: 68, SRD_WG: 72, SRD_WU: 74, SRD_WD: 76,
               SRD_OUT: 82}
        for n, s in src.items():
            e(f"s_mov_b64 s[{n}:{n + 1}], s[{s}:{s + 1}]")

    def reduce_hi3(self, a, t):
        e = self.e
        e(f"v_add_f32_dpp {a}, {a}, {a} row_ror:8 row_mask:0xf bank_mask:0xf")
        self.reduce_hi2(a, t)

    def reduce_hi2(self, a, t, op="v_add_f32"):
        e = self.e
        e(f"v_mov_b32 {t}, {a}")
        e(f"v_permlane16_swap_b32 {a}, {t}")
        e(f"{op} {a}, {a}, {t}")
        e(f"v_mov_b32 {t}, {a}")
        e(f"v_permlane32_swap_b32 {a}, {t}")
        e(f"{op} {a}, {a}, {t}")

    def gather_issue(self, voff, g0):
        e = self.e
        for q in range(4):
            e(f"s_mov_b32 {sA}, {WS_MODP + q * 10752}")
            e(f"buffer_load_dwordx4 {vr(g0 + 4 * q)}, {voff}, {srd(SRD_WS)}, {sA} offen sc1", "gath")

    def gather_finish(self, voff, g0, t0):
        e = self.e
        lp, dn = e.label("gath"), e.label("gathd")
        e(f"s_mov_b32 {sSPIN}, 0")
        e(f"s_mov_b32 {sD}, 0x0c0c0400")
        e(f"s_mov_b32 {sE}, 0x04000c0c")
        e.wait(vm="gath")
        keep = list(e.vm)
        e(f"{lp}:")
        for q in range(4):
            b = g0 + 4 * q
            e(f"v_perm_b32 v{t0}, v{b + 1}, v{b}, {sD}")
            e(f"v_perm_b32 v{t0 + 1}, v{b + 3}, v{b + 2}, {sE}")
            e(f"v_or_b32 v{t0}, v{t0}, v{t0 + 1}")
            e(f"v_xor_b32 v{t0 + 2 + q}, {sTAG}, v{t0}")
        e(f"v_or3_b32 v{t0}, v{t0 + 2}, v{t0 + 3}, v{t0 + 4}")
        e(f"v_or_b32 v{t0}, v{t0}, v{t0 + 5}")
        e(f"v_cmp_ne_u32 vcc, 0, v{t0}")
        e(f"s_cbranch_vccz {dn}")
        self.gather_issue(voff, g0)
        e(f"s_add_u32 {sSPIN}, {sSPIN}, 1")
        e(f"s_cmp_ge_u32 {sSPIN}, {SPIN_MAX}")
        e("s_waitcnt vmcnt(0)")
        e(f"s_cbranch_scc0 {lp}")
        e(f"{dn}:")
        e.vm = keep
        for k in range(16):
            e(f"v_and_b32 v{g0 + k}, 0xffffff00, v{g0 + k}")
        for k in range(4):
            e(f"v_add_f32 v{g0 + k}, v{g0 + k}, v{g0 + 4 + k}")
            e(f"v_add_f32 v{g0 + 8 + k}, v{g0 + 8 + k}, v{g0 + 12 + k}")
        for k in range(4):
            e(f"v_add_f32 v{g0 + k}, v{g0 + k}, v{g0 + 8 + k}")
        self.round_bf16([f"v{g0 + k}" for k in range(4)], f"v{t0}")

    def record(self, fn):
        real, rec = self.e, Emit()
        self.e = rec
        fn(rec)
        self.e = real
        return [lambda l=l.strip(): real(l) for l in rec.lines]

    def tag_and_register(self):
        e = self.e
        lab = e.label("noxcc")
        keep = list(e.vm)
        e(f"v_readfirstlane_b32 {sTAG}, {vE}")
        e(f"s_mul_i32 {sTAG}, {sTAG}, 1664525")
        e(f"s_add_u32 {sTAG}, {sTAG}, 1013904223")
        e(f"s_cmp_lg_u32 {sW}, 3")
        e(f"s_cbranch_scc1 {lab}")
        e(f"s_getreg_b32 {sA}, hwreg(HW_REG_XCC_ID, 0, 4)")
        e(f"v_mov_b32 v60, {sTAG}")
        e(f"v_mov_b32 v61, {sA}")
        e(f"s_lshl_b32 {sA}, {sI}, 5")
        e(f"s_add_u32 {sA}, {sA}, {sR}")
        e(f"s_lshl_b32 {sA}, {sA}, 7")
        e(f"s_add_u32 {sA}, {sA}, {WS_XCC}")
        e("s_mov_b64 exec, 1")
        e(f"buffer_store_dwordx2 v[60:61], off, {srd(SRD_WS)}, {sA} sc1")
        e("s_mov_b64 exec, -1")
        e(f"{lab}:")
        e.vm = keep

    def xcc_issue(self):
        e = self.e
        e(f"v_and_b32 v62, 31, {vL}")
        e(f"v_lshlrev_b32 v62, 7, v62")
        e(f"s_lshl_b32 s95, {sI}, 12")
        e(f"s_add_u32 s95, s95, {WS_XCC}")
        e(f"buffer_load_dwordx2 v[60:61], v62, {srd(SRD_WS)}, s95 offen sc1", "xcc")

    def xcc_check(self):
        e = self.e
        lp, dn = e.label("xcc"), e.label("xccd")
        keep = list(e.vm)
        e(f"s_mov_b32 {sSPIN}, 0")
        e(f"{lp}:")
        e(f"v_cmp_ne_u32 vcc, {sTAG}, v60")
        e(f"s_cbranch_vccz {dn}")
        e(f"buffer_load_dwordx2 v[60:61], v62, {srd(SRD_WS)}, s95 offen sc1")
        e(f"s_add_u32 {sSPIN}, {sSPIN}, 1")
        e(f"s_cmp_ge_u32 {sSPIN}, {SPIN_MAX}")
        e("s_waitcnt vmcnt(0)")
        e(f"s_cbranch_scc0 {lp}")
        e(f"{dn}:")
        e.vm = keep
        e(f"s_getreg_b32 {sA}, hwreg(HW_REG_XCC_ID, 0, 4)")
        e(f"v_cmp_ne_u32 vcc, {sA}, v61")
        e("s_cmp_eq_u64 vcc, 0")
        e(f"s_cselect_b32 {sFAST}, {0 if self.o.get('force_slow') else 1}, 0")

    def bump_epoch(self):
        e = self.e
        lp, dn = e.label("bump"), e.label("bumpd")
        e(f"v_lshlrev_b32 v4, 7, {vL}")
        e(f"s_mov_b32 {sSPIN}, 0")
        e(f"{lp}:")
        for k in range(4):
            e(f"s_mov_b32 {sA}, {WS_XCC + 8192 * k}")
            e(f"buffer_load_dword v{8 + k}, v4, {srd(SRD_WS)}, {sA} offen sc1")
        e(f"s_add_u32 {sSPIN}, {sSPIN}, 1")
        e(f"s_cmp_ge_u32 {sSPIN}, {SPIN_MAX}")
        e("s_waitcnt vmcnt(0)")
        e(f"s_cbranch_scc1 {dn}")
        for k in range(4):
            e(f"v_xor_b32 v{8 + k}, {sTAG}, v{8 + k}")
        e("v_or3_b32 v8, v8, v9, v10")
        e("v_or_b32 v8, v8, v11")
        e("v_cmp_ne_u32 vcc, 0, v8")
        e(f"s_cbranch_vccnz {lp}")
        e(f"{dn}:")
        e(f"v_mov_b32 v4, {sTAG}")
        e("s_mov_b64 exec, 1")
        e(f"buffer_store_dword v4, off, {srd(SRD_WS)}, 0 sc1")
        e("s_mov_b64 exec, -1")

    def mod_loads(self, slot="s93", base=16):
        e = self.e
        e(f"v_lshrrev_b32 v4, 4, {vL}")
        e(f"v_and_b32 v5, 15, {vL}")
        e(f"s_and_b32 {sA}, {sI}, 3")
        e(f"s_mul_i32 {sA}, {sA}, 112")
        e(f"s_mul_i32 {sBt}, {sW}, 28")
        e(f"s_add_u32 {sA}, {sA}, {sBt}")
        e(f"v_lshl_add_u32 v6, v5, 2, v4")
        e(f"v_add_u32 v6, {sA}, v6")
        e(f"v_lshlrev_b32 v6, 1, v6")
        e(f"v_mul_u32_u24 v7, 5376, v4")
        e(f"v_lshl_add_u32 v7, v5, 3, v7")
        e(f"s_lshr_b32 {sBt}, {sI}, 2")
        e(f"s_lshl_b32 {sC}, {slot}, 1")
        e(f"s_add_u32 {sBt}, {sBt}, {sC}")
        e(f"s_mul_i32 {sA}, {sA}, 5376")
        e(f"s_lshl_b32 {sC}, {sBt}, 7")
        e(f"s_add_u32 {sA}, {sA}, {sC}")
        for j in range(7):
            e(f"buffer_load_dwordx2 {vr(base + 2 + 2 * j, 2)}, v7, {srd(SRD_WM)}, {sA} offen", "wm")
            if j < 6:
                e(f"s_add_u32 {sA}, {sA}, 21504")
        e(f"buffer_load_ushort v{base}, v6, {srd(SRD_C)}, 0 offen", "wm")

    def mod_compute(self, done, slot="s93", base=16, part=0, last=0):
        e = self.e
        c, t = f"v{base}", f"v{base + 1}"
        if part != 2:
            e(f"v_lshlrev_b32 {c}, 16, {c}")
            e(f"v_mul_f32 {t}, {fbits(-math.log2(math.e))}, {c}")
            e(f"v_exp_f32 {t}, {t}")
            e(f"v_add_f32 {t}, 1.0, {t}")
            e(f"v_rcp_f32 {t}, {t}")
            e(f"v_mul_f32 {c}, {c}, {t}")
            e(f"v_cvt_pk_bf16_f32 {c}, {c}, {c}")
            e(f"v_lshlrev_b32 {c}, 16, {c}")
            for k in range(4):
                e(f"v_mov_b32 v{80 + k}, 0")
            for j in range(7):
                a, b = base + 2 + 2 * j, base + 3 + 2 * j
                e(f"v_lshlrev_b32 v84, 16, v{a}")
                e(f"v_and_b32 v85, 0xffff0000, v{a}")
                e(f"v_lshlrev_b32 v86, 16, v{b}")
                e(f"v_and_b32 v87, 0xffff0000, v{b}")
                for k in range(4):
                    e(f"v_fmac_f32_dpp v{80 + k}, {c}, v{84 + k} row_newbcast:{j} row_mask:0xf bank_mask:0xf")
            e("v_permlane16_swap_b32 v80, v81")
            e("v_permlane16_swap_b32 v82, v83")
            e("v_add_f32 v80, v80, v81")
            e("v_add_f32 v82, v82, v83")
            e("v_permlane32_swap_b32 v80, v82")
            e("v_add_f32 v80, v80, v82")
            e(f"v_lshrrev_b32 v4, 4, {vL}")
            e(f"v_and_b32 v5, 15, {vL}")
            e(f"v_lshl_add_u32 v6, v5, 2, v4")
            e(f"s_lshl_b32 {sA}, {sW}, 8")
            e(f"v_lshl_add_u32 v6, v6, 2, {sA}")
            e(f"ds_write_b32 v6, v80 offset:{L_MODR}")
        if part == 1:
            return
        if part == 0:
            e("s_waitcnt lgkmcnt(0)")
            e("s_barrier")
        R = 80 if part == 0 else 128
        e(f"s_cmp_lg_u32 {sW}, {last}")
        e(f"s_cbranch_scc1 {done}")
        e("s_mov_b64 exec, 0xffff")
        for k in range(4):
            e(f"ds_read_b128 {vr(R + 4 * k)}, {vL16} offset:{L_MODR + 256 * k}")
        e(f"s_and_b32 {sA}, {sI}, 3")
        e(f"s_mul_i32 {sA}, {sA}, 10752")
        e(f"s_lshr_b32 {sBt}, {sI}, 2")
        e(f"s_lshl_b32 {sE}, {slot}, 1")
        e(f"s_add_u32 {sBt}, {sBt}, {sE}")
        e(f"s_lshl_b32 {sBt}, {sBt}, 8")
        e(f"s_add_u32 {sA}, {sA}, {sBt}")
        e(f"s_add_u32 {sA}, {sA}, {WS_MODP}")
        e("v_mov_b32 v6, 0xff")
        e("s_waitcnt lgkmcnt(0)")
        for k in range(4):
            e(f"v_add_f32 v{R + k}, v{R + k}, v{R + 4 + k}")
            e(f"v_add_f32 v{R + 8 + k}, v{R + 8 + k}, v{R + 12 + k}")
        for k in range(4):
            e(f"v_add_f32 v{R + k}, v{R + k}, v{R + 8 + k}")
            e(f"s_lshr_b32 {sBt}, {sTAG}, {8 * k}")
            e(f"v_bfi_b32 v{R + k}, v6, {sBt}, v{R + k}")
        e(f"buffer_store_dwordx4 {vr(R)}, {vL16}, {srd(SRD_WS)}, {sA} offen sc1")
        e("s_mov_b64 exec, -1")

    def src_addrs(self):
        e = self.e
        e(f"v_lshrrev_b32 v10, 2, {vL}")
        e(f"v_mul_u32_u24 v10, 2688, v10")
        e(f"v_and_b32 v6, 3, {vL}")
        e(f"v_lshl_add_u32 v10, v6, 4, v10")
        e(f"v_lshrrev_b32 v6, 3, {vL}")
        e(f"v_and_b32 v7, 7, {vL}")
        e(f"v_and_b32 v8, 2, v6")
        e(f"v_lshlrev_b32 v8, 1, v8")
        e("v_xor_b32 v8, v8, v7")
        e("v_lshlrev_b32 v8, 4, v8")
        e("v_mul_u32_u24 v11, 2688, v6")
        e("v_add_u32 v11, v11, v8")
        e("v_mul_u32_u24 v12, 3584, v6")
        e("v_add_u32 v12, v12, v8")
        e("v_mul_u32_u24 v13, 896, v6")
        e("v_add_u32 v14, v13, v8")
        e("v_and_b32 v8, 6, v6")
        e("v_xor_b32 v8, v8, v7")
        e("v_lshl_add_u32 v13, v8, 4, v13")
        e(f"s_lshl_b32 s99, {sFG}, 7")
        e(f"s_mul_i32 {sA}, {sW}, {8 * 3584}")
        e(f"s_add_u32 s99, s99, {sA}")
        e(f"s_lshl_b32 s101, {sW}, 10")

    def wgu_piece(self, p, mat, tag="wgu"):
        e = self.e
        e(f"s_add_u32 {sD}, s99, {p * 32 * 3584}")
        e(f"s_add_u32 m0, s101, {w4_base(p) + mat * 4096}")
        e(f"buffer_load_dwordx4 v12, {srd((SRD_WG, SRD_WU)[mat])}, {sD} offen lds", tag)

    def wq_setup(self):
        e = self.e
        e(f"s_mul_i32 s92, {sH}, 56")
        e(f"s_sub_u32 s92, s92, {sADJ}")
        e(f"s_mul_i32 {sA}, {sW}, {16 * 2688}")
        e(f"s_add_u32 s92, s92, {sA}")
        e(f"s_mul_i32 {sA}, {sR}, 37")
        e(f"s_lshr_b32 {sA}, {sA}, 8")
        e(f"s_mul_i32 {sA}, {sA}, 7")
        e(f"s_sub_u32 s94, {sR}, {sA}")

    def wq_dma(self, thr=True):
        e = self.e
        for n in range(7):
            e(f"s_mul_i32 {sA}, s94, {64 * 2688}")
            e(f"s_add_u32 {sA}, {sA}, s92")
            e(f"s_lshl_b32 {sBt}, s94, 12")
            e(f"s_add_u32 {sBt}, {sBt}, s101")
            e(f"s_add_u32 m0, {sBt}, {L_WQ}")
            e(f"s_add_u32 s94, s94, 1")
            e(f"buffer_load_dwordx4 v10, {srd(SRD_WQKV)}, {sA} offen lds", "wq")
            e(f"s_cmp_eq_u32 s94, 7")
            e(f"s_cselect_b32 s94, 0, s94")
            if thr:
                self.throttle("thr_q", 0)

    def code_prefetch(self):
        e = self.e
        lab = e.label("pc")
        e("s_getpc_b64 s[88:89]")
        e(f"{lab}:")
        e(f"s_sub_u32 s88, s88, {lab}-" + NAME + "_kernel")
        e("s_subb_u32 s89, s89, 0")
        e(f"s_lshl_b32 {sA}, {sR}, 2")
        e(f"s_add_u32 {sA}, {sA}, {sW}")
        e(f"v_lshl_add_u32 v62, {vL}, 7, {sA}")
        e(f"v_lshlrev_b32 v62, 7, v62")
        e(f"v_min_u32 v62, L_end-" + NAME + "_kernel, v62")
        e("s_mov_b64 exec, 7")
        e("global_load_dword v15, v62, s[88:89]", "pf")
        e("s_mov_b64 exec, -1")

    def touch(self, srdn, base, per_island, lines, mods="", island=True, dst="v127"):
        e = self.e
        n = -(-lines // 112)
        e(f"s_lshl_b32 {sA}, {sR}, 2")
        e(f"s_add_u32 {sA}, {sA}, {sW}")
        e(f"s_mul_i32 {sA}, {sA}, {n}")
        e(f"v_add_u32 v6, {sA}, {vL}")
        e(f"v_min_u32 v6, {lines - 1}, v6")
        e(f"v_lshlrev_b32 v6, 7, v6")
        if island:
            e(f"s_mul_i32 {sA}, {sI}, {per_island}")
            e(f"s_add_u32 {sA}, {sA}, {base}")
        else:
            e(f"s_mov_b32 {sA}, {base}")
        e(f"s_mov_b64 exec, {hex((1 << n) - 1)}")
        e(f"buffer_load_dword {dst}, v6, {srd(srdn)}, {sA} offen{mods}", "pt")
        e("s_mov_b64 exec, -1")

    def gwave(self):
        e = self.e
        e(f"s_lshl_b32 s95, {sR}, 3")
        e(f"s_add_u32 s95, s95, {sI}")
        e(f"s_lshl_b32 s95, s95, 2")
        e(f"s_add_u32 s95, s95, {sW}")

    def gtouch(self, srdn, lines):
        e = self.e
        n = -(-lines // 896)
        e(f"s_mul_i32 {sA}, s95, {n * 128}")
        e(f"v_lshlrev_b32 v6, 7, {vL}")
        e(f"s_mov_b64 exec, {hex((1 << n) - 1)}")
        e(f"buffer_load_dword v127, v6, {srd(srdn)}, {sA} offen", "pt")
        e("s_mov_b64 exec, -1")

    def stouch(self, srdn, lines, row_lines=None, first=0, pitch=None):
        e = self.e
        n = -(-lines // 896)
        out = []

        def setup():
            if row_lines is None:
                e(f"s_mul_i32 s64, s95, {n * 128}")
                e(f"s_min_u32 s64, s64, {(lines - n) * 128}")
            else:
                per_row = row_lines // n
                e(f"s_lshr_b32 s64, s95, {per_row.bit_length() - 1}")
                e(f"s_mul_i32 s64, s64, {pitch}")
                e(f"s_and_b32 s65, s95, {per_row - 1}")
                e(f"s_mul_i32 s65, s65, {n * 128}")
                e(f"s_add_u32 s64, s64, s65")
                e(f"s_add_u32 s64, s64, {first * 128}")
            e(f"s_add_u32 s66, s{srdn}, s64")
            e(f"s_addc_u32 s67, s{srdn + 1}, 0")
        out.append(setup)
        for k in range(n):
            out.append(lambda k=k: e(f"s_load_dword s{68 + k % 16}, s[66:67], {128 * k}"))
        return out

    def throttle(self, key, default):
        n = self.o.get(key, default)
        if n and len(self.e.vm) > n:
            self.e(f"s_waitcnt vmcnt({n})")

    def front(self):
        e = self.e
        n_early, n_e0, n_e1 = self.o.get("early_w", 2), self.o.get("e0", 0), self.o.get("e1", 0)
        pb = self.o.get("probe", 0)
        if pb:
            e("s_lshl_b32 s88, s2, 2")
            e(f"s_add_u32 s88, s88, {sW}")
            e(f"v_lshlrev_b32 v4, 7, {vL}")
            if pb == 1:
                e("s_mov_b64 s[92:93], s[70:71]")
                e("s_mov_b32 s94, 1835008")
                e("s_mov_b32 s95, 0x00020000")
                e("s_mul_i32 s88, s88, 1792")
                e("s_mov_b64 exec, 0x3fff")
                e("buffer_load_dword v5, v4, s[92:95], s88 offen")
                e("s_mov_b64 exec, -1")
            else:
                e("s_mov_b64 s[92:93], s[86:87]")
                e("s_mov_b32 s94, 0x10000000")
                e("s_mov_b32 s95, 0x00020000")
                e("s_lshl_b32 s88, s88, 14")
                e(f"s_add_u32 s88, s88, {(pb - 1) << 20}")
                e("buffer_load_dword v5, v4, s[92:95], s88 offen")
                e("s_add_u32 s88, s88, 8192")
                e("buffer_load_dword v5, v4, s[92:95], s88 offen")
            e("s_waitcnt vmcnt(0)")
        e(f"buffer_load_dword {vE}, off, {srd(SRD_WS)}, 0 sc1", "E")
        tw = self.o.get("tlb", 0)
        if tw:
            sh = self.o.get("tlbsh", 18)
            e(f"s_cmp_lg_u32 {sW}, 2")
            e("s_cbranch_scc1 L_notlb")
            e(f"v_lshlrev_b32 v4, {sh}, {vL}")
            e(f"s_lshl_b32 s88, s2, 7")
            e(f"buffer_load_dword v126, v4, {srd(SRD_WS)}, s88 offen")
            if (64 << sh) < WS_SIZE:
                e(f"s_add_u32 s88, s88, {64 << sh}")
                e(f"buffer_load_dword v126, v4, {srd(SRD_WS)}, s88 offen")
            e(f"s_lshl_b32 s88, s2, 7")
            e(f"buffer_load_dword v126, v4, {srd(SRD_OUT)}, s88 offen")
            if tw > 1:
                for n in (SRD_X, SRD_WQKV, SRD_WO, SRD_WG, SRD_WU, SRD_WD, SRD_WM):
                    e(f"buffer_load_dword v126, v4, {srd(n)}, s88 offen")
            e("L_notlb:")
            e.vm = ["E"]
        e(f"s_cmp_ge_u32 {sR}, 28")
        e("s_cbranch_scc1 L_helper")
        e("s_mov_b32 s92, 0x54ff3210")
        e("s_mov_b32 s93, 0xfffff6ff")
        e(f"s_min_u32 {sA}, {sR}, 15")
        e(f"s_lshl_b32 {sA}, {sA}, 2")
        e(f"s_lshr_b64 s[92:93], s[92:93], {sA}")
        e("s_and_b32 s93, s92, 15")
        e("s_cmp_ge_u32 s93, 7")
        e("s_cbranch_scc1 L_nomod1")
        self.mod_loads()
        e("L_nomod1:")
        e.vm = ["E"]
        self.gwave()
        if self.o.get("warm_w", 0):
            self.gtouch(SRD_WQKV, 9408)
        if self.o.get("touch_x", 1):
            self.touch(SRD_X, 0, 229376, 1792)
        if self.o.get("sm_h", 1) == 0:
            self.touch(SRD_WS, WS_H, 229376, 1792, " sc1")
        npt = len(e.vm) - 1
        self.src_addrs()
        self.wq_setup()
        e(f"s_lshl_b32 s90, {sH}, 7")
        e(f"s_add_u32 s90, s90, 896")
        e(f"s_mul_i32 {sA}, {sW}, {8 * 2688}")
        e(f"s_add_u32 s90, s90, {sA}")
        e(f"s_mul_i32 s91, {sB}, 7")

        def warm_list():
            if not self.o.get("warm_s", 0):
                return []
            return (self.stouch(SRD_WM, 12544, row_lines=28, first=14, pitch=5376) + self.stouch(SRD_WG, 12544)
                    + self.stouch(SRD_WU, 12544) + self.stouch(SRD_WO, 3136))

        warm = []

        def wkv(lo, hi):
            for n in range(lo, hi):
                for _ in range(self.o.get("warm_rate", 3)):
                    if warm:
                        warm.pop(0)()
                e(f"s_mul_i32 {sA}, s91, {32 * 2688}")
                e(f"s_add_u32 {sA}, {sA}, s90")
                e(f"s_lshl_b32 {sBt}, s91, 12")
                e(f"s_add_u32 {sBt}, {sBt}, s101")
                e(f"s_add_u32 m0, {sBt}, {L_WKV}")
                e(f"s_add_u32 s91, s91, 1")
                e(f"buffer_load_dwordx4 v11, {srd(SRD_WQKV)}, {sA} offen lds", "wkv")
                e(f"s_cmp_eq_u32 s91, 14")
                e(f"s_cselect_b32 s91, 0, s91")
                if n >= n_early:
                    self.throttle("thr_w", 0)

        e("s_cmp_ge_u32 s93, 7")
        e("s_cbranch_scc1 L_plainw")
        wkv(0, n_early)
        e.wait(vm="E")
        self.tag_and_register()
        self.stamp("tag")
        self.mod_compute("L_nomod2")
        e("L_nomod2:")
        self.stamp("modpub")
        warm.extend(warm_list())
        wkv(n_early, 14)
        self.wq_dma()
        while warm:
            warm.pop(0)()
        e("s_branch L_wissued")
        e("L_plainw:")
        e.vm = ["E"] + ["pt"] * npt
        n_plain = self.o.get("early_p", 4)
        wkv(0, n_plain)
        e.wait(vm="E")
        self.tag_and_register()
        warm.extend(warm_list())
        wkv(n_plain, 14)
        self.wq_dma()
        while warm:
            warm.pop(0)()
        e("L_wissued:")
        if self.o.get("no_w") or self.o.get("w_only"):
            e("s_waitcnt vmcnt(0)")
            self.stamp("wq")
            e("s_branch L_fin")
            self.nts -= 1
            self.ts_names.pop()
        self.stamp("wq")
        for p in range(n_e0):
            for mat in range(2):
                self.wgu_piece(p, mat)
        self.kv_store_addrs()
        for p in range(n_e0, n_e1):
            for mat in range(2):
                self.wgu_piece(p, mat)
                self.throttle("thr_e", 0)
        if self.o.get("wo_at", 2) == 0:
            self.wo_dma()
        self.xcc_issue()
        e("s_waitcnt vmcnt(0)")
        self.xcc_check()
        e.vm = []
        self.stamp("wdone")

    def jobs_issue(self):
        e = self.e
        tab = {r: 7 + k for k, r in enumerate(range(14))}
        e(f"s_add_u32 {sJ}, {sR}, 7")
        e(f"s_cmp_ge_u32 {sJ}, 21")
        e("s_cbranch_scc1 L_nomod3")
        keep = list(e.vm)
        self.mod_loads(slot=sJ, base=104)
        e("L_nomod3:")
        e.vm = keep
        e(f"s_lshl_b32 {sA}, {sR}, 3")
        e(f"s_add_u32 {sA}, {sA}, {sI}")
        e(f"s_lshl_b32 {sA}, {sA}, 2")
        e(f"s_add_u32 {sA}, {sA}, {sW}")
        e(f"s_min_u32 {sA}, {sA}, 784")
        e(f"s_mul_i32 {sBt}, {sA}, 9363")
        e(f"s_lshr_b32 {sBt}, {sBt}, 16")
        e(f"s_mul_i32 {sC}, {sBt}, 7")
        e(f"s_sub_u32 {sC}, {sA}, {sC}")
        e(f"s_mul_i32 {sU}, {sC}, 112")
        e(f"s_add_u32 {sU}, {sU}, {sBt}")
        e(f"s_cmp_ge_u32 {sA}, 784")
        e(f"s_cselect_b32 {sU}, 784, {sU}")
        e(f"s_mul_i32 {sBt}, {sBt}, {16 * 896}")
        e(f"s_lshl_b32 {sC}, {sC}, 7")
        e(f"s_add_u32 {sBt}, {sBt}, {sC}")
        e(f"v_add_u32 v9, {8 * 896 - 1024}, v14")
        e(f"s_lshl_b32 {sC}, {sW}, 11")
        e(f"s_add_u32 m0, {sC}, {L_SCR}")
        e(f"buffer_load_dwordx4 v14, {srd(SRD_WD)}, {sBt} offen lds", "rp")
        e(f"buffer_load_dwordx4 v9, {srd(SRD_WD)}, {sBt} offen offset:1024 lds", "rp")

    def jobs_process(self):
        e = self.e
        keep = list(e.vm)
        self.tr_addr("v6", 4)
        e(f"s_lshl_b32 {sA}, {sW}, 11")
        e(f"s_add_u32 {sA}, {sA}, {L_SCR}")
        e(f"v_add_u32 v8, {sA}, v6")
        e("v_xor_b32 v9, 64, v8")
        for ct in range(2):
            for hf in range(2):
                e(f"ds_read_b64_tr_b16 {vr(96 + 4 * ct + 2 * hf, 2)}, v{8 + ct} offset:{1024 * hf}")
        e(f"s_lshl_b32 {sA}, {sU}, 11")
        e(f"s_add_u32 {sA}, {sA}, {WS_WD}")
        e(f"s_cmp_ge_u32 {sU}, 784")
        e("s_waitcnt lgkmcnt(0)")
        e("s_cbranch_scc1 L_norp")
        for ct in range(2):
            e(f"buffer_store_dwordx4 {vr(96 + 4 * ct)}, {vL16}, {srd(SRD_WS)}, {sA} offen offset:{1024 * ct} sc1")
        e("L_norp:")
        e(f"s_cmp_ge_u32 {sJ}, 21")
        e("s_cbranch_scc1 L_nomod4")
        self.mod_compute(None, slot=sJ, base=104, part=1)
        e("L_nomod4:")
        e.vm = keep

    def jobs_finish(self):
        e = self.e
        keep = list(e.vm)
        e(f"s_cmp_ge_u32 {sU}, 784")
        e("s_cbranch_scc1 L_norp2")
        e(f"s_lshl_b32 {sA}, {sU}, 7")
        e(f"s_add_u32 {sA}, {sA}, {WS_FLW}")
        e(f"v_mov_b32 v4, {sTAG}")
        e("s_mov_b64 exec, 1")
        e(f"buffer_store_dword v4, off, {srd(SRD_WS)}, {sA} sc1")
        e("s_mov_b64 exec, -1")
        e("L_norp2:")
        e(f"s_cmp_ge_u32 {sJ}, 21")
        e("s_cbranch_scc1 L_nomod5")
        self.mod_compute("L_nomod5", slot=sJ, base=104, part=2, last=3)
        e("L_nomod5:")
        e.vm = keep

    def tr_addr(self, dst, rowmul):
        e = self.e
        e(f"v_lshrrev_b32 {dst}, 5, {vL}")
        e(f"v_mul_u32_u24 {dst}, {rowmul}, {dst}")
        e(f"v_bfe_u32 v5, {vL}, 2, 2")
        e(f"v_add_u32 {dst}, {dst}, v5")
        e(f"v_lshlrev_b32 {dst}, 7, {dst}")
        e(f"v_bfe_u32 v4, {vL}, 4, 1")
        e(f"v_lshl_add_u32 {dst}, v4, 5, {dst}")
        e(f"v_and_b32 v4, 3, {vL}")
        e(f"v_lshl_add_u32 {dst}, v4, 3, {dst}")
        e("v_lshrrev_b32 v5, 1, v5")
        e(f"v_lshl_add_u32 {dst}, v5, 6, {dst}")

    def kv_store_addrs(self):
        e = self.e
        e(f"v_lshrrev_b32 v4, 5, {vL}")
        e(f"v_and_b32 v5, 31, {vL}")
        e(f"s_cmp_ge_u32 {sH}, 7")
        e("s_cbranch_scc1 L_vaddr")
        e(f"s_lshl_b32 {sA}, {sH}, 4")
        e(f"v_add_u32 v4, {sA}, v4")
        e(f"v_lshlrev_b32 v5, 3, v5")
        for n in range(8):
            e(f"v_add_u32 v6, {2 * n}, v4")
            e("v_mul_u32_u24 v7, 147, v6")
            e("v_lshrrev_b32 v7, 10, v7")
            e("v_mul_u32_u24 v8, 7, v7")
            e("v_sub_u32 v6, v6, v8")
            e("v_lshl_add_u32 v6, v6, 8, v5")
            e(f"v_lshl_add_u32 v{96 + n}, v7, 18, v6")
        e("s_branch L_addrdone")
        e("L_vaddr:")
        e(f"s_sub_u32 {sA}, {sH}, 7")
        e(f"s_lshl_b32 {sA}, {sA}, 6")
        e(f"v_add_u32 v5, {sA}, v5")
        e("v_lshlrev_b32 v4, 9, v4")
        e("v_add_u32 v4, 2048, v4")
        for ct in range(2):
            e(f"v_add_u32 v6, {32 * ct}, v5")
            e("v_mul_u32_u24 v7, 2341, v6")
            e("v_lshrrev_b32 v7, 16, v7")
            e("v_mul_u32_u24 v8, 28, v7")
            e("v_sub_u32 v6, v6, v8")
            e("v_lshl_add_u32 v6, v6, 4, v4")
            e(f"v_lshl_add_u32 v{96 + ct}, v7, 18, v6")
        for n in range(2, 8):
            e(f"v_mov_b32 v{96 + n}, v96")
        e("L_addrdone:")

    def helper(self):
        e = self.e
        e.vm, e.lg = ["E"], []
        XF, XP, CR = 128, 64, 64
        e("L_helper:")
        e(f"v_lshrrev_b32 v6, 3, {vL}")
        e(f"v_and_b32 v7, 7, {vL}")
        e("v_lshrrev_b32 v8, 1, v6")
        e("v_xor_b32 v8, v8, v7")
        e("v_mul_u32_u24 v6, 896, v6")
        e("v_lshl_add_u32 v9, v8, 4, v6")
        e("v_xor_b32 v8, 4, v8")
        e("v_lshl_add_u32 v8, v8, 4, v6")
        e(f"v_add_u32 v8, {8 * 896}, v8")
        e(f"s_sub_u32 s91, {sR}, 28")
        e(f"s_lshl_b32 {sA}, {sI}, 2")
        e(f"s_add_u32 s91, s91, {sA}")
        e(f"s_lshl_b32 {sA}, s91, 2")
        e(f"s_add_u32 {sA}, {sA}, {sW}")
        e(f"s_mul_i32 {sA}, {sA}, 14336")
        e(f"s_mul_i32 {sBt}, {sW}, 14336")
        for ln in range(7):
            for rg in range(2):
                e(f"s_add_u32 m0, {sBt}, {L_HX + rg * 7168 + ln * 1024}")
                e(f"buffer_load_dwordx4 v{9 - rg}, {srd(SRD_X)}, {sA} offen lds", "x")
            if ln < 6:
                e(f"s_add_u32 {sA}, {sA}, 128")
        e(f"s_mul_i32 s90, s91, 57344")
        e(f"s_mul_i32 {sA}, {sW}, 7168")
        e(f"s_add_u32 s90, s90, {sA}")
        e(f"s_add_u32 s90, s90, {WS_H}")
        self.src_addrs()
        self.wq_setup()
        e(f"v_lshrrev_b32 v4, 4, {vL}")
        e(f"v_and_b32 v5, 15, {vL}")
        e("v_lshrrev_b32 v6, 3, v5")
        e("v_mul_u32_u24 v6, 7168, v6")
        e("v_and_b32 v7, 7, v5")
        e("v_lshl_add_u32 v6, v7, 7, v6")
        e(f"v_add_u32 v6, {L_HX}, v6")
        e("v_lshrrev_b32 v7, 1, v5")
        e(f"s_mul_i32 {sA}, {sW}, 14")
        e(f"v_add_u32 v8, {sA}, v4")
        for n in range(4):
            e(f"v_add_u32 v9, {4 * n}, v8")
            e("v_min_u32 v9, 55, v9")
            e("v_lshrrev_b32 v16, 3, v9")
            e("v_and_b32 v9, 7, v9")
            e("v_xor_b32 v9, v9, v7")
            e("v_lshl_add_u32 v16, v16, 10, v6")
            e(f"v_lshl_add_u32 v{20 + n}, v9, 4, v16")
        e.wait(vm="E")
        self.tag_and_register()
        e.wait(vm="x")
        e("s_barrier")
        self.stamp("hx")
        for G in range(4):
            for n in range(4):
                e(f"ds_read_b128 {vr(XP + 16 * G + 4 * n)}, v{20 + n} offset:{G * 14336}", ("x", G))
        pair = lambda r: f"v[{r}:{r + 1}]"
        e("s_mov_b32 s88, 0x3f803f80")
        for G in range(4):
            e.wait(lg=("x", G))
            for k in range(4):
                e(f"v_cndmask_b32 v{XP + 16 * G + 12 + k}, v{XP + 16 * G + 12 + k}, 0, {sHI}")
        for k in range(16):
            for G in range(4):
                x = f"v{XP + 16 * G + k}"
                e(f"v_dot2_f32_bf16 v{24 + G}, {x}, s88, {'0' if k == 0 else f'v{24 + G}'}")
            for G in range(4):
                x = f"v{XP + 16 * G + k}"
                e(f"v_dot2_f32_bf16 v{28 + G}, {x}, {x}, {'0' if k == 0 else f'v{28 + G}'}")
        e("s_nop 2")
        for b0 in (24, 28):
            e(f"v_permlane16_swap_b32 v{b0}, v{b0 + 1}")
            e(f"v_permlane16_swap_b32 v{b0 + 2}, v{b0 + 3}")
        for b0 in (24, 28):
            e(f"v_add_f32 v{b0}, v{b0}, v{b0 + 1}")
            e(f"v_add_f32 v{b0 + 2}, v{b0 + 2}, v{b0 + 3}")
        for b0 in (24, 28):
            e(f"v_permlane32_swap_b32 v{b0}, v{b0 + 2}")
        e("v_add_f32 v24, v24, v26")
        e("v_add_f32 v25, v28, v30")
        e(f"s_lshl_b32 {sA}, {sW}, 9")
        e(f"s_add_u32 {sA}, {sA}, {L_HS}")
        e(f"v_lshlrev_b32 v16, 3, {vL}")
        e(f"v_add_u32 v17, {sA}, v16")
        e(f"v_add_u32 v16, {L_HS}, v16")
        e("ds_write_b64 v17, v[24:25]")
        e(f"v_lshrrev_b32 v8, 2, {vL}")
        e(f"v_min_u32 v8, 13, v8")
        e(f"s_mul_i32 {sA}, {sW}, 14")
        e(f"v_add_u32 v8, {sA}, v8")
        e(f"v_bfe_u32 v9, {vL}, 1, 1")
        e(f"v_lshl_add_u32 v8, v8, 1, v9")
        e(f"v_and_b32 v9, 1, {vL}")
        e(f"v_mul_u32_u24 v6, 112, v9")
        e(f"v_add_u32 v8, v8, v6")
        e(f"v_lshlrev_b32 v8, 4, v8")
        e("s_waitcnt lgkmcnt(0)")
        e("s_barrier")
        for k in range(4):
            e(f"ds_read_b64 {pair(24 + 2 * k)}, v16 offset:{k * 512}", "s")

        def unpack(G):
            b = XF + 32 * G
            for k in range(16):
                e(f"v_lshlrev_b32 v{b + 2 * k}, 16, v{XP + 16 * G + k}")
                e(f"v_and_b32 v{b + 2 * k + 1}, 0xffff0000, v{XP + 16 * G + k}")

        unpack(0)
        e.wait(lg="s")
        e("v_pk_add_f32 v[24:25], v[24:25], v[26:27]")
        e("v_pk_add_f32 v[28:29], v[28:29], v[30:31]")
        e("v_pk_add_f32 v[24:25], v[24:25], v[28:29]")
        e(f"v_mul_f32 v24, {fbits(1.0 / 448)}, v24")
        e(f"v_mul_f32 v25, {fbits(1.0 / 448)}, v25")
        e("v_fma_f32 v25, -v24, v24, v25")
        e("v_max_f32 v25, 0, v25")
        self.round_bf16(["v24", "v25"], "v26")
        e(f"v_add_f32 v25, {fbits(1e-5)}, v25")
        e("v_cvt_pk_bf16_f32 v25, v25, v25")
        e("v_lshlrev_b32 v25, 16, v25")
        e("v_sqrt_f32 v25, v25")
        e("v_cvt_pk_bf16_f32 v25, v25, v25")
        e("v_lshlrev_b32 v25, 16, v25")
        e("v_rcp_f32 v26, v25")
        e("v_mul_f32 v27, -v24, v26")
        e(f"v_add_u32 v17, 2048, v17")
        e("ds_write_b64 v17, v[26:27]")
        e(f"s_lshl_b32 {sA}, {sW}, 9")
        e(f"s_add_u32 {sA}, {sA}, {L_HS + 2048}")
        e(f"v_lshl_add_u32 v16, v5, 3, {sA}")
        for G in range(4):
            e(f"ds_read_b64 {pair(32 + 2 * G)}, v16 offset:{G * 128}", "ab")
        for G in range(1, 4):
            if G == self.o.get("gath_at", 3):
                self.xcc_issue()
                self.gather_issue("v8", 40)
            unpack(G)
        e.wait(lg="ab")
        for G in range(4):
            b = XF + 32 * G
            for k in range(0, 32, 2):
                e(f"v_pk_fma_f32 {pair(b + k)}, {pair(b + k)}, {pair(32 + 2 * G)}, {pair(32 + 2 * G)} op_sel:[0,0,1] op_sel_hi:[1,0,1]")
        e(f"v_cvt_f32_u32 v9, v9")
        e(f"s_lshl_b32 {sA}, {sW}, 11")
        e(f"s_add_u32 {sA}, {sA}, {L_SCR}")
        e(f"v_add_u32 v6, {sA}, {vL16}")
        e(f"v_lshl_add_u32 v7, v4, 6, {sA}")
        self.stamp("ln1")
        self.gather_finish("v8", 40, 16)
        self.stamp("modgot")
        for k in range(4):
            e(f"v_add_f32 v{40 + k}, v{40 + k}, v9")
        self.round_bf16([f"v{40 + k}" for k in range(4)], "v16")
        e("ds_write_b128 v6, v[40:43]")
        for n in range(4):
            for it in range(4):
                e(f"ds_read_b128 {vr(CR + 16 * n + 4 * it)}, v7 offset:{n * 256 + 16 * it}", ("c", n))
        e(f"v_lshlrev_b32 v8, 4, v5")
        e(f"v_lshl_add_u32 v8, v4, 9, v8")
        e(f"v_add_u32 v9, 4096, v8")
        e(f"v_mov_b32 v16, 0x7ffffff0")
        e(f"v_cndmask_b32 v6, v9, v16, {sHI}")
        self.xcc_check()
        e(f"s_lshl_b32 s93, s91, 7")
        e(f"s_lshl_b32 {sC}, {sW}, 2")
        e(f"s_add_u32 s93, s93, {sC}")
        e(f"s_add_u32 s93, s93, {WS_FLH}")
        for G in range(4):
            b = XF + 32 * G
            if G:
                e(f"s_add_u32 s90, s90, {256 if G & 1 else 28672 - 256}")
            for n in range(4):
                if G == 0:
                    e.wait(lg=("c", n))
                for k in range(0, 8, 2):
                    c1 = CR + 16 * n + 4 * (2 * (k >> 2) + 1) + (k & 3)
                    c2 = CR + 16 * n + 4 * (2 * (k >> 2)) + (k & 3)
                    e(f"v_pk_fma_f32 {pair(b + 8 * n + k)}, {pair(b + 8 * n + k)}, {pair(c1)}, {pair(c2)}")
                d = 24 + 4 * ((4 * G + n) % 8)
                for k in range(4):
                    e(f"v_cvt_pk_bf16_f32 v{d + k}, v{b + 8 * n + 2 * k}, v{b + 8 * n + 2 * k + 1}")
                e(f"buffer_store_dwordx4 {vr(d)}, v{(8, 8, 9, 6)[n]}, {srd(SRD_WS)}, s90 offen offset:{(n & 1) * 2048}{self.sm('h')}")
        self.publish("s93", "v7", second=64)
        self.stamp("hpub")
        self.wq_dma(thr=False)
        e("s_waitcnt vmcnt(0)")
        e("s_branch L_p1")

    def p1(self):
        e = self.e
        e("L_p1:")
        e.vm, e.lg = [], []
        if self.o.get("front_only"):
            e("s_branch L_fin")
        e("s_waitcnt lgkmcnt(0)")
        e("s_barrier")
        e(f"v_lshrrev_b32 v4, 5, {vL}")
        e(f"v_lshlrev_b32 v4, 9, v4")
        e(f"v_bfe_u32 v5, {vL}, 2, 2")
        e(f"v_lshl_add_u32 v4, v5, 6, v4")
        e(f"v_bfe_u32 v5, {vL}, 4, 1")
        e(f"v_lshl_add_u32 v4, v5, 5, v4")
        e(f"v_and_b32 v5, 3, {vL}")
        e(f"v_lshl_add_u32 v4, v5, 3, v4")
        e(f"v_add_u32 v4, {sADJ}, v4")
        e(f"v_add_u32 v10, {L_WQ}, v4")
        self.tr_addr("v8", 8)
        e(f"v_add_u32 v8, {L_WKV}, v8")
        e("v_xor_b32 v9, 64, v8")
        e(f"v_and_b32 v4, 3, {vL}")
        e(f"v_lshlrev_b32 v4, 2, v4")
        e(f"s_lshl_b32 s88, {sT}, 6")
        e(f"s_add_u32 s88, s88, {WS_FLH}")
        e(f"s_mul_i32 {sC}, {sT}, 28672")
        e(f"s_add_u32 {sC}, {sC}, {WS_H}")
        e(f"s_lshl_b32 s90, {sT}, 12")
        e(f"s_add_u32 s90, s90, {WS_KV}")
        e(f"s_cmp_ge_u32 {sR}, 28")
        e("s_cbranch_scc1 L_p1_h")
        e(f"s_cmp_ge_u32 {sH}, 7")
        e("s_cbranch_scc1 L_p1_v")
        for mode in ("k", "v", "h"):
            e(f"L_p1_{mode}:")
            e.vm, e.lg = [], []
            self.p1_body(mode)
            if mode != "h":
                e("s_branch L_p1_done")
        e("L_p1_done:")
        e.vm, e.lg = [], []
        self.stamp("kvpub")
        self.slotq_issue()
        ACQ = 48
        qs = 28 ** -0.5 * math.log2(math.e)
        e(f"s_mov_b32 {sA}, {fbits(qs)}")
        for k in range(16):
            e(f"v_mul_f32 v{ACQ + k}, {sA}, v{ACQ + k}")
        for k in range(8):
            e(f"v_cvt_pk_bf16_f32 v{64 + k}, v{ACQ + 2 * k}, v{ACQ + 2 * k + 1}")
        e("v_mov_b32 v11, 0x00003f80")
        e(f"v_cndmask_b32 v70, v70, v11, {sHI}")
        e(f"v_cndmask_b32 v71, v71, 0, {sHI}")

    def p1_body(self, mode):
        e = self.e
        AC, ACQ = 16, 48
        HB, WR = 0, 112
        QR = WR + 32
        DEPTH = 3
        first = mode == "k"

        def rd_w(ks, ct):
            d = WR + 8 * (ks % 4) + 4 * ct
            e(f"ds_read_b64_tr_b16 {ar(d, 2)}, v{8 + ct} offset:{ks * 2048}", ("kv", ks))
            e(f"ds_read_b64_tr_b16 {ar(d + 2, 2)}, v{8 + ct} offset:{ks * 2048 + 512}", ("kv", ks))

        def rd_q(ks):
            d = QR + 4 * (ks % 8)
            e(f"ds_read_b64_tr_b16 {ar(d, 2)}, v10 offset:{ks * 1024}", ("q", ks))
            e(f"ds_read_b64_tr_b16 {ar(d + 2, 2)}, v10 offset:{ks * 1024 + 256}", ("q", ks))

        def ld_h(ks):
            if ks and ks % 4 == 0:
                e(f"s_add_u32 {sC}, {sC}, 4096")
            e(f"buffer_load_dwordx4 {ar(HB + 4 * ks)}, {vL16}, {srd(SRD_WS)}, {sC} offen offset:{(ks % 4) * 1024} sc1", ("h", ks))

        if mode != "h":
            for ks in range(DEPTH):
                rd_w(ks, 0)
                rd_w(ks, 1)
        self.poll("v4", "s88", "v5")
        self.acquire()
        self.stamp("hflag", again=not first)
        PRE = self.o.get("p1pre", 8)
        if mode == "h":
            for ks in range(28):
                ld_h(ks)
            for ks in range(6):
                rd_q(ks)
            self.helper_side()
        else:
            for ks in range(PRE):
                ld_h(ks)
            for ks in range(28):
                e.wait(vm=("h", ks), lg=("kv", ks))
                for ct in range(2):
                    w, hb = ar(WR + 8 * (ks % 4) + 4 * ct), ar(HB + 4 * ks)
                    acc = vr(AC + 16 * ct, 16)
                    a, b = (w, hb) if mode == "k" else (hb, w)
                    e(f"v_mfma_f32_32x32x16_bf16 {acc}, {a}, {b}, {'0' if ks == 0 else acc}")
                    if ct == 0 and ks + PRE < 28:
                        ld_h(ks + PRE)
                    if ks + DEPTH < 28:
                        rd_w(ks + DEPTH, ct)
                    else:
                        rd_q(2 * (ks + DEPTH - 28) + ct)
        self.stamp("kvgemm", again=not first)

        def kv_epi(r):
            for ct in range(2):
                for k in range(8):
                    r(f"v_cvt_pk_bf16_f32 v{64 + 8 * ct + k}, v{AC + 16 * ct + 2 * k}, v{AC + 16 * ct + 2 * k + 1}")
                    if mode == "k" and k & 1:
                        r(f"buffer_store_dwordx2 {vr(64 + 8 * ct + k - 1, 2)}, v{96 + 4 * ct + (k >> 1)}, {srd(SRD_WS)}, s90 offen sc1")
                    if mode == "v" and k % 4 == 3:
                        r(f"buffer_store_dwordx4 {vr(64 + 8 * ct + k - 3)}, v{96 + ct}, {srd(SRD_WS)}, s90 offen offset:{(k >> 2) * 1024} sc1")

        main, fill = [], {}
        for ks in range(28):
            def m(ks=ks):
                e.wait(vm=("h", ks), lg=("q", ks))
                cq = "0" if ks == 0 else vr(ACQ, 16)
                e(f"v_mfma_f32_32x32x16_bf16 {vr(ACQ, 16)}, {ar(QR + 4 * (ks % 8))}, {ar(HB + 4 * ks)}, {cq}")
            main.append(m)
            if ks + 6 < 28:
                fill.setdefault(ks, []).append(lambda ks=ks: rd_q(ks + 6))
        if mode != "h":
            self.spread(fill, self.record(kv_epi), 1, 7)
        self.spread(fill, self.record(self.slotq_addr), 8, 27)
        e1, e1b = self.o.get("e1", 0), self.o.get("e1b", self.o.get("e1", 0))
        s1 = []
        if mode != "h":
            s1 = [lambda p=p, mat=mat: self.wgu_piece(p, mat) for p in range(e1, e1b) for mat in range(2)]
            if self.o.get("wo_at", 2) == 1:
                s1 = self.wo_pieces() + s1
        nb = len(s1)
        self.spread(fill, s1, 8, 27)
        self.merge(main, fill)
        if mode == "h":
            e("s_barrier")
            return
        lab = e.label("nokvfl")
        e(f"s_lshr_b32 {sA}, {sT}, 2")
        e(f"s_mul_i32 {sA}, {sA}, 14")
        e(f"s_add_u32 {sA}, {sA}, {sH}")
        e(f"s_lshl_b32 {sA}, {sA}, 7")
        e(f"s_add_u32 {sA}, {sA}, {WS_FLKV}")
        e(f"v_mov_b32 v7, {sTAG}")
        e(f"s_cmp_lg_u32 {sW}, 0")
        e(f"s_waitcnt vmcnt({nb})")
        e("s_barrier")
        e(f"s_cbranch_scc1 {lab}")
        e("s_mov_b64 exec, 1")
        e(f"buffer_store_dword v7, off, {srd(SRD_WS)}, {sA} sc1")
        e("s_mov_b64 exec, -1")
        e(f"{lab}:")
        if self.o.get("kv_touch", 1):
            if mode == "k":
                e("s_mov_b32 exec_lo, 0x00010001")
                e("s_mov_b32 exec_hi, 0x00010001")
                for n in range(8):
                    e(f"buffer_load_dword v127, v{96 + n}, {srd(SRD_WS)}, s90 offen sc1")
            else:
                e("s_mov_b32 exec_lo, 0x91111111")
                e("s_mov_b32 exec_hi, 0x91111111")
                for n in range(4):
                    e(f"buffer_load_dword v127, v{96 + (n >> 1)}, {srd(SRD_WS)}, s90 offen offset:{(n & 1) * 1024} sc1")
            e("s_mov_b64 exec, -1")

    def helper_side(self):
        e = self.e
        e(f"s_sub_u32 {sE}, {sR}, 28")
        e(f"s_lshl_b32 {sE}, {sE}, 2")
        e(f"s_add_u32 {sE}, {sE}, {sW}")
        e(f"v_lshlrev_b32 v6, 7, {vL}")
        e(f"s_lshl_b32 {sA}, {sI}, 9")
        e(f"s_add_u32 {sA}, {sA}, {WS_FLO}")
        e("s_mov_b64 exec, 15")
        e(f"buffer_load_dword v127, v6, {srd(SRD_WS)}, {sA} offen sc1")
        e(f"s_add_u32 {sA}, {sA}, {WS_FLZ - WS_FLO}")
        e(f"buffer_load_dword v127, v6, {srd(SRD_WS)}, {sA} offen sc1")
        e(f"s_lshl_b32 {sA}, {sI}, 10")
        e(f"s_add_u32 {sA}, {sA}, {WS_FLD}")
        e("s_mov_b64 exec, 0xff")
        e(f"buffer_load_dword v127, v6, {srd(SRD_WS)}, {sA} offen sc1")
        e("s_mov_b64 exec, -1")

    def slotq_addr(self, e):
        e(f"s_lshl_b32 {sA}, {sW}, 6")
        e(f"v_add_u32 v4, {sA}, {vL}")
        e(f"s_movk_i32 {sBt}, 112")
        e(f"v_cmp_gt_u32 s[88:89], {sBt}, v4")
        e(f"s_movk_i32 {sBt}, 224")
        e(f"v_cmp_gt_u32 s[94:95], {sBt}, v4")
        e("v_subrev_u32 v5, 112, v4")
        e("v_cndmask_b32 v5, v5, v4, s[88:89]")
        e("v_mov_b32 v6, 336")
        e("v_mov_b32 v7, 448")
        e("v_cndmask_b32 v6, v6, v7, s[88:89]")
        e("v_add_u32 v6, v6, v5")
        e("v_and_b32 v7, 15, v4")
        e(f"s_lshl_b32 {sA}, {sCG}, 4")
        e(f"v_add_u32 v7, {sA}, v7")
        e("v_bfe_u32 v208, v4, 4, 1")
        e("v_mul_u32_u24 v208, 336, v208")
        e("v_add_u32 v7, v7, v208")
        e("v_add_u32 v7, 224, v7")
        e("v_cndmask_b32 v6, v7, v6, s[94:95]")
        e("v_lshlrev_b32 v208, 4, v6")
        e("v_lshrrev_b32 v6, 3, v5")
        e("v_lshlrev_b32 v6, 6, v6")
        e("v_and_b32 v7, 3, v5")
        e("v_lshl_add_u32 v6, v7, 4, v6")
        e("v_bfe_u32 v7, v5, 2, 1")
        e("v_lshl_add_u32 v6, v7, 3, v6")
        e("v_mov_b32 v7, 896")
        e("v_cndmask_b32 v7, v7, 0, s[88:89]")
        e("v_add_u32 v209, v6, v7")
        e("v_and_b32 v7, 31, v4")
        e("v_lshlrev_b32 v210, 4, v7")
        e("v_cndmask_b32 v212, 0, 1.0, s[88:89]")
        e("v_cndmask_b32 v213, 0, 1, s[94:95]")
        e(f"v_lshrrev_b32 v4, 2, {vL}")
        e(f"v_mul_u32_u24 v4, 896, v4")
        e(f"v_and_b32 v5, 3, {vL}")
        e(f"v_lshl_add_u32 v214, v5, 4, v4")
        e(f"s_lshl_b32 {sA}, {sI}, 2")
        e(f"s_add_u32 {sA}, {sA}, {sRB}")
        e(f"s_lshl_b32 {sA}, {sA}, 2")
        e(f"s_add_u32 {sA}, {sA}, {sW}")
        e(f"s_mul_i32 {sA}, {sA}, 14336")
        e(f"s_lshl_b32 {sBt}, {sCG}, 7")
        e(f"s_add_u32 s100, {sA}, {sBt}")

    def wo_pieces(self):
        e = self.e

        def piece(n):
            if n == 0:
                e(f"s_lshl_b32 s86, {sCG}, 7")
                e(f"s_mul_i32 s87, {sW}, {8 * 896}")
                e(f"s_add_u32 s86, s86, s87")
                e(f"s_mul_i32 s87, {sRB}, 7")
                e(f"s_lshr_b32 s87, s87, 1")
            e(f"s_mul_i32 {sD}, s87, {32 * 896}")
            e(f"s_add_u32 {sD}, {sD}, s86")
            e(f"s_lshl_b32 s85, s87, 12")
            e(f"s_add_u32 s85, s85, s101")
            e(f"s_add_u32 m0, s85, {L_WO}")
            e(f"s_add_u32 s87, s87, 1")
            e(f"buffer_load_dwordx4 v13, {srd(SRD_WO)}, {sD} offen lds", "wo")
            e(f"s_cmp_eq_u32 s87, 14")
            e(f"s_cselect_b32 s87, 0, s87")
        return [lambda n=n: piece(n) for n in range(14)]

    def wo_dma(self):
        for x in self.wo_pieces():
            x()

    def wd_setup(self):
        e = self.e
        e(f"s_mul_i32 s100, {sCG}, 112")
        e(f"s_mul_i32 {sBt}, {sW}, 28")
        e(f"s_add_u32 s100, s100, {sBt}")
        e(f"s_lshl_b32 s100, s100, 11")
        e(f"s_add_u32 s100, s100, {WS_WD}")
        self.rot28("s3")
        self.wd_next = 0

    def wd_loads(self, count):
        e = self.e

        def ld(j, half):
            if self.o.get("skip_wd"):
                return
            if half == 0 and j % 4 == 0:
                e(f"s_lshl_b32 {sWD}, s3, 13")
                e(f"s_add_u32 {sWD}, {sWD}, s100")
                e("s_add_u32 s3, s3, 1")
                e("s_cmp_eq_u32 s3, 7")
                e("s_cselect_b32 s3, 0, s3")
            elif half == 0 and j % 4 == 2:
                e(f"s_add_u32 {sWD}, {sWD}, 4096")
            e(f"buffer_load_dwordx4 {ar(8 * j + 4 * half)}, {vL16}, {srd(SRD_WS)}, {sWD} offen offset:{(j & 1) * 2048 + 1024 * half} sc1", ("wd", j))
        j0 = self.wd_next
        self.wd_next = min(28, j0 + count)
        return [lambda j=j, half=half: ld(j, half) for j in range(j0, self.wd_next) for half in range(2)]

    def slotq_issue(self):
        e = self.e
        e(f"buffer_load_dwordx4 v[240:243], v214, {srd(SRD_X)}, s100 offen")
        e(f"buffer_load_dwordx4 v[244:247], v214, {srd(SRD_X)}, s100 offen offset:64")
        self.jobs_issue()
        if self.o.get("wo_at", 2) == 2:
            lab = e.label("nowo")
            e(f"s_cmp_ge_u32 {sR}, 28")
            e(f"s_cbranch_scc1 {lab}")
            self.wo_dma()
            e(f"{lab}:")

    def wfl_issue(self):
        e = self.e
        e(f"s_mul_i32 {sA}, {sCG}, 112")
        e(f"s_mul_i32 {sBt}, {sW}, 28")
        e(f"s_add_u32 {sA}, {sA}, {sBt}")
        e(f"s_lshl_b32 {sA}, {sA}, 7")
        e(f"s_add_u32 {sU}, {sA}, {WS_FLW}")
        e(f"v_min_u32 v215, 27, {vL}")
        e(f"v_lshlrev_b32 v215, 7, v215")
        self.poll_issue("v215", sU, "v238", "wfl")

    def late_consts(self):
        e = self.e
        self.gather_finish("v208", 216, 232)
        for k in range(4):
            e(f"v_add_f32 v{220 + k}, v{216 + k}, v212")
        e("v_cvt_pk_bf16_f32 v220, v220, v221")
        e("v_cvt_pk_bf16_f32 v221, v222, v223")
        e("v_cmp_ne_u32 vcc, 0, v213")
        e("s_mov_b64 exec, vcc")
        e(f"ds_write_b64 v209, v[220:221] offset:{L_CVEC}")
        e("s_not_b64 exec, exec")
        e(f"ds_write_b128 v210, v[216:219] offset:{L_GAB}")
        e("s_mov_b64 exec, -1")

    def x_relayout(self):
        e = self.e
        e(f"s_lshl_b32 {sA}, {sW}, 11")
        e(f"s_add_u32 {sA}, {sA}, {L_XS}")
        e(f"v_lshrrev_b32 v4, 2, {vL}")
        e(f"v_lshlrev_b32 v4, 7, v4")
        e(f"v_and_b32 v5, 3, {vL}")
        e(f"v_lshl_add_u32 v4, v5, 4, v4")
        e(f"v_add_u32 v6, {sA}, v4")
        e(f"v_and_b32 v4, 15, {vL}")
        e(f"v_lshlrev_b32 v4, 7, v4")
        e(f"v_lshrrev_b32 v5, 4, {vL}")
        e(f"v_lshl_add_u32 v4, v5, 3, v4")
        e(f"v_add_u32 v7, {sA}, v4")
        e("v_mov_b32 v8, 0")
        e("v_mov_b32 v9, 0")
        e(f"v_lshlrev_b32 v4, 3, {vL}")
        e(f"v_add_u32 v4, {L_PAD}, v4")
        e("ds_write_b64 v4, v[8:9]")
        e("ds_write_b128 v6, v[240:243]")
        e("ds_write_b128 v6, v[244:247] offset:64")
        for t in range(4):
            e(f"ds_read_b64 {vr(248 + 2 * t, 2)}, v7 offset:{32 * t}")

    def p2(self):
        e = self.e
        QF, MK = 64, 72
        e(f"v_and_b32 v4, 31, {vL}")
        e(f"v_lshrrev_b32 v7, 5, {vL}")
        e(f"v_lshlrev_b32 v7, 2, v7")
        e("v_sub_u32 v4, v4, v7")
        e("v_mov_b32 v6, 0xffff")
        e("v_mov_b32 v7, 0xffff0000")
        for r in range(16):
            e(f"v_cmp_le_i32 s[{SMASK + 2 * r}:{SMASK + 2 * r + 1}], {(r >> 2) * 8 + (r & 3)}, v4")
        for k in range(8):
            e(f"v_cndmask_b32 v8, 0, v6, s[{SMASK + 4 * k}:{SMASK + 4 * k + 1}]")
            e(f"v_cndmask_b32 v9, 0, v7, s[{SMASK + 4 * k + 2}:{SMASK + 4 * k + 3}]")
            e(f"v_or_b32 v{MK + k}, v8, v9")
        e(f"s_lshl_b32 {sA}, {sW}, 12")
        e(f"s_add_u32 {sA}, {sA}, {L_KV}")
        e(f"v_add_u32 v10, {sA}, {vL16}")
        e(f"v_lshl_add_u32 v15, {vL}, 3, {sA}")
        e(f"s_mul_i32 {sD}, {sW}, 12288")
        e(f"s_add_u32 {sD}, {sD}, {L_KV}")
        e(f"v_add_u32 v4, 1792, {vL16}")
        e(f"v_subrev_u32 v5, 16, {vL}")
        e(f"v_lshlrev_b32 v5, 9, v5")
        e(f"v_add_u32 v5, {2048 + 448}, v5")
        e(f"v_cmp_gt_u32 vcc, 16, {vL}")
        e("v_mov_b32 v6, 0x3f803f80")
        e("v_cndmask_b32 v4, v5, v4, vcc")
        e("v_cndmask_b32 v16, v6, 0, vcc")
        e(f"v_add_u32 v4, {sD}, v4")
        for k in range(1, 4):
            e(f"v_mov_b32 v{16 + k}, v16")
        e("s_mov_b64 exec, 0xfffff")
        for t in range(3):
            e(f"ds_write_b128 v4, v[16:19] offset:{t * 4096}")
        e("s_mov_b64 exec, -1")
        e(f"s_and_b32 {sC}, {sT}, 0xfc")
        e(f"s_mul_i32 {sBt}, {sW}, 3")
        e(f"s_add_u32 {sC}, {sC}, {sBt}")
        e(f"s_sub_u32 {sC}, {sC}, 8")
        e(f"v_bfe_u32 v4, {vL}, 2, 1")
        e(f"v_lshl_add_u32 v4, v4, 1, {sC}")
        e("v_ashrrev_i32 v4, 2, v4")
        e("v_max_i32 v4, 0, v4")
        e("v_mul_u32_u24 v4, 14, v4")
        e(f"s_mul_i32 {sA}, {sH}, 28")
        e(f"v_and_b32 v5, 1, {vL}")
        e("v_mul_u32_u24 v5, 27, v5")
        e(f"v_add_u32 v5, {sA}, v5")
        e("v_lshrrev_b32 v5, 6, v5")
        e("v_add_u32 v4, v4, v5")
        e(f"v_bfe_u32 v5, {vL}, 1, 1")
        e("v_mul_u32_u24 v5, 7, v5")
        e("v_add_u32 v4, v4, v5")
        e("v_lshlrev_b32 v4, 7, v4")
        e(f"s_mov_b32 {sA}, {WS_FLKV}")
        e(f"s_lshl_b32 {sE}, {sH}, 6")
        e(f"s_add_u32 {sE}, {sE}, {sC}")
        e(f"s_lshl_b32 {sE}, {sE}, 12")
        e(f"s_add_u32 {sE}, {sE}, {WS_KV}")
        for k in range(8):
            e(f"v_mov_b32 v{20 + k}, 0")
        e("v_mov_b32 v5, 0x0000f149")
        e(f"v_cmp_le_u32 vcc, 48, {vL}")
        e(f"v_add_u32 v9, {sD}, {vL16}")
        e("v_cndmask_b32 v24, 0, v5, vcc")
        e("v_cndmask_b32 v26, 0, v5, vcc")
        self.poll("v4", sA, "v8")
        self.acquire()
        self.stamp("kvflag")
        for t in range(3):
            fl, dn = e.label("kvfill"), e.label("kvdone")
            e(f"s_cmp_lt_i32 {sC}, {-t}")
            e(f"s_cbranch_scc1 {fl}")
            e(f"s_add_u32 m0, {sD}, {t * 4096}")
            e(f"s_add_u32 {sA}, {sE}, {t * 4096}")
            e(f"buffer_load_dwordx4 {vL16}, {srd(SRD_WS)}, {sA} offen sc1 lds")
            e("s_mov_b32 exec_hi, 0xffff")
            e(f"buffer_load_dwordx4 {vL16}, {srd(SRD_WS)}, {sA} offen offset:1024 sc1 lds")
            e("s_mov_b32 exec_lo, 0x0fffffff")
            e("s_mov_b32 exec_hi, 0x0fffffff")
            e(f"buffer_load_dwordx4 {vL16}, {srd(SRD_WS)}, {sA} offen offset:2048 sc1 lds")
            e(f"buffer_load_dwordx4 {vL16}, {srd(SRD_WS)}, {sA} offen offset:3072 sc1 lds")
            e("s_mov_b64 exec, -1")
            e(f"s_branch {dn}")
            e(f"{fl}:")
            for f in range(4):
                e(f"ds_write_b128 v9, {vr(24 if f == 1 else 20)} offset:{t * 4096 + f * 1024}")
            e(f"{dn}:")
        e.vm = []
        self.x_relayout()
        self.jobs_process()
        e("s_waitcnt vmcnt(0) lgkmcnt(0)")
        e("s_barrier")
        self.stamp("kvgot")
        self.jobs_finish()
        order = [0, 8, 1, 2, 3, 4, 5, 6, 7]
        S = [80, 96, 112]
        MG, NM, OA, PF = 128, 144, 160, 176
        vM = "v11"
        kseq = order + list(range(1, 8))
        vseq = [0, 8] + list(range(1, 8))
        kreg = lambda n, half: ar(224 + 8 * (n % 4) + 4 * half)
        vreg = lambda n, half: vr(16 + 8 * (n % 4) + 4 * half)

        def rdk(n):
            t = kseq[n]
            for f in range(2):
                e(f"ds_read2st64_b64 {kreg(n, f)}, v15 offset0:{8 * t + 2 * f} offset1:{8 * t + 2 * f + 1}", ("k", n))

        def rdv(n):
            t = vseq[n]
            for f in range(2):
                e(f"ds_read_b128 {vreg(n, f)}, v10 offset:{t * 4096 + 2048 + f * 1024}", ("v", n))

        def smf(n, half, dst, c):
            if half == 0:
                e.wait(lg=("k", n))
            e(f"v_mfma_f32_32x32x16_bf16 {vr(dst, 16)}, {kreg(n, half)}, {vr(QF + 4 * half)}, {c if half == 0 else vr(dst, 16)}")

        def mx(src, k, first=False):
            if first:
                e(f"v_max_f32 {vM}, v{src}, v{src + 1}")
            else:
                e(f"v_max3_f32 {vM}, {vM}, v{src + 2 * k}, v{src + 2 * k + 1}")

        for n in range(3):
            rdk(n)
        self.wd_setup()
        pf = [lambda p=p, mat=mat: self.wgu_piece(p, mat) for p in range(self.o.get("e1b", self.o.get("e1", 0)), self.o.get("e2", 5)) for mat in range(2)]
        side = [lambda: self.touch(SRD_WS, WS_STAT, 14336, 112, " sc1", dst="v239")]
        if self.o.get("sm_o", 0) == 0:
            side.insert(0, lambda: self.touch(SRD_WS, WS_O, 262144, 2048, " sc1", dst="v239"))
        wdl = side + pf + [lambda: self.gather_issue("v208", 216), self.wfl_issue]
        npf1 = self.o.get("pf1", 8)
        main, fill = [], {}
        dsts = {0: S[0], 8: S[1]}
        for n, t in enumerate(order[2:]):
            dsts[t] = S[(n + 2) % 3]
        for n, t in enumerate(order):
            for half in range(2):
                main.append(lambda n=n, t=t, half=half: smf(n, half, dsts[t], "0"))
            fill.setdefault(2 * n, []).append(lambda n=n: rdk(n + 3))
        mrg = [lambda r=r: e(f"v_cndmask_b32 v{MG + r}, v{S[0] + r}, v{S[1] + r}, s[{SMASK + 2 * r}:{SMASK + 2 * r + 1}]") for r in range(16)]
        fill.setdefault(5, []).extend(mrg)
        fill.setdefault(6, []).extend([lambda k=k: mx(MG, k, k == 0) for k in range(8)])
        for n, t in enumerate(order[2:]):
            g = 2 * (n + 2) + 3
            ops = [lambda k=k, t=t: mx(dsts[t], k) for k in range(8)]
            if g + 1 < 18:
                fill.setdefault(g, []).extend(ops[:4])
                fill.setdefault(g + 1, []).extend(ops[4:])
            else:
                fill.setdefault(17, []).extend(ops)
        self.spread(fill, [lambda n=n: rdv(n) for n in range(3)], 9, 15)
        self.spread(fill, wdl[:npf1], 0, 17)
        wdl = wdl[npf1:]
        self.merge(main, fill)
        e(f"v_mov_b32 v4, {vM}")
        e(f"v_permlane32_swap_b32 {vM}, v4")
        e(f"v_max_f32 {vM}, {vM}, v4")
        for r in range(16):
            e(f"v_sub_f32 v{NM + r}, 0, {vM}")
        nm = vr(NM, 16)
        smf(9, 0, S[0], nm)
        for r in range(8):
            e(f"v_sub_f32 v{MG + r}, v{MG + r}, {vM}")
        smf(9, 1, S[0], nm)
        for r in range(8, 16):
            e(f"v_sub_f32 v{MG + r}, v{MG + r}, {vM}")
        smf(10, 0, S[1], nm)
        rdk(12)
        for r in range(8):
            e(f"v_exp_f32 v{MG + r}, v{MG + r}")
        smf(10, 1, S[1], nm)
        rdv(3)
        for r in range(8, 16):
            e(f"v_exp_f32 v{MG + r}, v{MG + r}")
        for k in range(8):
            e(f"v_cvt_pk_bf16_f32 v{PF + k}, v{MG + 2 * k}, v{MG + 2 * k + 1}")
        for k in range(8):
            e(f"v_and_b32 v{PF + 8 + k}, v{PF + k}, v{MK + k}")
            e(f"v_xor_b32 v{PF + k}, v{PF + k}, v{PF + 8 + k}")
        oa = vr(OA, 16)
        nside = len(wdl)

        def pv(n, half, p, first=False):
            if half == 0:
                e.wait(lg=("v", n))
            e(f"v_mfma_f32_32x32x16_bf16 {oa}, {vreg(n, half)}, {vr(p + 4 * half)}, {'0' if first else oa}")

        pend = [lambda: pv(0, 0, PF, True), lambda: pv(0, 1, PF), lambda: pv(1, 0, PF + 8), lambda: pv(1, 1, PF + 8)]
        for t in range(1, 8):
            src = S[(t - 1) % 3]
            pfr = PF + 16 + 8 * (t & 1)
            mf = list(pend)
            if t + 2 < 8:
                d = S[(t + 1) % 3]
                mf += [lambda t=t, d=d: smf(10 + t, 0, d, nm), lambda t=t, d=d: smf(10 + t, 1, d, nm)]
            ops = [f"v_exp_f32 v{src + r}, v{src + r}" for r in range(16)]
            ops += [f"v_cvt_pk_bf16_f32 v{pfr + k}, v{src + 2 * k}, v{src + 2 * k + 1}" for k in range(8)]
            cost = [2] * 16 + [1] * 8
            tot, acc, mi = sum(cost), 0, 0
            for oi, (op, c) in enumerate(zip(ops, cost)):
                pos = (t - 1) * 24 + oi
                while wdl and (nside - len(wdl)) * self.o.get("pf2", 120) <= pos * nside:
                    wdl.pop(0)()
                while mi < len(mf) and acc >= mi * tot / len(mf):
                    mf[mi]()
                    mi += 1
                e(op)
                acc += c
            for x in mf[mi:]:
                x()
            if 12 + t < len(kseq):
                rdk(12 + t)
            if t == 1:
                rdv(4)
            if 4 + t < len(vseq):
                rdv(4 + t)
            pend = [lambda t=t, pfr=pfr: pv(t + 1, 0, pfr), lambda t=t, pfr=pfr: pv(t + 1, 1, pfr)]
        for x in wdl:
            x()
        pend[0]()
        e(f"v_bfe_u32 v4, {vL}, 4, 1")
        e(f"v_lshlrev_b32 v4, 14, v4")
        e(f"v_lshrrev_b32 v5, 5, {vL}")
        e(f"v_lshl_add_u32 v4, v5, 8, v4")
        pend[1]()
        e(f"v_and_b32 v5, 15, {vL}")
        e(f"v_lshl_add_u32 v4, v5, 4, v4")
        e(f"s_lshl_b32 {sA}, {sT}, 5")
        e(f"s_add_u32 {sA}, {sA}, {sH}")
        e(f"s_lshl_b32 {sA}, {sA}, 10")
        e(f"s_add_u32 {sA}, {sA}, {WS_O}")
        e(f"s_lshl_b32 {sBt}, {sT}, 4")
        e(f"s_add_u32 {sBt}, {sBt}, {sH}")
        e(f"s_lshl_b32 {sBt}, {sBt}, 2")
        e(f"s_add_u32 {sBt}, {sBt}, {WS_FLO}")
        e(f"v_mov_b32 v5, v{OA + 12}")
        e(f"v_mov_b32 v6, v{OA + 12}")
        e("v_permlane32_swap_b32 v5, v6")
        e("v_rcp_f32 v6, v6")
        for f in range(2):
            for r in range(8 * f, 8 * f + 8):
                e(f"v_mul_f32 v{OA + r}, v6, v{OA + r}")
            for k in range(4 * f, 4 * f + 4):
                e(f"v_cvt_pk_bf16_f32 v{PF + k}, v{OA + 2 * k}, v{OA + 2 * k + 1}")
            if f == 1:
                e(f"v_cndmask_b32 v{PF + 6}, v{PF + 6}, 0, {sHI}")
                e(f"v_cndmask_b32 v{PF + 7}, v{PF + 7}, 0, {sHI}")
            e(f"buffer_store_dwordx4 {vr(PF + 4 * f)}, v4, {srd(SRD_WS)}, {sA} offen offset:{f * 512}{self.sm('o')}")
        self.stamp("attn")
        self.publish(sBt, "v7")
        self.stamp("opub")
        self.poll_check("v215", sU, "v238", "wfl")
        for x in self.wd_loads(self.o.get("wd_o", 12)):
            x()
        self.late_consts()
        e("s_waitcnt lgkmcnt(0)")
        e("s_barrier")
        e(f"s_cmp_ge_u32 {sR}, 28")
        e("s_cbranch_scc1 L_spare")

    def p3(self):
        e = self.e
        OB, AC = 128, 16
        GA, CB, XR = 32, 48, 64
        NWO = 5
        wreg = lambda hd, t, k=4, o=0: (ar if hd % NWO < 2 else vr)((224 + 16 * (hd % NWO) if hd % NWO < 2 else 192 + 16 * (hd % NWO - 2)) + 4 * t + o, k)
        e(f"v_lshrrev_b32 v4, 5, {vL}")
        e(f"v_lshlrev_b32 v4, 4, v4")
        e(f"v_bfe_u32 v5, {vL}, 4, 1")
        e(f"v_lshl_add_u32 v4, v5, 2, v4")
        e(f"v_bfe_u32 v6, {vL}, 2, 2")
        e("v_add_u32 v4, v4, v6")
        e("v_lshlrev_b32 v4, 7, v4")
        e("v_lshrrev_b32 v6, 1, v6")
        e("v_lshl_add_u32 v5, v5, 1, v6")
        e(f"v_and_b32 v6, 3, {vL}")
        e("v_lshl_add_u32 v4, v6, 3, v4")
        e(f"v_add_u32 v4, {L_WO}, v4")
        for t in range(4):
            e(f"v_xor_b32 v6, {t}, v5")
            e(f"v_lshl_add_u32 v{8 + t}, v6, 5, v4")

        def rd_wo(hd, tiles=range(4)):
            for t in tiles:
                a = 8 + (t ^ (2 * (hd & 1)))
                e(f"ds_read_b64_tr_b16 {wreg(hd, t, 2)}, v{a} offset:{hd * 3584}", ("wo", hd))
                e(f"ds_read_b64_tr_b16 {wreg(hd, t, 2, 2)}, v{a} offset:{hd * 3584 + 1024}", ("wo", hd))

        e(f"s_lshl_b32 {sA}, {sW}, 11")
        e(f"v_and_b32 v4, 15, {vL}")
        e(f"v_lshlrev_b32 v4, 7, v4")
        e(f"v_lshrrev_b32 v5, 4, {vL}")
        e(f"v_lshl_add_u32 v4, v5, 3, v4")
        e(f"s_add_u32 {sA}, {sA}, {L_X1}")
        e(f"v_add_u32 v100, {sA}, v4")
        e(f"v_lshlrev_b32 v6, 4, v5")
        for t in range(4):
            e(f"ds_read_b128 {vr(GA + 4 * t)}, v6 offset:{L_GAB + 64 * t}")
        e(f"s_lshl_b32 {sA}, {sCG}, 7")
        e(f"v_add_u32 v6, {sA}, v6")
        for pp in range(2):
            e(f"ds_read_b128 {vr(XR + 16 + 4 * pp)}, v6 offset:{L_CVEC + 64 * pp}", "xr")
        e(f"v_and_b32 v4, 15, {vL}")
        e(f"v_lshlrev_b32 v101, 4, v4")
        e(f"v_lshl_add_u32 v101, v5, 9, v101")
        e(f"v_lshlrev_b32 v4, 2, v4")
        e(f"s_lshl_b32 {sA}, {sI}, 2")
        e(f"s_add_u32 {sE}, {sA}, {sRB}")
        e(f"s_lshl_b32 {sA}, {sE}, 1")
        e(f"s_lshr_b32 {sBt}, {sW}, 1")
        e(f"s_add_u32 {sA}, {sA}, {sBt}")
        e(f"s_mul_i32 s64, {sA}, 28672")
        e(f"s_lshl_b32 {sBt}, {sCG}, 12")
        e(f"s_add_u32 s64, s64, {sBt}")
        e(f"s_and_b32 {sBt}, {sW}, 1")
        e(f"s_lshl_b32 {sBt}, {sBt}, 8")
        e(f"s_add_u32 s64, s64, {sBt}")
        e(f"s_add_u32 s64, s64, {WS_Z}")
        e(f"s_lshl_b32 s67, {sA}, 6")
        e(f"s_add_u32 s67, s67, {WS_FLO}")
        e(f"s_mul_i32 s65, {sE}, 7")
        e(f"s_add_u32 s65, s65, {sCG}")
        e(f"s_lshl_b32 s65, s65, 9")
        e(f"s_lshl_b32 {sBt}, {sW}, 7")
        e(f"s_add_u32 s65, s65, {sBt}")
        e(f"s_add_u32 s65, s65, {WS_STAT}")
        e(f"s_lshl_b32 s66, {sE}, 5")
        e(f"s_lshl_b32 {sBt}, {sCG}, 2")
        e(f"s_add_u32 s66, s66, {sBt}")
        e(f"s_add_u32 s66, s66, {sW}")
        e(f"s_lshl_b32 s66, s66, 2")
        e(f"s_add_u32 s66, s66, {WS_FLZ}")
        e(f"s_lshl_b32 {sC}, {sE}, 2")
        e(f"s_add_u32 {sC}, {sC}, {sW}")
        e(f"s_lshl_b32 {sC}, {sC}, 14")
        e(f"s_add_u32 {sC}, {sC}, {WS_O}")
        e.wait(lg="xr")
        for k in range(8):
            e(f"v_lshlrev_b32 v{XR + 2 * k}, 16, v{248 + k}")
            e(f"v_and_b32 v{XR + 2 * k + 1}, 0xffff0000, v{248 + k}")
            e(f"v_lshlrev_b32 v{CB + 2 * k}, 16, v{XR + 16 + k}")
            e(f"v_and_b32 v{CB + 2 * k + 1}, 0xffff0000, v{XR + 16 + k}")
        for hd in range(4):
            rd_wo(hd)
        self.poll("v4", "s67", "v5")
        self.acquire()
        self.stamp("oflag")

        def ld_o(hd):
            if hd and hd % 4 == 0:
                e(f"s_add_u32 {sC}, {sC}, 4096")
            e(f"buffer_load_dwordx4 {vr(OB + 4 * hd)}, {vL16}, {srd(SRD_WS)}, {sC} offen offset:{(hd % 4) * 1024} sc1", ("o", hd))

        PRE = self.o.get("p3pre", 6)
        for hd in range(PRE):
            ld_o(hd)
        for hd in range(16):
            e.wait(vm=("o", hd), lg=("wo", hd))
            for t in range(4):
                c = "0" if hd == 0 else vr(AC + 4 * t)
                e(f"v_mfma_f32_16x16x32_bf16 {vr(AC + 4 * t)}, {wreg(hd, t)}, {vr(OB + 4 * hd)}, {c}")
                if t == 0 and hd + PRE < 16:
                    ld_o(hd + PRE)
                if hd + 4 < 16:
                    rd_wo(hd + 4, [t])
        self.stamp("oproj")
        for pp in range(2):
            ks = range(8 * pp, 8 * pp + 8)
            for k in ks:
                e(f"v_fmac_f32 v{XR + k}, v{GA + k}, v{AC + k}")
            for k in range(4 * pp, 4 * pp + 4):
                e(f"v_cvt_pk_bf16_f32 v{XR + 16 + k}, v{XR + 2 * k}, v{XR + 2 * k + 1}")
            for k in range(4 * pp, 4 * pp + 4):
                e(f"v_lshlrev_b32 v{XR + 2 * k}, 16, v{XR + 16 + k}")
                e(f"v_and_b32 v{XR + 2 * k + 1}, 0xffff0000, v{XR + 16 + k}")
            for k in ks:
                e(f"v_mul_f32 v{CB + k}, v{CB + k}, v{XR + k}")
            for k in range(4 * pp, 4 * pp + 4):
                e(f"v_cvt_pk_bf16_f32 v{XR + 24 + k}, v{CB + 2 * k}, v{CB + 2 * k + 1}")
            e(f"buffer_store_dwordx4 {vr(XR + 24 + 4 * pp)}, v101, {srd(SRD_WS)}, s64 offen offset:{pp * 2048}{self.sm('z')}")
        e(f"v_add_f32 v6, v{XR}, v{XR + 1}")
        e(f"v_add_f32 v7, v{XR + 2}, v{XR + 3}")
        for k in range(4, 16, 2):
            e(f"v_add_f32 v6, v6, v{XR + k}")
            e(f"v_add_f32 v7, v7, v{XR + k + 1}")
        e("v_add_f32 v6, v6, v7")
        self.reduce_hi2("v6", "v7")
        e(f"v_mul_f32 v11, {fbits(1.0 / 64)}, v6")
        e("v_mov_b32 v7, 0")
        e("v_mov_b32 v10, 0")
        for k in range(0, 16, 2):
            e(f"v_sub_f32 v{GA}, v{XR + k}, v11")
            e(f"v_sub_f32 v{GA + 1}, v{XR + k + 1}, v11")
            e(f"v_fmac_f32 v7, v{GA}, v{GA}")
            e(f"v_fmac_f32 v10, v{GA + 1}, v{GA + 1}")
        e("v_add_f32 v7, v7, v10")
        self.reduce_hi2("v7", "v10")
        e(f"v_lshlrev_b32 v4, 3, {vL}")
        e("s_mov_b64 exec, 0xffff")
        e(f"buffer_store_dwordx2 v[6:7], v4, {srd(SRD_WS)}, s65 offen")
        e("s_mov_b64 exec, -1")
        self.publish("s66", "v8")
        self.stamp("zpub")
        for x in self.wd_loads(self.o.get("wd_z", 12)):
            x()
        e("s_barrier")
        for t in range(4):
            e(f"ds_write_b64 v100, {vr(XR + 16 + 2 * t, 2)} offset:{32 * t}")

    def rot28(self, d):
        e = self.e
        e(f"s_lshl_b32 {d}, {sRB}, 1")
        e(f"s_add_u32 {d}, {d}, {sCG}")
        e(f"s_cmp_ge_u32 {d}, 7")
        e(f"s_cselect_b32 {sBt}, 7, 0")
        e(f"s_sub_u32 {d}, {d}, {sBt}")

    def w4_addr(self):
        e = self.e
        self.tr_addr("v24", 4)
        e("v_xor_b32 v25, 64, v24")
        for k in range(1, 3):
            e(f"v_add_u32 v{24 + 2 * k}, {65536 * k}, v24")
            e(f"v_add_u32 v{25 + 2 * k}, {65536 * k}, v25")

    @staticmethod
    def w4_off(ks, mat):
        a = w4_base(ks >> 1) + mat * 4096 + (ks & 1) * 1024
        return a % 65536, 2 * (a // 65536)

    def p45(self):
        e = self.e
        AC, BR, AR, WD = 128, 64, 224, 0
        XA, XB, R2 = 48, 112, 120
        KS = self.o.get("ks_split", 14)
        NB, DB = 12, self.o.get("zdist", 10)
        self.w4_addr()
        e(f"s_lshl_b32 {sA}, {sW}, 13")
        e(f"s_add_u32 s92, {sA}, {L_RA}")
        steps = [(ks, (0, 1)) for ks in range(KS)] + [(ks, (0,)) for ks in range(KS, 29)] + [(ks, (1,)) for ks in range(KS, 29)]
        seq = [(ks, tt) for ks, tts in steps for tt in tts if ks < 28]
        slot = {x: n % NB for n, x in enumerate(seq)}

        def rd_a1(si, t, hf):
            ks = steps[si][0]
            if ks == 28:
                return
            off, hi = self.w4_off(ks, t >> 1)
            d = AR + 16 * (si % 2) + 4 * t + 2 * hf
            e(f"ds_read_b64_tr_b16 {ar(d, 2)}, v{24 + hi + (t & 1)} offset:{off + 2048 * hf}", ("a", si, t))

        for t in range(4):
            for hf in range(2):
                rd_a1(0, t, hf)
        e(f"v_min_u32 v4, 27, {vL}")
        e(f"v_lshlrev_b32 v4, 2, v4")
        e(f"s_lshl_b32 {sE}, {sI}, 2")
        e(f"s_add_u32 {sE}, {sE}, {sW}")
        e(f"s_lshl_b32 {sA}, {sE}, 7")
        e(f"s_add_u32 {sA}, {sA}, {WS_FLZ}")
        e(f"s_mul_i32 s88, {sE}, 57344")
        e(f"s_add_u32 s88, s88, {WS_Z}")
        e(f"s_add_u32 s89, s88, 28672")
        e(f"s_mul_i32 s64, {sE}, 3584")
        e(f"s_add_u32 s64, s64, {WS_STAT}")
        e(f"s_mul_i32 s65, {sE}, {2 * 114688}")
        e(f"s_lshl_b32 {sBt}, {sR}, 12")
        e(f"s_add_u32 s65, s65, {sBt}")
        e(f"s_add_u32 s65, s65, {WS_HID}")
        e(f"s_add_u32 s66, s65, 114688")
        e(f"s_lshl_b32 s67, {sE}, 6")
        e(f"s_add_u32 s67, s67, {sR}")
        e(f"s_lshl_b32 s67, s67, 2")
        e(f"s_add_u32 s67, s67, {WS_FLD}")
        e(f"s_add_u32 s68, s67, 128")
        e(f"s_lshl_b32 s69, {sI}, 2")
        e(f"s_add_u32 s69, s69, {sRB}")
        e(f"s_lshl_b32 s70, s69, 8")
        e(f"s_mul_i32 {sBt}, {sW}, 28")
        e(f"s_add_u32 s70, s70, {sBt}")
        e(f"s_add_u32 s70, s70, {WS_FLD}")
        e(f"s_mul_i32 s71, s69, {2 * 114688}")
        e(f"s_mul_i32 {sBt}, {sW}, 28672")
        e(f"s_add_u32 s71, s71, {sBt}")
        e(f"s_add_u32 s71, s71, {WS_HID}")
        self.rot28("s74")
        e(f"s_lshl_b32 s75, {sR}, 7")
        e(f"s_add_u32 s75, s75, {WS_FLXA}")
        e(f"s_lshl_b32 s76, {sR}, 12")
        e(f"s_add_u32 s76, s76, {WS_XA}")
        e(f"s_lshl_b32 s77, s69, 3")
        e(f"s_add_u32 s77, s77, {sW}")
        e(f"s_mul_i32 s77, s77, 7168")
        e(f"s_lshl_b32 {sBt}, {sCG}, 7")
        e(f"s_add_u32 s77, s77, {sBt}")
        e(f"s_add_u32 s78, s77, {32 * 896}")
        self.poll("v4", sA, "v5")
        self.acquire()
        self.stamp("zflag")

        def ld_z(n):
            if self.o.get("skip_z") and n >= 12:
                return
            ks, tt = seq[n]
            if ks and ks % 4 == 0:
                e(f"s_add_u32 s{88 + tt}, s{88 + tt}, 4096")
            e(f"buffer_load_dwordx4 {vr(BR + 4 * slot[seq[n]])}, {vL16}, {srd(SRD_WS)}, s{88 + tt} offen offset:{(ks % 4) * 1024} sc1", ("z", n))

        first = self.o.get("zfirst", 6)
        for n in range(first):
            ld_z(n)

        def ld_stat(cg):
            if cg == 0:
                e(f"v_lshlrev_b32 v4, 3, {vL}")
            e(f"buffer_load_dwordx2 {vr(32 + 2 * cg, 2)}, v4, {srd(SRD_WS)}, s64 offen offset:{cg * 512} sc1", "stat")

        def stats(e):
            e("v_add_f32 v4, v32, v34")
            e("v_add_f32 v5, v36, v38")
            e("v_add_f32 v6, v40, v42")
            e("v_add_f32 v4, v4, v5")
            e("v_add_f32 v6, v6, v44")
            e("v_add_f32 v4, v4, v6")
            e(f"v_mul_f32 v4, {fbits(1.0 / 448)}, v4")
            e("v_add_f32 v5, v33, v35")
            e("v_add_f32 v6, v37, v39")
            e("v_add_f32 v7, v41, v43")
            e("v_add_f32 v5, v5, v6")
            e("v_add_f32 v7, v7, v45")
            e("v_add_f32 v5, v5, v7")
            e(f"v_mov_b32 v7, {fbits(1.0 / 64)}")
            e("v_mov_b32 v6, 0")
            for cg in range(7):
                e(f"v_fma_f32 v46, v{32 + 2 * cg}, v7, -v4")
                e("v_fmac_f32 v6, v46, v46")
            e(f"v_mul_f32 v6, {fbits(64.0)}, v6")
            e("v_add_f32 v5, v5, v6")
            e(f"v_mul_f32 v5, {fbits(1.0 / 448)}, v5")
            e(f"v_add_f32 v5, {fbits(1e-5)}, v5")
            e(f"v_rcp_f32 v{R2}, v5")
            e("v_sqrt_f32 v5, v5")
            e("v_sub_f32 v4, 0, v4")
            e("v_cvt_pk_bf16_f32 v6, v4, v5")
            e("v_lshlrev_b32 v7, 16, v6")
            e("v_and_b32 v46, 0xffff0000, v6")
            e("v_sub_f32 v4, v4, v7")
            e("v_sub_f32 v5, v5, v46")
            e("v_cvt_pk_bf16_f32 v7, v4, v5")
            e(f"s_mov_b32 {sA}, 0x01000100")
            e(f"s_mov_b32 {sBt}, 0x03020504")
            e(f"s_mov_b32 {sC}, 0x07060302")
            e(f"v_perm_b32 v{XB}, v7, v6, {sA}")
            e(f"v_perm_b32 v{XB + 1}, v7, v6, {sBt}")
            e(f"v_perm_b32 v{XB + 2}, v7, v6, {sC}")
            e(f"v_mov_b32 v{XB + 3}, 0")
            e(f"v_mov_b32 v{XB + 7}, 0")
            for k in range(3):
                e(f"v_mov_b32 v{XB + 4 + k}, v{XB + k}")
            e(f"v_mov_b32 v{R2 + 1}, v{R2}")
            for k in range(3):
                e(f"v_permlane32_swap_b32 v{XB + k}, v{XB + 4 + k}")
            e(f"v_permlane32_swap_b32 v{R2}, v{R2 + 1}")

        def epi4(tt):
            out = []
            for ct in range(2):
                g, u = AC + 64 * tt + 16 * ct, AC + 64 * tt + 32 + 16 * ct
                for k in range(8):
                    for r in (2 * k, 2 * k + 1):
                        out.append(f"v_max_f32 v{g + r}, 0, v{g + r}")
                        out.append(f"v_mul_f32 v{u + r}, v{R2 + tt}, v{u + r}")
                    for r in (2 * k, 2 * k + 1):
                        out.append(f"v_mul_f32 v{g + r}, v{g + r}, v{u + r}")
                    out.append(f"v_cvt_pk_bf16_f32 v{g + k}, v{g + 2 * k}, v{g + 2 * k + 1}")
                    if k % 4 == 3:
                        s = k // 4
                        out.append((f"buffer_store_dwordx4 {vr(g + 4 * s)}, {vL16}, {srd(SRD_WS)}, s{65 + tt} offen offset:{(2 * ct + s) * 1024} sc1", ("hs", tt)))
            return [(lambda x=x: e(x)) if isinstance(x, str) else (lambda x=x: e(x[0], x[1])) for x in out]

        def flag_hid(tt):
            e.wait(vm=("hs", tt))
            e(f"v_mov_b32 v7, {sTAG}")
            slow, dn = e.label("slowfl"), e.label("fl")
            e("s_mov_b64 exec, 1")
            e(f"s_cmp_lg_u32 {sFAST}, 0")
            e(f"s_cbranch_scc0 {slow}")
            e(f"buffer_store_dword v7, off, {srd(SRD_WS)}, s{67 + tt}")
            e(f"s_branch {dn}")
            e(f"{slow}:")
            e(f"buffer_store_dword v7, off, {srd(SRD_WS)}, s{67 + tt} sc1")
            e(f"{dn}:")
            e.vm.pop()
            e("s_mov_b64 exec, -1")

        def xa_issue():
            e(f"v_and_b32 v30, 3, {vL}")
            e(f"v_lshlrev_b32 v30, 2, v30")
            self.poll_issue("v30", "s75", "v31", "xafl")

        def poll_xa():
            self.poll_check("v30", "s75", "v31", "xafl")
            for t in range(4):
                e(f"buffer_load_dwordx4 {vr(XA + 4 * t)}, {vL16}, {srd(SRD_WS)}, s76 offen offset:{t * 1024} sc1", "xa")

        ring5 = [128 + 4 * k for k in range(8)] + [32 + 4 * k for k in range(4)] + [16, 20]
        N5, D5 = len(ring5), self.o.get("hdist", 10)

        def hid_issue(tt):
            if tt == 0:
                e(f"v_min_u32 v30, 6, {vL}")
                e(f"v_lshlrev_b32 v30, 2, v30")
            self.poll_issue("v30", "s70", "v31", ("hfl", tt), imm=128 * tt)

        def poll_hid(tt):
            self.poll_check("v30", "s70", "v31", ("hfl", tt), imm=128 * tt)
            self.stamp("hid%d" % tt)

        def ld_hid(n):
            if n == 28:
                e("s_add_u32 s71, s71, 114688")
            if n % 4 == 0:
                e("s_lshl_b32 s80, s74, 12")
                e("s_add_u32 s80, s80, s71")
                e("s_add_u32 s74, s74, 1")
                e("s_cmp_eq_u32 s74, 7")
                e("s_cselect_b32 s74, 0, s74")
            e(f"buffer_load_dwordx4 {vr(ring5[n % N5])}, {vL16}, {srd(SRD_WS)}, s80 offen offset:{(n % 4) * 1024} sc1", ("d", n))

        main, fill = [], {}
        gap0 = []
        nseq = 0
        for si, (ks, tts) in enumerate(steps):
            gap0.append(len(main))
            d = AR + 16 * (si % 2)
            for t in range(4):
                for tt in tts:
                    def m(si=si, ks=ks, t=t, tt=tt, d=d, n=nseq + tts.index(tt), lead=(tt == tts[0])):
                        if ks < 28:
                            e.wait(vm=("z", n) if t == 0 else None, lg=("a", si, t) if lead else None)
                            a, b = ar(d + 4 * t), vr(BR + 4 * slot[(ks, tt)])
                        else:
                            e.wait(vm="xa")
                            a, b = vr(XA + 4 * t), vr(XB + 4 * tt)
                        acc = AC + 64 * tt + 16 * t
                        c = "0" if ks == 0 else vr(acc, 16)
                        e(f"v_mfma_f32_32x32x16_bf16 {vr(acc, 16)}, {a}, {b}, {c}")
                    main.append(m)
            g, ng = gap0[si], 4 * len(tts)
            if si + 1 < len(steps):
                self.spread(fill, [lambda si=si, t=t, hf=hf: rd_a1(si + 1, t, hf) for t in range(4) for hf in range(2)], g, g + ng)
            if ks < 28:
                nseq += len(tts)
        n4 = len(main)
        use = {}
        n = 0
        for si, (ks, tts) in enumerate(steps):
            for k, tt in enumerate(tts):
                if ks < 28:
                    use[n] = gap0[si] + 4 * k
                    n += 1
        prev = -1
        for n in range(first, len(seq)):
            gpos = max(use[n - DB] if n >= DB else 0, prev + 1)
            prev = gpos
            fill.setdefault(gpos, []).append(lambda n=n: ld_z(n))
        npf = self.o.get("e2", 5)
        rest = list(range(npf, 14))
        step = self.o.get("wg_step", 6)
        pos = {}
        for k, p in enumerate(rest):
            for mat in range(2):
                pos[(p, mat)] = self.o.get("wg0", 4) + (2 * k + mat) * step
                if not self.o.get("skip_wg"):
                    fill.setdefault(pos[(p, mat)], []).append(lambda p=p, mat=mat: self.wgu_piece(p, mat, ("wg", p)))
        self.spread(fill, [lambda cg=cg: ld_stat(cg) for cg in range(7)], 40, 54)
        grp = self.o.get("wg_grp", 3)
        for k in range(0, len(rest), grp):
            last = rest[min(k + grp, len(rest)) - 1]
            gb = gap0[2 * rest[k] - 1] - 1
            assert gb > pos[(last, 1)], (gb, pos[(last, 1)])

            def bar(last=last):
                e.wait(vm=("wg", last))
                e("s_barrier")
            fill.setdefault(gb, []).append(bar)
        for gs, nm in ((40, "g40"), (96, "g96"), (gap0[29], "tail1"), (200, "g200")):
            fill.setdefault(gs, []).append(lambda nm=nm: self.stamp(nm))
        fill.setdefault(80, []).append(lambda: e.wait(vm="stat"))
        self.spread(fill, self.record(stats), 81, 120)
        end0 = gap0[KS + 29 - KS]
        fill.setdefault(end0 - 56, []).append(xa_issue)
        fill.setdefault(end0 - 32, []).append(poll_xa)
        self.spread(fill, self.wd_loads(28), self.o.get("wd0", 112), min(self.o.get("wd1", 200), n4 - 12))
        self.spread(fill, epi4(0), end0 + 1, end0 + self.o.get("ep0", 26))
        fill.setdefault(end0 + self.o.get("fl0", 40), []).append(lambda: flag_hid(0))
        pre5 = self.o.get("p5pre", 6)
        gp0 = n4 - self.o.get("poll0", 8)
        fill.setdefault(gp0 - self.o.get("pgap", 8), []).append(lambda: hid_issue(0))
        fill.setdefault(gp0, []).append(lambda: poll_hid(0))
        self.spread(fill, [lambda n=n: ld_hid(n) for n in range(pre5)], gp0 + 1, n4)
        acc5 = [160, 224]
        for n in range(56):
            tt, j = divmod(n, 28)
            for ct in range(2):
                def m(n=n, tt=tt, j=j, ct=ct):
                    if n == 0 and ct == 0:
                        self.stamp("gemm4")
                    if ct == 0:
                        e.wait(vm=("d", n))
                    acc = acc5[tt] + 16 * ct
                    c = "0" if j == 0 else vr(acc, 16)
                    e(f"v_mfma_f32_32x32x16_bf16 {vr(acc, 16)}, {ar(WD + 8 * j + 4 * ct)}, {vr(ring5[n % N5])}, {c}")
                main.append(m)
        gp1 = n4 + self.o.get("poll1", 50)
        fill.setdefault(gp1 - self.o.get("pgap", 8), []).append(lambda: hid_issue(1))
        fill.setdefault(gp1, []).append(lambda: poll_hid(1))
        prev = n4 - 1
        for n in range(pre5, 56):
            gpos = max(n4 + 2 * (n - D5), prev + 1)
            if n >= 28:
                gpos = max(gpos, gp1)
            prev = gpos
            fill.setdefault(gpos, []).append(lambda n=n: ld_hid(n))
        self.spread(fill, epi4(1), n4 + 1, n4 + 22)
        fill.setdefault(n4 + self.o.get("fl1", 32), []).append(lambda: flag_hid(1))

        def red_addr(e):
            e(f"v_and_b32 v4, 31, {vL}")
            e(f"v_and_b32 v5, 7, {vL}")
            e(f"v_lshrrev_b32 v6, 5, {vL}")
            e("v_xor_b32 v5, v5, v6")
            e("v_lshlrev_b32 v4, 8, v4")
            e("v_add_u32 v4, s92, v4")
            for p in range(8):
                e(f"v_xor_b32 v6, {2 * p}, v5")
                e(f"v_lshl_add_u32 v{64 + p}, v6, 4, v4")
            e(f"v_lshrrev_b32 v4, 3, {vL}")
            e(f"v_and_b32 v6, 7, {vL}")
            e("v_lshlrev_b32 v5, 1, v6")
            e("v_xor_b32 v5, v5, v4")
            e(f"s_lshl_b32 {sA}, {sW}, 11")
            e(f"s_add_u32 {sA}, {sA}, {L_RA}")
            e(f"v_lshl_add_u32 v7, v4, 8, {sA}")
            e("v_lshl_add_u32 v72, v5, 4, v7")
            e("v_xor_b32 v73, 16, v72")
            e("v_mul_u32_u24 v4, 896, v4")
            e("v_lshl_add_u32 v74, v6, 4, v4")
            e("v_lshlrev_b32 v6, 5, v6")
            e(f"ds_read_b128 v[76:79], v6 offset:{L_GAB + 256}")
            e(f"ds_read_b128 v[80:83], v6 offset:{L_GAB + 272}")
            e(f"s_lshl_b32 {sA}, {sW}, 10")
            e(f"s_add_u32 {sA}, {sA}, {L_X1}")
            e(f"v_add_u32 v75, {sA}, {vL16}")

        self.spread(fill, self.record(red_addr), n4 + 22, n4 + 32)

        def red_write(tt):
            out = []
            for ct in range(2):
                for q in range(4):
                    out.append(f"ds_write_b128 v{64 + 4 * ct + q}, {vr(acc5[tt] + 16 * ct + 4 * q)}")
            return out

        def red_final(tt):
            out = [f"ds_read_b128 v[84:87], v75 offset:{tt * 4096}"]
            for n in range(2):
                for s in range(4):
                    out.append(f"ds_read_b128 {vr(88 + 16 * n + 4 * s)}, v{72 + n} offset:{s * 8192}")
            out.append("s_waitcnt lgkmcnt(4)")
            for k in range(4):
                out.append(f"v_lshlrev_b32 v{120 + 2 * k}, 16, v{84 + k}")
                out.append(f"v_and_b32 v{121 + 2 * k}, 0xffff0000, v{84 + k}")
            for n in range(2):
                b = 88 + 16 * n
                if n == 1:
                    out.append("s_waitcnt lgkmcnt(0)")
                for k in range(4):
                    out.append(f"v_add_f32 v{b + k}, v{b + k}, v{b + 4 + k}")
                    out.append(f"v_add_f32 v{b + 8 + k}, v{b + 8 + k}, v{b + 12 + k}")
                for k in range(4):
                    out.append(f"v_add_f32 v{b + k}, v{b + k}, v{b + 8 + k}")
                for k in range(4):
                    out.append(f"v_fmac_f32 v{120 + 4 * n + k}, v{76 + 4 * n + k}, v{b + k}")
                out.append(f"v_cvt_pk_bf16_f32 v{84 + 2 * n}, v{120 + 4 * n}, v{121 + 4 * n}")
                out.append(f"v_cvt_pk_bf16_f32 v{85 + 2 * n}, v{122 + 4 * n}, v{123 + 4 * n}")
            out.append(f"buffer_store_dwordx4 v[84:87], v74, {srd(SRD_OUT)}, s{77 + tt} offen{self.sm('out')}")
            return out

        g5 = n4 + 56
        self.spread(fill, [lambda x=x: e(x) for x in red_write(0)], g5 + 2, g5 + 10)
        shift = L_RB - L_RA

        def bar5():
            e("s_waitcnt lgkmcnt(0)")
            e("s_barrier")
        fill.setdefault(g5 + 14, []).append(bar5)
        fin = red_final(0)
        fin += [f"v_add_u32 v{64 + p}, {shift}, v{64 + p}" for p in range(10)]
        self.spread(fill, [lambda x=x: e(x) for x in fin], g5 + 15, g5 + 50)
        self.merge(main, fill)
        self.stamp("gemm5")
        for x in red_write(1):
            e(x)
        bar5()
        for x in red_final(1):
            e(x)
        self.stamp("end")
        e("s_branch L_fin")

    def spare(self):
        e = self.e
        e.vm, e.lg = [], []
        AR = 224
        e("L_spare:")
        e(f"s_sub_u32 {sA}, {sR}, 28")
        e(f"s_lshl_b32 {sA}, {sA}, 3")
        e(f"s_add_u32 {sA}, {sA}, {sI}")
        e(f"s_cmp_lt_u32 {sA}, 28")
        e("s_cbranch_scc1 L_bias")
        e(f"s_cmp_lg_u32 {sA}, 31")
        e("s_cbranch_scc1 L_fin")
        e(f"s_cmp_lg_u32 {sW}, 0")
        e("s_cbranch_scc1 L_fin")
        self.bump_epoch()
        e("s_branch L_fin")
        e("L_bias:")
        for p in list(range(self.o.get("e1b", self.o.get("e1", 0)))) + list(range(self.o.get("e2", 5), 14)):
            for mat in range(2):
                self.wgu_piece(p, mat)
        self.w4_addr()
        e(f"s_and_b32 {sA}, {sW}, 1")
        e(f"s_lshl_b32 {sA}, {sA}, 6")
        e(f"v_xor_b32 v26, {sA}, v24")
        e(f"s_lshr_b32 {sA}, {sW}, 1")
        e(f"s_lshl_b32 {sA}, {sA}, 12")
        e(f"v_add_u32 v26, {sA}, v26")
        e(f"v_add_u32 v28, 65536, v26")
        e(f"v_add_u32 v30, 131072, v26")
        e(f"v_and_b32 v4, 1, {vL}")
        e(f"v_mul_u32_u24 v4, 896, v4")
        e(f"v_lshrrev_b32 v5, 5, {vL}")
        e(f"v_lshl_add_u32 v27, v5, 4, v4")
        e("s_waitcnt vmcnt(0)")
        e("s_barrier")

        def rd_b(ks):
            d = AR + 8 * (ks % 4)
            off, hi = self.w4_off(ks, 0)
            e(f"ds_read_b128 {ar(d)}, v27 offset:{L_CVEC + ks * 32}", ("b", ks))
            e(f"ds_read_b64_tr_b16 {ar(d + 4, 2)}, v{26 + hi} offset:{off}", ("b", ks))
            e(f"ds_read_b64_tr_b16 {ar(d + 6, 2)}, v{26 + hi} offset:{off + 2048}", ("b", ks))

        for ks in range(3):
            rd_b(ks)
        for ks in range(28):
            e.wait(lg=("b", ks))
            d = AR + 8 * (ks % 4)
            c = "0" if ks == 0 else vr(32, 16)
            e(f"v_mfma_f32_32x32x16_bf16 {vr(32, 16)}, {ar(d)}, {ar(d + 4)}, {c}")
            if ks + 3 < 28:
                rd_b(ks + 3)
        e("v_cvt_pk_bf16_f32 v4, v32, v33")
        e("v_lshlrev_b32 v5, 16, v4")
        e("v_and_b32 v6, 0xffff0000, v4")
        e("v_sub_f32 v5, v32, v5")
        e("v_sub_f32 v6, v33, v6")
        e("v_cvt_pk_bf16_f32 v5, v5, v6")
        e(f"s_mov_b32 {sA}, 0x05040100")
        e(f"s_mov_b32 {sBt}, 0x03020706")
        e(f"v_perm_b32 v48, v5, v4, {sA}")
        e("v_mov_b32 v49, v4")
        e(f"v_perm_b32 v50, v5, v4, {sBt}")
        e("v_mov_b32 v51, 0")
        for k in range(3):
            e(f"v_cndmask_b32 v{48 + k}, v{48 + k}, 0, {sHI}")
        e(f"s_lshl_b32 {sA}, {sFG}, 2")
        e(f"s_add_u32 {sA}, {sA}, {sW}")
        e(f"s_lshl_b32 {sA}, {sA}, 10")
        e(f"s_add_u32 {sA}, {sA}, {WS_XA}")
        e(f"buffer_store_dwordx4 v[48:51], {vL16}, {srd(SRD_WS)}, {sA} offen sc1")
        e(f"s_lshl_b32 {sA}, {sFG}, 5")
        e(f"s_add_u32 {sA}, {sA}, {sW}")
        e(f"s_lshl_b32 {sA}, {sA}, 2")
        e(f"s_add_u32 {sA}, {sA}, {WS_FLXA}")
        self.publish(sA, "v7", local=False)
        e("s_branch L_fin")

    def finish(self):
        e = self.e
        e("L_fin:")
        if self.ts:
            e("s_lshl_b32 s88, s2, 2")
            e(f"s_add_u32 s88, s88, {sW}")
            e("s_lshl_b32 s88, s88, 8")
            e(f"s_add_u32 s88, s88, {WS_TS}")
            e(f"v_lshlrev_b32 v4, 2, {vL}")
            e(f"buffer_store_dword {vTS}, v4, {srd(SRD_WS)}, s88 offen")
        e("L_end:")
        e("s_endpgm")

    def build(self):
        phases = [self.entry, self.front, self.p1, self.p2, self.p3, self.p45, self.spare, self.helper]
        for ph in phases:
            self.e(f"; ---- {ph.__name__}")
            ph()
            if self.stop_after == ph.__name__:
                break
        self.finish()
        body, nops = self.e.text()
        head = open(f"cdna_kernels/{NAME}.s.ref").read().split("; Override launch")[0]
        txt = head
        txt += f"; @launch grid=(256,1,1) block=(256,1,1) lds={LDS_BYTES}\n"
        txt += '.amdgcn_target "amdgcn-amd-amdhsa--gfx950"\n.text\n'
        txt += f".globl {NAME}_kernel\n.p2align 8\n.type {NAME}_kernel,@function\n{NAME}_kernel:\n"
        txt += body
        txt += '.section .rodata,"a"\n.p2align 6\n'
        txt += f".amdhsa_kernel {NAME}_kernel\n"
        txt += ("  .amdhsa_next_free_vgpr 512\n  .amdhsa_next_free_sgpr 102\n  .amdhsa_accum_offset 256\n"
                "  .amdhsa_group_segment_fixed_size 0\n  .amdhsa_kernarg_size 96\n  .amdhsa_user_sgpr_count 2\n"
                "  .amdhsa_user_sgpr_kernarg_segment_ptr 1\n  .amdhsa_system_sgpr_workgroup_id_x 1\n"
                "  .amdhsa_float_denorm_mode_32 3\n"
                ".end_amdhsa_kernel\n")
        return txt, nops


def parse_opts(args):
    o = {}
    for a in args:
        k, v = a.split("=")
        o[k] = int(v)
    return o


if __name__ == "__main__":
    out = sys.argv[1]
    o = parse_opts(sys.argv[2:])
    g = Gen(ts=bool(o.pop("ts", 0)), opts=o)
    txt, nops = g.build()
    open(out, "w").write(txt)
    if g.ts:
        open(out + ".ts", "w").write("\n".join(g.ts_names))
    print("written", out, "lines", txt.count("\n"), "nop pads", nops)
```

```python
import math
import struct
import sys

sys.path.insert(0, "work")
from emit import Emit

NAME = "adaLN_cond__sliding_block__glu_gated_reglu__prompt"

WS_EPOCH = 0x0
WS_XCC = 0xa0000
WS_FLH = 0x1000
WS_FLO = 0x2000
WS_FLZ = 0x3000
WS_FLD = 0x4000
WS_FLXA = 0x6000
WS_FLW = 0xb0000
WS_FLKV = 0x20000
WS_MODP = 0x10000
WS_STAT = 0xd0000
WS_TS = 0x40000
WS_XA = 0x80000
WS_H = 0x110000
WS_Z = WS_H
WS_O = 0x300000
WS_KV = 0x500000
WS_HID = 0x900000
WS_WD = 0x1000000
WS_SIZE = 0x1200000

L_CVEC = 0
L_MODR = 2560
L_GAB = 1792
L_WKV, L_WQ = 3584, 60928
L_KV = 3584
L_XS = 52736
L_WO = 105984
L_PAD = 163328
L_SCR = 97792
L_HX = 105984
L_HS = 89600
L_RP = 122880
L_X1 = 122368
L_RA = 130560
L_RB = 3584
LDS_BYTES = 163840


def w4_base(p):
    if p <= 1:
        return 89600 + p * 8192
    if p <= 4:
        return 61440 + (p - 2) * 8192
    if p <= 11:
        return 3584 + (p - 5) * 8192
    return 105984 + (p - 12) * 8192


SRD_X, SRD_WQKV, SRD_WO, SRD_WG, SRD_WU, SRD_WD = 4, 8, 12, 16, 20, 24
SRD_C, SRD_WM, SRD_OUT, SRD_DBG, SRD_WS = 28, 32, 36, 40, 44
sI, sR, sW, sH, sB, sT, sTAG, sFAST = "s48", "s49", "s50", "s51", "s52", "s53", "s54", "s55"
sA, sBt, sC, sD, sE = "s56", "s57", "s58", "s59", "s60"
sRB, sCG, sSPIN = "s61", "s62", "s63"
SMASK = 64
sHI, sHIp = "s[96:97]", 96
sTSp = 0
sADJ = "s3"
sFG = "s98"
sWD = "s52"
sJ, sU = "s40", "s41"

vL, vL16, vTS, vE = "v0", "v1", "v2", "v3"

SPIN_MAX = 1 << 17


def srd(n):
    return f"s[{n}:{n + 3}]"


def vr(n, k=4):
    return f"v[{n}:{n + k - 1}]" if k > 1 else f"v{n}"


def ar(n, k=4):
    return f"a[{n}:{n + k - 1}]" if k > 1 else f"a{n}"


def fbits(x):
    return "0x%08x" % struct.unpack("<I", struct.pack("<f", x))[0]


class Gen:
    def __init__(self, ts=False, stop_after=None, opts=None):
        self.e = Emit()
        self.ts = ts
        self.stop_after = stop_after
        self.o = dict(opts or {})
        self.nts = 0
        self.jb = 16 if self.o.get('jobs_front', 0) == 1 else 104
        self.ts_names = []

    def stamp(self, name, again=False):
        if not self.ts:
            return
        if self.o.get("ts_min") and name not in ("start", "end"):
            return
        e = self.e
        if again:
            self.nts_keep, self.nts = self.nts, self.ts_names.index(name)
        e(f"s_memrealtime s[{sTSp}:{sTSp + 1}]")
        e("s_waitcnt lgkmcnt(0)")
        e(f"v_writelane_b32 {vTS}, s{sTSp}, {self.nts}")
        if self.o.get("clk"):
            e(f"s_memtime s[{sTSp}:{sTSp + 1}]")
            e("s_waitcnt lgkmcnt(0)")
            e(f"v_writelane_b32 {vTS}, s{sTSp}, {self.nts + 32}")
        if again:
            self.nts = self.nts_keep
            return
        self.ts_names.append(name)
        self.nts += 1

    def poll(self, voff, soff, vtmp, imm=0):
        e = self.e
        lp, dn = e.label("poll"), e.label("polled")
        e(f"s_mov_b32 {sSPIN}, 0")
        e(f"{lp}:")
        e(f"buffer_load_dword {vtmp}, {voff}, {srd(SRD_WS)}, {soff} offen offset:{imm} sc1")
        e(f"s_add_u32 {sSPIN}, {sSPIN}, 1")
        e(f"s_cmp_ge_u32 {sSPIN}, {SPIN_MAX}")
        e("s_waitcnt vmcnt(0)")
        e(f"s_cbranch_scc1 {dn}")
        e(f"v_cmp_ne_u32 vcc, {sTAG}, {vtmp}")
        e(f"s_cbranch_vccnz {lp}")
        e(f"{dn}:")

    def poll_issue(self, voff, soff, vtmp, tag, imm=0):
        self.e(f"buffer_load_dword {vtmp}, {voff}, {srd(SRD_WS)}, {soff} offen offset:{imm} sc1", tag)

    def poll_check(self, voff, soff, vtmp, tag, imm=0):
        e = self.e
        lp, dn = e.label("chk"), e.label("chkd")
        e.wait(vm=tag)
        keep = list(e.vm)
        e(f"v_cmp_ne_u32 vcc, {sTAG}, {vtmp}")
        e(f"s_cbranch_vccz {dn}")
        e(f"s_mov_b32 {sSPIN}, 0")
        e(f"{lp}:")
        e(f"buffer_load_dword {vtmp}, {voff}, {srd(SRD_WS)}, {soff} offen offset:{imm} sc1")
        e(f"s_add_u32 {sSPIN}, {sSPIN}, 1")
        e(f"s_cmp_ge_u32 {sSPIN}, {SPIN_MAX}")
        e("s_waitcnt vmcnt(0)")
        e(f"s_cbranch_scc1 {dn}")
        e(f"v_cmp_ne_u32 vcc, {sTAG}, {vtmp}")
        e(f"s_cbranch_vccnz {lp}")
        e(f"{dn}:")
        e.vm = keep

    def acquire(self):
        e = self.e
        sk = e.label("acq")
        e(f"s_cmp_lg_u32 {sFAST}, 0")
        e(f"s_cbranch_scc1 {sk}")
        e("buffer_inv sc1")
        e("s_waitcnt vmcnt(0)")
        e(f"{sk}:")

    def publish(self, soff, vtmp, local=True, second=None, younger=0):
        e = self.e
        e(f"s_waitcnt vmcnt({younger})")
        keep = list(e.vm)
        e(f"v_mov_b32 {vtmp}, {sTAG}")
        if local:
            slow, dn = e.label("slowpub"), e.label("pub")
            e(f"s_cmp_lg_u32 {sFAST}, 0")
            e(f"s_cbranch_scc0 {slow}")
            e("s_mov_b64 exec, 1")
            e(f"buffer_store_dword {vtmp}, off, {srd(SRD_WS)}, {soff}")
            if second:
                e(f"buffer_store_dword {vtmp}, off, {srd(SRD_WS)}, {soff} offset:{second}")
            e(f"s_branch {dn}")
            e(f"{slow}:")
            e("buffer_wbl2 sc1")
            e("s_waitcnt vmcnt(0)")
            e("s_mov_b64 exec, 1")
            e(f"buffer_store_dword {vtmp}, off, {srd(SRD_WS)}, {soff} sc1")
            if second:
                e(f"buffer_store_dword {vtmp}, off, {srd(SRD_WS)}, {soff} offset:{second} sc1")
            e(f"{dn}:")
        else:
            e("s_mov_b64 exec, 1")
            e(f"buffer_store_dword {vtmp}, off, {srd(SRD_WS)}, {soff} sc1")
        e("s_mov_b64 exec, -1")
        e.vm = keep + ["flag"]

    def round_bf16(self, regs, tmp):
        e = self.e
        for a, b in zip(regs[::2], regs[1::2]):
            e(f"v_cvt_pk_bf16_f32 {tmp}, {a}, {b}")
            e(f"v_lshlrev_b32 {a}, 16, {tmp}")
            e(f"v_and_b32 {b}, 0xffff0000, {tmp}")

    def dma(self, voff, srdn, soff, lds, tag, mods=""):
        e = self.e
        e(f"s_mov_b32 m0, {lds}")
        e(f"buffer_load_dwordx4 {voff}, {srd(srdn)}, {soff} offen {mods} lds", tag)

    def sm(self, what):
        return {0: "", 1: " sc1", 2: " nt", 3: " sc0 sc1"}[self.o.get("sm_" + what, 1 if what == "h" else 0)]

    def merge(self, main, fill):
        for i, m in enumerate(main):
            m()
            for f in fill.get(i, []):
                f()

    @staticmethod
    def spread(fill, items, lo, hi):
        n = len(items)
        for k, it in enumerate(items):
            fill.setdefault(lo + (k * (hi - lo)) // max(n, 1), []).append(it)

    def entry(self):
        e = self.e
        e("s_cmp_ge_u32 s2, 256")
        e("s_cbranch_scc1 L_end")
        e("s_load_dwordx16 s[64:79], s[0:1], 0")
        e("s_load_dwordx8 s[80:87], s[0:1], 64")
        K = NAME + "_kernel"
        e("s_getpc_b64 s[88:89]")
        e("L_pc:")
        e(f"s_lshr_b32 {sR}, s2, 3")
        e(f"s_add_u32 {sR}, {sR}, 28")
        e(f"s_and_b32 {sR}, {sR}, 31")
        e(f"s_mul_i32 {sA}, {sR}, 12")
        e(f"s_cmp_ge_u32 {sR}, 28")
        e(f"s_cselect_b32 {sBt}, (L_helper-L_pc)/128, 0")
        e("v_min_u32 v4, 11, v0")
        e(f"v_add_u32 v4, {sA}, v4")
        e("v_and_b32 v5, 63, v0")
        e(f"v_add_u32 v5, {sBt}, v5")
        e("v_cmp_gt_u32 vcc, 64, v0")
        e("v_cndmask_b32 v4, v5, v4, vcc")
        e("v_lshlrev_b32 v4, 7, v4")
        e("v_min_u32 v4, L_end-L_pc, v4")
        e("v_cmp_gt_u32 vcc, 128, v0")
        e("s_and_saveexec_b64 s[90:91], vcc")
        e("s_cbranch_execz L_nopf")
        e("global_load_dword v127, v4, s[88:89]")
        e("L_nopf:")
        e("s_mov_b64 exec, -1")
        e.vm = []
        if self.ts:
            e(f"v_mov_b32 {vTS}, 0")
        self.stamp("start")
        e(f"v_lshrrev_b32 v4, 6, v0")
        e(f"v_and_b32 {vL}, 63, v0")
        e(f"v_readfirstlane_b32 {sW}, v4")
        e(f"v_lshlrev_b32 {vL16}, 4, {vL}")
        e(f"s_and_b32 {sI}, s2, 7")
        e(f"s_lshr_b32 {sH}, {sR}, 1")
        e(f"s_sub_u32 {sA}, {sR}, 28")
        e(f"s_lshl_b32 {sA}, {sA}, 3")
        e(f"s_add_u32 {sA}, {sA}, {sI}")
        e(f"s_min_u32 {sA}, {sA}, 27")
        e(f"s_cmp_lt_u32 {sR}, 28")
        e(f"s_cselect_b32 {sFG}, {sR}, {sA}")
        e(f"s_and_b32 {sB}, {sR}, 1")
        e(f"s_lshl_b32 {sT}, {sI}, 1")
        e(f"s_add_u32 {sT}, {sT}, {sB}")
        e(f"s_lshl_b32 {sT}, {sT}, 2")
        e(f"s_add_u32 {sT}, {sT}, {sW}")
        e(f"s_mul_i32 {sRB}, {sR}, 37")
        e(f"s_lshr_b32 {sRB}, {sRB}, 8")
        e(f"s_mul_i32 {sA}, {sRB}, 7")
        e(f"s_sub_u32 {sCG}, {sR}, {sA}")
        e(f"s_cmp_eq_u32 {sH}, 15")
        e(f"s_cselect_b32 {sADJ}, 8, 0")
        e(f"s_mov_b32 s{sHIp}, 0")
        e(f"s_mov_b32 s{sHIp + 1}, -1")
        sizes = {SRD_X: 1835008, SRD_WQKV: 1204224, SRD_WO: 401408, SRD_WG: 1605632, SRD_WU: 1605632, SRD_WD: 1605632,
                 SRD_C: 896, SRD_WM: 2408448, SRD_OUT: 1835008, SRD_WS: WS_SIZE}
        for n, sz in sizes.items():
            e(f"s_mov_b32 s{n + 2}, {sz}")
            e(f"s_mov_b32 s{n + 3}, 0x00020000")
        e("s_waitcnt lgkmcnt(0)")
        src = {SRD_WS: 86, SRD_C: 78, SRD_WM: 80, SRD_X: 64, SRD_WQKV: 66, SRD_WO: 68, SRD_WG: 72, SRD_WU: 74, SRD_WD: 76,
               SRD_OUT: 82}
        for n, s in src.items():
            e(f"s_mov_b64 s[{n}:{n + 1}], s[{s}:{s + 1}]")

    def reduce_hi3(self, a, t):
        e = self.e
        e(f"v_add_f32_dpp {a}, {a}, {a} row_ror:8 row_mask:0xf bank_mask:0xf")
        self.reduce_hi2(a, t)

    def reduce_hi2(self, a, t, op="v_add_f32"):
        e = self.e
        e(f"v_mov_b32 {t}, {a}")
        e(f"v_permlane16_swap_b32 {a}, {t}")
        e(f"{op} {a}, {a}, {t}")
        e(f"v_mov_b32 {t}, {a}")
        e(f"v_permlane32_swap_b32 {a}, {t}")
        e(f"{op} {a}, {a}, {t}")

    def gather_issue(self, voff, g0):
        e = self.e
        for q in range(4):
            e(f"s_mov_b32 {sA}, {WS_MODP + q * 10752}")
            e(f"buffer_load_dwordx4 {vr(g0 + 4 * q)}, {voff}, {srd(SRD_WS)}, {sA} offen sc1", "gath")

    def gather_finish(self, voff, g0, t0):
        e = self.e
        lp, dn = e.label("gath"), e.label("gathd")
        e(f"s_mov_b32 {sSPIN}, 0")
        e(f"s_mov_b32 {sD}, 0x0c0c0400")
        e(f"s_mov_b32 {sE}, 0x04000c0c")
        e.wait(vm="gath")
        keep = list(e.vm)
        e(f"{lp}:")
        for q in range(4):
            b = g0 + 4 * q
            e(f"v_perm_b32 v{t0}, v{b + 1}, v{b}, {sD}")
            e(f"v_perm_b32 v{t0 + 1}, v{b + 3}, v{b + 2}, {sE}")
            e(f"v_or_b32 v{t0}, v{t0}, v{t0 + 1}")
            e(f"v_xor_b32 v{t0 + 2 + q}, {sTAG}, v{t0}")
        e(f"v_or3_b32 v{t0}, v{t0 + 2}, v{t0 + 3}, v{t0 + 4}")
        e(f"v_or_b32 v{t0}, v{t0}, v{t0 + 5}")
        e(f"v_cmp_ne_u32 vcc, 0, v{t0}")
        e(f"s_cbranch_vccz {dn}")
        self.gather_issue(voff, g0)
        e(f"s_add_u32 {sSPIN}, {sSPIN}, 1")
        e(f"s_cmp_ge_u32 {sSPIN}, {SPIN_MAX}")
        e("s_waitcnt vmcnt(0)")
        e(f"s_cbranch_scc0 {lp}")
        e(f"{dn}:")
        e.vm = keep
        for k in range(16):
            e(f"v_and_b32 v{g0 + k}, 0xffffff00, v{g0 + k}")
        for k in range(4):
            e(f"v_add_f32 v{g0 + k}, v{g0 + k}, v{g0 + 4 + k}")
            e(f"v_add_f32 v{g0 + 8 + k}, v{g0 + 8 + k}, v{g0 + 12 + k}")
        for k in range(4):
            e(f"v_add_f32 v{g0 + k}, v{g0 + k}, v{g0 + 8 + k}")
        self.round_bf16([f"v{g0 + k}" for k in range(4)], f"v{t0}")

    def record(self, fn):
        real, rec = self.e, Emit()
        self.e = rec
        fn(rec)
        self.e = real
        return [lambda l=l.strip(): real(l) for l in rec.lines]

    def tag_and_register(self):
        e = self.e
        lab = e.label("noxcc")
        keep = list(e.vm)
        e(f"v_readfirstlane_b32 {sTAG}, {vE}")
        e(f"s_mul_i32 {sTAG}, {sTAG}, 1664525")
        e(f"s_add_u32 {sTAG}, {sTAG}, 1013904223")
        e(f"s_cmp_lg_u32 {sW}, 3")
        e(f"s_cbranch_scc1 {lab}")
        e(f"s_getreg_b32 {sA}, hwreg(HW_REG_XCC_ID, 0, 4)")
        e(f"v_mov_b32 v60, {sTAG}")
        e(f"v_mov_b32 v61, {sA}")
        e(f"s_lshl_b32 {sA}, {sI}, 5")
        e(f"s_add_u32 {sA}, {sA}, {sR}")
        e(f"s_lshl_b32 {sA}, {sA}, 7")
        e(f"s_add_u32 {sA}, {sA}, {WS_XCC}")
        e("s_mov_b64 exec, 1")
        e(f"buffer_store_dwordx2 v[60:61], off, {srd(SRD_WS)}, {sA} sc1")
        e("s_mov_b64 exec, -1")
        e(f"{lab}:")
        e.vm = keep

    def xcc_issue(self):
        e = self.e
        e(f"v_and_b32 v62, 31, {vL}")
        e(f"v_lshlrev_b32 v62, 7, v62")
        e(f"s_lshl_b32 s95, {sI}, 12")
        e(f"s_add_u32 s95, s95, {WS_XCC}")
        e(f"buffer_load_dwordx2 v[60:61], v62, {srd(SRD_WS)}, s95 offen sc1", "xcc")

    def xcc_check(self, base="s95"):
        e = self.e
        lp, dn = e.label("xcc"), e.label("xccd")
        keep = list(e.vm)
        e(f"s_mov_b32 {sSPIN}, 0")
        e(f"{lp}:")
        e(f"v_cmp_ne_u32 vcc, {sTAG}, v60")
        e(f"s_cbranch_vccz {dn}")
        e(f"buffer_load_dwordx2 v[60:61], v62, {srd(SRD_WS)}, {base} offen sc1")
        e(f"s_add_u32 {sSPIN}, {sSPIN}, 1")
        e(f"s_cmp_ge_u32 {sSPIN}, {SPIN_MAX}")
        e("s_waitcnt vmcnt(0)")
        e(f"s_cbranch_scc0 {lp}")
        e(f"{dn}:")
        e.vm = keep
        e(f"s_getreg_b32 {sA}, hwreg(HW_REG_XCC_ID, 0, 4)")
        e(f"v_cmp_ne_u32 vcc, {sA}, v61")
        e("s_cmp_eq_u64 vcc, 0")
        e(f"s_cselect_b32 {sFAST}, {0 if self.o.get('force_slow') else 1}, 0")

    def bump_epoch(self):
        e = self.e
        lp, dn = e.label("bump"), e.label("bumpd")
        e(f"v_lshlrev_b32 v4, 7, {vL}")
        e(f"s_mov_b32 {sSPIN}, 0")
        e(f"{lp}:")
        for k in range(4):
            e(f"s_mov_b32 {sA}, {WS_XCC + 8192 * k}")
            e(f"buffer_load_dword v{8 + k}, v4, {srd(SRD_WS)}, {sA} offen sc1")
        e(f"s_add_u32 {sSPIN}, {sSPIN}, 1")
        e(f"s_cmp_ge_u32 {sSPIN}, {SPIN_MAX}")
        e("s_waitcnt vmcnt(0)")
        e(f"s_cbranch_scc1 {dn}")
        for k in range(4):
            e(f"v_xor_b32 v{8 + k}, {sTAG}, v{8 + k}")
        e("v_or3_b32 v8, v8, v9, v10")
        e("v_or_b32 v8, v8, v11")
        e("v_cmp_ne_u32 vcc, 0, v8")
        e(f"s_cbranch_vccnz {lp}")
        e(f"{dn}:")
        e(f"v_mov_b32 v4, {sTAG}")
        e("s_mov_b64 exec, 1")
        e(f"buffer_store_dword v4, off, {srd(SRD_WS)}, 0 sc1")
        e("s_mov_b64 exec, -1")

    def mod_loads(self, slot="s93", base=16):
        e = self.e
        e(f"v_lshrrev_b32 v4, 4, {vL}")
        e(f"v_and_b32 v5, 15, {vL}")
        e(f"s_and_b32 {sA}, {sI}, 3")
        e(f"s_mul_i32 {sA}, {sA}, 112")
        e(f"s_mul_i32 {sBt}, {sW}, 28")
        e(f"s_add_u32 {sA}, {sA}, {sBt}")
        e(f"v_lshl_add_u32 v6, v5, 2, v4")
        e(f"v_add_u32 v6, {sA}, v6")
        e(f"v_lshlrev_b32 v6, 1, v6")
        e(f"v_mul_u32_u24 v7, 5376, v4")
        e(f"v_lshl_add_u32 v7, v5, 3, v7")
        e(f"s_lshr_b32 {sBt}, {sI}, 2")
        e(f"s_lshl_b32 {sC}, {slot}, 1")
        e(f"s_add_u32 {sBt}, {sBt}, {sC}")
        e(f"s_mul_i32 {sA}, {sA}, 5376")
        e(f"s_lshl_b32 {sC}, {sBt}, 7")
        e(f"s_add_u32 {sA}, {sA}, {sC}")
        for j in range(7):
            e(f"buffer_load_dwordx2 {vr(base + 2 + 2 * j, 2)}, v7, {srd(SRD_WM)}, {sA} offen", "wm")
            if j < 6:
                e(f"s_add_u32 {sA}, {sA}, 21504")
        e(f"buffer_load_ushort v{base}, v6, {srd(SRD_C)}, 0 offen", "wm")

    def mod_compute(self, done, slot="s93", base=16, part=0, last=0):
        e = self.e
        c, t = f"v{base}", f"v{base + 1}"
        if part != 2:
            e(f"v_lshlrev_b32 {c}, 16, {c}")
            e(f"v_mul_f32 {t}, {fbits(-math.log2(math.e))}, {c}")
            e(f"v_exp_f32 {t}, {t}")
            e(f"v_add_f32 {t}, 1.0, {t}")
            e(f"v_rcp_f32 {t}, {t}")
            e(f"v_mul_f32 {c}, {c}, {t}")
            e(f"v_cvt_pk_bf16_f32 {c}, {c}, {c}")
            e(f"v_lshlrev_b32 {c}, 16, {c}")
            for k in range(4):
                e(f"v_mov_b32 v{80 + k}, 0")
            for j in range(7):
                a, b = base + 2 + 2 * j, base + 3 + 2 * j
                e(f"v_lshlrev_b32 v84, 16, v{a}")
                e(f"v_and_b32 v85, 0xffff0000, v{a}")
                e(f"v_lshlrev_b32 v86, 16, v{b}")
                e(f"v_and_b32 v87, 0xffff0000, v{b}")
                for k in range(4):
                    e(f"v_fmac_f32_dpp v{80 + k}, {c}, v{84 + k} row_newbcast:{j} row_mask:0xf bank_mask:0xf")
            e("v_permlane16_swap_b32 v80, v81")
            e("v_permlane16_swap_b32 v82, v83")
            e("v_add_f32 v80, v80, v81")
            e("v_add_f32 v82, v82, v83")
            e("v_permlane32_swap_b32 v80, v82")
            e("v_add_f32 v80, v80, v82")
            e(f"v_lshrrev_b32 v4, 4, {vL}")
            e(f"v_and_b32 v5, 15, {vL}")
            e(f"v_lshl_add_u32 v6, v5, 2, v4")
            e(f"s_lshl_b32 {sA}, {sW}, 8")
            e(f"v_lshl_add_u32 v6, v6, 2, {sA}")
            e(f"ds_write_b32 v6, v80 offset:{L_MODR}")
        if part == 1:
            return
        if part == 0:
            e("s_waitcnt lgkmcnt(0)")
            e("s_barrier")
        R = 80 if part == 0 else 128
        e(f"s_cmp_lg_u32 {sW}, {last}")
        e(f"s_cbranch_scc1 {done}")
        e("s_mov_b64 exec, 0xffff")
        for k in range(4):
            e(f"ds_read_b128 {vr(R + 4 * k)}, {vL16} offset:{L_MODR + 256 * k}")
        e(f"s_and_b32 {sA}, {sI}, 3")
        e(f"s_mul_i32 {sA}, {sA}, 10752")
        e(f"s_lshr_b32 {sBt}, {sI}, 2")
        e(f"s_lshl_b32 {sE}, {slot}, 1")
        e(f"s_add_u32 {sBt}, {sBt}, {sE}")
        e(f"s_lshl_b32 {sBt}, {sBt}, 8")
        e(f"s_add_u32 {sA}, {sA}, {sBt}")
        e(f"s_add_u32 {sA}, {sA}, {WS_MODP}")
        e("v_mov_b32 v6, 0xff")
        e("s_waitcnt lgkmcnt(0)")
        for k in range(4):
            e(f"v_add_f32 v{R + k}, v{R + k}, v{R + 4 + k}")
            e(f"v_add_f32 v{R + 8 + k}, v{R + 8 + k}, v{R + 12 + k}")
        for k in range(4):
            e(f"v_add_f32 v{R + k}, v{R + k}, v{R + 8 + k}")
            e(f"s_lshr_b32 {sBt}, {sTAG}, {8 * k}")
            e(f"v_bfi_b32 v{R + k}, v6, {sBt}, v{R + k}")
        e(f"buffer_store_dwordx4 {vr(R)}, {vL16}, {srd(SRD_WS)}, {sA} offen sc1")
        e("s_mov_b64 exec, -1")

    def src_addrs(self):
        e = self.e
        e(f"v_lshrrev_b32 v10, 2, {vL}")
        e(f"v_mul_u32_u24 v10, 2688, v10")
        e(f"v_and_b32 v6, 3, {vL}")
        e(f"v_lshl_add_u32 v10, v6, 4, v10")
        e(f"v_lshrrev_b32 v6, 3, {vL}")
        e(f"v_and_b32 v7, 7, {vL}")
        e(f"v_and_b32 v8, 2, v6")
        e(f"v_lshlrev_b32 v8, 1, v8")
        e("v_xor_b32 v8, v8, v7")
        e("v_lshlrev_b32 v8, 4, v8")
        e("v_mul_u32_u24 v11, 2688, v6")
        e("v_add_u32 v11, v11, v8")
        e("v_mul_u32_u24 v12, 3584, v6")
        e("v_add_u32 v12, v12, v8")
        e("v_mul_u32_u24 v13, 896, v6")
        e("v_add_u32 v14, v13, v8")
        e("v_and_b32 v8, 6, v6")
        e("v_xor_b32 v8, v8, v7")
        e("v_lshl_add_u32 v13, v8, 4, v13")
        e(f"s_lshl_b32 s99, {sFG}, 7")
        e(f"s_mul_i32 {sA}, {sW}, {8 * 3584}")
        e(f"s_add_u32 s99, s99, {sA}")
        e(f"s_lshl_b32 s101, {sW}, 10")

    def wgu_piece(self, p, mat, tag="wgu"):
        e = self.e
        e(f"s_add_u32 {sD}, s99, {p * 32 * 3584}")
        e(f"s_add_u32 m0, s101, {w4_base(p) + mat * 4096}")
        e(f"buffer_load_dwordx4 v12, {srd((SRD_WG, SRD_WU)[mat])}, {sD} offen lds", tag)

    def wq_setup(self):
        e = self.e
        e(f"s_mul_i32 s92, {sH}, 56")
        e(f"s_sub_u32 s92, s92, {sADJ}")
        e(f"s_mul_i32 {sA}, {sW}, {16 * 2688}")
        e(f"s_add_u32 s92, s92, {sA}")
        e(f"s_mul_i32 {sA}, {sR}, 37")
        e(f"s_lshr_b32 {sA}, {sA}, 8")
        e(f"s_mul_i32 {sA}, {sA}, 7")
        e(f"s_sub_u32 s94, {sR}, {sA}")

    def wq_dma(self, thr=True):
        e = self.e
        for n in range(7):
            e(f"s_mul_i32 {sA}, s94, {64 * 2688}")
            e(f"s_add_u32 {sA}, {sA}, s92")
            e(f"s_lshl_b32 {sBt}, s94, 12")
            e(f"s_add_u32 {sBt}, {sBt}, s101")
            e(f"s_add_u32 m0, {sBt}, {L_WQ}")
            e(f"s_add_u32 s94, s94, 1")
            e(f"buffer_load_dwordx4 v10, {srd(SRD_WQKV)}, {sA} offen lds", "wq")
            e(f"s_cmp_eq_u32 s94, 7")
            e(f"s_cselect_b32 s94, 0, s94")
            if thr:
                self.throttle("thr_q", 0)

    def code_prefetch(self):
        e = self.e
        lab = e.label("pc")
        e("s_getpc_b64 s[88:89]")
        e(f"{lab}:")
        e(f"s_sub_u32 s88, s88, {lab}-" + NAME + "_kernel")
        e("s_subb_u32 s89, s89, 0")
        e(f"s_lshl_b32 {sA}, {sR}, 2")
        e(f"s_add_u32 {sA}, {sA}, {sW}")
        e(f"v_lshl_add_u32 v62, {vL}, 7, {sA}")
        e(f"v_lshlrev_b32 v62, 7, v62")
        e(f"v_min_u32 v62, L_end-" + NAME + "_kernel, v62")
        e("s_mov_b64 exec, 7")
        e("global_load_dword v15, v62, s[88:89]", "pf")
        e("s_mov_b64 exec, -1")

    def touch(self, srdn, base, per_island, lines, mods="", island=True, dst="v127"):
        e = self.e
        n = -(-lines // 112)
        e(f"s_lshl_b32 {sA}, {sR}, 2")
        e(f"s_add_u32 {sA}, {sA}, {sW}")
        e(f"s_mul_i32 {sA}, {sA}, {n}")
        e(f"v_add_u32 v6, {sA}, {vL}")
        e(f"v_min_u32 v6, {lines - 1}, v6")
        e(f"v_lshlrev_b32 v6, 7, v6")
        if island:
            e(f"s_mul_i32 {sA}, {sI}, {per_island}")
            e(f"s_add_u32 {sA}, {sA}, {base}")
        else:
            e(f"s_mov_b32 {sA}, {base}")
        e(f"s_mov_b64 exec, {hex((1 << n) - 1)}")
        e(f"buffer_load_dword {dst}, v6, {srd(srdn)}, {sA} offen{mods}", "pt")
        e("s_mov_b64 exec, -1")

    def gwave(self):
        e = self.e
        e(f"s_lshl_b32 s95, {sR}, 3")
        e(f"s_add_u32 s95, s95, {sI}")
        e(f"s_lshl_b32 s95, s95, 2")
        e(f"s_add_u32 s95, s95, {sW}")

    def gtouch(self, srdn, lines):
        e = self.e
        n = -(-lines // 896)
        e(f"s_mul_i32 {sA}, s95, {n * 128}")
        e(f"v_lshlrev_b32 v6, 7, {vL}")
        e(f"s_mov_b64 exec, {hex((1 << n) - 1)}")
        e(f"buffer_load_dword v127, v6, {srd(srdn)}, {sA} offen", "pt")
        e("s_mov_b64 exec, -1")

    def stouch(self, srdn, lines, row_lines=None, first=0, pitch=None):
        e = self.e
        n = -(-lines // 896)
        out = []

        def setup():
            if row_lines is None:
                e(f"s_mul_i32 s64, s95, {n * 128}")
                e(f"s_min_u32 s64, s64, {(lines - n) * 128}")
            else:
                per_row = row_lines // n
                e(f"s_lshr_b32 s64, s95, {per_row.bit_length() - 1}")
                e(f"s_mul_i32 s64, s64, {pitch}")
                e(f"s_and_b32 s65, s95, {per_row - 1}")
                e(f"s_mul_i32 s65, s65, {n * 128}")
                e(f"s_add_u32 s64, s64, s65")
                e(f"s_add_u32 s64, s64, {first * 128}")
            e(f"s_add_u32 s66, s{srdn}, s64")
            e(f"s_addc_u32 s67, s{srdn + 1}, 0")
        out.append(setup)
        for k in range(n):
            out.append(lambda k=k: e(f"s_load_dword s{68 + k % 16}, s[66:67], {128 * k}"))
        return out

    def throttle(self, key, default):
        n = self.o.get(key, default)
        if n and len(self.e.vm) > n:
            self.e(f"s_waitcnt vmcnt({n})")

    def front(self):
        e = self.e
        n_early, n_e0, n_e1 = self.o.get("early_w", 2), self.o.get("e0", 0), self.o.get("e1", 0)
        pb = self.o.get("probe", 0)
        if pb:
            e("s_lshl_b32 s88, s2, 2")
            e(f"s_add_u32 s88, s88, {sW}")
            e(f"v_lshlrev_b32 v4, 7, {vL}")
            if pb == 1:
                e("s_mov_b64 s[92:93], s[70:71]")
                e("s_mov_b32 s94, 1835008")
                e("s_mov_b32 s95, 0x00020000")
                e("s_mul_i32 s88, s88, 1792")
                e("s_mov_b64 exec, 0x3fff")
                e("buffer_load_dword v5, v4, s[92:95], s88 offen")
                e("s_mov_b64 exec, -1")
            else:
                e("s_mov_b64 s[92:93], s[86:87]")
                e("s_mov_b32 s94, 0x10000000")
                e("s_mov_b32 s95, 0x00020000")
                e("s_lshl_b32 s88, s88, 14")
                e(f"s_add_u32 s88, s88, {(pb - 1) << 20}")
                e("buffer_load_dword v5, v4, s[92:95], s88 offen")
                e("s_add_u32 s88, s88, 8192")
                e("buffer_load_dword v5, v4, s[92:95], s88 offen")
            e("s_waitcnt vmcnt(0)")
        e(f"buffer_load_dword {vE}, off, {srd(SRD_WS)}, 0 sc1", "E")
        tw = self.o.get("tlb", 0)
        if tw:
            sh = self.o.get("tlbsh", 18)
            e(f"s_cmp_lg_u32 {sW}, 2")
            e("s_cbranch_scc1 L_notlb")
            e(f"v_lshlrev_b32 v4, {sh}, {vL}")
            e(f"s_lshl_b32 s88, s2, 7")
            e(f"buffer_load_dword v126, v4, {srd(SRD_WS)}, s88 offen")
            if (64 << sh) < WS_SIZE:
                e(f"s_add_u32 s88, s88, {64 << sh}")
                e(f"buffer_load_dword v126, v4, {srd(SRD_WS)}, s88 offen")
            e(f"s_lshl_b32 s88, s2, 7")
            e(f"buffer_load_dword v126, v4, {srd(SRD_OUT)}, s88 offen")
            if tw > 1:
                for n in (SRD_X, SRD_WQKV, SRD_WO, SRD_WG, SRD_WU, SRD_WD, SRD_WM):
                    e(f"buffer_load_dword v126, v4, {srd(n)}, s88 offen")
            e("L_notlb:")
            e.vm = ["E"]
        e(f"s_cmp_ge_u32 {sR}, 28")
        e("s_cbranch_scc1 L_helper")
        nc = [0, 1, 2, 3, 6, 7, 10, 11, 14, 15, 16, 17, 20, 21, 24, 25, 4, 8, 12, 18, 22]
        nslots = 21
        tab = {r: k for k, r in enumerate(nc[:nslots])}
        for q in range(4):
            t = sum(tab.get(r, 255) << (8 * (r % 8)) for r in range(8 * q, 8 * q + 8))
            e(f"s_mov_b32 s{88 + 2 * (q & 1)}, {hex(t & 0xffffffff)}")
            e(f"s_mov_b32 s{89 + 2 * (q & 1)}, {hex(t >> 32)}")
            if q & 1:
                e(f"s_bitcmp1_b32 {sR}, 3")
                e(f"s_cselect_b64 s[{92 + (q & 2)}:{93 + (q & 2)}], s[90:91], s[88:89]")
        e(f"s_bitcmp1_b32 {sR}, 4")
        e("s_cselect_b64 s[92:93], s[94:95], s[92:93]")
        e(f"s_and_b32 {sA}, {sR}, 7")
        e(f"s_lshl_b32 {sA}, {sA}, 3")
        e(f"s_lshr_b64 s[92:93], s[92:93], {sA}")
        e("s_and_b32 s93, s92, 255")
        e("s_cmp_ge_u32 s93, 21")
        e("s_cbranch_scc1 L_nomod1")
        self.mod_loads()
        e("L_nomod1:")
        e.vm = ["E"]
        self.gwave()
        if self.o.get("warm_w", 0):
            self.gtouch(SRD_WQKV, 9408)
        if self.o.get("touch_x", 1):
            self.touch(SRD_X, 0, 229376, 1792)
        if self.o.get("sm_h", 1) == 0:
            self.touch(SRD_WS, WS_H, 229376, 1792, " sc1")
        npt = len(e.vm) - 1
        self.src_addrs()
        self.wq_setup()
        e(f"s_lshl_b32 s90, {sH}, 7")
        e(f"s_add_u32 s90, s90, 896")
        e(f"s_mul_i32 {sA}, {sW}, {8 * 2688}")
        e(f"s_add_u32 s90, s90, {sA}")
        e(f"s_mul_i32 s91, {sB}, 7")

        def warm_list():
            if not self.o.get("warm_s", 0):
                return []
            return (self.stouch(SRD_WM, 12544, row_lines=28, first=14, pitch=5376) + self.stouch(SRD_WG, 12544)
                    + self.stouch(SRD_WU, 12544) + self.stouch(SRD_WO, 3136))

        warm = []

        def wkv(lo, hi):
            for n in range(lo, hi):
                for _ in range(self.o.get("warm_rate", 3)):
                    if warm:
                        warm.pop(0)()
                e(f"s_mul_i32 {sA}, s91, {32 * 2688}")
                e(f"s_add_u32 {sA}, {sA}, s90")
                e(f"s_lshl_b32 {sBt}, s91, 12")
                e(f"s_add_u32 {sBt}, {sBt}, s101")
                e(f"s_add_u32 m0, {sBt}, {L_WKV}")
                e(f"s_add_u32 s91, s91, 1")
                e(f"buffer_load_dwordx4 v11, {srd(SRD_WQKV)}, {sA} offen lds", "wkv")
                e(f"s_cmp_eq_u32 s91, 14")
                e(f"s_cselect_b32 s91, 0, s91")
                if n >= n_early:
                    self.throttle("thr_w", 0)

        e("s_cmp_ge_u32 s93, 21")
        e("s_cbranch_scc1 L_plainw")
        wkv(0, n_early)
        e.wait(vm="E")
        self.tag_and_register()
        self.stamp("tag")
        self.mod_compute("L_nomod2")
        e("L_nomod2:")
        self.stamp("modpub")
        warm.extend(warm_list())
        wkv(n_early, 14)
        self.wq_dma()
        while warm:
            warm.pop(0)()
        e("s_branch L_wissued")
        e("L_plainw:")
        e.vm = ["E"] + ["pt"] * npt
        n_plain = self.o.get("early_p", 4)
        wkv(0, n_plain)
        e.wait(vm="E")
        self.tag_and_register()
        warm.extend(warm_list())
        wkv(n_plain, 14)
        self.wq_dma()
        while warm:
            warm.pop(0)()
        e("L_wissued:")
        if self.o.get("no_w") or self.o.get("w_only"):
            e("s_waitcnt vmcnt(0)")
            self.stamp("wq")
            e("s_branch L_fin")
            self.nts -= 1
            self.ts_names.pop()
        self.stamp("wq")
        for p in range(n_e0):
            for mat in range(2):
                self.wgu_piece(p, mat)
        self.kv_store_addrs()
        for p in range(n_e0, n_e1):
            for mat in range(2):
                self.wgu_piece(p, mat)
                self.throttle("thr_e", 0)
        if self.o.get("wo_at", 2) == 0:
            self.wo_dma()
        self.xcc_issue()
        e("s_mov_b32 s8, s95")
        self.prep_p2(e)
        e("s_waitcnt vmcnt(0)")
        self.xcc_check("s8")
        e.vm = []
        self.stamp("wdone")

    def rp_setup(self, e):
        e(f"s_lshl_b32 {sA}, {sR}, 3")
        e(f"s_add_u32 {sA}, {sA}, {sI}")
        e(f"s_lshl_b32 {sA}, {sA}, 2")
        e(f"s_add_u32 {sA}, {sA}, {sW}")
        e(f"s_min_u32 {sA}, {sA}, 784")
        e(f"s_mul_i32 {sBt}, {sA}, 9363")
        e(f"s_lshr_b32 {sBt}, {sBt}, 16")
        e(f"s_mul_i32 {sC}, {sBt}, 7")
        e(f"s_sub_u32 {sC}, {sA}, {sC}")
        e(f"s_mul_i32 {sU}, {sC}, 112")
        e(f"s_add_u32 {sU}, {sU}, {sBt}")
        e(f"s_cmp_ge_u32 {sA}, 784")
        e(f"s_cselect_b32 {sU}, 784, {sU}")
        e(f"s_mul_i32 {sJ}, {sBt}, {16 * 896}")
        e(f"s_lshl_b32 {sC}, {sC}, 7")
        e(f"s_add_u32 {sJ}, {sJ}, {sC}")
        e(f"v_add_u32 v211, {8 * 896 - 1024}, v14")
        self.tr_addr("v212", 4)
        e(f"s_lshl_b32 {sA}, {sW}, 11")
        e(f"s_add_u32 {sA}, {sA}, {L_XS}")
        e(f"v_add_u32 v212, {sA}, v212")
        e("v_xor_b32 v213, 64, v212")

    def rp_load(self):
        e = self.e
        e(f"s_lshl_b32 {sD}, {sW}, 11")
        e(f"s_add_u32 m0, {sD}, {L_XS}")
        e(f"buffer_load_dwordx4 v14, {srd(SRD_WD)}, {sJ} offen lds", "rp")
        e(f"buffer_load_dwordx4 v211, {srd(SRD_WD)}, {sJ} offen offset:1024 lds", "rp")

    def rp_read(self):
        e = self.e
        e.wait(vm="rp")
        for ct in range(2):
            for hf in range(2):
                e(f"ds_read_b64_tr_b16 {vr(240 + 4 * ct + 2 * hf, 2)}, v{212 + ct} offset:{1024 * hf}", "rpr")

    def rp_store(self):
        e = self.e
        e(f"s_lshl_b32 {sD}, {sU}, 11")
        e(f"s_add_u32 {sD}, {sD}, {WS_WD}")
        e(f"s_cmp_ge_u32 {sU}, 784")
        e(f"s_cselect_b32 {sD}, 0x7ff00000, {sD}")
        e.wait(lg="rpr")
        for ct in range(2):
            e(f"buffer_store_dwordx4 {vr(240 + 4 * ct)}, {vL16}, {srd(SRD_WS)}, {sD} offen offset:{1024 * ct} sc1")

    def rp_flag(self):
        e = self.e
        e(f"s_lshl_b32 {sD}, {sU}, 7")
        e(f"s_add_u32 {sD}, {sD}, {WS_FLW}")
        e(f"s_cmp_ge_u32 {sU}, 784")
        e(f"s_cselect_b32 {sD}, 0x7ff00000, {sD}")
        e(f"v_mov_b32 v4, {sTAG}")
        e("s_mov_b64 exec, 1")
        e(f"buffer_store_dword v4, off, {srd(SRD_WS)}, {sD} sc1")
        e("s_mov_b64 exec, -1")

    def tr_addr(self, dst, rowmul):
        e = self.e
        e(f"v_lshrrev_b32 {dst}, 5, {vL}")
        e(f"v_mul_u32_u24 {dst}, {rowmul}, {dst}")
        e(f"v_bfe_u32 v5, {vL}, 2, 2")
        e(f"v_add_u32 {dst}, {dst}, v5")
        e(f"v_lshlrev_b32 {dst}, 7, {dst}")
        e(f"v_bfe_u32 v4, {vL}, 4, 1")
        e(f"v_lshl_add_u32 {dst}, v4, 5, {dst}")
        e(f"v_and_b32 v4, 3, {vL}")
        e(f"v_lshl_add_u32 {dst}, v4, 3, {dst}")
        e("v_lshrrev_b32 v5, 1, v5")
        e(f"v_lshl_add_u32 {dst}, v5, 6, {dst}")

    def kv_store_addrs(self):
        e = self.e
        e(f"v_lshrrev_b32 v4, 5, {vL}")
        e(f"v_and_b32 v5, 31, {vL}")
        e(f"s_cmp_ge_u32 {sH}, 7")
        e("s_cbranch_scc1 L_vaddr")
        e(f"s_lshl_b32 {sA}, {sH}, 4")
        e(f"v_add_u32 v4, {sA}, v4")
        e(f"v_lshlrev_b32 v5, 3, v5")
        for n in range(8):
            e(f"v_add_u32 v6, {2 * n}, v4")
            e("v_mul_u32_u24 v7, 147, v6")
            e("v_lshrrev_b32 v7, 10, v7")
            e("v_mul_u32_u24 v8, 7, v7")
            e("v_sub_u32 v6, v6, v8")
            e("v_lshl_add_u32 v6, v6, 8, v5")
            e(f"v_lshl_add_u32 v{96 + n}, v7, 18, v6")
        e("s_branch L_addrdone")
        e("L_vaddr:")
        e(f"s_sub_u32 {sA}, {sH}, 7")
        e(f"s_lshl_b32 {sA}, {sA}, 6")
        e(f"v_add_u32 v5, {sA}, v5")
        e("v_lshlrev_b32 v4, 9, v4")
        e("v_add_u32 v4, 2048, v4")
        for ct in range(2):
            e(f"v_add_u32 v6, {32 * ct}, v5")
            e("v_mul_u32_u24 v7, 2341, v6")
            e("v_lshrrev_b32 v7, 16, v7")
            e("v_mul_u32_u24 v8, 28, v7")
            e("v_sub_u32 v6, v6, v8")
            e("v_lshl_add_u32 v6, v6, 4, v4")
            e(f"v_lshl_add_u32 v{96 + ct}, v7, 18, v6")
        for n in range(2, 8):
            e(f"v_mov_b32 v{96 + n}, v96")
        e("L_addrdone:")

    def helper(self):
        e = self.e
        e.vm, e.lg = ["E"], []
        XF, XP, CR = 128, 64, 64
        e("L_helper:")
        e(f"v_lshrrev_b32 v6, 3, {vL}")
        e(f"v_and_b32 v7, 7, {vL}")
        e("v_lshrrev_b32 v8, 1, v6")
        e("v_xor_b32 v8, v8, v7")
        e("v_mul_u32_u24 v6, 896, v6")
        e("v_lshl_add_u32 v9, v8, 4, v6")
        e("v_xor_b32 v8, 4, v8")
        e("v_lshl_add_u32 v8, v8, 4, v6")
        e(f"v_add_u32 v8, {8 * 896}, v8")
        e(f"s_sub_u32 s91, {sR}, 28")
        e(f"s_lshl_b32 {sA}, {sI}, 2")
        e(f"s_add_u32 s91, s91, {sA}")
        e(f"s_lshl_b32 {sA}, s91, 2")
        e(f"s_add_u32 {sA}, {sA}, {sW}")
        e(f"s_mul_i32 {sA}, {sA}, 14336")
        e(f"s_mul_i32 {sBt}, {sW}, 14336")
        for ln in range(7):
            for rg in range(2):
                e(f"s_add_u32 m0, {sBt}, {L_HX + rg * 7168 + ln * 1024}")
                e(f"buffer_load_dwordx4 v{9 - rg}, {srd(SRD_X)}, {sA} offen lds", "x")
            if ln < 6:
                e(f"s_add_u32 {sA}, {sA}, 128")
        e(f"s_mul_i32 s90, s91, 57344")
        e(f"s_mul_i32 {sA}, {sW}, 7168")
        e(f"s_add_u32 s90, s90, {sA}")
        e(f"s_add_u32 s90, s90, {WS_H}")
        self.src_addrs()
        self.wq_setup()
        e(f"v_lshrrev_b32 v4, 4, {vL}")
        e(f"v_and_b32 v5, 15, {vL}")
        e("v_lshrrev_b32 v6, 3, v5")
        e("v_mul_u32_u24 v6, 7168, v6")
        e("v_and_b32 v7, 7, v5")
        e("v_lshl_add_u32 v6, v7, 7, v6")
        e(f"v_add_u32 v6, {L_HX}, v6")
        e("v_lshrrev_b32 v7, 1, v5")
        e(f"s_mul_i32 {sA}, {sW}, 14")
        e(f"v_add_u32 v8, {sA}, v4")
        for n in range(4):
            e(f"v_add_u32 v9, {4 * n}, v8")
            e("v_min_u32 v9, 55, v9")
            e("v_lshrrev_b32 v16, 3, v9")
            e("v_and_b32 v9, 7, v9")
            e("v_xor_b32 v9, v9, v7")
            e("v_lshl_add_u32 v16, v16, 10, v6")
            e(f"v_lshl_add_u32 v{20 + n}, v9, 4, v16")
        e.wait(vm="E")
        self.tag_and_register()
        e.wait(vm="x")
        e("s_barrier")
        self.stamp("hx")
        for G in range(4):
            for n in range(4):
                e(f"ds_read_b128 {vr(XP + 16 * G + 4 * n)}, v{20 + n} offset:{G * 14336}", ("x", G))
        pair = lambda r: f"v[{r}:{r + 1}]"
        e("s_mov_b32 s88, 0x3f803f80")
        for G in range(4):
            e.wait(lg=("x", G))
            for k in range(4):
                e(f"v_cndmask_b32 v{XP + 16 * G + 12 + k}, v{XP + 16 * G + 12 + k}, 0, {sHI}")
        for k in range(16):
            for G in range(4):
                x = f"v{XP + 16 * G + k}"
                e(f"v_dot2_f32_bf16 v{24 + G}, {x}, s88, {'0' if k == 0 else f'v{24 + G}'}")
            for G in range(4):
                x = f"v{XP + 16 * G + k}"
                e(f"v_dot2_f32_bf16 v{28 + G}, {x}, {x}, {'0' if k == 0 else f'v{28 + G}'}")
        e("s_nop 2")
        for b0 in (24, 28):
            e(f"v_permlane16_swap_b32 v{b0}, v{b0 + 1}")
            e(f"v_permlane16_swap_b32 v{b0 + 2}, v{b0 + 3}")
        for b0 in (24, 28):
            e(f"v_add_f32 v{b0}, v{b0}, v{b0 + 1}")
            e(f"v_add_f32 v{b0 + 2}, v{b0 + 2}, v{b0 + 3}")
        for b0 in (24, 28):
            e(f"v_permlane32_swap_b32 v{b0}, v{b0 + 2}")
        e("v_add_f32 v24, v24, v26")
        e("v_add_f32 v25, v28, v30")
        e(f"s_lshl_b32 {sA}, {sW}, 9")
        e(f"s_add_u32 {sA}, {sA}, {L_HS}")
        e(f"v_lshlrev_b32 v16, 3, {vL}")
        e(f"v_add_u32 v17, {sA}, v16")
        e(f"v_add_u32 v16, {L_HS}, v16")
        e("ds_write_b64 v17, v[24:25]")
        e(f"v_lshrrev_b32 v8, 2, {vL}")
        e(f"v_min_u32 v8, 13, v8")
        e(f"s_mul_i32 {sA}, {sW}, 14")
        e(f"v_add_u32 v8, {sA}, v8")
        e(f"v_bfe_u32 v9, {vL}, 1, 1")
        e(f"v_lshl_add_u32 v8, v8, 1, v9")
        e(f"v_and_b32 v9, 1, {vL}")
        e(f"v_mul_u32_u24 v6, 112, v9")
        e(f"v_add_u32 v8, v8, v6")
        e(f"v_lshlrev_b32 v8, 4, v8")
        e("s_waitcnt lgkmcnt(0)")
        e("s_barrier")
        for k in range(4):
            e(f"ds_read_b64 {pair(24 + 2 * k)}, v16 offset:{k * 512}", "s")

        def unpack(G):
            b = XF + 32 * G
            for k in range(16):
                e(f"v_lshlrev_b32 v{b + 2 * k}, 16, v{XP + 16 * G + k}")
                e(f"v_and_b32 v{b + 2 * k + 1}, 0xffff0000, v{XP + 16 * G + k}")

        unpack(0)
        e.wait(lg="s")
        e("v_pk_add_f32 v[24:25], v[24:25], v[26:27]")
        e("v_pk_add_f32 v[28:29], v[28:29], v[30:31]")
        e("v_pk_add_f32 v[24:25], v[24:25], v[28:29]")
        e(f"v_mul_f32 v24, {fbits(1.0 / 448)}, v24")
        e(f"v_mul_f32 v25, {fbits(1.0 / 448)}, v25")
        e("v_fma_f32 v25, -v24, v24, v25")
        e("v_max_f32 v25, 0, v25")
        self.round_bf16(["v24", "v25"], "v26")
        e(f"v_add_f32 v25, {fbits(1e-5)}, v25")
        e("v_cvt_pk_bf16_f32 v25, v25, v25")
        e("v_lshlrev_b32 v25, 16, v25")
        e("v_sqrt_f32 v25, v25")
        e("v_cvt_pk_bf16_f32 v25, v25, v25")
        e("v_lshlrev_b32 v25, 16, v25")
        e("v_rcp_f32 v26, v25")
        e("v_mul_f32 v27, -v24, v26")
        e(f"v_add_u32 v17, 2048, v17")
        e("ds_write_b64 v17, v[26:27]")
        e(f"s_lshl_b32 {sA}, {sW}, 9")
        e(f"s_add_u32 {sA}, {sA}, {L_HS + 2048}")
        e(f"v_lshl_add_u32 v16, v5, 3, {sA}")
        for G in range(4):
            e(f"ds_read_b64 {pair(32 + 2 * G)}, v16 offset:{G * 128}", "ab")
        for G in range(1, 4):
            if G == self.o.get("gath_at", 3):
                self.xcc_issue()
                self.gather_issue("v8", 40)
            unpack(G)
        e.wait(lg="ab")
        for G in range(4):
            b = XF + 32 * G
            for k in range(0, 32, 2):
                e(f"v_pk_fma_f32 {pair(b + k)}, {pair(b + k)}, {pair(32 + 2 * G)}, {pair(32 + 2 * G)} op_sel:[0,0,1] op_sel_hi:[1,0,1]")
        e(f"v_cvt_f32_u32 v9, v9")
        e(f"s_lshl_b32 {sA}, {sW}, 11")
        e(f"s_add_u32 {sA}, {sA}, {L_SCR}")
        e(f"v_add_u32 v6, {sA}, {vL16}")
        e(f"v_lshl_add_u32 v7, v4, 6, {sA}")
        self.stamp("ln1")
        self.gather_finish("v8", 40, 16)
        self.stamp("modgot")
        for k in range(4):
            e(f"v_add_f32 v{40 + k}, v{40 + k}, v9")
        self.round_bf16([f"v{40 + k}" for k in range(4)], "v16")
        e("ds_write_b128 v6, v[40:43]")
        for n in range(4):
            for it in range(4):
                e(f"ds_read_b128 {vr(CR + 16 * n + 4 * it)}, v7 offset:{n * 256 + 16 * it}", ("c", n))
        e(f"v_lshlrev_b32 v8, 4, v5")
        e(f"v_lshl_add_u32 v8, v4, 9, v8")
        e(f"v_add_u32 v9, 4096, v8")
        e(f"v_mov_b32 v16, 0x7ffffff0")
        e(f"v_cndmask_b32 v6, v9, v16, {sHI}")
        self.xcc_check()
        e(f"s_lshl_b32 s93, s91, 7")
        e(f"s_lshl_b32 {sC}, {sW}, 2")
        e(f"s_add_u32 s93, s93, {sC}")
        e(f"s_add_u32 s93, s93, {WS_FLH}")
        for G in range(4):
            b = XF + 32 * G
            if G:
                e(f"s_add_u32 s90, s90, {256 if G & 1 else 28672 - 256}")
            for n in range(4):
                if G == 0:
                    e.wait(lg=("c", n))
                for k in range(0, 8, 2):
                    c1 = CR + 16 * n + 4 * (2 * (k >> 2) + 1) + (k & 3)
                    c2 = CR + 16 * n + 4 * (2 * (k >> 2)) + (k & 3)
                    e(f"v_pk_fma_f32 {pair(b + 8 * n + k)}, {pair(b + 8 * n + k)}, {pair(c1)}, {pair(c2)}")
                d = 24 + 4 * ((4 * G + n) % 8)
                for k in range(4):
                    e(f"v_cvt_pk_bf16_f32 v{d + k}, v{b + 8 * n + 2 * k}, v{b + 8 * n + 2 * k + 1}")
                e(f"buffer_store_dwordx4 {vr(d)}, v{(8, 8, 9, 6)[n]}, {srd(SRD_WS)}, s90 offen offset:{(n & 1) * 2048}{self.sm('h')}")
        self.publish("s93", "v7", second=64)
        self.stamp("hpub")
        self.wq_dma(thr=False)
        e("s_waitcnt vmcnt(0)")
        e("s_branch L_p1")

    def p1(self):
        e = self.e
        e("L_p1:")
        e.vm, e.lg = [], []
        if self.o.get("front_only"):
            e("s_branch L_fin")
        e("s_waitcnt lgkmcnt(0)")
        e("s_barrier")
        e(f"v_lshrrev_b32 v4, 5, {vL}")
        e(f"v_lshlrev_b32 v4, 9, v4")
        e(f"v_bfe_u32 v5, {vL}, 2, 2")
        e(f"v_lshl_add_u32 v4, v5, 6, v4")
        e(f"v_bfe_u32 v5, {vL}, 4, 1")
        e(f"v_lshl_add_u32 v4, v5, 5, v4")
        e(f"v_and_b32 v5, 3, {vL}")
        e(f"v_lshl_add_u32 v4, v5, 3, v4")
        e(f"v_add_u32 v4, {sADJ}, v4")
        e(f"v_add_u32 v10, {L_WQ}, v4")
        self.tr_addr("v8", 8)
        e(f"v_add_u32 v8, {L_WKV}, v8")
        e("v_xor_b32 v9, 64, v8")
        e(f"v_and_b32 v11, 3, {vL}")
        e(f"v_lshlrev_b32 v11, 2, v11")
        e(f"s_lshl_b32 s8, {sT}, 6")
        e(f"s_add_u32 s8, s8, {WS_FLH}")
        e(f"s_mul_i32 s11, {sT}, 28672")
        e(f"s_add_u32 s11, s11, {WS_H}")
        e(f"s_lshl_b32 s9, {sT}, 12")
        e(f"s_add_u32 s9, s9, {WS_KV}")
        e(f"s_cmp_ge_u32 {sR}, 28")
        e("s_cbranch_scc1 L_p1_h")
        e(f"s_cmp_ge_u32 {sH}, 7")
        e("s_cbranch_scc1 L_p1_v")
        for mode in ("k", "v", "h"):
            e(f"L_p1_{mode}:")
            e.vm, e.lg = [], []
            self.p1_body(mode)
            if mode != "h":
                e("s_branch L_p1_done")
        e("L_p1_done:")
        e.vm, e.lg = [], []
        self.stamp("kvpub")
        self.slotq_issue()
        ACQ = 48
        qs = 28 ** -0.5 * math.log2(math.e)
        e(f"s_mov_b32 {sA}, {fbits(qs)}")
        for k in range(0, 16, 2):
            e(f"v_pk_mul_f32 v[{ACQ + k}:{ACQ + k + 1}], v[{ACQ + k}:{ACQ + k + 1}], s[56:57] op_sel_hi:[1,0]")
        for k in range(8):
            e(f"v_cvt_pk_bf16_f32 v{64 + k}, v{ACQ + 2 * k}, v{ACQ + 2 * k + 1}")
        e("v_mov_b32 v11, 0x00003f80")
        e(f"v_cndmask_b32 v70, v70, v11, {sHI}")
        e(f"v_cndmask_b32 v71, v71, 0, {sHI}")

    def p1_body(self, mode):
        e = self.e
        AC, ACQ, PK = 16, 48, 104
        HB, QR, WR = 0, 112, 224
        DEPTH = 3
        first = mode == "k"

        def rd_w(ks, ct):
            d = WR + 8 * (ks % 4) + 4 * ct
            e(f"ds_read_b64_tr_b16 {ar(d, 2)}, v{8 + ct} offset:{ks * 2048}", ("kv", ks))
            e(f"ds_read_b64_tr_b16 {ar(d + 2, 2)}, v{8 + ct} offset:{ks * 2048 + 512}", ("kv", ks))

        def rd_q(ks):
            d = QR + 4 * ks
            e(f"ds_read_b64_tr_b16 {ar(d, 2)}, v10 offset:{ks * 1024}", ("q", ks))
            e(f"ds_read_b64_tr_b16 {ar(d + 2, 2)}, v10 offset:{ks * 1024 + 256}", ("q", ks))

        def ld_h(ks):
            if ks and ks % 4 == 0:
                e("s_add_u32 s11, s11, 4096")
            e(f"buffer_load_dwordx4 {ar(HB + 4 * ks)}, {vL16}, {srd(SRD_WS)}, s11 offen offset:{(ks % 4) * 1024} sc1", ("h", ks))

        PRE = self.o.get("p1pre", 8)
        if mode == "h":
            self.poll("v11", "s8", "v5")
            self.acquire()
            self.stamp("hflag", again=True)
            for ks in range(28):
                ld_h(ks)
                rd_q(ks)
            self.prep_p2(e)
            self.helper_side()
        else:
            self.poll_issue("v11", "s8", "v120", "hfl")
            for ks in range(28):
                rd_q(ks)
            for ks in range(DEPTH):
                rd_w(ks, 0)
                rd_w(ks, 1)
            self.poll_check("v11", "s8", "v120", "hfl")
            self.acquire()
            self.stamp("hflag", again=not first)
            for ks in range(PRE):
                ld_h(ks)
            for ks in range(28):
                e.wait(vm=("h", ks), lg=("kv", ks))
                for ct in range(2):
                    w, hb = ar(WR + 8 * (ks % 4) + 4 * ct), ar(HB + 4 * ks)
                    acc = vr(AC + 16 * ct, 16)
                    a, b = (w, hb) if mode == "k" else (hb, w)
                    e(f"v_mfma_f32_32x32x16_bf16 {acc}, {a}, {b}, {'0' if ks == 0 else acc}")
                    if ct == 0 and ks + PRE < 28:
                        ld_h(ks + PRE)
                    if ks + DEPTH < 28:
                        rd_w(ks + DEPTH, ct)
        self.stamp("kvgemm", again=not first)

        def kv_epi(r):
            for ct in range(2):
                for k in range(8):
                    r(f"v_cvt_pk_bf16_f32 v{PK + 8 * ct + k}, v{AC + 16 * ct + 2 * k}, v{AC + 16 * ct + 2 * k + 1}")
                    if mode == "k" and k & 1:
                        r(f"buffer_store_dwordx2 {vr(PK + 8 * ct + k - 1, 2)}, v{96 + 4 * ct + (k >> 1)}, {srd(SRD_WS)}, s9 offen sc1")
                    if mode == "v" and k % 4 == 3:
                        r(f"buffer_store_dwordx4 {vr(PK + 8 * ct + k - 3)}, v{96 + ct}, {srd(SRD_WS)}, s9 offen offset:{(k >> 2) * 1024} sc1")

        main, fill = [], {}
        for ks in range(28):
            def m(ks=ks):
                e.wait(vm=("h", ks), lg=("q", ks))
                cq = "0" if ks == 0 else vr(ACQ, 16)
                e(f"v_mfma_f32_32x32x16_bf16 {vr(ACQ, 16)}, {ar(QR + 4 * ks)}, {ar(HB + 4 * ks)}, {cq}")
            main.append(m)
        if mode != "h":
            self.spread(fill, self.record(kv_epi), 1, 8)
        e1, e1b = self.o.get("e1", 0), self.o.get("e1b", self.o.get("e1", 0))
        s1 = []
        if mode != "h":
            s1 = [lambda p=p, mat=mat: self.wgu_piece(p, mat) for p in range(e1, e1b) for mat in range(2)]
        nb = len(s1)
        self.spread(fill, s1, 9, 20)

        def kvflag():
            e(f"s_waitcnt vmcnt({nb})")
            e(f"v_mov_b32 v7, {sTAG}")
            e("s_mov_b64 exec, 1")
            e(f"buffer_store_dword v7, off, {srd(SRD_WS)}, s10 sc1")
            e("s_mov_b64 exec, -1")
        if mode != "h":
            fill.setdefault(self.o.get("kvfl_at", 24), []).append(kvflag)
        self.merge(main, fill)
        e("s_barrier")
        if mode == "h":
            return
        if self.o.get("kv_touch", 0):
            if mode == "k":
                e("s_mov_b32 exec_lo, 0x00010001")
                e("s_mov_b32 exec_hi, 0x00010001")
                for n in range(8):
                    e(f"buffer_load_dword v127, v{96 + n}, {srd(SRD_WS)}, s9 offen sc1")
            else:
                e("s_mov_b32 exec_lo, 0x91111111")
                e("s_mov_b32 exec_hi, 0x91111111")
                for n in range(4):
                    e(f"buffer_load_dword v127, v{96 + (n >> 1)}, {srd(SRD_WS)}, s9 offen offset:{(n & 1) * 1024} sc1")
            e("s_mov_b64 exec, -1")

    def prep_p2(self, e):
        MK = 72
        e(f"s_mul_i32 s10, {sT}, 14")
        e(f"s_add_u32 s10, s10, {sH}")
        e(f"s_lshl_b32 s10, s10, 7")
        e(f"s_add_u32 s10, s10, {WS_FLKV}")
        e(f"v_lshrrev_b32 v4, 4, {vL}")
        e("v_min_u32 v4, 2, v4")
        e("v_cmp_eq_u32 vcc, 1, v4")
        e("v_mul_u32_u24 v5, 168, v4")
        e("v_cndmask_b32 v210, 0, 1.0, vcc")
        e("v_cndmask_b32 v6, 0, 56, vcc")
        e("v_add_u32 v5, v5, v6")
        e(f"v_and_b32 v6, 15, {vL}")
        e(f"s_lshl_b32 {sA}, {sCG}, 4")
        e(f"s_add_u32 {sA}, {sA}, 224")
        e(f"v_add3_u32 v5, v5, v6, {sA}")
        e("v_lshlrev_b32 v208, 4, v5")
        e("v_lshl_add_u32 v209, v4, 4, v6")
        e("v_lshlrev_b32 v209, 4, v209")
        e(f"v_lshrrev_b32 v4, 2, {vL}")
        e(f"v_mul_u32_u24 v4, 896, v4")
        e(f"v_and_b32 v5, 3, {vL}")
        e(f"v_lshl_add_u32 v214, v5, 4, v4")
        e(f"s_lshl_b32 {sA}, {sI}, 2")
        e(f"s_add_u32 {sA}, {sA}, {sRB}")
        e(f"s_lshl_b32 {sA}, {sA}, 2")
        e(f"s_add_u32 {sA}, {sA}, {sW}")
        e(f"s_mul_i32 {sA}, {sA}, 14336")
        e(f"s_lshl_b32 {sBt}, {sCG}, 7")
        e(f"s_add_u32 s100, {sA}, {sBt}")
        e(f"v_and_b32 v4, 31, {vL}")
        e(f"v_lshrrev_b32 v7, 5, {vL}")
        e(f"v_lshlrev_b32 v7, 2, v7")
        e("v_sub_u32 v4, v4, v7")
        e("v_mov_b32 v6, 0xffff")
        e("v_mov_b32 v7, 0xffff0000")
        for r in range(16):
            e(f"v_cmp_le_i32 s[{SMASK + 2 * r}:{SMASK + 2 * r + 1}], {(r >> 2) * 8 + (r & 3)}, v4")
        for k in range(8):
            e(f"v_cndmask_b32 v4, 0, v6, s[{SMASK + 4 * k}:{SMASK + 4 * k + 1}]")
            e(f"v_cndmask_b32 v5, 0, v7, s[{SMASK + 4 * k + 2}:{SMASK + 4 * k + 3}]")
            e(f"v_or_b32 v{MK + k}, v4, v5")
        e(f"s_mul_i32 s42, {sW}, 12288")
        e(f"s_add_u32 s42, s42, {L_KV}")
        e(f"v_add_u32 v4, 1792, {vL16}")
        e(f"v_subrev_u32 v5, 16, {vL}")
        e(f"v_lshlrev_b32 v5, 9, v5")
        e(f"v_add_u32 v5, {2048 + 448}, v5")
        e(f"v_cmp_gt_u32 vcc, 16, {vL}")
        e("v_mov_b32 v6, 0x3f803f80")
        e("v_cndmask_b32 v4, v5, v4, vcc")
        e("v_cndmask_b32 v196, v6, 0, vcc")
        e(f"v_add_u32 v201, s42, v4")
        for k in range(1, 4):
            e(f"v_mov_b32 v{196 + k}, v196")
        e(f"s_and_b32 s43, {sT}, 0xfc")
        e(f"s_mul_i32 {sBt}, {sW}, 3")
        e(f"s_add_u32 s43, s43, {sBt}")
        e(f"s_sub_u32 s43, s43, 8")
        e(f"v_bfe_u32 v4, {vL}, 2, 2")
        e("v_min_u32 v4, 2, v4")
        e(f"v_add_u32 v4, s43, v4")
        e("v_max_i32 v4, 0, v4")
        e("v_mul_u32_u24 v4, 14, v4")
        e(f"s_mul_i32 {sA}, {sH}, 28")
        e(f"v_and_b32 v5, 1, {vL}")
        e("v_mul_u32_u24 v5, 27, v5")
        e(f"v_add_u32 v5, {sA}, v5")
        e("v_lshrrev_b32 v5, 6, v5")
        e("v_add_u32 v4, v4, v5")
        e(f"v_bfe_u32 v5, {vL}, 1, 1")
        e("v_mul_u32_u24 v5, 7, v5")
        e("v_add_u32 v4, v4, v5")
        e("v_lshlrev_b32 v4, 7, v4")
        e(f"v_add_u32 v200, {WS_FLKV}, v4")
        for k in range(8):
            e(f"v_mov_b32 v{184 + k}, 0")
        e("v_mov_b32 v5, 0x0000f149")
        e(f"v_cmp_le_u32 vcc, 48, {vL}")
        e(f"v_add_u32 v202, s42, {vL16}")
        e("v_cndmask_b32 v188, 0, v5, vcc")
        e("v_cndmask_b32 v190, 0, v5, vcc")
        self.rp_setup(e)

    def helper_side(self):
        e = self.e
        e(f"s_sub_u32 {sE}, {sR}, 28")
        e(f"s_lshl_b32 {sE}, {sE}, 2")
        e(f"s_add_u32 {sE}, {sE}, {sW}")
        e(f"v_lshlrev_b32 v6, 7, {vL}")
        e(f"s_lshl_b32 {sA}, {sI}, 9")
        e(f"s_add_u32 {sA}, {sA}, {WS_FLO}")
        e("s_mov_b64 exec, 15")
        e(f"buffer_load_dword v127, v6, {srd(SRD_WS)}, {sA} offen sc1")
        e(f"s_add_u32 {sA}, {sA}, {WS_FLZ - WS_FLO}")
        e(f"buffer_load_dword v127, v6, {srd(SRD_WS)}, {sA} offen sc1")
        e(f"s_lshl_b32 {sA}, {sI}, 10")
        e(f"s_add_u32 {sA}, {sA}, {WS_FLD}")
        e("s_mov_b64 exec, 0xff")
        e(f"buffer_load_dword v127, v6, {srd(SRD_WS)}, {sA} offen sc1")
        e("s_mov_b64 exec, -1")

    def wo_pieces(self):
        e = self.e

        def piece(n):
            if n == 0:
                e(f"s_lshl_b32 {sC}, {sCG}, 7")
                e(f"s_mul_i32 {sE}, {sW}, {8 * 896}")
                e(f"s_add_u32 {sC}, {sC}, {sE}")
                e(f"s_mul_i32 {sE}, {sRB}, 7")
                e(f"s_lshr_b32 {sE}, {sE}, 1")
            e(f"s_mul_i32 {sD}, {sE}, {32 * 896}")
            e(f"s_add_u32 {sD}, {sD}, {sC}")
            e(f"s_lshl_b32 {sBt}, {sE}, 12")
            e(f"s_add_u32 {sBt}, {sBt}, s101")
            e(f"s_add_u32 m0, {sBt}, {L_WO}")
            e(f"s_add_u32 {sE}, {sE}, 1")
            e(f"buffer_load_dwordx4 v13, {srd(SRD_WO)}, {sD} offen lds", "wo")
            e(f"s_cmp_eq_u32 {sE}, 14")
            e(f"s_cselect_b32 {sE}, 0, {sE}")
        return [lambda n=n: piece(n) for n in range(14)]

    def wo_dma(self):
        for x in self.wo_pieces():
            x()

    def wd_setup(self):
        e = self.e
        e(f"s_mul_i32 s100, {sCG}, 112")
        e(f"s_mul_i32 {sBt}, {sW}, 28")
        e(f"s_add_u32 s100, s100, {sBt}")
        e(f"s_lshl_b32 s100, s100, 11")
        e(f"s_add_u32 s100, s100, {WS_WD}")
        self.rot28("s3")
        self.wd_next = 0

    def wd_loads(self, count):
        e = self.e

        def ld(j, half):
            if self.o.get("skip_wd"):
                return
            if half == 0 and j % 4 == 0:
                e(f"s_lshl_b32 {sWD}, s3, 13")
                e(f"s_add_u32 {sWD}, {sWD}, s100")
                e("s_add_u32 s3, s3, 1")
                e("s_cmp_eq_u32 s3, 7")
                e("s_cselect_b32 s3, 0, s3")
            elif half == 0 and j % 4 == 2:
                e(f"s_add_u32 {sWD}, {sWD}, 4096")
            e(f"buffer_load_dwordx4 {ar(8 * j + 4 * half)}, {vL16}, {srd(SRD_WS)}, {sWD} offen offset:{(j & 1) * 2048 + 1024 * half} sc1", ("wd", j))
        j0 = self.wd_next
        self.wd_next = min(28, j0 + count)
        return [lambda j=j, half=half: ld(j, half) for j in range(j0, self.wd_next) for half in range(2)]

    def slotq_issue(self):
        e = self.e
        e(f"buffer_load_dwordx4 v[240:243], v214, {srd(SRD_X)}, s100 offen")
        e(f"buffer_load_dwordx4 v[244:247], v214, {srd(SRD_X)}, s100 offen offset:64")
        if self.o.get("wo_at", 2) == 2:
            lab = e.label("nowo")
            e(f"s_cmp_ge_u32 {sR}, 28")
            e(f"s_cbranch_scc1 {lab}")
            self.wo_dma()
            e(f"{lab}:")

    def wfl_issue(self, va="v215", vd="v238"):
        e = self.e
        e(f"s_mul_i32 {sD}, {sCG}, 112")
        e(f"s_mul_i32 {sE}, {sW}, 28")
        e(f"s_add_u32 {sD}, {sD}, {sE}")
        e(f"s_lshl_b32 {sD}, {sD}, 7")
        e(f"s_add_u32 {sU}, {sD}, {WS_FLW}")
        e(f"v_min_u32 {va}, 27, {vL}")
        e(f"v_lshlrev_b32 {va}, 7, {va}")
        self.poll_issue(va, sU, vd, "wfl")

    def late_consts(self):
        e = self.e
        self.gather_finish("v208", 216, 232)
        for k in range(4):
            e(f"v_add_f32 v{216 + k}, v{216 + k}, v210")
        self.round_bf16([f"v{216 + k}" for k in range(4)], "v232")
        e(f"ds_write_b128 v209, v[216:219] offset:{L_GAB}")

    def x_relayout(self):
        e = self.e
        e(f"s_lshl_b32 {sA}, {sW}, 11")
        e(f"s_add_u32 {sA}, {sA}, {L_XS}")
        e(f"v_lshrrev_b32 v4, 2, {vL}")
        e(f"v_lshlrev_b32 v4, 7, v4")
        e(f"v_and_b32 v5, 3, {vL}")
        e(f"v_lshl_add_u32 v4, v5, 4, v4")
        e(f"v_add_u32 v6, {sA}, v4")
        e(f"v_and_b32 v4, 15, {vL}")
        e(f"v_lshlrev_b32 v4, 7, v4")
        e(f"v_lshrrev_b32 v5, 4, {vL}")
        e(f"v_lshl_add_u32 v4, v5, 3, v4")
        e(f"v_add_u32 v7, {sA}, v4")
        e("ds_write_b128 v6, v[240:243]")
        e("ds_write_b128 v6, v[244:247] offset:64")
        for t in range(4):
            e(f"ds_read_b64 {vr(248 + 2 * t, 2)}, v7 offset:{32 * t}")

    def p2(self):
        e = self.e
        QF, MK = 64, 72
        e(f"v_lshlrev_b32 v4, 3, {vL}")
        e(f"v_add_u32 v4, {L_PAD}, v4")
        e("ds_write_b64 v4, v[184:185]")
        e("s_mov_b64 exec, 0xfffff")
        for t in range(3):
            e(f"ds_write_b128 v201, v[196:199] offset:{t * 4096}")
        e("s_mov_b64 exec, -1")
        self.poll_issue("v200", "0", "v203", "kvfl")
        e(f"s_lshl_b32 {sA}, {sW}, 12")
        e(f"s_add_u32 {sA}, {sA}, {L_KV}")
        e(f"v_add_u32 v10, {sA}, {vL16}")
        e(f"v_lshl_add_u32 v15, {vL}, 3, {sA}")
        self.prep_p3()
        self.wo_setup()
        for hd in range(self.wo_early):
            self.rd_wo(hd)
        e(f"s_lshl_b32 {sE}, {sH}, 6")
        e(f"s_add_u32 {sE}, {sE}, s43")
        e(f"s_lshl_b32 {sE}, {sE}, 12")
        e(f"s_add_u32 {sE}, {sE}, {WS_KV}")
        self.poll_check("v200", "0", "v203", "kvfl")
        self.acquire()
        self.stamp("kvflag")
        for t in range(3):
            fl, dn = e.label("kvfill"), e.label("kvdone")
            e(f"s_cmp_lt_i32 s43, {-t}")
            e(f"s_cbranch_scc1 {fl}")
            e(f"s_add_u32 m0, s42, {t * 4096}")
            e(f"s_add_u32 {sA}, {sE}, {t * 4096}")
            e(f"buffer_load_dwordx4 {vL16}, {srd(SRD_WS)}, {sA} offen sc1 lds")
            e("s_mov_b32 exec_hi, 0xffff")
            e(f"buffer_load_dwordx4 {vL16}, {srd(SRD_WS)}, {sA} offen offset:1024 sc1 lds")
            e("s_mov_b32 exec_lo, 0x0fffffff")
            e("s_mov_b32 exec_hi, 0x0fffffff")
            e(f"buffer_load_dwordx4 {vL16}, {srd(SRD_WS)}, {sA} offen offset:2048 sc1 lds")
            e(f"buffer_load_dwordx4 {vL16}, {srd(SRD_WS)}, {sA} offen offset:3072 sc1 lds")
            e("s_mov_b64 exec, -1")
            e(f"s_branch {dn}")
            e(f"{fl}:")
            for f in range(4):
                e(f"ds_write_b128 v202, {vr(188 if f == 1 else 184)} offset:{t * 4096 + f * 1024}")
            e(f"{dn}:")
        e.vm = []
        self.x_relayout()
        e("s_waitcnt vmcnt(0) lgkmcnt(0)")
        e("s_barrier")
        self.stamp("kvgot")
        order = [0, 8, 1, 2, 3, 4, 5, 6, 7]
        S = [80, 96, 112]
        MG, NM, OA, PF = 128, 144, 160, 176
        vM = "v11"
        kseq = order + list(range(1, 8))
        vseq = [0, 8] + list(range(1, 8))
        kreg = lambda n, half: ar(224 + 8 * (n % 4) + 4 * half)
        vreg = lambda n, half: vr(16 + 8 * (n % 4) + 4 * half)

        def rdk(n):
            t = kseq[n]
            for f in range(2):
                e(f"ds_read2st64_b64 {kreg(n, f)}, v15 offset0:{8 * t + 2 * f} offset1:{8 * t + 2 * f + 1}", ("k", n))

        def rdv(n):
            t = vseq[n]
            for f in range(2):
                e(f"ds_read_b128 {vreg(n, f)}, v10 offset:{t * 4096 + 2048 + f * 1024}", ("v", n))

        def smf(n, half, dst, c):
            if half == 0:
                e.wait(lg=("k", n))
            e(f"v_mfma_f32_32x32x16_bf16 {vr(dst, 16)}, {kreg(n, half)}, {vr(QF + 4 * half)}, {c if half == 0 else vr(dst, 16)}")

        def mx(src, k, first=False):
            if first:
                e(f"v_max_f32 {vM}, v{src}, v{src + 1}")
            else:
                e(f"v_max3_f32 {vM}, {vM}, v{src + 2 * k}, v{src + 2 * k + 1}")

        for n in range(3):
            rdk(n)
        self.wd_setup()
        pf = [lambda p=p, mat=mat: self.wgu_piece(p, mat) for p in range(self.o.get("e1b", self.o.get("e1", 0)), self.o.get("e2", 5)) for mat in range(2)]
        side = [self.rp_load]
        if self.o.get("sm_o", 0) == 0:
            side.insert(0, lambda: self.touch(SRD_WS, WS_O, 262144, 2048, " sc1", dst="v239"))
        wdl = side + pf + [lambda: self.gather_issue("v208", 216)]
        npf1 = self.o.get("pf1", 8)
        main, fill = [], {}
        dsts = {0: S[0], 8: S[1]}
        for n, t in enumerate(order[2:]):
            dsts[t] = S[(n + 2) % 3]
        for n, t in enumerate(order):
            for half in range(2):
                main.append(lambda n=n, t=t, half=half: smf(n, half, dsts[t], "0"))
            fill.setdefault(2 * n, []).append(lambda n=n: rdk(n + 3))
        mrg = [lambda r=r: e(f"v_cndmask_b32 v{MG + r}, v{S[0] + r}, v{S[1] + r}, s[{SMASK + 2 * r}:{SMASK + 2 * r + 1}]") for r in range(16)]
        fill.setdefault(5, []).extend(mrg)
        fill.setdefault(6, []).extend([lambda k=k: mx(MG, k, k == 0) for k in range(8)])
        for n, t in enumerate(order[2:]):
            g = 2 * (n + 2) + 3
            ops = [lambda k=k, t=t: mx(dsts[t], k) for k in range(8)]
            if g + 1 < 18:
                fill.setdefault(g, []).extend(ops[:4])
                fill.setdefault(g + 1, []).extend(ops[4:])
            else:
                fill.setdefault(17, []).extend(ops)
        self.spread(fill, [lambda n=n: rdv(n) for n in range(3)], 9, 15)
        self.spread(fill, wdl[:npf1], 0, 17)
        wdl = wdl[npf1:]
        self.merge(main, fill)
        e(f"v_mov_b32 v4, {vM}")
        e(f"v_permlane32_swap_b32 {vM}, v4")
        e(f"v_max_f32 {vM}, {vM}, v4")
        for r in range(16):
            e(f"v_sub_f32 v{NM + r}, 0, {vM}")
        nm = vr(NM, 16)
        smf(9, 0, S[0], nm)
        for r in range(8):
            e(f"v_sub_f32 v{MG + r}, v{MG + r}, {vM}")
        smf(9, 1, S[0], nm)
        for r in range(8, 16):
            e(f"v_sub_f32 v{MG + r}, v{MG + r}, {vM}")
        smf(10, 0, S[1], nm)
        rdk(12)
        for r in range(8):
            e(f"v_exp_f32 v{MG + r}, v{MG + r}")
        smf(10, 1, S[1], nm)
        rdv(3)
        for r in range(8, 16):
            e(f"v_exp_f32 v{MG + r}, v{MG + r}")
        for k in range(8):
            e(f"v_cvt_pk_bf16_f32 v{PF + k}, v{MG + 2 * k}, v{MG + 2 * k + 1}")
        for k in range(8):
            e(f"v_and_b32 v{PF + 8 + k}, v{PF + k}, v{MK + k}")
            e(f"v_xor_b32 v{PF + k}, v{PF + k}, v{PF + 8 + k}")
        oa = vr(OA, 16)
        nside = len(wdl)

        def pv(n, half, p, first=False):
            if half == 0:
                e.wait(lg=("v", n))
            e(f"v_mfma_f32_32x32x16_bf16 {oa}, {vreg(n, half)}, {vr(p + 4 * half)}, {'0' if first else oa}")

        pend = [lambda: pv(0, 0, PF, True), lambda: pv(0, 1, PF), lambda: pv(1, 0, PF + 8), lambda: pv(1, 1, PF + 8)]
        for t in range(1, 8):
            src = S[(t - 1) % 3]
            pfr = PF + 16 + 8 * (t & 1)
            mf = list(pend)
            if t + 2 < 8:
                d = S[(t + 1) % 3]
                mf += [lambda t=t, d=d: smf(10 + t, 0, d, nm), lambda t=t, d=d: smf(10 + t, 1, d, nm)]
            ops = [f"v_exp_f32 v{src + r}, v{src + r}" for r in range(16)]
            ops += [f"v_cvt_pk_bf16_f32 v{pfr + k}, v{src + 2 * k}, v{src + 2 * k + 1}" for k in range(8)]
            cost = [2] * 16 + [1] * 8
            tot, acc, mi = sum(cost), 0, 0
            for oi, (op, c) in enumerate(zip(ops, cost)):
                pos = (t - 1) * 24 + oi
                while wdl and (nside - len(wdl)) * self.o.get("pf2", 120) <= pos * nside:
                    wdl.pop(0)()
                while mi < len(mf) and acc >= mi * tot / len(mf):
                    mf[mi]()
                    mi += 1
                e(op)
                acc += c
            for x in mf[mi:]:
                x()
            if t == self.o.get("rp_at", 3):
                self.rp_read()
            if t == self.o.get("rp_at", 3) + 1:
                self.rp_store()
            if 12 + t < len(kseq):
                rdk(12 + t)
            if t == 1:
                rdv(4)
            if 4 + t < len(vseq):
                rdv(4 + t)
            pend = [lambda t=t, pfr=pfr: pv(t + 1, 0, pfr), lambda t=t, pfr=pfr: pv(t + 1, 1, pfr)]
        for x in wdl:
            x()
        pend[0]()
        e(f"v_bfe_u32 v4, {vL}, 4, 1")
        e(f"v_lshlrev_b32 v4, 14, v4")
        e(f"v_lshrrev_b32 v5, 5, {vL}")
        e(f"v_lshl_add_u32 v4, v5, 8, v4")
        pend[1]()
        e(f"v_and_b32 v5, 15, {vL}")
        e(f"v_lshl_add_u32 v4, v5, 4, v4")
        e(f"s_lshl_b32 {sA}, {sT}, 5")
        e(f"s_add_u32 {sA}, {sA}, {sH}")
        e(f"s_lshl_b32 {sA}, {sA}, 10")
        e(f"s_add_u32 {sA}, {sA}, {WS_O}")
        e(f"s_lshl_b32 {sBt}, {sT}, 4")
        e(f"s_add_u32 {sBt}, {sBt}, {sH}")
        e(f"s_lshl_b32 {sBt}, {sBt}, 2")
        e(f"s_add_u32 {sBt}, {sBt}, {WS_FLO}")
        e(f"v_mov_b32 v5, v{OA + 12}")
        e(f"v_mov_b32 v6, v{OA + 12}")
        e("v_permlane32_swap_b32 v5, v6")
        e("v_rcp_f32 v6, v6")
        for f in range(2):
            for r in range(8 * f, 8 * f + 8):
                e(f"v_mul_f32 v{OA + r}, v6, v{OA + r}")
            for k in range(4 * f, 4 * f + 4):
                e(f"v_cvt_pk_bf16_f32 v{PF + k}, v{OA + 2 * k}, v{OA + 2 * k + 1}")
            if f == 1:
                e(f"v_cndmask_b32 v{PF + 6}, v{PF + 6}, 0, {sHI}")
                e(f"v_cndmask_b32 v{PF + 7}, v{PF + 7}, 0, {sHI}")
            e(f"buffer_store_dwordx4 {vr(PF + 4 * f)}, v4, {srd(SRD_WS)}, {sA} offen offset:{f * 512}{self.sm('o')}")
        self.stamp("attn")
        self.publish(sBt, "v7")
        self.stamp("opub")
        e(f"s_cmp_ge_u32 {sR}, 28")
        e("s_cbranch_scc1 L_spare")

    def prep_p3(self):
        e = self.e
        e(f"v_lshrrev_b32 v4, 5, {vL}")
        e(f"v_lshlrev_b32 v4, 4, v4")
        e(f"v_bfe_u32 v5, {vL}, 4, 1")
        e(f"v_lshl_add_u32 v4, v5, 2, v4")
        e(f"v_bfe_u32 v6, {vL}, 2, 2")
        e("v_add_u32 v4, v4, v6")
        e("v_lshlrev_b32 v4, 7, v4")
        e("v_lshrrev_b32 v6, 1, v6")
        e("v_lshl_add_u32 v5, v5, 1, v6")
        e(f"v_and_b32 v6, 3, {vL}")
        e("v_lshl_add_u32 v4, v6, 3, v4")
        e(f"v_add_u32 v4, {L_WO}, v4")
        for t in range(4):
            e(f"v_xor_b32 v6, {t}, v5")
            e(f"v_lshl_add_u32 v{48 + t}, v6, 5, v4")
        e(f"v_and_b32 v4, 15, {vL}")
        e(f"v_lshrrev_b32 v5, 4, {vL}")
        e(f"v_lshlrev_b32 v52, 4, v4")
        e(f"v_lshl_add_u32 v52, v5, 9, v52")
        e(f"v_lshlrev_b32 v6, 7, v4")
        e(f"v_lshl_add_u32 v6, v5, 3, v6")
        e(f"s_lshl_b32 {sA}, {sW}, 11")
        e(f"s_add_u32 {sA}, {sA}, {L_X1}")
        e(f"v_add_u32 v53, {sA}, v6")
        e(f"v_lshlrev_b32 v54, 2, v4")
        e(f"v_lshlrev_b32 v55, 4, v5")
        e(f"s_lshl_b32 {sA}, {sI}, 2")
        e(f"s_add_u32 s33, {sA}, {sRB}")
        e(f"s_lshl_b32 {sA}, s33, 1")
        e(f"s_lshr_b32 {sBt}, {sW}, 1")
        e(f"s_add_u32 {sA}, {sA}, {sBt}")
        e(f"s_mul_i32 s28, {sA}, 28672")
        e(f"s_lshl_b32 {sBt}, {sCG}, 12")
        e(f"s_add_u32 s28, s28, {sBt}")
        e(f"s_and_b32 {sBt}, {sW}, 1")
        e(f"s_lshl_b32 {sBt}, {sBt}, 8")
        e(f"s_add_u32 s28, s28, {sBt}")
        e(f"s_add_u32 s28, s28, {WS_Z}")
        e(f"s_lshl_b32 s31, {sA}, 6")
        e(f"s_add_u32 s31, s31, {WS_FLO}")
        e(f"s_mul_i32 s29, s33, 7")
        e(f"s_add_u32 s29, s29, {sCG}")
        e(f"s_lshl_b32 s29, s29, 10")
        e(f"s_lshl_b32 {sBt}, {sW}, 8")
        e(f"s_add_u32 s29, s29, {sBt}")
        e(f"s_add_u32 s29, s29, {WS_STAT}")
        e(f"s_lshl_b32 s30, s33, 5")
        e(f"s_lshl_b32 {sBt}, {sCG}, 2")
        e(f"s_add_u32 s30, s30, {sBt}")
        e(f"s_add_u32 s30, s30, {sW}")
        e(f"s_lshl_b32 s30, s30, 2")
        e(f"s_add_u32 s30, s30, {WS_FLZ}")
        e(f"s_lshl_b32 s32, s33, 2")
        e(f"s_add_u32 s32, s32, {sW}")
        e(f"s_lshl_b32 s32, s32, 14")
        e(f"s_add_u32 s32, s32, {WS_O}")

    def wo_setup(self):
        e = self.e
        a0 = 0
        early = [("a", n) for n in range(a0, 224, 16) if n + 16 <= 224]
        slots = early + [("a", 224), ("a", 240)] + [("v", n) for n in (192, 208, 224)]
        self.NWO = NWO = min(len(slots), 16)
        self.wo_early = min(len(early), self.o.get("wo_pre", 14)) if self.o.get("wo_at", 2) == 0 else 0

        def wreg(hd, t, k=4, o=0):
            kind, n = slots[hd % NWO]
            return (ar if kind == "a" else vr)(n + 4 * t + o, k)

        def rd_wo(hd, tiles=range(4)):
            for t in tiles:
                a = 48 + (t ^ (2 * (hd & 1)))
                e(f"ds_read_b64_tr_b16 {wreg(hd, t, 2)}, v{a} offset:{hd * 3584}", ("wo", hd))
                e(f"ds_read_b64_tr_b16 {wreg(hd, t, 2, 2)}, v{a} offset:{hd * 3584 + 1024}", ("wo", hd))
        self.wreg, self.rd_wo = wreg, rd_wo

    def p3(self):
        e = self.e
        OB, AC = 128, 32
        GA, CB, XR = 64, 80, 96
        wreg, rd_wo, NWO = self.wreg, self.rd_wo, self.NWO
        self.late_consts()
        for t in range(4):
            e(f"ds_read_b128 {vr(GA + 4 * t)}, v55 offset:{L_GAB + 64 * t}")
            e(f"ds_read_b128 {vr(CB + 4 * t)}, v55 offset:{L_GAB + 256 + 64 * t}")
        self.poll_issue("v54", "s31", "v56", "ofl")
        ahead = NWO if NWO == 16 else NWO - 1
        nxt = self.wo_early
        while nxt < min(ahead, max(self.wo_early + 2, 4)):
            rd_wo(nxt)
            nxt += 1
        for k in range(8):
            e(f"v_lshlrev_b32 v{XR + 2 * k}, 16, v{248 + k}")
            e(f"v_and_b32 v{XR + 2 * k + 1}, 0xffff0000, v{248 + k}")
        self.poll_check("v54", "s31", "v56", "ofl")
        self.acquire()
        self.stamp("oflag")

        def ld_o(hd):
            if hd and hd % 4 == 0:
                e("s_add_u32 s32, s32, 4096")
            e(f"buffer_load_dwordx4 {vr(OB + 4 * hd)}, {vL16}, {srd(SRD_WS)}, s32 offen offset:{(hd % 4) * 1024} sc1", ("o", hd))

        PRE = self.o.get("p3pre", 8)
        for hd in range(PRE):
            ld_o(hd)
        self.prep_p45()
        for hd in range(16):
            e.wait(vm=("o", hd), lg=("wo", hd))
            for t in range(4):
                c = "0" if hd == 0 else vr(AC + 4 * t)
                e(f"v_mfma_f32_16x16x32_bf16 {vr(AC + 4 * t)}, {wreg(hd, t)}, {vr(OB + 4 * hd)}, {c}")
                if t == 0 and hd + PRE < 16:
                    ld_o(hd + PRE)
                if nxt < 16 and nxt <= hd + ahead:
                    rd_wo(nxt, [t])
                    if t == 3:
                        nxt += 1
        self.stamp("oproj")
        for pp in range(2):
            ks = range(8 * pp, 8 * pp + 8)
            for k in ks:
                e(f"v_fmac_f32 v{XR + k}, v{GA + k}, v{AC + k}")
            for k in range(4 * pp, 4 * pp + 4):
                e(f"v_cvt_pk_bf16_f32 v{XR + 16 + k}, v{XR + 2 * k}, v{XR + 2 * k + 1}")
            for k in range(4 * pp, 4 * pp + 4):
                e(f"v_lshlrev_b32 v{XR + 2 * k}, 16, v{XR + 16 + k}")
                e(f"v_and_b32 v{XR + 2 * k + 1}, 0xffff0000, v{XR + 16 + k}")
            for k in range(8 * pp, 8 * pp + 8, 2):
                e(f"v_pk_mul_f32 v[{CB + k}:{CB + k + 1}], v[{CB + k}:{CB + k + 1}], v[{XR + k}:{XR + k + 1}]")
            for k in range(4 * pp, 4 * pp + 4):
                e(f"v_cvt_pk_bf16_f32 v{XR + 24 + k}, v{CB + 2 * k}, v{CB + 2 * k + 1}")
            e(f"buffer_store_dwordx4 {vr(XR + 24 + 4 * pp)}, v52, {srd(SRD_WS)}, s28 offen offset:{pp * 2048}{self.sm('z')}")
        pr = lambda n: f"v[{n}:{n + 1}]"
        e(f"v_pk_add_f32 v[4:5], {pr(XR)}, {pr(XR + 2)}")
        e(f"v_pk_add_f32 v[6:7], {pr(XR + 4)}, {pr(XR + 6)}")
        e(f"v_pk_add_f32 v[4:5], v[4:5], {pr(XR + 8)}")
        e(f"v_pk_add_f32 v[6:7], v[6:7], {pr(XR + 10)}")
        e(f"v_pk_add_f32 v[4:5], v[4:5], {pr(XR + 12)}")
        e(f"v_pk_add_f32 v[6:7], v[6:7], {pr(XR + 14)}")
        e("v_pk_add_f32 v[4:5], v[4:5], v[6:7]")
        e("v_add_f32 v8, v4, v5")
        self.reduce_hi2("v8", "v7")
        self.publish("s30", "v7")
        self.stamp("zpub")
        e(f"v_mul_f32 v6, {fbits(1.0 / 64)}, v8")
        for k in range(0, 16, 2):
            e(f"v_pk_add_f32 {pr(XR + k)}, {pr(XR + k)}, v[6:7] op_sel_hi:[1,0] neg_lo:[0,1] neg_hi:[0,1]")
        e(f"v_pk_mul_f32 v[4:5], {pr(XR)}, {pr(XR)}")
        e(f"v_pk_mul_f32 v[6:7], {pr(XR + 2)}, {pr(XR + 2)}")
        for k in range(4, 16, 4):
            e(f"v_pk_fma_f32 v[4:5], {pr(XR + k)}, {pr(XR + k)}, v[4:5]")
            e(f"v_pk_fma_f32 v[6:7], {pr(XR + k + 2)}, {pr(XR + k + 2)}, v[6:7]")
        e("v_pk_add_f32 v[4:5], v[4:5], v[6:7]")
        e("v_add_f32 v9, v4, v5")
        self.reduce_hi2("v9", "v7")
        e(f"v_mov_b32 v10, {sTAG}")
        e(f"v_mov_b32 v11, {sTAG}")
        e("s_barrier")
        for t in range(4):
            e(f"ds_write_b64 v53, {vr(XR + 16 + 2 * t, 2)} offset:{32 * t}")

    def prep_p45(self):
        e = self.e
        self.w4_addr()
        e(f"s_lshl_b32 {sA}, {sW}, 13")
        e(f"s_add_u32 s92, {sA}, {L_RA}")
        e(f"v_min_u32 v30, 27, {vL}")
        e(f"v_lshlrev_b32 v30, 2, v30")
        e(f"s_lshl_b32 {sE}, {sI}, 2")
        e(f"s_add_u32 {sE}, {sE}, {sW}")
        e(f"s_lshl_b32 s81, {sE}, 7")
        e(f"s_add_u32 s81, s81, {WS_FLZ}")
        e(f"s_mul_i32 s88, {sE}, 57344")
        e(f"s_add_u32 s88, s88, {WS_Z}")
        e(f"s_add_u32 s89, s88, 28672")
        e(f"s_mul_i32 s64, {sE}, 7168")
        e(f"s_add_u32 s64, s64, {WS_STAT}")
        e(f"s_mul_i32 s65, {sE}, {2 * 114688}")
        e(f"s_lshl_b32 {sBt}, {sR}, 12")
        e(f"s_add_u32 s65, s65, {sBt}")
        e(f"s_add_u32 s65, s65, {WS_HID}")
        e(f"s_add_u32 s66, s65, 114688")
        e(f"s_lshl_b32 s67, {sE}, 6")
        e(f"s_add_u32 s67, s67, {sR}")
        e(f"s_lshl_b32 s67, s67, 2")
        e(f"s_add_u32 s67, s67, {WS_FLD}")
        e(f"s_add_u32 s68, s67, 128")
        e(f"s_lshl_b32 s69, {sI}, 2")
        e(f"s_add_u32 s69, s69, {sRB}")
        e(f"s_lshl_b32 s70, s69, 8")
        e(f"s_mul_i32 {sBt}, {sW}, 28")
        e(f"s_add_u32 s70, s70, {sBt}")
        e(f"s_add_u32 s70, s70, {WS_FLD}")
        e(f"s_mul_i32 s71, s69, {2 * 114688}")
        e(f"s_mul_i32 {sBt}, {sW}, 28672")
        e(f"s_add_u32 s71, s71, {sBt}")
        e(f"s_add_u32 s71, s71, {WS_HID}")
        self.rot28("s74")
        e(f"s_lshl_b32 s75, {sR}, 7")
        e(f"s_add_u32 s75, s75, {WS_FLXA}")
        e(f"s_lshl_b32 s76, {sR}, 12")
        e(f"s_add_u32 s76, s76, {WS_XA}")
        e(f"s_lshl_b32 s77, s69, 3")
        e(f"s_add_u32 s77, s77, {sW}")
        e(f"s_mul_i32 s77, s77, 7168")
        e(f"s_lshl_b32 {sBt}, {sCG}, 7")
        e(f"s_add_u32 s77, s77, {sBt}")
        e(f"s_add_u32 s78, s77, {32 * 896}")

    def rot28(self, d):
        e = self.e
        e(f"s_lshl_b32 {d}, {sRB}, 1")
        e(f"s_add_u32 {d}, {d}, {sCG}")
        e(f"s_cmp_ge_u32 {d}, 7")
        e(f"s_cselect_b32 {sBt}, 7, 0")
        e(f"s_sub_u32 {d}, {d}, {sBt}")

    def w4_addr(self):
        e = self.e
        self.tr_addr("v24", 4)
        e("v_xor_b32 v25, 64, v24")
        for k in range(1, 3):
            e(f"v_add_u32 v{24 + 2 * k}, {65536 * k}, v24")
            e(f"v_add_u32 v{25 + 2 * k}, {65536 * k}, v25")

    @staticmethod
    def w4_off(ks, mat):
        a = w4_base(ks >> 1) + mat * 4096 + (ks & 1) * 1024
        return a % 65536, 2 * (a // 65536)

    def p45(self):
        e = self.e
        AC, BR, AR, WD = 128, 64, 224, 0
        XA, XB, R2 = 48, 112, 120
        KS = self.o.get("ks_split", 14)
        NB, DB = 12, self.o.get("zdist", 10)
        steps = [(ks, (0, 1)) for ks in range(KS)] + [(ks, (0,)) for ks in range(KS, 29)] + [(ks, (1,)) for ks in range(KS, 29)]
        seq = [(ks, tt) for ks, tts in steps for tt in tts if ks < 28]
        slot = {x: n % NB for n, x in enumerate(seq)}

        def rd_a1(si, t, hf):
            ks = steps[si][0]
            if ks == 28:
                return
            off, hi = self.w4_off(ks, t >> 1)
            d = AR + 16 * (si % 2) + 4 * t + 2 * hf
            e(f"ds_read_b64_tr_b16 {ar(d, 2)}, v{24 + hi + (t & 1)} offset:{off + 2048 * hf}", ("a", si, t))

        for t in range(4):
            for hf in range(2):
                rd_a1(0, t, hf)
        self.poll("v30", "s81", "v31")
        self.acquire()
        self.stamp("zflag")

        def ld_z(n):
            if self.o.get("skip_z") and n >= 12:
                return
            ks, tt = seq[n]
            if ks and ks % 4 == 0:
                e(f"s_add_u32 s{88 + tt}, s{88 + tt}, 4096")
            e(f"buffer_load_dwordx4 {vr(BR + 4 * slot[seq[n]])}, {vL16}, {srd(SRD_WS)}, s{88 + tt} offen offset:{(ks % 4) * 1024} sc1", ("z", n))

        first = self.o.get("zfirst", 6)
        for n in range(first):
            ld_z(n)

        def ld_stat(cg):
            if cg == 4:
                e("s_add_u32 s82, s64, 4096")
            e(f"buffer_load_dwordx4 {vr(32 + 4 * cg)}, {vL16}, {srd(SRD_WS)}, {'s64' if cg < 4 else 's82'} offen offset:{(cg % 4) * 1024} sc1", "stat")

        def stat_check():
            lp, dn = e.label("stat"), e.label("statd")
            e.wait(vm="stat")
            keep = list(e.vm)
            e(f"s_mov_b32 {sSPIN}, 0")
            e(f"{lp}:")
            e(f"v_xor_b32 v4, {sTAG}, v34")
            for cg in range(1, 7):
                e(f"v_xor_b32 v5, {sTAG}, v{34 + 4 * cg}")
                e("v_or_b32 v4, v4, v5")
            e("v_cmp_ne_u32 vcc, 0, v4")
            e(f"s_cbranch_vccz {dn}")
            for cg in range(7):
                ld_stat(cg)
            e(f"s_add_u32 {sSPIN}, {sSPIN}, 1")
            e(f"s_cmp_ge_u32 {sSPIN}, {SPIN_MAX}")
            e("s_waitcnt vmcnt(0)")
            e(f"s_cbranch_scc0 {lp}")
            e(f"{dn}:")
            e.vm = keep

        def stats(e):
            e("v_add_f32 v4, v32, v36")
            e("v_add_f32 v5, v40, v44")
            e("v_add_f32 v6, v48, v52")
            e("v_add_f32 v4, v4, v5")
            e("v_add_f32 v6, v6, v56")
            e("v_add_f32 v4, v4, v6")
            e(f"v_mul_f32 v4, {fbits(1.0 / 448)}, v4")
            e("v_add_f32 v5, v33, v37")
            e("v_add_f32 v6, v41, v45")
            e("v_add_f32 v7, v49, v53")
            e("v_add_f32 v5, v5, v6")
            e("v_add_f32 v7, v7, v57")
            e("v_add_f32 v5, v5, v7")
            e(f"v_mov_b32 v7, {fbits(1.0 / 64)}")
            e("v_mov_b32 v6, 0")
            for cg in range(7):
                e(f"v_fma_f32 v46, v{32 + 4 * cg}, v7, -v4")
                e("v_fmac_f32 v6, v46, v46")
            e(f"v_mul_f32 v6, {fbits(64.0)}, v6")
            e("v_add_f32 v5, v5, v6")
            e(f"v_mul_f32 v5, {fbits(1.0 / 448)}, v5")
            e(f"v_add_f32 v5, {fbits(1e-5)}, v5")
            e(f"v_rcp_f32 v{R2}, v5")
            e("v_sqrt_f32 v5, v5")
            e("v_sub_f32 v4, 0, v4")
            e("v_cvt_pk_bf16_f32 v6, v4, v5")
            e("v_lshlrev_b32 v7, 16, v6")
            e("v_and_b32 v46, 0xffff0000, v6")
            e("v_sub_f32 v4, v4, v7")
            e("v_sub_f32 v5, v5, v46")
            e("v_cvt_pk_bf16_f32 v7, v4, v5")
            e(f"s_mov_b32 {sA}, 0x01000100")
            e(f"s_mov_b32 {sBt}, 0x03020504")
            e(f"s_mov_b32 {sC}, 0x07060302")
            e(f"v_perm_b32 v{XB}, v7, v6, {sA}")
            e(f"v_perm_b32 v{XB + 1}, v7, v6, {sBt}")
            e(f"v_perm_b32 v{XB + 2}, v7, v6, {sC}")
            e(f"v_mov_b32 v{XB + 3}, 0")
            e(f"v_mov_b32 v{XB + 7}, 0")
            for k in range(3):
                e(f"v_mov_b32 v{XB + 4 + k}, v{XB + k}")
            e(f"v_mov_b32 v{R2 + 1}, v{R2}")
            for k in range(3):
                e(f"v_permlane32_swap_b32 v{XB + k}, v{XB + 4 + k}")
            e(f"v_permlane32_swap_b32 v{R2}, v{R2 + 1}")

        def epi4(tt):
            out = []
            for ct in range(2):
                g, u = AC + 64 * tt + 16 * ct, AC + 64 * tt + 32 + 16 * ct
                for k in range(8):
                    for r in (2 * k, 2 * k + 1):
                        out.append(f"v_max_f32 v{g + r}, 0, v{g + r}")
                        out.append(f"v_mul_f32 v{u + r}, v{R2 + tt}, v{u + r}")
                    for r in (2 * k, 2 * k + 1):
                        out.append(f"v_mul_f32 v{g + r}, v{g + r}, v{u + r}")
                    out.append(f"v_cvt_pk_bf16_f32 v{g + k}, v{g + 2 * k}, v{g + 2 * k + 1}")
                    if k % 4 == 3:
                        s = k // 4
                        out.append((f"buffer_store_dwordx4 {vr(g + 4 * s)}, {vL16}, {srd(SRD_WS)}, s{65 + tt} offen offset:{(2 * ct + s) * 1024} sc1", ("hs", tt)))
            return [(lambda x=x: e(x)) if isinstance(x, str) else (lambda x=x: e(x[0], x[1])) for x in out]

        def flag_hid(tt):
            e.wait(vm=("hs", tt))
            e(f"v_mov_b32 v7, {sTAG}")
            slow, dn = e.label("slowfl"), e.label("fl")
            e("s_mov_b64 exec, 1")
            e(f"s_cmp_lg_u32 {sFAST}, 0")
            e(f"s_cbranch_scc0 {slow}")
            e(f"buffer_store_dword v7, off, {srd(SRD_WS)}, s{67 + tt}")
            e(f"s_branch {dn}")
            e(f"{slow}:")
            e(f"buffer_store_dword v7, off, {srd(SRD_WS)}, s{67 + tt} sc1")
            e(f"{dn}:")
            e.vm.pop()
            e("s_mov_b64 exec, -1")

        def xa_issue():
            e(f"v_and_b32 v30, 3, {vL}")
            e(f"v_lshlrev_b32 v30, 2, v30")
            self.poll_issue("v30", "s75", "v31", "xafl")

        def poll_xa():
            self.poll_check("v30", "s75", "v31", "xafl")
            for t in range(4):
                e(f"buffer_load_dwordx4 {vr(XA + 4 * t)}, {vL16}, {srd(SRD_WS)}, s76 offen offset:{t * 1024} sc1", "xa")

        ring5 = [128 + 4 * k for k in range(8)] + [32 + 4 * k for k in range(4)] + [16, 20]
        N5, D5 = len(ring5), self.o.get("hdist", 10)

        def hid_issue(tt):
            if tt == 0:
                e(f"v_min_u32 v30, 6, {vL}")
                e(f"v_lshlrev_b32 v30, 2, v30")
            self.poll_issue("v30", "s70", "v31", ("hfl", tt), imm=128 * tt)

        def poll_hid(tt):
            self.poll_check("v30", "s70", "v31", ("hfl", tt), imm=128 * tt)
            self.stamp("hid%d" % tt)

        def ld_hid(n):
            if n == 28:
                e("s_add_u32 s71, s71, 114688")
            if n % 4 == 0:
                e("s_lshl_b32 s80, s74, 12")
                e("s_add_u32 s80, s80, s71")
                e("s_add_u32 s74, s74, 1")
                e("s_cmp_eq_u32 s74, 7")
                e("s_cselect_b32 s74, 0, s74")
            e(f"buffer_load_dwordx4 {vr(ring5[n % N5])}, {vL16}, {srd(SRD_WS)}, s80 offen offset:{(n % 4) * 1024} sc1", ("d", n))

        main, fill = [], {}
        gap0 = []
        nseq = 0
        for si, (ks, tts) in enumerate(steps):
            gap0.append(len(main))
            d = AR + 16 * (si % 2)
            for t in range(4):
                for tt in tts:
                    def m(si=si, ks=ks, t=t, tt=tt, d=d, n=nseq + tts.index(tt), lead=(tt == tts[0])):
                        if ks < 28:
                            e.wait(vm=("z", n) if t == 0 else None, lg=("a", si, t) if lead else None)
                            a, b = ar(d + 4 * t), vr(BR + 4 * slot[(ks, tt)])
                        else:
                            e.wait(vm="xa")
                            a, b = vr(XA + 4 * t), vr(XB + 4 * tt)
                        acc = AC + 64 * tt + 16 * t
                        c = "0" if ks == 0 else vr(acc, 16)
                        e(f"v_mfma_f32_32x32x16_bf16 {vr(acc, 16)}, {a}, {b}, {c}")
                    main.append(m)
            g, ng = gap0[si], 4 * len(tts)
            if si + 1 < len(steps):
                self.spread(fill, [lambda si=si, t=t, hf=hf: rd_a1(si + 1, t, hf) for t in range(4) for hf in range(2)], g, g + ng)
            if ks < 28:
                nseq += len(tts)
        n4 = len(main)
        use = {}
        n = 0
        for si, (ks, tts) in enumerate(steps):
            for k, tt in enumerate(tts):
                if ks < 28:
                    use[n] = gap0[si] + 4 * k
                    n += 1
        prev = -1
        for n in range(first, len(seq)):
            gpos = max(use[n - DB] if n >= DB else 0, prev + 1)
            prev = gpos
            fill.setdefault(gpos, []).append(lambda n=n: ld_z(n))
        npf = self.o.get("e2", 5)
        rest = list(range(npf, 14))
        step = self.o.get("wg_step", 6)
        pos = {}
        for k, p in enumerate(rest):
            for mat in range(2):
                pos[(p, mat)] = self.o.get("wg0", 4) + (2 * k + mat) * step
                if not self.o.get("skip_wg"):
                    fill.setdefault(pos[(p, mat)], []).append(lambda p=p, mat=mat: self.wgu_piece(p, mat, ("wg", p)))
        def st_stat():
            e("s_mov_b64 exec, 0xffff")
            e(f"buffer_store_dwordx4 v[8:11], {vL16}, {srd(SRD_WS)}, s29 offen sc1")
            e("s_mov_b64 exec, -1")
        fill.setdefault(5, []).append(st_stat)
        fill.setdefault(6, []).append(self.rp_flag)
        self.spread(fill, [lambda cg=cg: ld_stat(cg) for cg in range(7)], 48, 62)
        grp = self.o.get("wg_grp", 3)
        for k in range(0, len(rest), grp):
            last = rest[min(k + grp, len(rest)) - 1]
            gb = gap0[2 * rest[k] - 1] - 1
            assert gb > pos[(last, 1)], (gb, pos[(last, 1)])

            def bar(last=last):
                e.wait(vm=("wg", last))
                e("s_barrier")
            fill.setdefault(gb, []).append(bar)
        for gs, nm in ((40, "g40"), (96, "g96"), (gap0[29], "tail1"), (200, "g200")):
            fill.setdefault(gs, []).append(lambda nm=nm: self.stamp(nm))
        fill.setdefault(86, []).append(stat_check)
        self.spread(fill, self.record(stats), 87, 112)
        end0 = gap0[KS + 29 - KS]
        fill.setdefault(end0 - 56, []).append(xa_issue)
        fill.setdefault(max(end0 - 32, 113), []).append(poll_xa)
        self.spread(fill, self.wd_loads(self.o.get("wd_4", 12)), self.o.get("wd0", 112), min(self.o.get("wd1", 200), n4 - 12))
        w0 = self.o.get("wd0", 112)
        fill.setdefault(w0 - 24, []).append(lambda: self.wfl_issue("v28", "v29"))
        fill.setdefault(w0 - 1, []).append(lambda: self.poll_check("v28", sU, "v29", "wfl"))
        j_late = self.wd_next
        hpos = {}
        late = self.wd_loads(28)
        self.spread(fill, epi4(0), end0 + 1, end0 + self.o.get("ep0", 26))
        fill.setdefault(end0 + self.o.get("fl0", 40), []).append(lambda: flag_hid(0))
        gp0 = n4 - self.o.get("poll0", 8)
        assert self.o.get("ep0", 26) <= self.o.get("fl0", 40) and end0 + self.o.get("fl0", 40) < gp0
        assert 22 <= self.o.get("fl1", 32) < self.o.get("poll1", 50) <= 55
        assert end0 - 56 >= 113 or True
        assert self.o.get("wd0", 112) - 24 > 7
        fill.setdefault(gp0 - self.o.get("pgap", 8), []).append(lambda: hid_issue(0))
        fill.setdefault(gp0, []).append(lambda: poll_hid(0))
        acc5 = [160, 224]
        for n in range(56):
            tt, j = divmod(n, 28)
            for ct in range(2):
                def m(n=n, tt=tt, j=j, ct=ct):
                    if n == 0 and ct == 0:
                        self.stamp("gemm4")
                    if ct == 0:
                        e.wait(vm=("d", n))
                    acc = acc5[tt] + 16 * ct
                    c = "0" if j == 0 else vr(acc, 16)
                    e(f"v_mfma_f32_32x32x16_bf16 {vr(acc, 16)}, {ar(WD + 8 * j + 4 * ct)}, {vr(ring5[n % N5])}, {c}")
                main.append(m)
        gp1 = n4 + self.o.get("poll1", 50)
        fill.setdefault(gp1 - self.o.get("pgap", 8), []).append(lambda: hid_issue(1))
        fill.setdefault(gp1, []).append(lambda: poll_hid(1))
        prev = gp0
        for n in range(56):
            gpos = max(n4 + 2 * (n - D5), prev + 1)
            if n >= 28:
                gpos = max(gpos, gp1)
            gpos = min(gpos, n4 + 2 * n - 1)
            prev = gpos
            hpos[n] = gpos
        l0 = max(n4 + self.o.get("late0", -8), min(self.o.get("wd1", 200), n4 - 12))
        for k, it in enumerate(late):
            j = j_late + k // 2
            g = min(l0 + (k * self.o.get("late_step", 10)) // 10, hpos[j])
            fill.setdefault(g, []).append(it)
        for n in range(56):
            fill.setdefault(hpos[n], []).append(lambda n=n: ld_hid(n))
        self.spread(fill, epi4(1), n4 + 1, n4 + 22)
        fill.setdefault(n4 + self.o.get("fl1", 32), []).append(lambda: flag_hid(1))

        def red_addr(e):
            e(f"v_and_b32 v4, 31, {vL}")
            e(f"v_and_b32 v5, 7, {vL}")
            e(f"v_lshrrev_b32 v6, 5, {vL}")
            e("v_xor_b32 v5, v5, v6")
            e("v_lshlrev_b32 v4, 8, v4")
            e("v_add_u32 v4, s92, v4")
            for p in range(8):
                e(f"v_xor_b32 v6, {2 * p}, v5")
                e(f"v_lshl_add_u32 v{64 + p}, v6, 4, v4")
            e(f"v_lshrrev_b32 v4, 3, {vL}")
            e(f"v_and_b32 v6, 7, {vL}")
            e("v_lshlrev_b32 v5, 1, v6")
            e("v_xor_b32 v5, v5, v4")
            e(f"s_lshl_b32 {sA}, {sW}, 11")
            e(f"s_add_u32 {sA}, {sA}, {L_RA}")
            e(f"v_lshl_add_u32 v7, v4, 8, {sA}")
            e("v_lshl_add_u32 v72, v5, 4, v7")
            e("v_xor_b32 v73, 16, v72")
            e("v_mul_u32_u24 v4, 896, v4")
            e("v_lshl_add_u32 v74, v6, 4, v4")
            e("v_lshlrev_b32 v6, 5, v6")
            e(f"ds_read_b128 v[76:79], v6 offset:{L_GAB + 512}")
            e(f"ds_read_b128 v[80:83], v6 offset:{L_GAB + 528}")
            e(f"s_lshl_b32 {sA}, {sW}, 10")
            e(f"s_add_u32 {sA}, {sA}, {L_X1}")
            e(f"v_add_u32 v75, {sA}, {vL16}")

        self.spread(fill, self.record(red_addr), n4 + 22, n4 + 32)

        def red_write(tt):
            out = []
            for ct in range(2):
                for q in range(4):
                    out.append(f"ds_write_b128 v{64 + 4 * ct + q}, {vr(acc5[tt] + 16 * ct + 4 * q)}")
            return out

        def red_final(tt):
            out = [f"ds_read_b128 v[84:87], v75 offset:{tt * 4096}"]
            for n in range(2):
                for s in range(4):
                    out.append(f"ds_read_b128 {vr(88 + 16 * n + 4 * s)}, v{72 + n} offset:{s * 8192}")
            out.append("s_waitcnt lgkmcnt(4)")
            for k in range(4):
                out.append(f"v_lshlrev_b32 v{120 + 2 * k}, 16, v{84 + k}")
                out.append(f"v_and_b32 v{121 + 2 * k}, 0xffff0000, v{84 + k}")
            for n in range(2):
                b = 88 + 16 * n
                if n == 1:
                    out.append("s_waitcnt lgkmcnt(0)")
                for k in range(4):
                    out.append(f"v_add_f32 v{b + k}, v{b + k}, v{b + 4 + k}")
                    out.append(f"v_add_f32 v{b + 8 + k}, v{b + 8 + k}, v{b + 12 + k}")
                for k in range(4):
                    out.append(f"v_add_f32 v{b + k}, v{b + k}, v{b + 8 + k}")
                for k in range(4):
                    out.append(f"v_fmac_f32 v{120 + 4 * n + k}, v{76 + 4 * n + k}, v{b + k}")
                out.append(f"v_cvt_pk_bf16_f32 v{84 + 2 * n}, v{120 + 4 * n}, v{121 + 4 * n}")
                out.append(f"v_cvt_pk_bf16_f32 v{85 + 2 * n}, v{122 + 4 * n}, v{123 + 4 * n}")
            out.append(f"buffer_store_dwordx4 v[84:87], v74, {srd(SRD_OUT)}, s{77 + tt} offen{self.sm('out')}")
            return out

        g5 = n4 + 56
        self.spread(fill, [lambda x=x: e(x) for x in red_write(0)], g5 + 2, g5 + 10)
        shift = L_RB - L_RA

        def bar5():
            e("s_waitcnt lgkmcnt(0)")
            e("s_barrier")
        fill.setdefault(g5 + 14, []).append(bar5)
        fin = red_final(0)
        fin += [f"v_add_u32 v{64 + p}, {shift}, v{64 + p}" for p in range(10)]
        self.spread(fill, [lambda x=x: e(x) for x in fin], g5 + 15, g5 + 50)
        self.merge(main, fill)
        self.stamp("gemm5")
        for x in red_write(1):
            e(x)
        bar5()
        for x in red_final(1):
            e(x)
        self.stamp("end")
        e("s_branch L_fin")

    def spare(self):
        e = self.e
        e.vm, e.lg = [], []
        AR = 224
        e("L_spare:")
        e("s_barrier")
        e(f"s_sub_u32 s74, {sR}, 28")
        e(f"s_lshl_b32 s74, s74, 3")
        e(f"s_add_u32 s74, s74, {sI}")
        e(f"s_cmp_lt_u32 s74, 28")
        e("s_cbranch_scc1 L_bias")
        e(f"s_cmp_lg_u32 s74, 31")
        e("s_cbranch_scc1 L_fin")
        e(f"s_cmp_lg_u32 {sW}, 0")
        e("s_cbranch_scc1 L_fin")
        self.bump_epoch()
        e("s_branch L_fin")
        e("L_bias:")
        e.vm = []
        e(f"s_lshl_b32 {sA}, {sW}, 6")
        e(f"v_add_u32 v4, {sA}, {vL}")
        e("v_min_u32 v4, 223, v4")
        e(f"v_cmp_gt_u32 vcc, 112, v4")
        e("v_subrev_u32 v5, 112, v4")
        e("v_cndmask_b32 v5, v5, v4, vcc")
        e("v_mov_b32 v6, 336")
        e("v_mov_b32 v7, 448")
        e("v_cndmask_b32 v6, v6, v7, vcc")
        e("v_add_u32 v6, v6, v5")
        e("v_lshlrev_b32 v208, 4, v6")
        e("v_lshrrev_b32 v6, 3, v5")
        e("v_lshlrev_b32 v6, 6, v6")
        e("v_and_b32 v7, 3, v5")
        e("v_lshl_add_u32 v6, v7, 4, v6")
        e("v_bfe_u32 v7, v5, 2, 1")
        e("v_lshl_add_u32 v6, v7, 3, v6")
        e("v_mov_b32 v7, 896")
        e("v_cndmask_b32 v7, v7, 0, vcc")
        e("v_add_u32 v209, v6, v7")
        e("v_cndmask_b32 v210, 0, 1.0, vcc")
        self.gather_issue("v208", 216)
        for p in list(range(self.o.get("e1b", self.o.get("e1", 0)))) + list(range(self.o.get("e2", 5), 14)):
            for mat in range(2):
                self.wgu_piece(p, mat)
        self.w4_addr()
        e(f"s_and_b32 {sA}, {sW}, 1")
        e(f"s_lshl_b32 {sA}, {sA}, 6")
        e(f"v_xor_b32 v26, {sA}, v24")
        e(f"s_lshr_b32 {sA}, {sW}, 1")
        e(f"s_lshl_b32 {sA}, {sA}, 12")
        e(f"v_add_u32 v26, {sA}, v26")
        e(f"v_add_u32 v28, 65536, v26")
        e(f"v_add_u32 v30, 131072, v26")
        e(f"v_and_b32 v4, 1, {vL}")
        e(f"v_mul_u32_u24 v4, 896, v4")
        e(f"v_lshrrev_b32 v5, 5, {vL}")
        e(f"v_lshl_add_u32 v27, v5, 4, v4")
        self.gather_finish("v208", 216, 232)
        for k in range(4):
            e(f"v_add_f32 v{216 + k}, v{216 + k}, v210")
        e("v_cvt_pk_bf16_f32 v220, v216, v217")
        e("v_cvt_pk_bf16_f32 v221, v218, v219")
        e(f"ds_write_b64 v209, v[220:221] offset:{L_CVEC}")
        e.wait(vm="wgu")
        e("s_waitcnt lgkmcnt(0)")
        e("s_barrier")

        def rd_b(ks):
            d = AR + 8 * (ks % 4)
            off, hi = self.w4_off(ks, 0)
            e(f"ds_read_b128 {ar(d)}, v27 offset:{L_CVEC + ks * 32}", ("b", ks))
            e(f"ds_read_b64_tr_b16 {ar(d + 4, 2)}, v{26 + hi} offset:{off}", ("b", ks))
            e(f"ds_read_b64_tr_b16 {ar(d + 6, 2)}, v{26 + hi} offset:{off + 2048}", ("b", ks))

        for ks in range(3):
            rd_b(ks)
        for ks in range(28):
            e.wait(lg=("b", ks))
            d = AR + 8 * (ks % 4)
            c = "0" if ks == 0 else vr(32, 16)
            e(f"v_mfma_f32_32x32x16_bf16 {vr(32, 16)}, {ar(d)}, {ar(d + 4)}, {c}")
            if ks + 3 < 28:
                rd_b(ks + 3)
        e("v_cvt_pk_bf16_f32 v4, v32, v33")
        e("v_lshlrev_b32 v5, 16, v4")
        e("v_and_b32 v6, 0xffff0000, v4")
        e("v_sub_f32 v5, v32, v5")
        e("v_sub_f32 v6, v33, v6")
        e("v_cvt_pk_bf16_f32 v5, v5, v6")
        e(f"s_mov_b32 {sA}, 0x05040100")
        e(f"s_mov_b32 {sBt}, 0x03020706")
        e(f"v_perm_b32 v48, v5, v4, {sA}")
        e("v_mov_b32 v49, v4")
        e(f"v_perm_b32 v50, v5, v4, {sBt}")
        e("v_mov_b32 v51, 0")
        for k in range(3):
            e(f"v_cndmask_b32 v{48 + k}, v{48 + k}, 0, {sHI}")
        e(f"s_lshl_b32 {sA}, {sFG}, 2")
        e(f"s_add_u32 {sA}, {sA}, {sW}")
        e(f"s_lshl_b32 {sA}, {sA}, 10")
        e(f"s_add_u32 {sA}, {sA}, {WS_XA}")
        e(f"buffer_store_dwordx4 v[48:51], {vL16}, {srd(SRD_WS)}, {sA} offen sc1")
        e(f"s_lshl_b32 {sA}, {sFG}, 5")
        e(f"s_add_u32 {sA}, {sA}, {sW}")
        e(f"s_lshl_b32 {sA}, {sA}, 2")
        e(f"s_add_u32 {sA}, {sA}, {WS_FLXA}")
        self.publish(sA, "v7", local=False)
        self.stamp("bias")
        e("s_branch L_fin")

    def finish(self):
        e = self.e
        e("L_fin:")
        if self.ts:
            e("s_lshl_b32 s88, s2, 2")
            e(f"s_add_u32 s88, s88, {sW}")
            e("s_lshl_b32 s88, s88, 8")
            e(f"s_add_u32 s88, s88, {WS_TS}")
            e(f"v_lshlrev_b32 v4, 2, {vL}")
            e(f"buffer_store_dword {vTS}, v4, {srd(SRD_WS)}, s88 offen")
        e("L_end:")
        e("s_endpgm")

    def build(self):
        phases = [self.entry, self.front, self.p1, self.p2, self.p3, self.p45, self.spare, self.helper]
        for ph in phases:
            self.e(f"; ---- {ph.__name__}")
            ph()
            if self.stop_after == ph.__name__:
                break
        self.finish()
        body, nops = self.e.text()
        head = open(f"cdna_kernels/{NAME}.s.ref").read().split("; Override launch")[0]
        txt = head
        txt += f"; @launch grid=(256,1,1) block=(256,1,1) lds={LDS_BYTES}\n"
        txt += '.amdgcn_target "amdgcn-amd-amdhsa--gfx950"\n.text\n'
        txt += f".globl {NAME}_kernel\n.p2align 8\n.type {NAME}_kernel,@function\n{NAME}_kernel:\n"
        txt += body
        txt += '.section .rodata,"a"\n.p2align 6\n'
        txt += f".amdhsa_kernel {NAME}_kernel\n"
        txt += ("  .amdhsa_next_free_vgpr 512\n  .amdhsa_next_free_sgpr 102\n  .amdhsa_accum_offset 256\n"
                "  .amdhsa_group_segment_fixed_size 0\n  .amdhsa_kernarg_size 96\n  .amdhsa_user_sgpr_count 2\n"
                "  .amdhsa_user_sgpr_kernarg_segment_ptr 1\n  .amdhsa_system_sgpr_workgroup_id_x 1\n"
                "  .amdhsa_float_denorm_mode_32 3\n"
                ".end_amdhsa_kernel\n")
        return txt, nops


def parse_opts(args):
    o = {}
    for a in args:
        if a.endswith(".json"):
            import json
            o.update(json.load(open(a)))
            continue
        k, v = a.split("=")
        o[k] = int(v)
    return o


if __name__ == "__main__":
    out = sys.argv[1]
    o = parse_opts(sys.argv[2:])
    g = Gen(ts=bool(o.pop("ts", 0)), opts=o)
    txt, nops = g.build()
    open(out, "w").write(txt)
    if g.ts:
        open(out + ".ts", "w").write("\n".join(g.ts_names))
    print("written", out, "lines", txt.count("\n"), "nop pads", nops)
```

```python
import math
import struct
import sys

sys.path.insert(0, "work")
from emit import Emit

NAME = "adaLN_cond__sliding_block__glu_gated_reglu__prompt"

WS_EPOCH = 0x0
WS_XCC = 0xa0000
WS_FLH = 0x1000
WS_FLO = 0x2000
WS_FLZ = 0x3000
WS_FLD = 0x4000
WS_FLXA = 0x6000
WS_FLW = 0xb0000
WS_FLKV = 0x20000
WS_MODP = 0x10000
WS_STAT = 0xd0000
WS_TS = 0x40000
WS_XA = 0x80000
WS_H = 0x110000
WS_Z = WS_H
WS_O = 0x300000
WS_KV = 0x500000
WS_HID = 0x900000
WS_WD = 0x1000000
WS_SIZE = 0x1200000

L_CVEC = 0
L_MODR = 2560
L_GAB = 1792
L_WKV, L_WQ = 3584, 60928
L_KV = 3584
L_XS = 52736
L_WO = 105984
L_PAD = 163328
L_SCR = 97792
L_HX = 105984
L_HS = 89600
L_RP = 122880
L_X1 = 122368
L_RA = 130560
L_RB = 3584
LDS_BYTES = 163840


def w4_base(p):
    if p <= 1:
        return 89600 + p * 8192
    if p <= 4:
        return 61440 + (p - 2) * 8192
    if p <= 11:
        return 3584 + (p - 5) * 8192
    return 105984 + (p - 12) * 8192


SRD_X, SRD_WQKV, SRD_WO, SRD_WG, SRD_WU, SRD_WD = 4, 8, 12, 16, 20, 24
SRD_C, SRD_WM, SRD_OUT, SRD_DBG, SRD_WS = 28, 32, 36, 40, 44
sI, sR, sW, sH, sB, sT, sTAG, sFAST = "s48", "s49", "s50", "s51", "s52", "s53", "s54", "s55"
sA, sBt, sC, sD, sE = "s56", "s57", "s58", "s59", "s60"
sRB, sCG, sSPIN = "s61", "s62", "s63"
SMASK = 64
sHI, sHIp = "s[96:97]", 96
sTSp = 0
sADJ = "s3"
sFG = "s98"
sWD = "s52"
sJ, sU = "s40", "s41"

vL, vL16, vTS, vE = "v0", "v1", "v2", "v3"

SPIN_MAX = 1 << 17


def srd(n):
    return f"s[{n}:{n + 3}]"


def vr(n, k=4):
    return f"v[{n}:{n + k - 1}]" if k > 1 else f"v{n}"


def ar(n, k=4):
    return f"a[{n}:{n + k - 1}]" if k > 1 else f"a{n}"


def fbits(x):
    return "0x%08x" % struct.unpack("<I", struct.pack("<f", x))[0]


class Gen:
    def __init__(self, ts=False, stop_after=None, opts=None):
        self.e = Emit()
        self.ts = ts
        self.stop_after = stop_after
        self.o = dict(opts or {})
        self.nts = 0
        self.amp = ['', 'end', 'hflag', 'kvgot', 'zflag', 'tag', 'gemm4'][self.o.get('amp', 0)]
        self.jb = 16 if self.o.get('jobs_front', 0) == 1 else 104
        self.ts_names = []

    def stamp(self, name, again=False):
        if not self.ts:
            return
        if self.o.get("ts_min") and name not in ("start", "end", self.amp):
            return
        e = self.e
        if again:
            self.nts_keep, self.nts = self.nts, self.ts_names.index(name)
        e(f"s_memrealtime s[{sTSp}:{sTSp + 1}]")
        e("s_waitcnt lgkmcnt(0)")
        e(f"v_writelane_b32 {vTS}, s{sTSp}, {self.nts}")
        if self.o.get("clk"):
            e(f"s_memtime s[{sTSp}:{sTSp + 1}]")
            e("s_waitcnt lgkmcnt(0)")
            e(f"v_writelane_b32 {vTS}, s{sTSp}, {self.nts + 32}")
        if again:
            self.nts = self.nts_keep
            return
        self.ts_names.append(name)
        self.nts += 1

    def poll(self, voff, soff, vtmp, imm=0):
        e = self.e
        lp, dn = e.label("poll"), e.label("polled")
        e(f"s_mov_b32 {sSPIN}, 0")
        e(f"{lp}:")
        e(f"buffer_load_dword {vtmp}, {voff}, {srd(SRD_WS)}, {soff} offen offset:{imm} sc1")
        e(f"s_add_u32 {sSPIN}, {sSPIN}, 1")
        e(f"s_cmp_ge_u32 {sSPIN}, {SPIN_MAX}")
        e("s_waitcnt vmcnt(0)")
        e(f"s_cbranch_scc1 {dn}")
        e(f"v_cmp_ne_u32 vcc, {sTAG}, {vtmp}")
        e(f"s_cbranch_vccnz {lp}")
        e(f"{dn}:")

    def poll_issue(self, voff, soff, vtmp, tag, imm=0):
        self.e(f"buffer_load_dword {vtmp}, {voff}, {srd(SRD_WS)}, {soff} offen offset:{imm} sc1", tag)

    def poll_check(self, voff, soff, vtmp, tag, imm=0):
        e = self.e
        lp, dn = e.label("chk"), e.label("chkd")
        e.wait(vm=tag)
        keep = list(e.vm)
        e(f"v_cmp_ne_u32 vcc, {sTAG}, {vtmp}")
        e(f"s_cbranch_vccz {dn}")
        e(f"s_mov_b32 {sSPIN}, 0")
        e(f"{lp}:")
        e(f"buffer_load_dword {vtmp}, {voff}, {srd(SRD_WS)}, {soff} offen offset:{imm} sc1")
        e(f"s_add_u32 {sSPIN}, {sSPIN}, 1")
        e(f"s_cmp_ge_u32 {sSPIN}, {SPIN_MAX}")
        e("s_waitcnt vmcnt(0)")
        e(f"s_cbranch_scc1 {dn}")
        e(f"v_cmp_ne_u32 vcc, {sTAG}, {vtmp}")
        e(f"s_cbranch_vccnz {lp}")
        e(f"{dn}:")
        e.vm = keep

    def acquire(self):
        e = self.e
        sk = e.label("acq")
        e(f"s_cmp_lg_u32 {sFAST}, 0")
        e(f"s_cbranch_scc1 {sk}")
        e("buffer_inv sc1")
        e("s_waitcnt vmcnt(0)")
        e(f"{sk}:")

    def publish(self, soff, vtmp, local=True, second=None, younger=0):
        e = self.e
        e(f"s_waitcnt vmcnt({younger})")
        keep = list(e.vm)
        e(f"v_mov_b32 {vtmp}, {sTAG}")
        if local:
            slow, dn = e.label("slowpub"), e.label("pub")
            e(f"s_cmp_lg_u32 {sFAST}, 0")
            e(f"s_cbranch_scc0 {slow}")
            e("s_mov_b64 exec, 1")
            e(f"buffer_store_dword {vtmp}, off, {srd(SRD_WS)}, {soff}")
            if second:
                e(f"buffer_store_dword {vtmp}, off, {srd(SRD_WS)}, {soff} offset:{second}")
            e(f"s_branch {dn}")
            e(f"{slow}:")
            e("buffer_wbl2 sc1")
            e("s_waitcnt vmcnt(0)")
            e("s_mov_b64 exec, 1")
            e(f"buffer_store_dword {vtmp}, off, {srd(SRD_WS)}, {soff} sc1")
            if second:
                e(f"buffer_store_dword {vtmp}, off, {srd(SRD_WS)}, {soff} offset:{second} sc1")
            e(f"{dn}:")
        else:
            e("s_mov_b64 exec, 1")
            e(f"buffer_store_dword {vtmp}, off, {srd(SRD_WS)}, {soff} sc1")
        e("s_mov_b64 exec, -1")
        e.vm = keep + ["flag"]

    def round_bf16(self, regs, tmp):
        e = self.e
        for a, b in zip(regs[::2], regs[1::2]):
            e(f"v_cvt_pk_bf16_f32 {tmp}, {a}, {b}")
            e(f"v_lshlrev_b32 {a}, 16, {tmp}")
            e(f"v_and_b32 {b}, 0xffff0000, {tmp}")

    def dma(self, voff, srdn, soff, lds, tag, mods=""):
        e = self.e
        e(f"s_mov_b32 m0, {lds}")
        e(f"buffer_load_dwordx4 {voff}, {srd(srdn)}, {soff} offen {mods} lds", tag)

    def sm(self, what):
        return {0: "", 1: " sc1", 2: " nt", 3: " sc0 sc1"}[self.o.get("sm_" + what, 1 if what == "h" else 0)]

    def merge(self, main, fill):
        for i, m in enumerate(main):
            m()
            for f in fill.get(i, []):
                f()

    @staticmethod
    def spread(fill, items, lo, hi):
        n = len(items)
        for k, it in enumerate(items):
            fill.setdefault(lo + (k * (hi - lo)) // max(n, 1), []).append(it)

    def entry(self):
        e = self.e
        e("s_cmp_ge_u32 s2, 256")
        e("s_cbranch_scc1 L_end")
        e("s_load_dwordx16 s[64:79], s[0:1], 0")
        e("s_load_dwordx8 s[80:87], s[0:1], 64")
        K = NAME + "_kernel"
        e("s_getpc_b64 s[88:89]")
        e("L_pc:")
        e(f"s_lshr_b32 {sR}, s2, 3")
        e(f"s_add_u32 {sR}, {sR}, 28")
        e(f"s_and_b32 {sR}, {sR}, 31")
        e(f"s_mul_i32 {sA}, {sR}, 12")
        e(f"s_cmp_ge_u32 {sR}, 28")
        e(f"s_cselect_b32 {sBt}, (L_helper-L_pc)/128, 0")
        e("v_min_u32 v4, 11, v0")
        e(f"v_add_u32 v4, {sA}, v4")
        e("v_and_b32 v5, 63, v0")
        e(f"v_add_u32 v5, {sBt}, v5")
        e("v_cmp_gt_u32 vcc, 64, v0")
        e("v_cndmask_b32 v4, v5, v4, vcc")
        e("v_lshlrev_b32 v4, 7, v4")
        e("v_min_u32 v4, L_end-L_pc, v4")
        e("v_cmp_gt_u32 vcc, 128, v0")
        e("s_and_saveexec_b64 s[90:91], vcc")
        e("s_cbranch_execz L_nopf")
        e("global_load_dword v127, v4, s[88:89]")
        e("L_nopf:")
        e("s_mov_b64 exec, -1")
        e.vm = []
        if self.ts:
            e(f"v_mov_b32 {vTS}, 0")
        self.stamp("start")
        e(f"v_lshrrev_b32 v4, 6, v0")
        e(f"v_and_b32 {vL}, 63, v0")
        e(f"v_readfirstlane_b32 {sW}, v4")
        e(f"v_lshlrev_b32 {vL16}, 4, {vL}")
        e(f"s_and_b32 {sI}, s2, 7")
        e(f"s_lshr_b32 {sH}, {sR}, 1")
        e(f"s_sub_u32 {sA}, {sR}, 28")
        e(f"s_lshl_b32 {sA}, {sA}, 3")
        e(f"s_add_u32 {sA}, {sA}, {sI}")
        e(f"s_min_u32 {sA}, {sA}, 27")
        e(f"s_cmp_lt_u32 {sR}, 28")
        e(f"s_cselect_b32 {sFG}, {sR}, {sA}")
        e(f"s_and_b32 {sB}, {sR}, 1")
        e(f"s_lshl_b32 {sT}, {sI}, 1")
        e(f"s_add_u32 {sT}, {sT}, {sB}")
        e(f"s_lshl_b32 {sT}, {sT}, 2")
        e(f"s_add_u32 {sT}, {sT}, {sW}")
        e(f"s_mul_i32 {sRB}, {sR}, 37")
        e(f"s_lshr_b32 {sRB}, {sRB}, 8")
        e(f"s_mul_i32 {sA}, {sRB}, 7")
        e(f"s_sub_u32 {sCG}, {sR}, {sA}")
        e(f"s_cmp_eq_u32 {sH}, 15")
        e(f"s_cselect_b32 {sADJ}, 8, 0")
        e(f"s_mov_b32 s{sHIp}, 0")
        e(f"s_mov_b32 s{sHIp + 1}, -1")
        sizes = {SRD_X: 1835008, SRD_WQKV: 1204224, SRD_WO: 401408, SRD_WG: 1605632, SRD_WU: 1605632, SRD_WD: 1605632,
                 SRD_C: 896, SRD_WM: 2408448, SRD_OUT: 1835008, SRD_WS: WS_SIZE}
        for n, sz in sizes.items():
            e(f"s_mov_b32 s{n + 2}, {sz}")
            e(f"s_mov_b32 s{n + 3}, 0x00020000")
        e("s_waitcnt lgkmcnt(0)")
        src = {SRD_WS: 86, SRD_C: 78, SRD_WM: 80, SRD_X: 64, SRD_WQKV: 66, SRD_WO: 68, SRD_WG: 72, SRD_WU: 74, SRD_WD: 76,
               SRD_OUT: 82}
        for n, s in src.items():
            e(f"s_mov_b64 s[{n}:{n + 1}], s[{s}:{s + 1}]")

    def reduce_hi3(self, a, t):
        e = self.e
        e(f"v_add_f32_dpp {a}, {a}, {a} row_ror:8 row_mask:0xf bank_mask:0xf")
        self.reduce_hi2(a, t)

    def reduce_hi2(self, a, t, op="v_add_f32"):
        e = self.e
        e(f"v_mov_b32 {t}, {a}")
        e(f"v_permlane16_swap_b32 {a}, {t}")
        e(f"{op} {a}, {a}, {t}")
        e(f"v_mov_b32 {t}, {a}")
        e(f"v_permlane32_swap_b32 {a}, {t}")
        e(f"{op} {a}, {a}, {t}")

    def gather_issue(self, voff, g0):
        e = self.e
        for q in range(4):
            e(f"s_mov_b32 {sA}, {WS_MODP + q * 10752}")
            e(f"buffer_load_dwordx4 {vr(g0 + 4 * q)}, {voff}, {srd(SRD_WS)}, {sA} offen sc1", "gath")

    def gather_finish(self, voff, g0, t0):
        e = self.e
        lp, dn = e.label("gath"), e.label("gathd")
        e(f"s_mov_b32 {sSPIN}, 0")
        e(f"s_mov_b32 {sD}, 0x0c0c0400")
        e(f"s_mov_b32 {sE}, 0x04000c0c")
        e.wait(vm="gath")
        keep = list(e.vm)
        e(f"{lp}:")
        for q in range(4):
            b = g0 + 4 * q
            e(f"v_perm_b32 v{t0}, v{b + 1}, v{b}, {sD}")
            e(f"v_perm_b32 v{t0 + 1}, v{b + 3}, v{b + 2}, {sE}")
            e(f"v_or_b32 v{t0}, v{t0}, v{t0 + 1}")
            e(f"v_xor_b32 v{t0 + 2 + q}, {sTAG}, v{t0}")
        e(f"v_or3_b32 v{t0}, v{t0 + 2}, v{t0 + 3}, v{t0 + 4}")
        e(f"v_or_b32 v{t0}, v{t0}, v{t0 + 5}")
        e(f"v_cmp_ne_u32 vcc, 0, v{t0}")
        e(f"s_cbranch_vccz {dn}")
        self.gather_issue(voff, g0)
        e(f"s_add_u32 {sSPIN}, {sSPIN}, 1")
        e(f"s_cmp_ge_u32 {sSPIN}, {SPIN_MAX}")
        e("s_waitcnt vmcnt(0)")
        e(f"s_cbranch_scc0 {lp}")
        e(f"{dn}:")
        e.vm = keep
        for k in range(16):
            e(f"v_and_b32 v{g0 + k}, 0xffffff00, v{g0 + k}")
        for k in range(4):
            e(f"v_add_f32 v{g0 + k}, v{g0 + k}, v{g0 + 4 + k}")
            e(f"v_add_f32 v{g0 + 8 + k}, v{g0 + 8 + k}, v{g0 + 12 + k}")
        for k in range(4):
            e(f"v_add_f32 v{g0 + k}, v{g0 + k}, v{g0 + 8 + k}")
        self.round_bf16([f"v{g0 + k}" for k in range(4)], f"v{t0}")

    def record(self, fn):
        real, rec = self.e, Emit()
        self.e = rec
        fn(rec)
        self.e = real
        return [lambda l=l.strip(): real(l) for l in rec.lines]

    def tag_and_register(self):
        e = self.e
        lab = e.label("noxcc")
        keep = list(e.vm)
        e(f"v_readfirstlane_b32 {sTAG}, {vE}")
        e(f"s_mul_i32 {sTAG}, {sTAG}, 1664525")
        e(f"s_add_u32 {sTAG}, {sTAG}, 1013904223")
        e(f"s_cmp_lg_u32 {sW}, 3")
        e(f"s_cbranch_scc1 {lab}")
        e(f"s_getreg_b32 {sA}, hwreg(HW_REG_XCC_ID, 0, 4)")
        e(f"v_mov_b32 v60, {sTAG}")
        e(f"v_mov_b32 v61, {sA}")
        e(f"s_lshl_b32 {sA}, {sI}, 5")
        e(f"s_add_u32 {sA}, {sA}, {sR}")
        e(f"s_lshl_b32 {sA}, {sA}, 7")
        e(f"s_add_u32 {sA}, {sA}, {WS_XCC}")
        e("s_mov_b64 exec, 1")
        e(f"buffer_store_dwordx2 v[60:61], off, {srd(SRD_WS)}, {sA} sc1")
        e("s_mov_b64 exec, -1")
        e(f"{lab}:")
        e.vm = keep

    def xcc_issue(self):
        e = self.e
        e(f"v_and_b32 v62, 31, {vL}")
        e(f"v_lshlrev_b32 v62, 7, v62")
        e(f"s_lshl_b32 s95, {sI}, 12")
        e(f"s_add_u32 s95, s95, {WS_XCC}")
        e(f"buffer_load_dwordx2 v[60:61], v62, {srd(SRD_WS)}, s95 offen sc1", "xcc")

    def xcc_check(self, base="s95"):
        e = self.e
        lp, dn = e.label("xcc"), e.label("xccd")
        keep = list(e.vm)
        e(f"s_mov_b32 {sSPIN}, 0")
        e(f"{lp}:")
        e(f"v_cmp_ne_u32 vcc, {sTAG}, v60")
        e(f"s_cbranch_vccz {dn}")
        e(f"buffer_load_dwordx2 v[60:61], v62, {srd(SRD_WS)}, {base} offen sc1")
        e(f"s_add_u32 {sSPIN}, {sSPIN}, 1")
        e(f"s_cmp_ge_u32 {sSPIN}, {SPIN_MAX}")
        e("s_waitcnt vmcnt(0)")
        e(f"s_cbranch_scc0 {lp}")
        e(f"{dn}:")
        e.vm = keep
        e(f"s_getreg_b32 {sA}, hwreg(HW_REG_XCC_ID, 0, 4)")
        e(f"v_cmp_ne_u32 vcc, {sA}, v61")
        e("s_cmp_eq_u64 vcc, 0")
        e(f"s_cselect_b32 {sFAST}, {0 if self.o.get('force_slow') else 1}, 0")

    def bump_epoch(self):
        e = self.e
        lp, dn = e.label("bump"), e.label("bumpd")
        e(f"v_lshlrev_b32 v4, 7, {vL}")
        e(f"s_mov_b32 {sSPIN}, 0")
        e(f"{lp}:")
        for k in range(4):
            e(f"s_mov_b32 {sA}, {WS_XCC + 8192 * k}")
            e(f"buffer_load_dword v{8 + k}, v4, {srd(SRD_WS)}, {sA} offen sc1")
        e(f"s_add_u32 {sSPIN}, {sSPIN}, 1")
        e(f"s_cmp_ge_u32 {sSPIN}, {SPIN_MAX}")
        e("s_waitcnt vmcnt(0)")
        e(f"s_cbranch_scc1 {dn}")
        for k in range(4):
            e(f"v_xor_b32 v{8 + k}, {sTAG}, v{8 + k}")
        e("v_or3_b32 v8, v8, v9, v10")
        e("v_or_b32 v8, v8, v11")
        e("v_cmp_ne_u32 vcc, 0, v8")
        e(f"s_cbranch_vccnz {lp}")
        e(f"{dn}:")
        e(f"v_mov_b32 v4, {sTAG}")
        e("s_mov_b64 exec, 1")
        e(f"buffer_store_dword v4, off, {srd(SRD_WS)}, 0 sc1")
        e("s_mov_b64 exec, -1")

    def mod_loads(self, slot="s93", base=16):
        e = self.e
        e(f"v_lshrrev_b32 v4, 4, {vL}")
        e(f"v_and_b32 v5, 15, {vL}")
        e(f"s_and_b32 {sA}, {sI}, 3")
        e(f"s_mul_i32 {sA}, {sA}, 112")
        e(f"s_mul_i32 {sBt}, {sW}, 28")
        e(f"s_add_u32 {sA}, {sA}, {sBt}")
        e(f"v_lshl_add_u32 v6, v5, 2, v4")
        e(f"v_add_u32 v6, {sA}, v6")
        e(f"v_lshlrev_b32 v6, 1, v6")
        e(f"v_mul_u32_u24 v7, 5376, v4")
        e(f"v_lshl_add_u32 v7, v5, 3, v7")
        e(f"s_lshr_b32 {sBt}, {sI}, 2")
        e(f"s_lshl_b32 {sC}, {slot}, 1")
        e(f"s_add_u32 {sBt}, {sBt}, {sC}")
        e(f"s_mul_i32 {sA}, {sA}, 5376")
        e(f"s_lshl_b32 {sC}, {sBt}, 7")
        e(f"s_add_u32 {sA}, {sA}, {sC}")
        for j in range(7):
            e(f"buffer_load_dwordx2 {vr(base + 2 + 2 * j, 2)}, v7, {srd(SRD_WM)}, {sA} offen", "wm")
            if j < 6:
                e(f"s_add_u32 {sA}, {sA}, 21504")
        e(f"buffer_load_ushort v{base}, v6, {srd(SRD_C)}, 0 offen", "wm")

    def mod_compute(self, done, slot="s93", base=16, part=0, last=0):
        e = self.e
        c, t = f"v{base}", f"v{base + 1}"
        if part != 2:
            e(f"v_lshlrev_b32 {c}, 16, {c}")
            e(f"v_mul_f32 {t}, {fbits(-math.log2(math.e))}, {c}")
            e(f"v_exp_f32 {t}, {t}")
            e(f"v_add_f32 {t}, 1.0, {t}")
            e(f"v_rcp_f32 {t}, {t}")
            e(f"v_mul_f32 {c}, {c}, {t}")
            e(f"v_cvt_pk_bf16_f32 {c}, {c}, {c}")
            e(f"v_lshlrev_b32 {c}, 16, {c}")
            for k in range(4):
                e(f"v_mov_b32 v{80 + k}, 0")
            for j in range(7):
                a, b = base + 2 + 2 * j, base + 3 + 2 * j
                e(f"v_lshlrev_b32 v84, 16, v{a}")
                e(f"v_and_b32 v85, 0xffff0000, v{a}")
                e(f"v_lshlrev_b32 v86, 16, v{b}")
                e(f"v_and_b32 v87, 0xffff0000, v{b}")
                for k in range(4):
                    e(f"v_fmac_f32_dpp v{80 + k}, {c}, v{84 + k} row_newbcast:{j} row_mask:0xf bank_mask:0xf")
            e("v_permlane16_swap_b32 v80, v81")
            e("v_permlane16_swap_b32 v82, v83")
            e("v_add_f32 v80, v80, v81")
            e("v_add_f32 v82, v82, v83")
            e("v_permlane32_swap_b32 v80, v82")
            e("v_add_f32 v80, v80, v82")
            e(f"v_lshrrev_b32 v4, 4, {vL}")
            e(f"v_and_b32 v5, 15, {vL}")
            e(f"v_lshl_add_u32 v6, v5, 2, v4")
            e(f"s_lshl_b32 {sA}, {sW}, 8")
            e(f"v_lshl_add_u32 v6, v6, 2, {sA}")
            e(f"ds_write_b32 v6, v80 offset:{L_MODR}")
        if part == 1:
            return
        if part == 0:
            e("s_waitcnt lgkmcnt(0)")
            e("s_barrier")
        R = 80 if part == 0 else 128
        e(f"s_cmp_lg_u32 {sW}, {last}")
        e(f"s_cbranch_scc1 {done}")
        e("s_mov_b64 exec, 0xffff")
        for k in range(4):
            e(f"ds_read_b128 {vr(R + 4 * k)}, {vL16} offset:{L_MODR + 256 * k}")
        e(f"s_and_b32 {sA}, {sI}, 3")
        e(f"s_mul_i32 {sA}, {sA}, 10752")
        e(f"s_lshr_b32 {sBt}, {sI}, 2")
        e(f"s_lshl_b32 {sE}, {slot}, 1")
        e(f"s_add_u32 {sBt}, {sBt}, {sE}")
        e(f"s_lshl_b32 {sBt}, {sBt}, 8")
        e(f"s_add_u32 {sA}, {sA}, {sBt}")
        e(f"s_add_u32 {sA}, {sA}, {WS_MODP}")
        e("v_mov_b32 v6, 0xff")
        e("s_waitcnt lgkmcnt(0)")
        for k in range(4):
            e(f"v_add_f32 v{R + k}, v{R + k}, v{R + 4 + k}")
            e(f"v_add_f32 v{R + 8 + k}, v{R + 8 + k}, v{R + 12 + k}")
        for k in range(4):
            e(f"v_add_f32 v{R + k}, v{R + k}, v{R + 8 + k}")
            e(f"s_lshr_b32 {sBt}, {sTAG}, {8 * k}")
            e(f"v_bfi_b32 v{R + k}, v6, {sBt}, v{R + k}")
        e(f"buffer_store_dwordx4 {vr(R)}, {vL16}, {srd(SRD_WS)}, {sA} offen sc1")
        e("s_mov_b64 exec, -1")

    def src_addrs(self):
        e = self.e
        e(f"v_lshrrev_b32 v10, 2, {vL}")
        e(f"v_mul_u32_u24 v10, 2688, v10")
        e(f"v_and_b32 v6, 3, {vL}")
        e(f"v_lshl_add_u32 v10, v6, 4, v10")
        e(f"v_lshrrev_b32 v6, 3, {vL}")
        e(f"v_and_b32 v7, 7, {vL}")
        e(f"v_and_b32 v8, 2, v6")
        e(f"v_lshlrev_b32 v8, 1, v8")
        e("v_xor_b32 v8, v8, v7")
        e("v_lshlrev_b32 v8, 4, v8")
        e("v_mul_u32_u24 v11, 2688, v6")
        e("v_add_u32 v11, v11, v8")
        e("v_mul_u32_u24 v12, 3584, v6")
        e("v_add_u32 v12, v12, v8")
        e("v_mul_u32_u24 v13, 896, v6")
        e("v_add_u32 v14, v13, v8")
        e("v_and_b32 v8, 6, v6")
        e("v_xor_b32 v8, v8, v7")
        e("v_lshl_add_u32 v13, v8, 4, v13")
        e(f"s_lshl_b32 s99, {sFG}, 7")
        e(f"s_mul_i32 {sA}, {sW}, {8 * 3584}")
        e(f"s_add_u32 s99, s99, {sA}")
        e(f"s_lshl_b32 s101, {sW}, 10")

    def wgu_piece(self, p, mat, tag="wgu"):
        e = self.e
        e(f"s_add_u32 {sD}, s99, {p * 32 * 3584}")
        e(f"s_add_u32 m0, s101, {w4_base(p) + mat * 4096}")
        e(f"buffer_load_dwordx4 v12, {srd((SRD_WG, SRD_WU)[mat])}, {sD} offen lds", tag)

    def wq_setup(self):
        e = self.e
        e(f"s_mul_i32 s92, {sH}, 56")
        e(f"s_sub_u32 s92, s92, {sADJ}")
        e(f"s_mul_i32 {sA}, {sW}, {16 * 2688}")
        e(f"s_add_u32 s92, s92, {sA}")
        e(f"s_mul_i32 {sA}, {sR}, 37")
        e(f"s_lshr_b32 {sA}, {sA}, 8")
        e(f"s_mul_i32 {sA}, {sA}, 7")
        e(f"s_sub_u32 s94, {sR}, {sA}")

    def wq_dma(self, thr=True):
        e = self.e
        for n in range(7):
            e(f"s_mul_i32 {sA}, s94, {64 * 2688}")
            e(f"s_add_u32 {sA}, {sA}, s92")
            e(f"s_lshl_b32 {sBt}, s94, 12")
            e(f"s_add_u32 {sBt}, {sBt}, s101")
            e(f"s_add_u32 m0, {sBt}, {L_WQ}")
            e(f"s_add_u32 s94, s94, 1")
            e(f"buffer_load_dwordx4 v10, {srd(SRD_WQKV)}, {sA} offen lds", "wq")
            e(f"s_cmp_eq_u32 s94, 7")
            e(f"s_cselect_b32 s94, 0, s94")
            if thr:
                self.throttle("thr_q", 0)

    def code_prefetch(self):
        e = self.e
        lab = e.label("pc")
        e("s_getpc_b64 s[88:89]")
        e(f"{lab}:")
        e(f"s_sub_u32 s88, s88, {lab}-" + NAME + "_kernel")
        e("s_subb_u32 s89, s89, 0")
        e(f"s_lshl_b32 {sA}, {sR}, 2")
        e(f"s_add_u32 {sA}, {sA}, {sW}")
        e(f"v_lshl_add_u32 v62, {vL}, 7, {sA}")
        e(f"v_lshlrev_b32 v62, 7, v62")
        e(f"v_min_u32 v62, L_end-" + NAME + "_kernel, v62")
        e("s_mov_b64 exec, 7")
        e("global_load_dword v15, v62, s[88:89]", "pf")
        e("s_mov_b64 exec, -1")

    def touch(self, srdn, base, per_island, lines, mods="", island=True, dst="v127"):
        e = self.e
        n = -(-lines // 112)
        e(f"s_lshl_b32 {sA}, {sR}, 2")
        e(f"s_add_u32 {sA}, {sA}, {sW}")
        e(f"s_mul_i32 {sA}, {sA}, {n}")
        e(f"v_add_u32 v6, {sA}, {vL}")
        e(f"v_min_u32 v6, {lines - 1}, v6")
        e(f"v_lshlrev_b32 v6, 7, v6")
        if island:
            e(f"s_mul_i32 {sA}, {sI}, {per_island}")
            e(f"s_add_u32 {sA}, {sA}, {base}")
        else:
            e(f"s_mov_b32 {sA}, {base}")
        e(f"s_mov_b64 exec, {hex((1 << n) - 1)}")
        e(f"buffer_load_dword {dst}, v6, {srd(srdn)}, {sA} offen{mods}", "pt")
        e("s_mov_b64 exec, -1")

    def gwave(self):
        e = self.e
        e(f"s_lshl_b32 s95, {sR}, 3")
        e(f"s_add_u32 s95, s95, {sI}")
        e(f"s_lshl_b32 s95, s95, 2")
        e(f"s_add_u32 s95, s95, {sW}")

    def gtouch(self, srdn, lines):
        e = self.e
        n = -(-lines // 896)
        e(f"s_mul_i32 {sA}, s95, {n * 128}")
        e(f"v_lshlrev_b32 v6, 7, {vL}")
        e(f"s_mov_b64 exec, {hex((1 << n) - 1)}")
        e(f"buffer_load_dword v127, v6, {srd(srdn)}, {sA} offen", "pt")
        e("s_mov_b64 exec, -1")

    def stouch(self, srdn, lines, row_lines=None, first=0, pitch=None):
        e = self.e
        n = -(-lines // 896)
        out = []

        def setup():
            if row_lines is None:
                e(f"s_mul_i32 s64, s95, {n * 128}")
                e(f"s_min_u32 s64, s64, {(lines - n) * 128}")
            else:
                per_row = row_lines // n
                e(f"s_lshr_b32 s64, s95, {per_row.bit_length() - 1}")
                e(f"s_mul_i32 s64, s64, {pitch}")
                e(f"s_and_b32 s65, s95, {per_row - 1}")
                e(f"s_mul_i32 s65, s65, {n * 128}")
                e(f"s_add_u32 s64, s64, s65")
                e(f"s_add_u32 s64, s64, {first * 128}")
            e(f"s_add_u32 s66, s{srdn}, s64")
            e(f"s_addc_u32 s67, s{srdn + 1}, 0")
        out.append(setup)
        for k in range(n):
            out.append(lambda k=k: e(f"s_load_dword s{68 + k % 16}, s[66:67], {128 * k}"))
        return out

    def throttle(self, key, default):
        n = self.o.get(key, default)
        if n and len(self.e.vm) > n:
            self.e(f"s_waitcnt vmcnt({n})")

    def front(self):
        e = self.e
        n_early, n_e0, n_e1 = self.o.get("early_w", 2), self.o.get("e0", 0), self.o.get("e1", 0)
        pb = self.o.get("probe", 0)
        if pb:
            e("s_lshl_b32 s88, s2, 2")
            e(f"s_add_u32 s88, s88, {sW}")
            e(f"v_lshlrev_b32 v4, 7, {vL}")
            if pb == 1:
                e("s_mov_b64 s[92:93], s[70:71]")
                e("s_mov_b32 s94, 1835008")
                e("s_mov_b32 s95, 0x00020000")
                e("s_mul_i32 s88, s88, 1792")
                e("s_mov_b64 exec, 0x3fff")
                e("buffer_load_dword v5, v4, s[92:95], s88 offen")
                e("s_mov_b64 exec, -1")
            else:
                e("s_mov_b64 s[92:93], s[86:87]")
                e("s_mov_b32 s94, 0x10000000")
                e("s_mov_b32 s95, 0x00020000")
                e("s_lshl_b32 s88, s88, 14")
                e(f"s_add_u32 s88, s88, {(pb - 1) << 20}")
                e("buffer_load_dword v5, v4, s[92:95], s88 offen")
                e("s_add_u32 s88, s88, 8192")
                e("buffer_load_dword v5, v4, s[92:95], s88 offen")
            e("s_waitcnt vmcnt(0)")
        e(f"buffer_load_dword {vE}, off, {srd(SRD_WS)}, 0 sc1", "E")
        tw = self.o.get("tlb", 0)
        if tw:
            sh = self.o.get("tlbsh", 18)
            e(f"s_cmp_lg_u32 {sW}, 2")
            e("s_cbranch_scc1 L_notlb")
            e(f"v_lshlrev_b32 v4, {sh}, {vL}")
            e(f"s_lshl_b32 s88, s2, 7")
            e(f"buffer_load_dword v126, v4, {srd(SRD_WS)}, s88 offen")
            if (64 << sh) < WS_SIZE:
                e(f"s_add_u32 s88, s88, {64 << sh}")
                e(f"buffer_load_dword v126, v4, {srd(SRD_WS)}, s88 offen")
            e(f"s_lshl_b32 s88, s2, 7")
            e(f"buffer_load_dword v126, v4, {srd(SRD_OUT)}, s88 offen")
            if tw > 1:
                for n in (SRD_X, SRD_WQKV, SRD_WO, SRD_WG, SRD_WU, SRD_WD, SRD_WM):
                    e(f"buffer_load_dword v126, v4, {srd(n)}, s88 offen")
            e("L_notlb:")
            e.vm = ["E"]
        e(f"s_cmp_ge_u32 {sR}, 28")
        e("s_cbranch_scc1 L_helper")
        nc = [0, 1, 2, 3, 6, 7, 10, 11, 14, 15, 16, 17, 20, 21, 24, 25, 4, 8, 12, 18, 22]
        nslots = 21
        tab = {r: k for k, r in enumerate(nc[:nslots])}
        for q in range(4):
            t = sum(tab.get(r, 255) << (8 * (r % 8)) for r in range(8 * q, 8 * q + 8))
            e(f"s_mov_b32 s{88 + 2 * (q & 1)}, {hex(t & 0xffffffff)}")
            e(f"s_mov_b32 s{89 + 2 * (q & 1)}, {hex(t >> 32)}")
            if q & 1:
                e(f"s_bitcmp1_b32 {sR}, 3")
                e(f"s_cselect_b64 s[{92 + (q & 2)}:{93 + (q & 2)}], s[90:91], s[88:89]")
        e(f"s_bitcmp1_b32 {sR}, 4")
        e("s_cselect_b64 s[92:93], s[94:95], s[92:93]")
        e(f"s_and_b32 {sA}, {sR}, 7")
        e(f"s_lshl_b32 {sA}, {sA}, 3")
        e(f"s_lshr_b64 s[92:93], s[92:93], {sA}")
        e("s_and_b32 s93, s92, 255")
        e("s_cmp_ge_u32 s93, 21")
        e("s_cbranch_scc1 L_nomod1")
        self.mod_loads()
        e("L_nomod1:")
        e.vm = ["E"]
        self.gwave()
        if self.o.get("warm_w", 0):
            self.gtouch(SRD_WQKV, 9408)
        if self.o.get("touch_x", 1):
            self.touch(SRD_X, 0, 229376, 1792)
        if self.o.get("sm_h", 1) == 0:
            self.touch(SRD_WS, WS_H, 229376, 1792, " sc1")
        npt = len(e.vm) - 1
        self.src_addrs()
        self.wq_setup()
        e(f"s_lshl_b32 s90, {sH}, 7")
        e(f"s_add_u32 s90, s90, 896")
        e(f"s_mul_i32 {sA}, {sW}, {8 * 2688}")
        e(f"s_add_u32 s90, s90, {sA}")
        e(f"s_mul_i32 s91, {sB}, 7")

        def warm_list():
            if not self.o.get("warm_s", 0):
                return []
            return (self.stouch(SRD_WM, 12544, row_lines=28, first=14, pitch=5376) + self.stouch(SRD_WG, 12544)
                    + self.stouch(SRD_WU, 12544) + self.stouch(SRD_WO, 3136))

        warm = []

        def wkv(lo, hi):
            for n in range(lo, hi):
                for _ in range(self.o.get("warm_rate", 3)):
                    if warm:
                        warm.pop(0)()
                e(f"s_mul_i32 {sA}, s91, {32 * 2688}")
                e(f"s_add_u32 {sA}, {sA}, s90")
                e(f"s_lshl_b32 {sBt}, s91, 12")
                e(f"s_add_u32 {sBt}, {sBt}, s101")
                e(f"s_add_u32 m0, {sBt}, {L_WKV}")
                e(f"s_add_u32 s91, s91, 1")
                e(f"buffer_load_dwordx4 v11, {srd(SRD_WQKV)}, {sA} offen lds", "wkv")
                e(f"s_cmp_eq_u32 s91, 14")
                e(f"s_cselect_b32 s91, 0, s91")
                if n >= n_early:
                    self.throttle("thr_w", 0)

        e("s_cmp_ge_u32 s93, 21")
        e("s_cbranch_scc1 L_plainw")
        wkv(0, n_early)
        e.wait(vm="E")
        self.tag_and_register()
        self.stamp("tag")
        self.mod_compute("L_nomod2")
        e("L_nomod2:")
        self.stamp("modpub")
        warm.extend(warm_list())
        wkv(n_early, 14)
        self.wq_dma()
        while warm:
            warm.pop(0)()
        e("s_branch L_wissued")
        e("L_plainw:")
        e.vm = ["E"] + ["pt"] * npt
        n_plain = self.o.get("early_p", 4)
        wkv(0, n_plain)
        e.wait(vm="E")
        self.tag_and_register()
        warm.extend(warm_list())
        wkv(n_plain, 14)
        self.wq_dma()
        while warm:
            warm.pop(0)()
        e("L_wissued:")
        if self.o.get("no_w") or self.o.get("w_only"):
            e("s_waitcnt vmcnt(0)")
            self.stamp("wq")
            e("s_branch L_fin")
            self.nts -= 1
            self.ts_names.pop()
        self.stamp("wq")
        for p in range(n_e0):
            for mat in range(2):
                self.wgu_piece(p, mat)
        self.kv_store_addrs()
        for p in range(n_e0, n_e1):
            for mat in range(2):
                self.wgu_piece(p, mat)
                self.throttle("thr_e", 0)
        if self.o.get("wo_at", 2) == 0:
            self.wo_dma()
        self.xcc_issue()
        e("s_mov_b32 s8, s95")
        self.prep_p2(e)
        e("s_waitcnt vmcnt(0)")
        self.xcc_check("s8")
        e.vm = []
        self.stamp("wdone")

    def rp_setup(self, e):
        e(f"s_lshl_b32 {sA}, {sR}, 3")
        e(f"s_add_u32 {sA}, {sA}, {sI}")
        e(f"s_lshl_b32 {sA}, {sA}, 2")
        e(f"s_add_u32 {sA}, {sA}, {sW}")
        e(f"s_min_u32 {sA}, {sA}, 784")
        e(f"s_mul_i32 {sBt}, {sA}, 9363")
        e(f"s_lshr_b32 {sBt}, {sBt}, 16")
        e(f"s_mul_i32 {sC}, {sBt}, 7")
        e(f"s_sub_u32 {sC}, {sA}, {sC}")
        e(f"s_mul_i32 {sU}, {sC}, 112")
        e(f"s_add_u32 {sU}, {sU}, {sBt}")
        e(f"s_cmp_ge_u32 {sA}, 784")
        e(f"s_cselect_b32 {sU}, 784, {sU}")
        e(f"s_mul_i32 {sJ}, {sBt}, {16 * 896}")
        e(f"s_lshl_b32 {sC}, {sC}, 7")
        e(f"s_add_u32 {sJ}, {sJ}, {sC}")
        e(f"v_add_u32 v211, {8 * 896 - 1024}, v14")
        self.tr_addr("v212", 4)
        e(f"s_lshl_b32 {sA}, {sW}, 11")
        e(f"s_add_u32 {sA}, {sA}, {L_XS}")
        e(f"v_add_u32 v212, {sA}, v212")
        e("v_xor_b32 v213, 64, v212")

    def rp_load(self):
        e = self.e
        e(f"s_lshl_b32 {sD}, {sW}, 11")
        e(f"s_add_u32 m0, {sD}, {L_XS}")
        e(f"buffer_load_dwordx4 v14, {srd(SRD_WD)}, {sJ} offen lds", "rp")
        e(f"buffer_load_dwordx4 v211, {srd(SRD_WD)}, {sJ} offen offset:1024 lds", "rp")

    def rp_read(self):
        e = self.e
        e.wait(vm="rp")
        for ct in range(2):
            for hf in range(2):
                e(f"ds_read_b64_tr_b16 {vr(240 + 4 * ct + 2 * hf, 2)}, v{212 + ct} offset:{1024 * hf}", "rpr")

    def rp_store(self):
        e = self.e
        e(f"s_lshl_b32 {sD}, {sU}, 11")
        e(f"s_add_u32 {sD}, {sD}, {WS_WD}")
        e(f"s_cmp_ge_u32 {sU}, 784")
        e(f"s_cselect_b32 {sD}, 0x7ff00000, {sD}")
        e.wait(lg="rpr")
        for ct in range(2):
            e(f"buffer_store_dwordx4 {vr(240 + 4 * ct)}, {vL16}, {srd(SRD_WS)}, {sD} offen offset:{1024 * ct} sc1")

    def rp_flag(self):
        e = self.e
        e(f"s_lshl_b32 {sD}, {sU}, 7")
        e(f"s_add_u32 {sD}, {sD}, {WS_FLW}")
        e(f"s_cmp_ge_u32 {sU}, 784")
        e(f"s_cselect_b32 {sD}, 0x7ff00000, {sD}")
        e(f"v_mov_b32 v4, {sTAG}")
        e("s_mov_b64 exec, 1")
        e(f"buffer_store_dword v4, off, {srd(SRD_WS)}, {sD} sc1")
        e("s_mov_b64 exec, -1")

    def tr_addr(self, dst, rowmul):
        e = self.e
        e(f"v_lshrrev_b32 {dst}, 5, {vL}")
        e(f"v_mul_u32_u24 {dst}, {rowmul}, {dst}")
        e(f"v_bfe_u32 v5, {vL}, 2, 2")
        e(f"v_add_u32 {dst}, {dst}, v5")
        e(f"v_lshlrev_b32 {dst}, 7, {dst}")
        e(f"v_bfe_u32 v4, {vL}, 4, 1")
        e(f"v_lshl_add_u32 {dst}, v4, 5, {dst}")
        e(f"v_and_b32 v4, 3, {vL}")
        e(f"v_lshl_add_u32 {dst}, v4, 3, {dst}")
        e("v_lshrrev_b32 v5, 1, v5")
        e(f"v_lshl_add_u32 {dst}, v5, 6, {dst}")

    def kv_store_addrs(self):
        e = self.e
        e(f"v_lshrrev_b32 v4, 5, {vL}")
        e(f"v_and_b32 v5, 31, {vL}")
        e(f"s_cmp_ge_u32 {sH}, 7")
        e("s_cbranch_scc1 L_vaddr")
        e(f"s_lshl_b32 {sA}, {sH}, 4")
        e(f"v_add_u32 v4, {sA}, v4")
        e(f"v_lshlrev_b32 v5, 3, v5")
        for n in range(8):
            e(f"v_add_u32 v6, {2 * n}, v4")
            e("v_mul_u32_u24 v7, 147, v6")
            e("v_lshrrev_b32 v7, 10, v7")
            e("v_mul_u32_u24 v8, 7, v7")
            e("v_sub_u32 v6, v6, v8")
            e("v_lshl_add_u32 v6, v6, 8, v5")
            e(f"v_lshl_add_u32 v{96 + n}, v7, 18, v6")
        e("s_branch L_addrdone")
        e("L_vaddr:")
        e(f"s_sub_u32 {sA}, {sH}, 7")
        e(f"s_lshl_b32 {sA}, {sA}, 6")
        e(f"v_add_u32 v5, {sA}, v5")
        e("v_lshlrev_b32 v4, 9, v4")
        e("v_add_u32 v4, 2048, v4")
        for ct in range(2):
            e(f"v_add_u32 v6, {32 * ct}, v5")
            e("v_mul_u32_u24 v7, 2341, v6")
            e("v_lshrrev_b32 v7, 16, v7")
            e("v_mul_u32_u24 v8, 28, v7")
            e("v_sub_u32 v6, v6, v8")
            e("v_lshl_add_u32 v6, v6, 4, v4")
            e(f"v_lshl_add_u32 v{96 + ct}, v7, 18, v6")
        for n in range(2, 8):
            e(f"v_mov_b32 v{96 + n}, v96")
        e("L_addrdone:")

    def helper(self):
        e = self.e
        e.vm, e.lg = ["E"], []
        XF, XP, CR = 128, 64, 64
        e("L_helper:")
        e(f"v_lshrrev_b32 v6, 3, {vL}")
        e(f"v_and_b32 v7, 7, {vL}")
        e("v_lshrrev_b32 v8, 1, v6")
        e("v_xor_b32 v8, v8, v7")
        e("v_mul_u32_u24 v6, 896, v6")
        e("v_lshl_add_u32 v9, v8, 4, v6")
        e("v_xor_b32 v8, 4, v8")
        e("v_lshl_add_u32 v8, v8, 4, v6")
        e(f"v_add_u32 v8, {8 * 896}, v8")
        e(f"s_sub_u32 s91, {sR}, 28")
        e(f"s_lshl_b32 {sA}, {sI}, 2")
        e(f"s_add_u32 s91, s91, {sA}")
        e(f"s_lshl_b32 {sA}, s91, 2")
        e(f"s_add_u32 {sA}, {sA}, {sW}")
        e(f"s_mul_i32 {sA}, {sA}, 14336")
        e(f"s_mul_i32 {sBt}, {sW}, 14336")
        for ln in range(7):
            for rg in range(2):
                e(f"s_add_u32 m0, {sBt}, {L_HX + rg * 7168 + ln * 1024}")
                e(f"buffer_load_dwordx4 v{9 - rg}, {srd(SRD_X)}, {sA} offen lds", "x")
            if ln < 6:
                e(f"s_add_u32 {sA}, {sA}, 128")
        e(f"s_mul_i32 s90, s91, 57344")
        e(f"s_mul_i32 {sA}, {sW}, 7168")
        e(f"s_add_u32 s90, s90, {sA}")
        e(f"s_add_u32 s90, s90, {WS_H}")
        self.src_addrs()
        self.wq_setup()
        e(f"v_lshrrev_b32 v4, 4, {vL}")
        e(f"v_and_b32 v5, 15, {vL}")
        e("v_lshrrev_b32 v6, 3, v5")
        e("v_mul_u32_u24 v6, 7168, v6")
        e("v_and_b32 v7, 7, v5")
        e("v_lshl_add_u32 v6, v7, 7, v6")
        e(f"v_add_u32 v6, {L_HX}, v6")
        e("v_lshrrev_b32 v7, 1, v5")
        e(f"s_mul_i32 {sA}, {sW}, 14")
        e(f"v_add_u32 v8, {sA}, v4")
        for n in range(4):
            e(f"v_add_u32 v9, {4 * n}, v8")
            e("v_min_u32 v9, 55, v9")
            e("v_lshrrev_b32 v16, 3, v9")
            e("v_and_b32 v9, 7, v9")
            e("v_xor_b32 v9, v9, v7")
            e("v_lshl_add_u32 v16, v16, 10, v6")
            e(f"v_lshl_add_u32 v{20 + n}, v9, 4, v16")
        e.wait(vm="E")
        self.tag_and_register()
        e.wait(vm="x")
        e("s_barrier")
        self.stamp("hx")
        for G in range(4):
            for n in range(4):
                e(f"ds_read_b128 {vr(XP + 16 * G + 4 * n)}, v{20 + n} offset:{G * 14336}", ("x", G))
        pair = lambda r: f"v[{r}:{r + 1}]"
        e("s_mov_b32 s88, 0x3f803f80")
        for G in range(4):
            e.wait(lg=("x", G))
            for k in range(4):
                e(f"v_cndmask_b32 v{XP + 16 * G + 12 + k}, v{XP + 16 * G + 12 + k}, 0, {sHI}")
        for k in range(16):
            for G in range(4):
                x = f"v{XP + 16 * G + k}"
                e(f"v_dot2_f32_bf16 v{24 + G}, {x}, s88, {'0' if k == 0 else f'v{24 + G}'}")
            for G in range(4):
                x = f"v{XP + 16 * G + k}"
                e(f"v_dot2_f32_bf16 v{28 + G}, {x}, {x}, {'0' if k == 0 else f'v{28 + G}'}")
        e("s_nop 2")
        for b0 in (24, 28):
            e(f"v_permlane16_swap_b32 v{b0}, v{b0 + 1}")
            e(f"v_permlane16_swap_b32 v{b0 + 2}, v{b0 + 3}")
        for b0 in (24, 28):
            e(f"v_add_f32 v{b0}, v{b0}, v{b0 + 1}")
            e(f"v_add_f32 v{b0 + 2}, v{b0 + 2}, v{b0 + 3}")
        for b0 in (24, 28):
            e(f"v_permlane32_swap_b32 v{b0}, v{b0 + 2}")
        e("v_add_f32 v24, v24, v26")
        e("v_add_f32 v25, v28, v30")
        e(f"s_lshl_b32 {sA}, {sW}, 9")
        e(f"s_add_u32 {sA}, {sA}, {L_HS}")
        e(f"v_lshlrev_b32 v16, 3, {vL}")
        e(f"v_add_u32 v17, {sA}, v16")
        e(f"v_add_u32 v16, {L_HS}, v16")
        e("ds_write_b64 v17, v[24:25]")
        e(f"v_lshrrev_b32 v8, 2, {vL}")
        e(f"v_min_u32 v8, 13, v8")
        e(f"s_mul_i32 {sA}, {sW}, 14")
        e(f"v_add_u32 v8, {sA}, v8")
        e(f"v_bfe_u32 v9, {vL}, 1, 1")
        e(f"v_lshl_add_u32 v8, v8, 1, v9")
        e(f"v_and_b32 v9, 1, {vL}")
        e(f"v_mul_u32_u24 v6, 112, v9")
        e(f"v_add_u32 v8, v8, v6")
        e(f"v_lshlrev_b32 v8, 4, v8")
        e("s_waitcnt lgkmcnt(0)")
        e("s_barrier")
        for k in range(4):
            e(f"ds_read_b64 {pair(24 + 2 * k)}, v16 offset:{k * 512}", "s")

        def unpack(G):
            b = XF + 32 * G
            for k in range(16):
                e(f"v_lshlrev_b32 v{b + 2 * k}, 16, v{XP + 16 * G + k}")
                e(f"v_and_b32 v{b + 2 * k + 1}, 0xffff0000, v{XP + 16 * G + k}")

        unpack(0)
        e.wait(lg="s")
        e("v_pk_add_f32 v[24:25], v[24:25], v[26:27]")
        e("v_pk_add_f32 v[28:29], v[28:29], v[30:31]")
        e("v_pk_add_f32 v[24:25], v[24:25], v[28:29]")
        e(f"v_mul_f32 v24, {fbits(1.0 / 448)}, v24")
        e(f"v_mul_f32 v25, {fbits(1.0 / 448)}, v25")
        e("v_fma_f32 v25, -v24, v24, v25")
        e("v_max_f32 v25, 0, v25")
        self.round_bf16(["v24", "v25"], "v26")
        e(f"v_add_f32 v25, {fbits(1e-5)}, v25")
        e("v_cvt_pk_bf16_f32 v25, v25, v25")
        e("v_lshlrev_b32 v25, 16, v25")
        e("v_sqrt_f32 v25, v25")
        e("v_cvt_pk_bf16_f32 v25, v25, v25")
        e("v_lshlrev_b32 v25, 16, v25")
        e("v_rcp_f32 v26, v25")
        e("v_mul_f32 v27, -v24, v26")
        e(f"v_add_u32 v17, 2048, v17")
        e("ds_write_b64 v17, v[26:27]")
        e(f"s_lshl_b32 {sA}, {sW}, 9")
        e(f"s_add_u32 {sA}, {sA}, {L_HS + 2048}")
        e(f"v_lshl_add_u32 v16, v5, 3, {sA}")
        for G in range(4):
            e(f"ds_read_b64 {pair(32 + 2 * G)}, v16 offset:{G * 128}", "ab")
        for G in range(1, 4):
            if G == self.o.get("gath_at", 3):
                self.xcc_issue()
                self.gather_issue("v8", 40)
            unpack(G)
        e.wait(lg="ab")
        for G in range(4):
            b = XF + 32 * G
            for k in range(0, 32, 2):
                e(f"v_pk_fma_f32 {pair(b + k)}, {pair(b + k)}, {pair(32 + 2 * G)}, {pair(32 + 2 * G)} op_sel:[0,0,1] op_sel_hi:[1,0,1]")
        e(f"v_cvt_f32_u32 v9, v9")
        e(f"s_lshl_b32 {sA}, {sW}, 11")
        e(f"s_add_u32 {sA}, {sA}, {L_SCR}")
        e(f"v_add_u32 v6, {sA}, {vL16}")
        e(f"v_lshl_add_u32 v7, v4, 6, {sA}")
        self.stamp("ln1")
        self.gather_finish("v8", 40, 16)
        self.stamp("modgot")
        for k in range(4):
            e(f"v_add_f32 v{40 + k}, v{40 + k}, v9")
        self.round_bf16([f"v{40 + k}" for k in range(4)], "v16")
        e("ds_write_b128 v6, v[40:43]")
        for n in range(4):
            for it in range(4):
                e(f"ds_read_b128 {vr(CR + 16 * n + 4 * it)}, v7 offset:{n * 256 + 16 * it}", ("c", n))
        e(f"v_lshlrev_b32 v8, 4, v5")
        e(f"v_lshl_add_u32 v8, v4, 9, v8")
        e(f"v_add_u32 v9, 4096, v8")
        e(f"v_mov_b32 v16, 0x7ffffff0")
        e(f"v_cndmask_b32 v6, v9, v16, {sHI}")
        self.xcc_check()
        e(f"s_lshl_b32 s93, s91, 7")
        e(f"s_lshl_b32 {sC}, {sW}, 2")
        e(f"s_add_u32 s93, s93, {sC}")
        e(f"s_add_u32 s93, s93, {WS_FLH}")
        for G in range(4):
            b = XF + 32 * G
            if G:
                e(f"s_add_u32 s90, s90, {256 if G & 1 else 28672 - 256}")
            for n in range(4):
                if G == 0:
                    e.wait(lg=("c", n))
                for k in range(0, 8, 2):
                    c1 = CR + 16 * n + 4 * (2 * (k >> 2) + 1) + (k & 3)
                    c2 = CR + 16 * n + 4 * (2 * (k >> 2)) + (k & 3)
                    e(f"v_pk_fma_f32 {pair(b + 8 * n + k)}, {pair(b + 8 * n + k)}, {pair(c1)}, {pair(c2)}")
                d = 24 + 4 * ((4 * G + n) % 8)
                for k in range(4):
                    e(f"v_cvt_pk_bf16_f32 v{d + k}, v{b + 8 * n + 2 * k}, v{b + 8 * n + 2 * k + 1}")
                e(f"buffer_store_dwordx4 {vr(d)}, v{(8, 8, 9, 6)[n]}, {srd(SRD_WS)}, s90 offen offset:{(n & 1) * 2048}{self.sm('h')}")
        self.publish("s93", "v7", second=64)
        self.stamp("hpub")
        self.wq_dma(thr=False)
        e("s_waitcnt vmcnt(0)")
        e("s_branch L_p1")

    def p1(self):
        e = self.e
        e("L_p1:")
        e.vm, e.lg = [], []
        if self.o.get("front_only"):
            e("s_branch L_fin")
        e("s_waitcnt lgkmcnt(0)")
        e("s_barrier")
        e(f"v_lshrrev_b32 v4, 5, {vL}")
        e(f"v_lshlrev_b32 v4, 9, v4")
        e(f"v_bfe_u32 v5, {vL}, 2, 2")
        e(f"v_lshl_add_u32 v4, v5, 6, v4")
        e(f"v_bfe_u32 v5, {vL}, 4, 1")
        e(f"v_lshl_add_u32 v4, v5, 5, v4")
        e(f"v_and_b32 v5, 3, {vL}")
        e(f"v_lshl_add_u32 v4, v5, 3, v4")
        e(f"v_add_u32 v4, {sADJ}, v4")
        e(f"v_add_u32 v10, {L_WQ}, v4")
        self.tr_addr("v8", 8)
        e(f"v_add_u32 v8, {L_WKV}, v8")
        e("v_xor_b32 v9, 64, v8")
        e(f"v_and_b32 v11, 3, {vL}")
        e(f"v_lshlrev_b32 v11, 2, v11")
        e(f"s_lshl_b32 s8, {sT}, 6")
        e(f"s_add_u32 s8, s8, {WS_FLH}")
        e(f"s_mul_i32 s11, {sT}, 28672")
        e(f"s_add_u32 s11, s11, {WS_H}")
        e(f"s_lshl_b32 s9, {sT}, 12")
        e(f"s_add_u32 s9, s9, {WS_KV}")
        e(f"s_cmp_ge_u32 {sR}, 28")
        e("s_cbranch_scc1 L_p1_h")
        e(f"s_cmp_ge_u32 {sH}, 7")
        e("s_cbranch_scc1 L_p1_v")
        for mode in ("k", "v", "h"):
            e(f"L_p1_{mode}:")
            e.vm, e.lg = [], []
            self.p1_body(mode)
            if mode != "h":
                e("s_branch L_p1_done")
        e("L_p1_done:")
        e.vm, e.lg = [], []
        self.stamp("kvpub")
        self.slotq_issue()
        ACQ = 48
        qs = 28 ** -0.5 * math.log2(math.e)
        e(f"s_mov_b32 {sA}, {fbits(qs)}")
        for k in range(0, 16, 2):
            e(f"v_pk_mul_f32 v[{ACQ + k}:{ACQ + k + 1}], v[{ACQ + k}:{ACQ + k + 1}], s[56:57] op_sel_hi:[1,0]")
        for k in range(8):
            e(f"v_cvt_pk_bf16_f32 v{64 + k}, v{ACQ + 2 * k}, v{ACQ + 2 * k + 1}")
        e("v_mov_b32 v11, 0x00003f80")
        e(f"v_cndmask_b32 v70, v70, v11, {sHI}")
        e(f"v_cndmask_b32 v71, v71, 0, {sHI}")

    def p1_body(self, mode):
        e = self.e
        AC, ACQ, PK = 16, 48, 104
        HB, QR, WR = 0, 112, 224
        DEPTH = 3
        first = mode == "k"

        def rd_w(ks, ct):
            d = WR + 8 * (ks % 4) + 4 * ct
            e(f"ds_read_b64_tr_b16 {ar(d, 2)}, v{8 + ct} offset:{ks * 2048}", ("kv", ks))
            e(f"ds_read_b64_tr_b16 {ar(d + 2, 2)}, v{8 + ct} offset:{ks * 2048 + 512}", ("kv", ks))

        def rd_q(ks):
            d = QR + 4 * ks
            e(f"ds_read_b64_tr_b16 {ar(d, 2)}, v10 offset:{ks * 1024}", ("q", ks))
            e(f"ds_read_b64_tr_b16 {ar(d + 2, 2)}, v10 offset:{ks * 1024 + 256}", ("q", ks))

        def ld_h(ks):
            if ks and ks % 4 == 0:
                e("s_add_u32 s11, s11, 4096")
            e(f"buffer_load_dwordx4 {ar(HB + 4 * ks)}, {vL16}, {srd(SRD_WS)}, s11 offen offset:{(ks % 4) * 1024} sc1", ("h", ks))

        PRE = self.o.get("p1pre", 8)
        if mode == "h":
            self.poll("v11", "s8", "v5")
            self.acquire()
            self.stamp("hflag", again=True)
            for ks in range(28):
                ld_h(ks)
                rd_q(ks)
            self.prep_p2(e)
            self.helper_side()
        else:
            self.poll_issue("v11", "s8", "v120", "hfl")
            for ks in range(28):
                rd_q(ks)
            for ks in range(DEPTH):
                rd_w(ks, 0)
                rd_w(ks, 1)
            self.poll_check("v11", "s8", "v120", "hfl")
            self.acquire()
            self.stamp("hflag", again=not first)
            for ks in range(PRE):
                ld_h(ks)
            for ks in range(28):
                e.wait(vm=("h", ks), lg=("kv", ks))
                for ct in range(2):
                    w, hb = ar(WR + 8 * (ks % 4) + 4 * ct), ar(HB + 4 * ks)
                    acc = vr(AC + 16 * ct, 16)
                    a, b = (w, hb) if mode == "k" else (hb, w)
                    e(f"v_mfma_f32_32x32x16_bf16 {acc}, {a}, {b}, {'0' if ks == 0 else acc}")
                    if ct == 0 and ks + PRE < 28:
                        ld_h(ks + PRE)
                    if ks + DEPTH < 28:
                        rd_w(ks + DEPTH, ct)
        self.stamp("kvgemm", again=not first)

        def kv_epi(r):
            for ct in range(2):
                for k in range(8):
                    r(f"v_cvt_pk_bf16_f32 v{PK + 8 * ct + k}, v{AC + 16 * ct + 2 * k}, v{AC + 16 * ct + 2 * k + 1}")
                    if mode == "k" and k & 1:
                        r(f"buffer_store_dwordx2 {vr(PK + 8 * ct + k - 1, 2)}, v{96 + 4 * ct + (k >> 1)}, {srd(SRD_WS)}, s9 offen sc1")
                    if mode == "v" and k % 4 == 3:
                        r(f"buffer_store_dwordx4 {vr(PK + 8 * ct + k - 3)}, v{96 + ct}, {srd(SRD_WS)}, s9 offen offset:{(k >> 2) * 1024} sc1")

        main, fill = [], {}
        for ks in range(28):
            def m(ks=ks):
                e.wait(vm=("h", ks), lg=("q", ks))
                cq = "0" if ks == 0 else vr(ACQ, 16)
                e(f"v_mfma_f32_32x32x16_bf16 {vr(ACQ, 16)}, {ar(QR + 4 * ks)}, {ar(HB + 4 * ks)}, {cq}")
            main.append(m)
        if mode != "h":
            self.spread(fill, self.record(kv_epi), 1, 8)
        e1, e1b = self.o.get("e1", 0), self.o.get("e1b", self.o.get("e1", 0))
        s1 = []
        if mode != "h":
            s1 = [lambda p=p, mat=mat: self.wgu_piece(p, mat) for p in range(e1, e1b) for mat in range(2)]
        nb = len(s1)
        self.spread(fill, s1, 9, 20)

        def kvflag():
            e(f"s_waitcnt vmcnt({nb})")
            e(f"v_mov_b32 v7, {sTAG}")
            e("s_mov_b64 exec, 1")
            e(f"buffer_store_dword v7, off, {srd(SRD_WS)}, s10 sc1")
            e("s_mov_b64 exec, -1")
        if mode != "h":
            fill.setdefault(self.o.get("kvfl_at", 24), []).append(kvflag)
        self.merge(main, fill)
        e("s_barrier")
        if mode == "h":
            return
        if self.o.get("kv_touch", 0):
            if mode == "k":
                e("s_mov_b32 exec_lo, 0x00010001")
                e("s_mov_b32 exec_hi, 0x00010001")
                for n in range(8):
                    e(f"buffer_load_dword v127, v{96 + n}, {srd(SRD_WS)}, s9 offen sc1")
            else:
                e("s_mov_b32 exec_lo, 0x91111111")
                e("s_mov_b32 exec_hi, 0x91111111")
                for n in range(4):
                    e(f"buffer_load_dword v127, v{96 + (n >> 1)}, {srd(SRD_WS)}, s9 offen offset:{(n & 1) * 1024} sc1")
            e("s_mov_b64 exec, -1")

    def prep_p2(self, e):
        MK = 72
        e(f"s_mul_i32 s10, {sT}, 14")
        e(f"s_add_u32 s10, s10, {sH}")
        e(f"s_lshl_b32 s10, s10, 7")
        e(f"s_add_u32 s10, s10, {WS_FLKV}")
        e(f"v_lshrrev_b32 v4, 4, {vL}")
        e("v_min_u32 v4, 2, v4")
        e("v_cmp_eq_u32 vcc, 1, v4")
        e("v_mul_u32_u24 v5, 168, v4")
        e("v_cndmask_b32 v210, 0, 1.0, vcc")
        e("v_cndmask_b32 v6, 0, 56, vcc")
        e("v_add_u32 v5, v5, v6")
        e(f"v_and_b32 v6, 15, {vL}")
        e(f"s_lshl_b32 {sA}, {sCG}, 4")
        e(f"s_add_u32 {sA}, {sA}, 224")
        e(f"v_add3_u32 v5, v5, v6, {sA}")
        e("v_lshlrev_b32 v208, 4, v5")
        e("v_lshl_add_u32 v209, v4, 4, v6")
        e("v_lshlrev_b32 v209, 4, v209")
        e(f"v_lshrrev_b32 v4, 2, {vL}")
        e(f"v_mul_u32_u24 v4, 896, v4")
        e(f"v_and_b32 v5, 3, {vL}")
        e(f"v_lshl_add_u32 v214, v5, 4, v4")
        e(f"s_lshl_b32 {sA}, {sI}, 2")
        e(f"s_add_u32 {sA}, {sA}, {sRB}")
        e(f"s_lshl_b32 {sA}, {sA}, 2")
        e(f"s_add_u32 {sA}, {sA}, {sW}")
        e(f"s_mul_i32 {sA}, {sA}, 14336")
        e(f"s_lshl_b32 {sBt}, {sCG}, 7")
        e(f"s_add_u32 s100, {sA}, {sBt}")
        e(f"v_and_b32 v4, 31, {vL}")
        e(f"v_lshrrev_b32 v7, 5, {vL}")
        e(f"v_lshlrev_b32 v7, 2, v7")
        e("v_sub_u32 v4, v4, v7")
        e("v_mov_b32 v6, 0xffff")
        e("v_mov_b32 v7, 0xffff0000")
        for r in range(16):
            e(f"v_cmp_le_i32 s[{SMASK + 2 * r}:{SMASK + 2 * r + 1}], {(r >> 2) * 8 + (r & 3)}, v4")
        for k in range(8):
            e(f"v_cndmask_b32 v4, 0, v6, s[{SMASK + 4 * k}:{SMASK + 4 * k + 1}]")
            e(f"v_cndmask_b32 v5, 0, v7, s[{SMASK + 4 * k + 2}:{SMASK + 4 * k + 3}]")
            e(f"v_or_b32 v{MK + k}, v4, v5")
        e(f"s_mul_i32 s42, {sW}, 12288")
        e(f"s_add_u32 s42, s42, {L_KV}")
        e(f"v_add_u32 v4, 1792, {vL16}")
        e(f"v_subrev_u32 v5, 16, {vL}")
        e(f"v_lshlrev_b32 v5, 9, v5")
        e(f"v_add_u32 v5, {2048 + 448}, v5")
        e(f"v_cmp_gt_u32 vcc, 16, {vL}")
        e("v_mov_b32 v6, 0x3f803f80")
        e("v_cndmask_b32 v4, v5, v4, vcc")
        e("v_cndmask_b32 v196, v6, 0, vcc")
        e(f"v_add_u32 v201, s42, v4")
        for k in range(1, 4):
            e(f"v_mov_b32 v{196 + k}, v196")
        e(f"s_and_b32 s43, {sT}, 0xfc")
        e(f"s_mul_i32 {sBt}, {sW}, 3")
        e(f"s_add_u32 s43, s43, {sBt}")
        e(f"s_sub_u32 s43, s43, 8")
        e(f"v_bfe_u32 v4, {vL}, 2, 2")
        e("v_min_u32 v4, 2, v4")
        e(f"v_add_u32 v4, s43, v4")
        e("v_max_i32 v4, 0, v4")
        e("v_mul_u32_u24 v4, 14, v4")
        e(f"s_mul_i32 {sA}, {sH}, 28")
        e(f"v_and_b32 v5, 1, {vL}")
        e("v_mul_u32_u24 v5, 27, v5")
        e(f"v_add_u32 v5, {sA}, v5")
        e("v_lshrrev_b32 v5, 6, v5")
        e("v_add_u32 v4, v4, v5")
        e(f"v_bfe_u32 v5, {vL}, 1, 1")
        e("v_mul_u32_u24 v5, 7, v5")
        e("v_add_u32 v4, v4, v5")
        e("v_lshlrev_b32 v4, 7, v4")
        e(f"v_add_u32 v200, {WS_FLKV}, v4")
        for k in range(8):
            e(f"v_mov_b32 v{184 + k}, 0")
        e("v_mov_b32 v5, 0x0000f149")
        e(f"v_cmp_le_u32 vcc, 48, {vL}")
        e(f"v_add_u32 v202, s42, {vL16}")
        e("v_cndmask_b32 v188, 0, v5, vcc")
        e("v_cndmask_b32 v190, 0, v5, vcc")
        self.rp_setup(e)

    def helper_side(self):
        e = self.e
        e(f"s_sub_u32 {sE}, {sR}, 28")
        e(f"s_lshl_b32 {sE}, {sE}, 2")
        e(f"s_add_u32 {sE}, {sE}, {sW}")
        e(f"v_lshlrev_b32 v6, 7, {vL}")
        e(f"s_lshl_b32 {sA}, {sI}, 9")
        e(f"s_add_u32 {sA}, {sA}, {WS_FLO}")
        e("s_mov_b64 exec, 15")
        e(f"buffer_load_dword v127, v6, {srd(SRD_WS)}, {sA} offen sc1")
        e(f"s_add_u32 {sA}, {sA}, {WS_FLZ - WS_FLO}")
        e(f"buffer_load_dword v127, v6, {srd(SRD_WS)}, {sA} offen sc1")
        e(f"s_lshl_b32 {sA}, {sI}, 10")
        e(f"s_add_u32 {sA}, {sA}, {WS_FLD}")
        e("s_mov_b64 exec, 0xff")
        e(f"buffer_load_dword v127, v6, {srd(SRD_WS)}, {sA} offen sc1")
        e("s_mov_b64 exec, -1")

    def wo_pieces(self):
        e = self.e

        def piece(n):
            if n == 0:
                e(f"s_lshl_b32 {sC}, {sCG}, 7")
                e(f"s_mul_i32 {sE}, {sW}, {8 * 896}")
                e(f"s_add_u32 {sC}, {sC}, {sE}")
                e(f"s_mul_i32 {sE}, {sRB}, 7")
                e(f"s_lshr_b32 {sE}, {sE}, 1")
            e(f"s_mul_i32 {sD}, {sE}, {32 * 896}")
            e(f"s_add_u32 {sD}, {sD}, {sC}")
            e(f"s_lshl_b32 {sBt}, {sE}, 12")
            e(f"s_add_u32 {sBt}, {sBt}, s101")
            e(f"s_add_u32 m0, {sBt}, {L_WO}")
            e(f"s_add_u32 {sE}, {sE}, 1")
            e(f"buffer_load_dwordx4 v13, {srd(SRD_WO)}, {sD} offen lds", "wo")
            e(f"s_cmp_eq_u32 {sE}, 14")
            e(f"s_cselect_b32 {sE}, 0, {sE}")
        return [lambda n=n: piece(n) for n in range(14)]

    def wo_dma(self):
        for x in self.wo_pieces():
            x()

    def wd_setup(self):
        e = self.e
        e(f"s_mul_i32 s100, {sCG}, 112")
        e(f"s_mul_i32 {sBt}, {sW}, 28")
        e(f"s_add_u32 s100, s100, {sBt}")
        e(f"s_lshl_b32 s100, s100, 11")
        e(f"s_add_u32 s100, s100, {WS_WD}")
        self.rot28("s3")
        self.wd_next = 0

    def wd_loads(self, count):
        e = self.e

        def ld(j, half):
            if self.o.get("skip_wd"):
                return
            if half == 0 and j % 4 == 0:
                e(f"s_lshl_b32 {sWD}, s3, 13")
                e(f"s_add_u32 {sWD}, {sWD}, s100")
                e("s_add_u32 s3, s3, 1")
                e("s_cmp_eq_u32 s3, 7")
                e("s_cselect_b32 s3, 0, s3")
            elif half == 0 and j % 4 == 2:
                e(f"s_add_u32 {sWD}, {sWD}, 4096")
            e(f"buffer_load_dwordx4 {ar(8 * j + 4 * half)}, {vL16}, {srd(SRD_WS)}, {sWD} offen offset:{(j & 1) * 2048 + 1024 * half} sc1", ("wd", j))
        j0 = self.wd_next
        self.wd_next = min(28, j0 + count)
        return [lambda j=j, half=half: ld(j, half) for j in range(j0, self.wd_next) for half in range(2)]

    def slotq_issue(self):
        e = self.e
        e(f"buffer_load_dwordx4 v[240:243], v214, {srd(SRD_X)}, s100 offen")
        e(f"buffer_load_dwordx4 v[244:247], v214, {srd(SRD_X)}, s100 offen offset:64")
        if self.o.get("wo_at", 2) == 2:
            lab = e.label("nowo")
            e(f"s_cmp_ge_u32 {sR}, 28")
            e(f"s_cbranch_scc1 {lab}")
            self.wo_dma()
            e(f"{lab}:")

    def wfl_issue(self, va="v215", vd="v238"):
        e = self.e
        e(f"s_mul_i32 {sD}, {sCG}, 112")
        e(f"s_mul_i32 {sE}, {sW}, 28")
        e(f"s_add_u32 {sD}, {sD}, {sE}")
        e(f"s_lshl_b32 {sD}, {sD}, 7")
        e(f"s_add_u32 {sU}, {sD}, {WS_FLW}")
        e(f"v_min_u32 {va}, 27, {vL}")
        e(f"v_lshlrev_b32 {va}, 7, {va}")
        self.poll_issue(va, sU, vd, "wfl")

    def late_consts(self):
        e = self.e
        self.gather_finish("v208", 216, 232)
        for k in range(4):
            e(f"v_add_f32 v{216 + k}, v{216 + k}, v210")
        self.round_bf16([f"v{216 + k}" for k in range(4)], "v232")
        e(f"ds_write_b128 v209, v[216:219] offset:{L_GAB}")

    def x_relayout(self):
        e = self.e
        e(f"s_lshl_b32 {sA}, {sW}, 11")
        e(f"s_add_u32 {sA}, {sA}, {L_XS}")
        e(f"v_lshrrev_b32 v4, 2, {vL}")
        e(f"v_lshlrev_b32 v4, 7, v4")
        e(f"v_and_b32 v5, 3, {vL}")
        e(f"v_lshl_add_u32 v4, v5, 4, v4")
        e(f"v_add_u32 v6, {sA}, v4")
        e(f"v_and_b32 v4, 15, {vL}")
        e(f"v_lshlrev_b32 v4, 7, v4")
        e(f"v_lshrrev_b32 v5, 4, {vL}")
        e(f"v_lshl_add_u32 v4, v5, 3, v4")
        e(f"v_add_u32 v7, {sA}, v4")
        e("ds_write_b128 v6, v[240:243]")
        e("ds_write_b128 v6, v[244:247] offset:64")
        for t in range(4):
            e(f"ds_read_b64 {vr(248 + 2 * t, 2)}, v7 offset:{32 * t}")

    def p2(self):
        e = self.e
        QF, MK = 64, 72
        e(f"v_lshlrev_b32 v4, 3, {vL}")
        e(f"v_add_u32 v4, {L_PAD}, v4")
        e("ds_write_b64 v4, v[184:185]")
        e("s_mov_b64 exec, 0xfffff")
        for t in range(3):
            e(f"ds_write_b128 v201, v[196:199] offset:{t * 4096}")
        e("s_mov_b64 exec, -1")
        self.poll_issue("v200", "0", "v203", "kvfl")
        e(f"s_lshl_b32 {sA}, {sW}, 12")
        e(f"s_add_u32 {sA}, {sA}, {L_KV}")
        e(f"v_add_u32 v10, {sA}, {vL16}")
        e(f"v_lshl_add_u32 v15, {vL}, 3, {sA}")
        self.prep_p3()
        self.wo_setup()
        for hd in range(self.wo_early):
            self.rd_wo(hd)
        e(f"s_lshl_b32 {sE}, {sH}, 6")
        e(f"s_add_u32 {sE}, {sE}, s43")
        e(f"s_lshl_b32 {sE}, {sE}, 12")
        e(f"s_add_u32 {sE}, {sE}, {WS_KV}")
        self.poll_check("v200", "0", "v203", "kvfl")
        self.acquire()
        self.stamp("kvflag")
        for t in range(3):
            fl, dn = e.label("kvfill"), e.label("kvdone")
            e(f"s_cmp_lt_i32 s43, {-t}")
            e(f"s_cbranch_scc1 {fl}")
            e(f"s_add_u32 m0, s42, {t * 4096}")
            e(f"s_add_u32 {sA}, {sE}, {t * 4096}")
            e(f"buffer_load_dwordx4 {vL16}, {srd(SRD_WS)}, {sA} offen sc1 lds")
            e("s_mov_b32 exec_hi, 0xffff")
            e(f"buffer_load_dwordx4 {vL16}, {srd(SRD_WS)}, {sA} offen offset:1024 sc1 lds")
            e("s_mov_b32 exec_lo, 0x0fffffff")
            e("s_mov_b32 exec_hi, 0x0fffffff")
            e(f"buffer_load_dwordx4 {vL16}, {srd(SRD_WS)}, {sA} offen offset:2048 sc1 lds")
            e(f"buffer_load_dwordx4 {vL16}, {srd(SRD_WS)}, {sA} offen offset:3072 sc1 lds")
            e("s_mov_b64 exec, -1")
            e(f"s_branch {dn}")
            e(f"{fl}:")
            for f in range(4):
                e(f"ds_write_b128 v202, {vr(188 if f == 1 else 184)} offset:{t * 4096 + f * 1024}")
            e(f"{dn}:")
        e.vm = []
        self.x_relayout()
        e("s_waitcnt vmcnt(0) lgkmcnt(0)")
        e("s_barrier")
        self.stamp("kvgot")
        order = [0, 8, 1, 2, 3, 4, 5, 6, 7]
        S = [80, 96, 112]
        MG, NM, OA, PF = 128, 144, 160, 176
        vM = "v11"
        kseq = order + list(range(1, 8))
        vseq = [0, 8] + list(range(1, 8))
        kreg = lambda n, half: ar(224 + 8 * (n % 4) + 4 * half)
        vreg = lambda n, half: vr(16 + 8 * (n % 4) + 4 * half)

        def rdk(n):
            t = kseq[n]
            for f in range(2):
                e(f"ds_read2st64_b64 {kreg(n, f)}, v15 offset0:{8 * t + 2 * f} offset1:{8 * t + 2 * f + 1}", ("k", n))

        def rdv(n):
            t = vseq[n]
            for f in range(2):
                e(f"ds_read_b128 {vreg(n, f)}, v10 offset:{t * 4096 + 2048 + f * 1024}", ("v", n))

        def smf(n, half, dst, c):
            if half == 0:
                e.wait(lg=("k", n))
            e(f"v_mfma_f32_32x32x16_bf16 {vr(dst, 16)}, {kreg(n, half)}, {vr(QF + 4 * half)}, {c if half == 0 else vr(dst, 16)}")

        def mx(src, k, first=False):
            if first:
                e(f"v_max_f32 {vM}, v{src}, v{src + 1}")
            else:
                e(f"v_max3_f32 {vM}, {vM}, v{src + 2 * k}, v{src + 2 * k + 1}")

        for n in range(3):
            rdk(n)
        self.wd_setup()
        pf = [lambda p=p, mat=mat: self.wgu_piece(p, mat) for p in range(self.o.get("e1b", self.o.get("e1", 0)), self.o.get("e2", 5)) for mat in range(2)]
        side = [self.rp_load]
        if self.o.get("sm_o", 0) == 0:
            side.insert(0, lambda: self.touch(SRD_WS, WS_O, 262144, 2048, " sc1", dst="v239"))
        wdl = side + pf + [lambda: self.gather_issue("v208", 216)]
        npf1 = self.o.get("pf1", 8)
        main, fill = [], {}
        dsts = {0: S[0], 8: S[1]}
        for n, t in enumerate(order[2:]):
            dsts[t] = S[(n + 2) % 3]
        for n, t in enumerate(order):
            for half in range(2):
                main.append(lambda n=n, t=t, half=half: smf(n, half, dsts[t], "0"))
            fill.setdefault(2 * n, []).append(lambda n=n: rdk(n + 3))
        mrg = [lambda r=r: e(f"v_cndmask_b32 v{MG + r}, v{S[0] + r}, v{S[1] + r}, s[{SMASK + 2 * r}:{SMASK + 2 * r + 1}]") for r in range(16)]
        fill.setdefault(5, []).extend(mrg)
        fill.setdefault(6, []).extend([lambda k=k: mx(MG, k, k == 0) for k in range(8)])
        for n, t in enumerate(order[2:]):
            g = 2 * (n + 2) + 3
            ops = [lambda k=k, t=t: mx(dsts[t], k) for k in range(8)]
            if g + 1 < 18:
                fill.setdefault(g, []).extend(ops[:4])
                fill.setdefault(g + 1, []).extend(ops[4:])
            else:
                fill.setdefault(17, []).extend(ops)
        self.spread(fill, [lambda n=n: rdv(n) for n in range(3)], 9, 15)
        self.spread(fill, wdl[:npf1], 0, 17)
        wdl = wdl[npf1:]
        self.merge(main, fill)
        e(f"v_mov_b32 v4, {vM}")
        e(f"v_permlane32_swap_b32 {vM}, v4")
        e(f"v_max_f32 {vM}, {vM}, v4")
        for r in range(16):
            e(f"v_sub_f32 v{NM + r}, 0, {vM}")
        nm = vr(NM, 16)
        smf(9, 0, S[0], nm)
        for r in range(8):
            e(f"v_sub_f32 v{MG + r}, v{MG + r}, {vM}")
        smf(9, 1, S[0], nm)
        for r in range(8, 16):
            e(f"v_sub_f32 v{MG + r}, v{MG + r}, {vM}")
        smf(10, 0, S[1], nm)
        rdk(12)
        for r in range(8):
            e(f"v_exp_f32 v{MG + r}, v{MG + r}")
        smf(10, 1, S[1], nm)
        rdv(3)
        for r in range(8, 16):
            e(f"v_exp_f32 v{MG + r}, v{MG + r}")
        for k in range(8):
            e(f"v_cvt_pk_bf16_f32 v{PF + k}, v{MG + 2 * k}, v{MG + 2 * k + 1}")
        for k in range(8):
            e(f"v_and_b32 v{PF + 8 + k}, v{PF + k}, v{MK + k}")
            e(f"v_xor_b32 v{PF + k}, v{PF + k}, v{PF + 8 + k}")
        oa = vr(OA, 16)
        nside = len(wdl)

        def pv(n, half, p, first=False):
            if half == 0:
                e.wait(lg=("v", n))
            e(f"v_mfma_f32_32x32x16_bf16 {oa}, {vreg(n, half)}, {vr(p + 4 * half)}, {'0' if first else oa}")

        pend = [lambda: pv(0, 0, PF, True), lambda: pv(0, 1, PF), lambda: pv(1, 0, PF + 8), lambda: pv(1, 1, PF + 8)]
        for t in range(1, 8):
            src = S[(t - 1) % 3]
            pfr = PF + 16 + 8 * (t & 1)
            mf = list(pend)
            if t + 2 < 8:
                d = S[(t + 1) % 3]
                mf += [lambda t=t, d=d: smf(10 + t, 0, d, nm), lambda t=t, d=d: smf(10 + t, 1, d, nm)]
            ops = [f"v_exp_f32 v{src + r}, v{src + r}" for r in range(16)]
            ops += [f"v_cvt_pk_bf16_f32 v{pfr + k}, v{src + 2 * k}, v{src + 2 * k + 1}" for k in range(8)]
            cost = [2] * 16 + [1] * 8
            tot, acc, mi = sum(cost), 0, 0
            for oi, (op, c) in enumerate(zip(ops, cost)):
                pos = (t - 1) * 24 + oi
                while wdl and (nside - len(wdl)) * self.o.get("pf2", 120) <= pos * nside:
                    wdl.pop(0)()
                while mi < len(mf) and acc >= mi * tot / len(mf):
                    mf[mi]()
                    mi += 1
                e(op)
                acc += c
            for x in mf[mi:]:
                x()
            if t == self.o.get("rp_at", 3):
                self.rp_read()
            if t == self.o.get("rp_at", 3) + 1:
                self.rp_store()
            if 12 + t < len(kseq):
                rdk(12 + t)
            if t == 1:
                rdv(4)
            if 4 + t < len(vseq):
                rdv(4 + t)
            pend = [lambda t=t, pfr=pfr: pv(t + 1, 0, pfr), lambda t=t, pfr=pfr: pv(t + 1, 1, pfr)]
        for x in wdl:
            x()
        pend[0]()
        e(f"v_bfe_u32 v4, {vL}, 4, 1")
        e(f"v_lshlrev_b32 v4, 14, v4")
        e(f"v_lshrrev_b32 v5, 5, {vL}")
        e(f"v_lshl_add_u32 v4, v5, 8, v4")
        pend[1]()
        e(f"v_and_b32 v5, 15, {vL}")
        e(f"v_lshl_add_u32 v4, v5, 4, v4")
        e(f"s_lshl_b32 {sA}, {sT}, 5")
        e(f"s_add_u32 {sA}, {sA}, {sH}")
        e(f"s_lshl_b32 {sA}, {sA}, 10")
        e(f"s_add_u32 {sA}, {sA}, {WS_O}")
        e(f"s_lshl_b32 {sBt}, {sT}, 4")
        e(f"s_add_u32 {sBt}, {sBt}, {sH}")
        e(f"s_lshl_b32 {sBt}, {sBt}, 2")
        e(f"s_add_u32 {sBt}, {sBt}, {WS_FLO}")
        e(f"v_mov_b32 v5, v{OA + 12}")
        e(f"v_mov_b32 v6, v{OA + 12}")
        e("v_permlane32_swap_b32 v5, v6")
        e("v_rcp_f32 v6, v6")
        for f in range(2):
            for r in range(8 * f, 8 * f + 8):
                e(f"v_mul_f32 v{OA + r}, v6, v{OA + r}")
            for k in range(4 * f, 4 * f + 4):
                e(f"v_cvt_pk_bf16_f32 v{PF + k}, v{OA + 2 * k}, v{OA + 2 * k + 1}")
            if f == 1:
                e(f"v_cndmask_b32 v{PF + 6}, v{PF + 6}, 0, {sHI}")
                e(f"v_cndmask_b32 v{PF + 7}, v{PF + 7}, 0, {sHI}")
            e(f"buffer_store_dwordx4 {vr(PF + 4 * f)}, v4, {srd(SRD_WS)}, {sA} offen offset:{f * 512}{self.sm('o')}")
        self.stamp("attn")
        self.publish(sBt, "v7")
        self.stamp("opub")
        e(f"s_cmp_ge_u32 {sR}, 28")
        e("s_cbranch_scc1 L_spare")

    def prep_p3(self):
        e = self.e
        e(f"v_lshrrev_b32 v4, 5, {vL}")
        e(f"v_lshlrev_b32 v4, 4, v4")
        e(f"v_bfe_u32 v5, {vL}, 4, 1")
        e(f"v_lshl_add_u32 v4, v5, 2, v4")
        e(f"v_bfe_u32 v6, {vL}, 2, 2")
        e("v_add_u32 v4, v4, v6")
        e("v_lshlrev_b32 v4, 7, v4")
        e("v_lshrrev_b32 v6, 1, v6")
        e("v_lshl_add_u32 v5, v5, 1, v6")
        e(f"v_and_b32 v6, 3, {vL}")
        e("v_lshl_add_u32 v4, v6, 3, v4")
        e(f"v_add_u32 v4, {L_WO}, v4")
        for t in range(4):
            e(f"v_xor_b32 v6, {t}, v5")
            e(f"v_lshl_add_u32 v{48 + t}, v6, 5, v4")
        e(f"v_and_b32 v4, 15, {vL}")
        e(f"v_lshrrev_b32 v5, 4, {vL}")
        e(f"v_lshlrev_b32 v52, 4, v4")
        e(f"v_lshl_add_u32 v52, v5, 9, v52")
        e(f"v_lshlrev_b32 v6, 7, v4")
        e(f"v_lshl_add_u32 v6, v5, 3, v6")
        e(f"s_lshl_b32 {sA}, {sW}, 11")
        e(f"s_add_u32 {sA}, {sA}, {L_X1}")
        e(f"v_add_u32 v53, {sA}, v6")
        e(f"v_lshlrev_b32 v54, 2, v4")
        e(f"v_lshlrev_b32 v55, 4, v5")
        e(f"s_lshl_b32 {sA}, {sI}, 2")
        e(f"s_add_u32 s33, {sA}, {sRB}")
        e(f"s_lshl_b32 {sA}, s33, 1")
        e(f"s_lshr_b32 {sBt}, {sW}, 1")
        e(f"s_add_u32 {sA}, {sA}, {sBt}")
        e(f"s_mul_i32 s28, {sA}, 28672")
        e(f"s_lshl_b32 {sBt}, {sCG}, 12")
        e(f"s_add_u32 s28, s28, {sBt}")
        e(f"s_and_b32 {sBt}, {sW}, 1")
        e(f"s_lshl_b32 {sBt}, {sBt}, 8")
        e(f"s_add_u32 s28, s28, {sBt}")
        e(f"s_add_u32 s28, s28, {WS_Z}")
        e(f"s_lshl_b32 s31, {sA}, 6")
        e(f"s_add_u32 s31, s31, {WS_FLO}")
        e(f"s_mul_i32 s29, s33, 7")
        e(f"s_add_u32 s29, s29, {sCG}")
        e(f"s_lshl_b32 s29, s29, 10")
        e(f"s_lshl_b32 {sBt}, {sW}, 8")
        e(f"s_add_u32 s29, s29, {sBt}")
        e(f"s_add_u32 s29, s29, {WS_STAT}")
        e(f"s_lshl_b32 s30, s33, 5")
        e(f"s_lshl_b32 {sBt}, {sCG}, 2")
        e(f"s_add_u32 s30, s30, {sBt}")
        e(f"s_add_u32 s30, s30, {sW}")
        e(f"s_lshl_b32 s30, s30, 2")
        e(f"s_add_u32 s30, s30, {WS_FLZ}")
        e(f"s_lshl_b32 s32, s33, 2")
        e(f"s_add_u32 s32, s32, {sW}")
        e(f"s_lshl_b32 s32, s32, 14")
        e(f"s_add_u32 s32, s32, {WS_O}")

    def wo_setup(self):
        e = self.e
        a0 = 0
        early = [("a", n) for n in range(a0, 224, 16) if n + 16 <= 224]
        slots = early + [("a", 224), ("a", 240)] + [("v", n) for n in (192, 208, 224)]
        self.NWO = NWO = min(len(slots), 16)
        self.wo_early = min(len(early), self.o.get("wo_pre", 14)) if self.o.get("wo_at", 2) == 0 else 0

        def wreg(hd, t, k=4, o=0):
            kind, n = slots[hd % NWO]
            return (ar if kind == "a" else vr)(n + 4 * t + o, k)

        def rd_wo(hd, tiles=range(4)):
            for t in tiles:
                a = 48 + (t ^ (2 * (hd & 1)))
                e(f"ds_read_b64_tr_b16 {wreg(hd, t, 2)}, v{a} offset:{hd * 3584}", ("wo", hd))
                e(f"ds_read_b64_tr_b16 {wreg(hd, t, 2, 2)}, v{a} offset:{hd * 3584 + 1024}", ("wo", hd))
        self.wreg, self.rd_wo = wreg, rd_wo

    def p3(self):
        e = self.e
        OB, AC = 128, 32
        GA, CB, XR = 64, 80, 96
        wreg, rd_wo, NWO = self.wreg, self.rd_wo, self.NWO
        self.late_consts()
        for t in range(4):
            e(f"ds_read_b128 {vr(GA + 4 * t)}, v55 offset:{L_GAB + 64 * t}")
            e(f"ds_read_b128 {vr(CB + 4 * t)}, v55 offset:{L_GAB + 256 + 64 * t}")
        self.poll_issue("v54", "s31", "v56", "ofl")
        ahead = NWO if NWO == 16 else NWO - 1
        nxt = self.wo_early
        while nxt < min(ahead, max(self.wo_early + 2, 4)):
            rd_wo(nxt)
            nxt += 1
        for k in range(8):
            e(f"v_lshlrev_b32 v{XR + 2 * k}, 16, v{248 + k}")
            e(f"v_and_b32 v{XR + 2 * k + 1}, 0xffff0000, v{248 + k}")
        self.poll_check("v54", "s31", "v56", "ofl")
        self.acquire()
        self.stamp("oflag")

        def ld_o(hd):
            if hd and hd % 4 == 0:
                e("s_add_u32 s32, s32, 4096")
            e(f"buffer_load_dwordx4 {vr(OB + 4 * hd)}, {vL16}, {srd(SRD_WS)}, s32 offen offset:{(hd % 4) * 1024} sc1", ("o", hd))

        PRE = self.o.get("p3pre", 8)
        for hd in range(PRE):
            ld_o(hd)
        self.prep_p45()
        for hd in range(16):
            e.wait(vm=("o", hd), lg=("wo", hd))
            for t in range(4):
                c = "0" if hd == 0 else vr(AC + 4 * t)
                e(f"v_mfma_f32_16x16x32_bf16 {vr(AC + 4 * t)}, {wreg(hd, t)}, {vr(OB + 4 * hd)}, {c}")
                if t == 0 and hd + PRE < 16:
                    ld_o(hd + PRE)
                if nxt < 16 and nxt <= hd + ahead:
                    rd_wo(nxt, [t])
                    if t == 3:
                        nxt += 1
        self.stamp("oproj")
        for pp in range(2):
            ks = range(8 * pp, 8 * pp + 8)
            for k in ks:
                e(f"v_fmac_f32 v{XR + k}, v{GA + k}, v{AC + k}")
            for k in range(4 * pp, 4 * pp + 4):
                e(f"v_cvt_pk_bf16_f32 v{XR + 16 + k}, v{XR + 2 * k}, v{XR + 2 * k + 1}")
            for k in range(4 * pp, 4 * pp + 4):
                e(f"v_lshlrev_b32 v{XR + 2 * k}, 16, v{XR + 16 + k}")
                e(f"v_and_b32 v{XR + 2 * k + 1}, 0xffff0000, v{XR + 16 + k}")
            for k in range(8 * pp, 8 * pp + 8, 2):
                e(f"v_pk_mul_f32 v[{CB + k}:{CB + k + 1}], v[{CB + k}:{CB + k + 1}], v[{XR + k}:{XR + k + 1}]")
            for k in range(4 * pp, 4 * pp + 4):
                e(f"v_cvt_pk_bf16_f32 v{XR + 24 + k}, v{CB + 2 * k}, v{CB + 2 * k + 1}")
            e(f"buffer_store_dwordx4 {vr(XR + 24 + 4 * pp)}, v52, {srd(SRD_WS)}, s28 offen offset:{pp * 2048}{self.sm('z')}")
        pr = lambda n: f"v[{n}:{n + 1}]"
        e(f"v_pk_add_f32 v[4:5], {pr(XR)}, {pr(XR + 2)}")
        e(f"v_pk_add_f32 v[6:7], {pr(XR + 4)}, {pr(XR + 6)}")
        e(f"v_pk_add_f32 v[4:5], v[4:5], {pr(XR + 8)}")
        e(f"v_pk_add_f32 v[6:7], v[6:7], {pr(XR + 10)}")
        e(f"v_pk_add_f32 v[4:5], v[4:5], {pr(XR + 12)}")
        e(f"v_pk_add_f32 v[6:7], v[6:7], {pr(XR + 14)}")
        e("v_pk_add_f32 v[4:5], v[4:5], v[6:7]")
        e("v_add_f32 v8, v4, v5")
        self.reduce_hi2("v8", "v7")
        self.publish("s30", "v7")
        self.stamp("zpub")
        e(f"v_mul_f32 v6, {fbits(1.0 / 64)}, v8")
        for k in range(0, 16, 2):
            e(f"v_pk_add_f32 {pr(XR + k)}, {pr(XR + k)}, v[6:7] op_sel_hi:[1,0] neg_lo:[0,1] neg_hi:[0,1]")
        e(f"v_pk_mul_f32 v[4:5], {pr(XR)}, {pr(XR)}")
        e(f"v_pk_mul_f32 v[6:7], {pr(XR + 2)}, {pr(XR + 2)}")
        for k in range(4, 16, 4):
            e(f"v_pk_fma_f32 v[4:5], {pr(XR + k)}, {pr(XR + k)}, v[4:5]")
            e(f"v_pk_fma_f32 v[6:7], {pr(XR + k + 2)}, {pr(XR + k + 2)}, v[6:7]")
        e("v_pk_add_f32 v[4:5], v[4:5], v[6:7]")
        e("v_add_f32 v9, v4, v5")
        self.reduce_hi2("v9", "v7")
        e(f"v_mov_b32 v10, {sTAG}")
        e(f"v_mov_b32 v11, {sTAG}")
        e("s_barrier")
        for t in range(4):
            e(f"ds_write_b64 v53, {vr(XR + 16 + 2 * t, 2)} offset:{32 * t}")

    def prep_p45(self):
        e = self.e
        self.w4_addr()
        e(f"s_lshl_b32 {sA}, {sW}, 13")
        e(f"s_add_u32 s92, {sA}, {L_RA}")
        e(f"v_min_u32 v30, 27, {vL}")
        e(f"v_lshlrev_b32 v30, 2, v30")
        e(f"s_lshl_b32 {sE}, {sI}, 2")
        e(f"s_add_u32 {sE}, {sE}, {sW}")
        e(f"s_lshl_b32 s81, {sE}, 7")
        e(f"s_add_u32 s81, s81, {WS_FLZ}")
        e(f"s_mul_i32 s88, {sE}, 57344")
        e(f"s_add_u32 s88, s88, {WS_Z}")
        e(f"s_add_u32 s89, s88, 28672")
        e(f"s_mul_i32 s64, {sE}, 7168")
        e(f"s_add_u32 s64, s64, {WS_STAT}")
        e(f"s_mul_i32 s65, {sE}, {2 * 114688}")
        e(f"s_lshl_b32 {sBt}, {sR}, 12")
        e(f"s_add_u32 s65, s65, {sBt}")
        e(f"s_add_u32 s65, s65, {WS_HID}")
        e(f"s_add_u32 s66, s65, 114688")
        e(f"s_lshl_b32 s67, {sE}, 6")
        e(f"s_add_u32 s67, s67, {sR}")
        e(f"s_lshl_b32 s67, s67, 2")
        e(f"s_add_u32 s67, s67, {WS_FLD}")
        e(f"s_add_u32 s68, s67, 128")
        e(f"s_lshl_b32 s69, {sI}, 2")
        e(f"s_add_u32 s69, s69, {sRB}")
        e(f"s_lshl_b32 s70, s69, 8")
        e(f"s_mul_i32 {sBt}, {sW}, 28")
        e(f"s_add_u32 s70, s70, {sBt}")
        e(f"s_add_u32 s70, s70, {WS_FLD}")
        e(f"s_mul_i32 s71, s69, {2 * 114688}")
        e(f"s_mul_i32 {sBt}, {sW}, 28672")
        e(f"s_add_u32 s71, s71, {sBt}")
        e(f"s_add_u32 s71, s71, {WS_HID}")
        self.rot28("s74")
        e(f"s_lshl_b32 s75, {sR}, 7")
        e(f"s_add_u32 s75, s75, {WS_FLXA}")
        e(f"s_lshl_b32 s76, {sR}, 12")
        e(f"s_add_u32 s76, s76, {WS_XA}")
        e(f"s_lshl_b32 s77, s69, 3")
        e(f"s_add_u32 s77, s77, {sW}")
        e(f"s_mul_i32 s77, s77, 7168")
        e(f"s_lshl_b32 {sBt}, {sCG}, 7")
        e(f"s_add_u32 s77, s77, {sBt}")
        e(f"s_add_u32 s78, s77, {32 * 896}")

    def rot28(self, d):
        e = self.e
        e(f"s_lshl_b32 {d}, {sRB}, 1")
        e(f"s_add_u32 {d}, {d}, {sCG}")
        e(f"s_cmp_ge_u32 {d}, 7")
        e(f"s_cselect_b32 {sBt}, 7, 0")
        e(f"s_sub_u32 {d}, {d}, {sBt}")

    def w4_addr(self):
        e = self.e
        self.tr_addr("v24", 4)
        e("v_xor_b32 v25, 64, v24")
        for k in range(1, 3):
            e(f"v_add_u32 v{24 + 2 * k}, {65536 * k}, v24")
            e(f"v_add_u32 v{25 + 2 * k}, {65536 * k}, v25")

    @staticmethod
    def w4_off(ks, mat):
        a = w4_base(ks >> 1) + mat * 4096 + (ks & 1) * 1024
        return a % 65536, 2 * (a // 65536)

    def p45(self):
        e = self.e
        AC, BR, AR, WD = 128, 64, 224, 0
        XA, XB, R2 = 48, 112, 120
        KS = self.o.get("ks_split", 14)
        NB, DB = 12, self.o.get("zdist", 10)
        steps = [(ks, (0, 1)) for ks in range(KS)] + [(ks, (0,)) for ks in range(KS, 29)] + [(ks, (1,)) for ks in range(KS, 29)]
        seq = [(ks, tt) for ks, tts in steps for tt in tts if ks < 28]
        slot = {x: n % NB for n, x in enumerate(seq)}

        def rd_a1(si, t, hf):
            ks = steps[si][0]
            if ks == 28:
                return
            off, hi = self.w4_off(ks, t >> 1)
            d = AR + 16 * (si % 2) + 4 * t + 2 * hf
            e(f"ds_read_b64_tr_b16 {ar(d, 2)}, v{24 + hi + (t & 1)} offset:{off + 2048 * hf}", ("a", si, t))

        for t in range(4):
            for hf in range(2):
                rd_a1(0, t, hf)
        self.poll("v30", "s81", "v31")
        self.acquire()
        self.stamp("zflag")

        def ld_z(n):
            if self.o.get("skip_z") and n >= 12:
                return
            ks, tt = seq[n]
            if ks and ks % 4 == 0:
                e(f"s_add_u32 s{88 + tt}, s{88 + tt}, 4096")
            e(f"buffer_load_dwordx4 {vr(BR + 4 * slot[seq[n]])}, {vL16}, {srd(SRD_WS)}, s{88 + tt} offen offset:{(ks % 4) * 1024} sc1", ("z", n))

        first = self.o.get("zfirst", 6)
        for n in range(first):
            ld_z(n)

        def ld_stat(cg):
            if cg == 4:
                e("s_add_u32 s82, s64, 4096")
            e(f"buffer_load_dwordx4 {vr(32 + 4 * cg)}, {vL16}, {srd(SRD_WS)}, {'s64' if cg < 4 else 's82'} offen offset:{(cg % 4) * 1024} sc1", "stat")

        def stat_check():
            lp, dn = e.label("stat"), e.label("statd")
            e.wait(vm="stat")
            keep = list(e.vm)
            e(f"s_mov_b32 {sSPIN}, 0")
            e(f"{lp}:")
            e(f"v_xor_b32 v4, {sTAG}, v34")
            for cg in range(1, 7):
                e(f"v_xor_b32 v5, {sTAG}, v{34 + 4 * cg}")
                e("v_or_b32 v4, v4, v5")
            e("v_cmp_ne_u32 vcc, 0, v4")
            e(f"s_cbranch_vccz {dn}")
            for cg in range(7):
                ld_stat(cg)
            e(f"s_add_u32 {sSPIN}, {sSPIN}, 1")
            e(f"s_cmp_ge_u32 {sSPIN}, {SPIN_MAX}")
            e("s_waitcnt vmcnt(0)")
            e(f"s_cbranch_scc0 {lp}")
            e(f"{dn}:")
            e.vm = keep

        def stats(e):
            e("v_add_f32 v4, v32, v36")
            e("v_add_f32 v5, v40, v44")
            e("v_add_f32 v6, v48, v52")
            e("v_add_f32 v4, v4, v5")
            e("v_add_f32 v6, v6, v56")
            e("v_add_f32 v4, v4, v6")
            e(f"v_mul_f32 v4, {fbits(1.0 / 448)}, v4")
            e("v_add_f32 v5, v33, v37")
            e("v_add_f32 v6, v41, v45")
            e("v_add_f32 v7, v49, v53")
            e("v_add_f32 v5, v5, v6")
            e("v_add_f32 v7, v7, v57")
            e("v_add_f32 v5, v5, v7")
            e(f"v_mov_b32 v7, {fbits(1.0 / 64)}")
            e("v_mov_b32 v6, 0")
            for cg in range(7):
                e(f"v_fma_f32 v46, v{32 + 4 * cg}, v7, -v4")
                e("v_fmac_f32 v6, v46, v46")
            e(f"v_mul_f32 v6, {fbits(64.0)}, v6")
            e("v_add_f32 v5, v5, v6")
            e(f"v_mul_f32 v5, {fbits(1.0 / 448)}, v5")
            e(f"v_add_f32 v5, {fbits(1e-5)}, v5")
            e(f"v_rcp_f32 v{R2}, v5")
            e("v_sqrt_f32 v5, v5")
            e("v_sub_f32 v4, 0, v4")
            e("v_cvt_pk_bf16_f32 v6, v4, v5")
            e("v_lshlrev_b32 v7, 16, v6")
            e("v_and_b32 v46, 0xffff0000, v6")
            e("v_sub_f32 v4, v4, v7")
            e("v_sub_f32 v5, v5, v46")
            e("v_cvt_pk_bf16_f32 v7, v4, v5")
            e(f"s_mov_b32 {sA}, 0x01000100")
            e(f"s_mov_b32 {sBt}, 0x03020504")
            e(f"s_mov_b32 {sC}, 0x07060302")
            e(f"v_perm_b32 v{XB}, v7, v6, {sA}")
            e(f"v_perm_b32 v{XB + 1}, v7, v6, {sBt}")
            e(f"v_perm_b32 v{XB + 2}, v7, v6, {sC}")
            e(f"v_mov_b32 v{XB + 3}, 0")
            e(f"v_mov_b32 v{XB + 7}, 0")
            for k in range(3):
                e(f"v_mov_b32 v{XB + 4 + k}, v{XB + k}")
            e(f"v_mov_b32 v{R2 + 1}, v{R2}")
            for k in range(3):
                e(f"v_permlane32_swap_b32 v{XB + k}, v{XB + 4 + k}")
            e(f"v_permlane32_swap_b32 v{R2}, v{R2 + 1}")

        def epi4(tt):
            out = []
            for ct in range(2):
                g, u = AC + 64 * tt + 16 * ct, AC + 64 * tt + 32 + 16 * ct
                for k in range(8):
                    for r in (2 * k, 2 * k + 1):
                        out.append(f"v_max_f32 v{g + r}, 0, v{g + r}")
                        out.append(f"v_mul_f32 v{u + r}, v{R2 + tt}, v{u + r}")
                    for r in (2 * k, 2 * k + 1):
                        out.append(f"v_mul_f32 v{g + r}, v{g + r}, v{u + r}")
                    out.append(f"v_cvt_pk_bf16_f32 v{g + k}, v{g + 2 * k}, v{g + 2 * k + 1}")
                    if k % 4 == 3:
                        s = k // 4
                        out.append((f"buffer_store_dwordx4 {vr(g + 4 * s)}, {vL16}, {srd(SRD_WS)}, s{65 + tt} offen offset:{(2 * ct + s) * 1024} sc1", ("hs", tt)))
            return [(lambda x=x: e(x)) if isinstance(x, str) else (lambda x=x: e(x[0], x[1])) for x in out]

        def flag_hid(tt):
            e.wait(vm=("hs", tt))
            e(f"v_mov_b32 v7, {sTAG}")
            slow, dn = e.label("slowfl"), e.label("fl")
            e("s_mov_b64 exec, 1")
            e(f"s_cmp_lg_u32 {sFAST}, 0")
            e(f"s_cbranch_scc0 {slow}")
            e(f"buffer_store_dword v7, off, {srd(SRD_WS)}, s{67 + tt}")
            e(f"s_branch {dn}")
            e(f"{slow}:")
            e(f"buffer_store_dword v7, off, {srd(SRD_WS)}, s{67 + tt} sc1")
            e(f"{dn}:")
            e.vm.pop()
            e("s_mov_b64 exec, -1")

        def xa_issue():
            e(f"v_and_b32 v30, 3, {vL}")
            e(f"v_lshlrev_b32 v30, 2, v30")
            self.poll_issue("v30", "s75", "v31", "xafl")

        def poll_xa():
            self.poll_check("v30", "s75", "v31", "xafl")
            for t in range(4):
                e(f"buffer_load_dwordx4 {vr(XA + 4 * t)}, {vL16}, {srd(SRD_WS)}, s76 offen offset:{t * 1024} sc1", "xa")

        ring5 = [128 + 4 * k for k in range(8)] + [32 + 4 * k for k in range(4)] + [16, 20]
        N5, D5 = len(ring5), self.o.get("hdist", 10)

        def hid_issue(tt):
            if tt == 0:
                e(f"v_min_u32 v30, 6, {vL}")
                e(f"v_lshlrev_b32 v30, 2, v30")
            self.poll_issue("v30", "s70", "v31", ("hfl", tt), imm=128 * tt)

        def poll_hid(tt):
            self.poll_check("v30", "s70", "v31", ("hfl", tt), imm=128 * tt)
            self.stamp("hid%d" % tt)

        def ld_hid(n):
            if n == 28:
                e("s_add_u32 s71, s71, 114688")
            if n % 4 == 0:
                e("s_lshl_b32 s80, s74, 12")
                e("s_add_u32 s80, s80, s71")
                e("s_add_u32 s74, s74, 1")
                e("s_cmp_eq_u32 s74, 7")
                e("s_cselect_b32 s74, 0, s74")
            e(f"buffer_load_dwordx4 {vr(ring5[n % N5])}, {vL16}, {srd(SRD_WS)}, s80 offen offset:{(n % 4) * 1024} sc1", ("d", n))

        main, fill = [], {}
        gap0 = []
        nseq = 0
        for si, (ks, tts) in enumerate(steps):
            gap0.append(len(main))
            d = AR + 16 * (si % 2)
            for t in range(4):
                for tt in tts:
                    def m(si=si, ks=ks, t=t, tt=tt, d=d, n=nseq + tts.index(tt), lead=(tt == tts[0])):
                        if ks < 28:
                            e.wait(vm=("z", n) if t == 0 else None, lg=("a", si, t) if lead else None)
                            a, b = ar(d + 4 * t), vr(BR + 4 * slot[(ks, tt)])
                        else:
                            e.wait(vm="xa")
                            a, b = vr(XA + 4 * t), vr(XB + 4 * tt)
                        acc = AC + 64 * tt + 16 * t
                        c = "0" if ks == 0 else vr(acc, 16)
                        e(f"v_mfma_f32_32x32x16_bf16 {vr(acc, 16)}, {a}, {b}, {c}")
                    main.append(m)
            g, ng = gap0[si], 4 * len(tts)
            if si + 1 < len(steps):
                self.spread(fill, [lambda si=si, t=t, hf=hf: rd_a1(si + 1, t, hf) for t in range(4) for hf in range(2)], g, g + ng)
            if ks < 28:
                nseq += len(tts)
        n4 = len(main)
        use = {}
        n = 0
        for si, (ks, tts) in enumerate(steps):
            for k, tt in enumerate(tts):
                if ks < 28:
                    use[n] = gap0[si] + 4 * k
                    n += 1
        prev = -1
        for n in range(first, len(seq)):
            gpos = max(use[n - DB] if n >= DB else 0, prev + 1)
            prev = gpos
            fill.setdefault(gpos, []).append(lambda n=n: ld_z(n))
        npf = self.o.get("e2", 5)
        rest = list(range(npf, 14))
        step = self.o.get("wg_step", 6)
        pos = {}
        for k, p in enumerate(rest):
            for mat in range(2):
                pos[(p, mat)] = self.o.get("wg0", 4) + (2 * k + mat) * step
                if not self.o.get("skip_wg"):
                    fill.setdefault(pos[(p, mat)], []).append(lambda p=p, mat=mat: self.wgu_piece(p, mat, ("wg", p)))
        def st_stat():
            e("s_mov_b64 exec, 0xffff")
            e(f"buffer_store_dwordx4 v[8:11], {vL16}, {srd(SRD_WS)}, s29 offen sc1")
            e("s_mov_b64 exec, -1")
        fill.setdefault(5, []).append(st_stat)
        fill.setdefault(6, []).append(self.rp_flag)
        self.spread(fill, [lambda cg=cg: ld_stat(cg) for cg in range(7)], 48, 62)
        grp = self.o.get("wg_grp", 3)
        for k in range(0, len(rest), grp):
            last = rest[min(k + grp, len(rest)) - 1]
            gb = gap0[2 * rest[k] - 1] - 1
            assert gb > pos[(last, 1)], (gb, pos[(last, 1)])

            def bar(last=last):
                e.wait(vm=("wg", last))
                e("s_barrier")
            fill.setdefault(gb, []).append(bar)
        for gs, nm in ((40, "g40"), (96, "g96"), (gap0[29], "tail1"), (200, "g200")):
            fill.setdefault(gs, []).append(lambda nm=nm: self.stamp(nm))
        fill.setdefault(86, []).append(stat_check)
        self.spread(fill, self.record(stats), 87, 112)
        end0 = gap0[KS + 29 - KS]
        fill.setdefault(end0 - 56, []).append(xa_issue)
        fill.setdefault(max(end0 - 32, 113), []).append(poll_xa)
        self.spread(fill, self.wd_loads(self.o.get("wd_4", 12)), self.o.get("wd0", 112), min(self.o.get("wd1", 200), n4 - 12))
        w0 = self.o.get("wd0", 112)
        fill.setdefault(w0 - 24, []).append(lambda: self.wfl_issue("v28", "v29"))
        fill.setdefault(w0 - 1, []).append(lambda: self.poll_check("v28", sU, "v29", "wfl"))
        j_late = self.wd_next
        hpos = {}
        late = self.wd_loads(28)
        self.spread(fill, epi4(0), end0 + 1, end0 + self.o.get("ep0", 26))
        fill.setdefault(end0 + self.o.get("fl0", 40), []).append(lambda: flag_hid(0))
        gp0 = n4 - self.o.get("poll0", 8)
        assert self.o.get("ep0", 26) <= self.o.get("fl0", 40) and end0 + self.o.get("fl0", 40) < gp0
        assert 22 <= self.o.get("fl1", 32) < self.o.get("poll1", 50) <= 55
        assert end0 - 56 >= 113 or True
        assert self.o.get("wd0", 112) - 24 > 7
        fill.setdefault(gp0 - self.o.get("pgap", 8), []).append(lambda: hid_issue(0))
        fill.setdefault(gp0, []).append(lambda: poll_hid(0))
        acc5 = [160, 224]
        for n in range(56):
            tt, j = divmod(n, 28)
            for ct in range(2):
                def m(n=n, tt=tt, j=j, ct=ct):
                    if n == 0 and ct == 0:
                        self.stamp("gemm4")
                    if ct == 0:
                        e.wait(vm=("d", n))
                    acc = acc5[tt] + 16 * ct
                    c = "0" if j == 0 else vr(acc, 16)
                    e(f"v_mfma_f32_32x32x16_bf16 {vr(acc, 16)}, {ar(WD + 8 * j + 4 * ct)}, {vr(ring5[n % N5])}, {c}")
                main.append(m)
        gp1 = n4 + self.o.get("poll1", 50)
        fill.setdefault(gp1 - self.o.get("pgap", 8), []).append(lambda: hid_issue(1))
        fill.setdefault(gp1, []).append(lambda: poll_hid(1))
        prev = gp0
        for n in range(56):
            gpos = max(n4 + 2 * (n - D5), prev + 1)
            if n >= 28:
                gpos = max(gpos, gp1)
            gpos = min(gpos, n4 + 2 * n - 1)
            prev = gpos
            hpos[n] = gpos
        l0 = max(n4 + self.o.get("late0", -8), min(self.o.get("wd1", 200), n4 - 12))
        for k, it in enumerate(late):
            j = j_late + k // 2
            g = min(l0 + (k * self.o.get("late_step", 10)) // 10, hpos[j])
            fill.setdefault(g, []).append(it)
        for n in range(56):
            fill.setdefault(hpos[n], []).append(lambda n=n: ld_hid(n))
        self.spread(fill, epi4(1), n4 + 1, n4 + 22)
        fill.setdefault(n4 + self.o.get("fl1", 32), []).append(lambda: flag_hid(1))

        def red_addr(e):
            e(f"v_and_b32 v4, 31, {vL}")
            e(f"v_and_b32 v5, 7, {vL}")
            e(f"v_lshrrev_b32 v6, 5, {vL}")
            e("v_xor_b32 v5, v5, v6")
            e("v_lshlrev_b32 v4, 8, v4")
            e("v_add_u32 v4, s92, v4")
            for p in range(8):
                e(f"v_xor_b32 v6, {2 * p}, v5")
                e(f"v_lshl_add_u32 v{64 + p}, v6, 4, v4")
            e(f"v_lshrrev_b32 v4, 3, {vL}")
            e(f"v_and_b32 v6, 7, {vL}")
            e("v_lshlrev_b32 v5, 1, v6")
            e("v_xor_b32 v5, v5, v4")
            e(f"s_lshl_b32 {sA}, {sW}, 11")
            e(f"s_add_u32 {sA}, {sA}, {L_RA}")
            e(f"v_lshl_add_u32 v7, v4, 8, {sA}")
            e("v_lshl_add_u32 v72, v5, 4, v7")
            e("v_xor_b32 v73, 16, v72")
            e("v_mul_u32_u24 v4, 896, v4")
            e("v_lshl_add_u32 v74, v6, 4, v4")
            e("v_lshlrev_b32 v6, 5, v6")
            e(f"ds_read_b128 v[76:79], v6 offset:{L_GAB + 512}")
            e(f"ds_read_b128 v[80:83], v6 offset:{L_GAB + 528}")
            e(f"s_lshl_b32 {sA}, {sW}, 10")
            e(f"s_add_u32 {sA}, {sA}, {L_X1}")
            e(f"v_add_u32 v75, {sA}, {vL16}")

        self.spread(fill, self.record(red_addr), n4 + 22, n4 + 32)

        def red_write(tt):
            out = []
            for ct in range(2):
                for q in range(4):
                    out.append(f"ds_write_b128 v{64 + 4 * ct + q}, {vr(acc5[tt] + 16 * ct + 4 * q)}")
            return out

        def red_final(tt):
            out = [f"ds_read_b128 v[84:87], v75 offset:{tt * 4096}"]
            for n in range(2):
                for s in range(4):
                    out.append(f"ds_read_b128 {vr(88 + 16 * n + 4 * s)}, v{72 + n} offset:{s * 8192}")
            out.append("s_waitcnt lgkmcnt(4)")
            for k in range(4):
                out.append(f"v_lshlrev_b32 v{120 + 2 * k}, 16, v{84 + k}")
                out.append(f"v_and_b32 v{121 + 2 * k}, 0xffff0000, v{84 + k}")
            for n in range(2):
                b = 88 + 16 * n
                if n == 1:
                    out.append("s_waitcnt lgkmcnt(0)")
                for k in range(4):
                    out.append(f"v_add_f32 v{b + k}, v{b + k}, v{b + 4 + k}")
                    out.append(f"v_add_f32 v{b + 8 + k}, v{b + 8 + k}, v{b + 12 + k}")
                for k in range(4):
                    out.append(f"v_add_f32 v{b + k}, v{b + k}, v{b + 8 + k}")
                for k in range(4):
                    out.append(f"v_fmac_f32 v{120 + 4 * n + k}, v{76 + 4 * n + k}, v{b + k}")
                out.append(f"v_cvt_pk_bf16_f32 v{84 + 2 * n}, v{120 + 4 * n}, v{121 + 4 * n}")
                out.append(f"v_cvt_pk_bf16_f32 v{85 + 2 * n}, v{122 + 4 * n}, v{123 + 4 * n}")
            out.append(f"buffer_store_dwordx4 v[84:87], v74, {srd(SRD_OUT)}, s{77 + tt} offen{self.sm('out')}")
            return out

        g5 = n4 + 56
        self.spread(fill, [lambda x=x: e(x) for x in red_write(0)], g5 + 2, g5 + 10)
        shift = L_RB - L_RA

        def bar5():
            e("s_waitcnt lgkmcnt(0)")
            e("s_barrier")
        fill.setdefault(g5 + 14, []).append(bar5)
        fin = red_final(0)
        fin += [f"v_add_u32 v{64 + p}, {shift}, v{64 + p}" for p in range(10)]
        self.spread(fill, [lambda x=x: e(x) for x in fin], g5 + 15, g5 + 50)
        self.merge(main, fill)
        self.stamp("gemm5")
        for x in red_write(1):
            e(x)
        bar5()
        for x in red_final(1):
            e(x)
        self.stamp("end")
        e("s_branch L_fin")

    def spare(self):
        e = self.e
        e.vm, e.lg = [], []
        AR = 224
        e("L_spare:")
        e("s_barrier")
        e(f"s_sub_u32 s74, {sR}, 28")
        e(f"s_lshl_b32 s74, s74, 3")
        e(f"s_add_u32 s74, s74, {sI}")
        e(f"s_cmp_lt_u32 s74, 28")
        e("s_cbranch_scc1 L_bias")
        e(f"s_cmp_lg_u32 s74, 31")
        e("s_cbranch_scc1 L_fin")
        e(f"s_cmp_lg_u32 {sW}, 0")
        e("s_cbranch_scc1 L_fin")
        self.bump_epoch()
        e("s_branch L_fin")
        e("L_bias:")
        e.vm = []
        e(f"s_lshl_b32 {sA}, {sW}, 6")
        e(f"v_add_u32 v4, {sA}, {vL}")
        e("v_min_u32 v4, 223, v4")
        e(f"v_cmp_gt_u32 vcc, 112, v4")
        e("v_subrev_u32 v5, 112, v4")
        e("v_cndmask_b32 v5, v5, v4, vcc")
        e("v_mov_b32 v6, 336")
        e("v_mov_b32 v7, 448")
        e("v_cndmask_b32 v6, v6, v7, vcc")
        e("v_add_u32 v6, v6, v5")
        e("v_lshlrev_b32 v208, 4, v6")
        e("v_lshrrev_b32 v6, 3, v5")
        e("v_lshlrev_b32 v6, 6, v6")
        e("v_and_b32 v7, 3, v5")
        e("v_lshl_add_u32 v6, v7, 4, v6")
        e("v_bfe_u32 v7, v5, 2, 1")
        e("v_lshl_add_u32 v6, v7, 3, v6")
        e("v_mov_b32 v7, 896")
        e("v_cndmask_b32 v7, v7, 0, vcc")
        e("v_add_u32 v209, v6, v7")
        e("v_cndmask_b32 v210, 0, 1.0, vcc")
        self.gather_issue("v208", 216)
        for p in list(range(self.o.get("e1b", self.o.get("e1", 0)))) + list(range(self.o.get("e2", 5), 14)):
            for mat in range(2):
                self.wgu_piece(p, mat)
        self.w4_addr()
        e(f"s_and_b32 {sA}, {sW}, 1")
        e(f"s_lshl_b32 {sA}, {sA}, 6")
        e(f"v_xor_b32 v26, {sA}, v24")
        e(f"s_lshr_b32 {sA}, {sW}, 1")
        e(f"s_lshl_b32 {sA}, {sA}, 12")
        e(f"v_add_u32 v26, {sA}, v26")
        e(f"v_add_u32 v28, 65536, v26")
        e(f"v_add_u32 v30, 131072, v26")
        e(f"v_and_b32 v4, 1, {vL}")
        e(f"v_mul_u32_u24 v4, 896, v4")
        e(f"v_lshrrev_b32 v5, 5, {vL}")
        e(f"v_lshl_add_u32 v27, v5, 4, v4")
        self.gather_finish("v208", 216, 232)
        for k in range(4):
            e(f"v_add_f32 v{216 + k}, v{216 + k}, v210")
        e("v_cvt_pk_bf16_f32 v220, v216, v217")
        e("v_cvt_pk_bf16_f32 v221, v218, v219")
        e(f"ds_write_b64 v209, v[220:221] offset:{L_CVEC}")
        e.wait(vm="wgu")
        e("s_waitcnt lgkmcnt(0)")
        e("s_barrier")

        def rd_b(ks):
            d = AR + 8 * (ks % 4)
            off, hi = self.w4_off(ks, 0)
            e(f"ds_read_b128 {ar(d)}, v27 offset:{L_CVEC + ks * 32}", ("b", ks))
            e(f"ds_read_b64_tr_b16 {ar(d + 4, 2)}, v{26 + hi} offset:{off}", ("b", ks))
            e(f"ds_read_b64_tr_b16 {ar(d + 6, 2)}, v{26 + hi} offset:{off + 2048}", ("b", ks))

        for ks in range(3):
            rd_b(ks)
        for ks in range(28):
            e.wait(lg=("b", ks))
            d = AR + 8 * (ks % 4)
            c = "0" if ks == 0 else vr(32, 16)
            e(f"v_mfma_f32_32x32x16_bf16 {vr(32, 16)}, {ar(d)}, {ar(d + 4)}, {c}")
            if ks + 3 < 28:
                rd_b(ks + 3)
        e("v_cvt_pk_bf16_f32 v4, v32, v33")
        e("v_lshlrev_b32 v5, 16, v4")
        e("v_and_b32 v6, 0xffff0000, v4")
        e("v_sub_f32 v5, v32, v5")
        e("v_sub_f32 v6, v33, v6")
        e("v_cvt_pk_bf16_f32 v5, v5, v6")
        e(f"s_mov_b32 {sA}, 0x05040100")
        e(f"s_mov_b32 {sBt}, 0x03020706")
        e(f"v_perm_b32 v48, v5, v4, {sA}")
        e("v_mov_b32 v49, v4")
        e(f"v_perm_b32 v50, v5, v4, {sBt}")
        e("v_mov_b32 v51, 0")
        for k in range(3):
            e(f"v_cndmask_b32 v{48 + k}, v{48 + k}, 0, {sHI}")
        e(f"s_lshl_b32 {sA}, {sFG}, 2")
        e(f"s_add_u32 {sA}, {sA}, {sW}")
        e(f"s_lshl_b32 {sA}, {sA}, 10")
        e(f"s_add_u32 {sA}, {sA}, {WS_XA}")
        e(f"buffer_store_dwordx4 v[48:51], {vL16}, {srd(SRD_WS)}, {sA} offen sc1")
        e(f"s_lshl_b32 {sA}, {sFG}, 5")
        e(f"s_add_u32 {sA}, {sA}, {sW}")
        e(f"s_lshl_b32 {sA}, {sA}, 2")
        e(f"s_add_u32 {sA}, {sA}, {WS_FLXA}")
        self.publish(sA, "v7", local=False)
        self.stamp("bias")
        e("s_branch L_fin")

    def finish(self):
        e = self.e
        e("L_fin:")
        if self.o.get("amp"):
            k = self.ts_names.index(self.amp)
            e("s_cmp_lg_u32 s2, 44")
            e("s_cbranch_scc1 L_end")
            e(f"v_readlane_b32 s64, {vTS}, 0")
            e(f"v_readlane_b32 s65, {vTS}, {k}")
            e("s_sub_u32 s65, s65, s64")
            e("s_mul_i32 s65, s65, 4")
            e("s_min_u32 s65, s65, 40000")
            e("s_memrealtime s[66:67]")
            e("s_waitcnt lgkmcnt(0)")
            e("L_amp:")
            e("s_memrealtime s[68:69]")
            e("s_waitcnt lgkmcnt(0)")
            e("s_sub_u32 s68, s68, s66")
            e("s_cmp_lt_u32 s68, s65")
            e("s_cbranch_scc1 L_amp")
        elif self.ts:
            e("s_lshl_b32 s88, s2, 2")
            e(f"s_add_u32 s88, s88, {sW}")
            e("s_lshl_b32 s88, s88, 8")
            e(f"s_add_u32 s88, s88, {WS_TS}")
            e(f"v_lshlrev_b32 v4, 2, {vL}")
            e(f"buffer_store_dword {vTS}, v4, {srd(SRD_WS)}, s88 offen")
        e("L_end:")
        e("s_endpgm")

    def build(self):
        phases = [self.entry, self.front, self.p1, self.p2, self.p3, self.p45, self.spare, self.helper]
        for ph in phases:
            self.e(f"; ---- {ph.__name__}")
            ph()
            if self.stop_after == ph.__name__:
                break
        self.finish()
        body, nops = self.e.text()
        head = open(f"cdna_kernels/{NAME}.s.ref").read().split("; Override launch")[0]
        txt = head
        txt += f"; @launch grid=(256,1,1) block=(256,1,1) lds={LDS_BYTES}\n"
        txt += '.amdgcn_target "amdgcn-amd-amdhsa--gfx950"\n.text\n'
        txt += f".globl {NAME}_kernel\n.p2align 8\n.type {NAME}_kernel,@function\n{NAME}_kernel:\n"
        txt += body
        txt += '.section .rodata,"a"\n.p2align 6\n'
        txt += f".amdhsa_kernel {NAME}_kernel\n"
        txt += ("  .amdhsa_next_free_vgpr 512\n  .amdhsa_next_free_sgpr 102\n  .amdhsa_accum_offset 256\n"
                "  .amdhsa_group_segment_fixed_size 0\n  .amdhsa_kernarg_size 96\n  .amdhsa_user_sgpr_count 2\n"
                "  .amdhsa_user_sgpr_kernarg_segment_ptr 1\n  .amdhsa_system_sgpr_workgroup_id_x 1\n"
                "  .amdhsa_float_denorm_mode_32 3\n"
                ".end_amdhsa_kernel\n")
        return txt, nops


def parse_opts(args):
    o = {}
    for a in args:
        if a.endswith(".json"):
            import json
            o.update(json.load(open(a)))
            continue
        k, v = a.split("=")
        o[k] = int(v)
    return o


if __name__ == "__main__":
    out = sys.argv[1]
    o = parse_opts(sys.argv[2:])
    g = Gen(ts=bool(o.pop("ts", 0)), opts=o)
    txt, nops = g.build()
    open(out, "w").write(txt)
    if g.ts:
        open(out + ".ts", "w").write("\n".join(g.ts_names))
    print("written", out, "lines", txt.count("\n"), "nop pads", nops)
```
